```python
import torch

def _softmax(x, axis=-1):
    return torch.softmax(x, dim=axis)
def _gelu(x):
    return torch.nn.functional.gelu(x, approximate="tanh")
def _silu(x):
    return torch.nn.functional.silu(x)
def _sigmoid(x):
    return torch.sigmoid(x)
def _layernorm(x, axis=-1, eps=1e-5):
    m = x.mean(dim=axis, keepdim=True)
    v = x.var(dim=axis, keepdim=True, unbiased=False)
    return (x - m) / torch.sqrt(v + eps)
def _scatter_add(tgt, idx, src, axis=0):
    return tgt.clone().index_add_(axis, idx, src)
def _segment_sum(src, seg, n):
    out = torch.zeros((n,) + src.shape[1:], dtype=src.dtype)
    return out.index_add_(0, seg, src)
def _pad(x, pw):
    flat = tuple(v for pair in reversed(pw) for v in pair)
    return torch.nn.functional.pad(x, flat)

kernel_name = 'concat_heads__ssm_conv_h3__linear_attn_block__prompt'

def setup_inputs():

    _w = (lambda a: (lambda t: t.to(torch.bfloat16) if t.is_floating_point() else t)(torch.as_tensor(a)))
    def _A_setup():
        B, S, D = 1, 2048, 1024
        ks = 4
        return {
            "q": _w((lambda *s: torch.randn(*s, dtype=torch.bfloat16) * 0.05)(B, S, D)),
            "k": _w((lambda *s: torch.randn(*s, dtype=torch.bfloat16) * 0.4)(B, S, D)),
            "v": _w((lambda *s: torch.randn(*s, dtype=torch.bfloat16) * 0.4)(B, S, D)),
            "shift_k": _w((lambda *s: torch.randn(*s, dtype=torch.bfloat16) * 0.4)(D, ks) * 0.5),
            "ssm_k": _w((lambda *s: torch.randn(*s, dtype=torch.bfloat16) * 1.6)(D, S) * (1.0 / S ** 0.5)),
            "ssm_D": _w((lambda *s: torch.randn(*s, dtype=torch.bfloat16) * 0.4)(D)),
        }
    _A_in = _A_setup()

    def _B_setup():
        B, S, D = 1, 2048, 1024
        return {
            "x": _w((lambda *s: torch.randn(*s, dtype=torch.bfloat16) * 0.05)(B, S, D)),
            "wqkv": _w((lambda *s: torch.randn(*s, dtype=torch.bfloat16) * 0.8)(D, 3 * D)),
            "wo": _w((lambda *s: torch.randn(*s, dtype=torch.bfloat16) * 0.05)(D, D)),
        }
    _B_in = _B_setup()

    return {
        "A_q": _A_in["q"],
        "A_k": _A_in["k"],
        "A_v": _A_in["v"],
        "A_shift_k": _A_in["shift_k"],
        "A_ssm_k": _A_in["ssm_k"],
        "A_ssm_D": _A_in["ssm_D"],
        "B_x": _B_in["x"],
        "B_wqkv": _B_in["wqkv"],
        "B_wo": _B_in["wo"],
    }

def reference(A_q, A_k, A_v, A_shift_k, A_ssm_k, A_ssm_D, B_x, B_wqkv, B_wo):
    def _A_ref(q, k, v, shift_k, ssm_k, ssm_D):
        B, S, D = q.shape
        ks = shift_k.shape[-1]
        k_pad = _pad(k, ((0, 0), (ks - 1, 0), (0, 0)))
        k_shift = torch.zeros_like(k)
        for t in range(ks):
            k_shift = k_shift + k_pad[:, t:t + S, :] * shift_k[:, ks - 1 - t][None, None, :]
        kv = k_shift * v
        L = 2 * S
        kv_pad = _pad(kv, ((0, 0), (0, S), (0, 0)))
        kf_pad = _pad(ssm_k, ((0, 0), (0, S)))
        kv_f = (lambda x, axes=(-2,-1): torch.fft.rfft2(x.float(), dim=axes))(kv_pad[:, None, :, :], axes=(1, 2))
        kf_f = (lambda x, axes=(-2,-1): torch.fft.rfft2(x.float(), dim=axes))(kf_pad[:, None, :], axes=(1, 2))
        kf_f = (lambda x, *d: x.permute(*d))(kf_f, 1, 2, 0)
        y_f = kv_f * kf_f[None, :, :, :]
        y = (lambda x, s, axes=(-2,-1): torch.fft.irfft2(x, s=s, dim=axes).to(torch.bfloat16))(y_f, (1, L), axes=(1, 2))[:, 0, :S, :]
        y = y + kv * ssm_D[None, None, :]
        return q * y

    def _B_ref(x, wqkv, wo):
        B, S, D = x.shape
        H = 32; Dh = D // H
        qkv = (lambda x, *d: x.permute(*d))((x @ wqkv).reshape(B, S, 3, H, Dh), 2, 0, 3, 1, 4)
        q, k, v = qkv[0], qkv[1], qkv[2]
        phi = lambda t: torch.where(t > 0, t + 1, torch.exp(t)) + 1e-6
        pq, pk = phi(q), phi(k)
        kv = torch.einsum("bhsd,bhse->bhde", pk, v)
        z = torch.einsum("bhsd->bhd", pk)
        num = torch.einsum("bhqd,bhde->bhqe", pq, kv)
        den = torch.einsum("bhqd,bhd->bhq", pq, z)[..., None] + 1e-6
        o = num / den
        return (lambda x, *d: x.permute(*d))(o, 0, 2, 1, 3).reshape(B, S, D) @ wo

    a = _A_ref(A_q, A_k, A_v, A_shift_k, A_ssm_k, A_ssm_D)
    b = _B_ref(B_x, B_wqkv, B_wo)
    return torch.concatenate([a, b], axis=-1)
```

```python
class G:
    def __init__(s):
        s.L = []
        s.vmq = 0
        s.vmdone = 0
        s.lq = []
        s.ldone = 0
        s.uid = 0
    def e(s, x):
        for ln in x.split("\n"):
            ln = ln.strip()
            if ln: s.L.append("  " + ln)
    def lab(s, x): s.L.append(x + ":")
    def c(s, x): s.L.append("  ; " + x)
    def text(s): return "\n".join(s.L) + "\n"
    def newlabel(s, p="L"):
        s.uid += 1
        return f"{p}_{s.uid}"
    def vm_reset(s): s.vmq = 0; s.vmdone = 0
    def vm(s, x):
        s.e(x); s.vmq += 1
        return s.vmq - 1
    def vm_wait(s, idx):
        if idx < s.vmdone: return
        n = s.vmq - 1 - idx
        n = min(n, 63)
        s.e(f"s_waitcnt vmcnt({n})")
        s.vmdone = s.vmq - n
    def vm_wait_all(s):
        s.e("s_waitcnt vmcnt(0)"); s.vmdone = s.vmq
    def lg_reset(s, tags=()):
        s.lq = list(tags); s.ldone = 0
    def lg(s, x, tag):
        s.e(x); s.lq.append(tag)
    def lg_need(s, *tags):
        idx = -1
        for t in tags:
            i = len(s.lq) - 1 - s.lq[::-1].index(t)
            idx = max(idx, i)
        if idx < s.ldone: return
        n = len(s.lq) - 1 - idx
        assert n <= 15
        s.e(f"s_waitcnt lgkmcnt({n})")
        s.ldone = idx + 1
    def lg_all(s):
        s.e("s_waitcnt lgkmcnt(0)"); s.ldone = len(s.lq)
    def lg_out(s): return len(s.lq) - s.ldone

def vr(b, n=1):
    return f"v{b}" if n == 1 else f"v[{b}:{b+n-1}]"
def sr(b, n=1):
    return f"s{b}" if n == 1 else f"s[{b}:{b+n-1}]"

def kdesc(name, vgpr, sgpr=102):
    acc = min(256, (vgpr + 3)//4*4)
    return f""".section .rodata,"a"
.p2align 6
.amdhsa_kernel {name}
  .amdhsa_next_free_vgpr {vgpr}
  .amdhsa_next_free_sgpr {sgpr}
  .amdhsa_accum_offset {acc}
  .amdhsa_group_segment_fixed_size 0
  .amdhsa_kernarg_size 96
  .amdhsa_user_sgpr_count 2
  .amdhsa_user_sgpr_kernarg_segment_ptr 1
  .amdhsa_system_sgpr_workgroup_id_x 1
.end_amdhsa_kernel
.text
"""
def khead(name):
    return f""".globl {name}
.p2align 8
.type {name},@function
{name}:
"""
```

```python
import sys
from dsl import *
WS_XR  = 0x0
XR_STRIDE = 4224
WS_YT  = 0x500000
WS_PQ  = 0x900000
WS_O   = 0xD00000
WS_KVP = 0x1100000
WS_SIZE = 0x1400000
LOG2E = 0x3fb8aa3b
EPS   = 0x358637bd
NB_SD = 2048*1024*2

def srd(g, base, koff, nbytes):
    g.e(f"s_load_dwordx2 s[{base}:{base+1}], s[0:1], {koff}")
    g.e(f"s_mov_b32 s{base+2}, {nbytes}")
    g.e(f"s_mov_b32 s{base+3}, 0x20000")

def decode_wg(g, s_rb, s_hp, s_wave, t0, t1, vlane):
    g.e(f"""
    v_lshrrev_b32 v1, 6, v0
    s_and_b32 s{t0}, s2, 7
    s_lshr_b32 s{t1}, s2, 3
    s_and_b32 s{s_rb}, s{t0}, 1
    s_lshl_b32 s{s_rb}, s{s_rb}, 3
    v_readfirstlane_b32 s{s_wave}, v1
    s_lshr_b32 s{t0}, s{t0}, 1
    s_lshl_b32 s{s_hp}, s{t0}, 2
    s_and_b32 s{t0}, s{t1}, 7
    s_or_b32 s{s_rb}, s{s_rb}, s{t0}
    s_lshr_b32 s{t0}, s{t1}, 3
    s_or_b32 s{s_hp}, s{s_hp}, s{t0}
    v_and_b32 v{vlane}, 63, v0
    """)

def phi_pairs(g, regs, tmp, s_log2e, s_eps, outs):
    n = len(regs)
    for i in range(0, n, 2):
        a, b = regs[i], regs[i+1]
        ta, tb = tmp, tmp + 2
        g.e(f"v_pk_mul_f32 v[{ta}:{ta+1}], v[{a}:{a+1}], s[{s_log2e}:{s_log2e+1}]")
        g.e(f"v_pk_mul_f32 v[{tb}:{tb+1}], v[{b}:{b+1}], s[{s_log2e}:{s_log2e+1}]")
        g.e(f"v_exp_f32_e64 v{ta}, v{ta} clamp")
        g.e(f"v_exp_f32_e64 v{ta+1}, v{ta+1} clamp")
        g.e(f"v_exp_f32_e64 v{tb}, v{tb} clamp")
        g.e(f"v_exp_f32_e64 v{tb+1}, v{tb+1} clamp")
        g.e(f"v_max_f32 v{a}, 0, v{a}")
        g.e(f"v_max_f32 v{a+1}, 0, v{a+1}")
        g.e(f"v_max_f32 v{b}, 0, v{b}")
        g.e(f"v_max_f32 v{b+1}, 0, v{b+1}")
        g.e(f"v_pk_add_f32 v[{a}:{a+1}], v[{a}:{a+1}], v[{ta}:{ta+1}]")
        g.e(f"v_pk_add_f32 v[{b}:{b+1}], v[{b}:{b+1}], v[{tb}:{tb+1}]")
        g.e(f"v_pk_add_f32 v[{a}:{a+1}], v[{a}:{a+1}], s[{s_eps}:{s_eps+1}]")
        g.e(f"v_pk_add_f32 v[{b}:{b+1}], v[{b}:{b+1}], s[{s_eps}:{s_eps+1}]")
        g.e(f"v_cvt_pk_bf16_f32 v{outs[i]}, v{a}, v{a+1}")
        g.e(f"v_cvt_pk_bf16_f32 v{outs[i+1]}, v{b}, v{b+1}")

def gen_k1(name):
    g = G()
    g.L.append(khead(name))
    S_X, S_W, S_WS, S_K, S_V, S_SK = 4, 8, 12, 16, 20, 24
    s_rb, s_hp, s_wave = 28, 29, 30
    l = 192
    g.e(f"s_cmp_ge_u32 s2, 256")
    g.e(f"s_cbranch_scc1 {name}_end")
    srd(g, S_X, 48, NB_SD)
    srd(g, S_W, 56, 1024*3072*2)
    srd(g, S_WS, 88, WS_SIZE)
    srd(g, S_K, 8, NB_SD)
    srd(g, S_V, 16, NB_SD)
    srd(g, S_SK, 24, 1024*4*2)
    decode_wg(g, s_rb, s_hp, s_wave, 31, 32, l)
    g.e("s_waitcnt lgkmcnt(0)")
    g.e(f"s_cmp_ge_u32 s{s_wave}, 4")
    g.e(f"s_cbranch_scc1 {name}_helper")

    ACCQ = [0, 16]; ACCK = [32, 48]; ACCV = [64, 80]
    P = [96, 116]
    vA = [136, 137, 138, 139]; vB = 140
    T = 150
    s_wm, s_wn = 33, 34
    g.e(f"""
    s_lshr_b32 s{s_wm}, s{s_wave}, 1
    s_and_b32 s{s_wn}, s{s_wave}, 1
    v_and_b32 v{T}, 31, v{l}
    s_lshl_b32 s35, s{s_wm}, 6
    v_add_u32 v{T}, s35, v{T}
    v_lshlrev_b32 v{T}, 7, v{T}
    v_lshrrev_b32 v{T+1}, 1, v{l}
    v_and_b32 v{T+1}, 7, v{T+1}
    v_lshrrev_b32 v{T+2}, 5, v{l}
    v_xor_b32 v{T+1}, v{T+1}, v{T+2}
    """)
    for j in range(4):
        g.e(f"v_xor_b32 v{T+3}, {2*j}, v{T+1}")
        g.e(f"v_lshl_add_u32 v{vA[j]}, v{T+3}, 4, v{T}")
    g.e(f"""
    v_lshrrev_b32 v{T}, 5, v{l}
    v_lshlrev_b32 v{T}, 3, v{T}
    v_and_b32 v{T+1}, 15, v{l}
    v_lshrrev_b32 v{T+1}, 2, v{T+1}
    v_add_u32 v{T}, v{T}, v{T+1}
    v_lshlrev_b32 v{T}, 7, v{T}
    v_lshrrev_b32 v{T+1}, 4, v{l}
    v_and_b32 v{T+1}, 1, v{T+1}
    v_lshlrev_b32 v{T+1}, 1, v{T+1}
    v_and_b32 v{T+2}, 3, v{l}
    v_lshrrev_b32 v{T+2}, 1, v{T+2}
    v_add_u32 v{T+1}, v{T+1}, v{T+2}
    s_lshl_b32 s35, s{s_wn}, 2
    v_add_u32 v{T+1}, s35, v{T+1}
    v_lshrrev_b32 v{T+2}, 3, v{l}
    v_and_b32 v{T+2}, 1, v{T+2}
    v_lshlrev_b32 v{T+2}, 2, v{T+2}
    v_xor_b32 v{T+1}, v{T+1}, v{T+2}
    v_lshl_add_u32 v{T}, v{T+1}, 4, v{T}
    v_and_b32 v{T+1}, 1, v{l}
    v_lshl_add_u32 v{T}, v{T+1}, 3, v{T}
    v_add_u32 v{vB}, 49152, v{T}
    """)
    for r in range(96):
        g.e(f"v_mov_b32 v{r}, 0")
    g.e("""
    s_mov_b32 s40, 16384
    s_mov_b32 s41, -32768
    s_mov_b32 s42, 24576
    s_mov_b32 s43, -49152
    s_mov_b32 s36, 0
    s_mov_b32 s37, 16
    s_setprio 2
    """)
    def reads(setb, j):
        A0, A1, Bq, Bk, Bv = setb, setb+4, setb+8, setb+12, setb+16
        def tr(dst, sec, q):
            return f"ds_read_b64_tr_b16 v[{dst+2*q}:{dst+2*q+1}], v{vB} offset:{sec*8192 + j*2048 + q*512}"
        return [
            (f"ds_read_b128 v[{A0}:{A0+3}], v{vA[j]} offset:0", f"A0_{setb}"),
            (tr(Bq, 0, 0), f"Bqa_{setb}"),
            (tr(Bq, 0, 1), f"Bq_{setb}"),
            (f"ds_read_b128 v[{A1}:{A1+3}], v{vA[j]} offset:4096", f"A1_{setb}"),
            (tr(Bk, 1, 0), f"Bka_{setb}"),
            (tr(Bk, 1, 1), f"Bk_{setb}"),
            (tr(Bv, 2, 0), f"Bva_{setb}"),
            (tr(Bv, 2, 1), f"Bv_{setb}"),
        ]
    def mfmas(setb):
        A0, A1, Bq, Bk, Bv = setb, setb+4, setb+8, setb+12, setb+16
        def m(acc, a, b): return f"v_mfma_f32_32x32x16_bf16 v[{acc}:{acc+15}], v[{a}:{a+3}], v[{b}:{b+3}], v[{acc}:{acc+15}]"
        return [
            (m(ACCQ[0], Bq, A0), [f"A0_{setb}", f"Bq_{setb}"]),
            (m(ACCQ[1], Bq, A1), [f"A1_{setb}"]),
            (m(ACCK[0], A0, Bk), [f"Bk_{setb}"]),
            (m(ACCK[1], A1, Bk), []),
            (m(ACCV[0], A0, Bv), [f"Bv_{setb}"]),
            (m(ACCV[1], A1, Bv), []),
        ]
    g.e("s_barrier")
    g.lg_reset()
    for asm, tag in reads(P[0], 0): g.lg(asm, tag)
    g.lab(f"{name}_loop")
    g.lg_reset([t for _, t in reads(P[0], 0)])
    for j in range(4):
        cur, nxt = P[j & 1], P[(j + 1) & 1]
        M = mfmas(cur)
        if j < 3:
            R = reads(nxt, j + 1)
            sched = [2, 2, 2, 2, 0, 0]
            ri = 0
            for mi, (asm, needs) in enumerate(M):
                if needs: g.lg_need(*needs)
                g.e(asm)
                for _ in range(sched[mi]):
                    g.lg(*R[ri]); ri += 1
        else:
            R = reads(nxt, 0)
            for mi in range(2):
                asm, needs = M[mi]
                if needs: g.lg_need(*needs)
                g.e(asm)
            g.e("""
            s_add_u32 s38, s36, 1
            s_cmp_eq_u32 s36, 2
            s_cselect_b32 s36, 0, s38
            s_cselect_b32 s38, s41, s40
            s_cselect_b32 s39, s43, s42
            """)
            for jj in range(4): g.e(f"v_add_u32 v{vA[jj]}, s38, v{vA[jj]}")
            g.e(f"v_add_u32 v{vB}, s39, v{vB}")
            g.lg_all()
            g.e("s_barrier")
            ri = 0
            for mi in range(2, 6):
                asm, needs = M[mi]
                if needs: g.lg_need(*needs)
                g.e(asm)
                for _ in range(2):
                    g.lg(*R[ri]); ri += 1
    g.e("s_sub_u32 s37, s37, 1")
    g.e("s_cmp_lg_u32 s37, 0")
    g.e(f"s_cbranch_scc1 {name}_loop")
    g.e("s_waitcnt lgkmcnt(0)")
    g.e("s_setprio 0")
    PK, VF, ONES, PQ, TMP, TA = 96, 112, 128, 132, 148, 152
    s_l2e, s_eps = 44, 46
    g.e(f"""
    s_mov_b32 s{s_l2e}, {LOG2E}
    s_mov_b32 s{s_l2e+1}, {LOG2E}
    s_mov_b32 s{s_eps}, {EPS}
    s_mov_b32 s{s_eps+1}, {EPS}
    v_mov_b32 v{ONES}, 0x3f803f80
    v_mov_b32 v{ONES+1}, 0x3f803f80
    v_mov_b32 v{ONES+2}, 0x3f803f80
    v_mov_b32 v{ONES+3}, 0x3f803f80
    s_nop 7
    """)
    regs = [ACCK[mt] + r for mt in range(2) for r in range(0, 16, 2)]
    outs = [PK + mt*8 + r//2 for mt in range(2) for r in range(0, 16, 2)]
    phi_pairs(g, regs, TMP, s_l2e, s_eps, outs)
    for mt in range(2):
        for r in range(0, 16, 2):
            g.e(f"v_cvt_pk_bf16_f32 v{VF + mt*8 + r//2}, v{ACCV[mt]+r}, v{ACCV[mt]+r+1}")
    KV, Z = 64, 80
    g.e("s_nop 1")
    first = True
    for mt in range(2):
        for q2 in range(2):
            a = PK + mt*8 + q2*4; b = VF + mt*8 + q2*4
            c = "0" if first else f"v[{KV}:{KV+15}]"
            g.e(f"v_mfma_f32_32x32x16_bf16 v[{KV}:{KV+15}], v[{a}:{a+3}], v[{b}:{b+3}], {c}")
            c = "0" if first else f"v[{Z}:{Z+15}]"
            g.e(f"v_mfma_f32_32x32x16_bf16 v[{Z}:{Z+15}], v[{a}:{a+3}], v[{ONES}:{ONES+3}], {c}")
            first = False
    regs = [ACCQ[mt] + r for mt in range(2) for r in range(0, 16, 2)]
    outs = [PQ + mt*8 + r//2 for mt in range(2) for r in range(0, 16, 2)]
    phi_pairs(g, regs, TMP, s_l2e, s_eps, outs)
    g.e(f"""
    s_lshl_b32 s35, s{s_rb}, 4
    s_add_u32 s35, s35, s{s_hp}
    s_lshl_b32 s35, s35, 2
    s_add_u32 s35, s35, s{s_wave}
    s_lshl_b32 s35, s35, 12
    s_add_u32 s35, s35, {WS_PQ}
    v_lshlrev_b32 v{TA}, 4, v{l}
    """)
    for i in range(4):
        g.e(f"buffer_store_dwordx4 v[{PQ+4*i}:{PQ+4*i+3}], v{TA}, s[{S_WS}:{S_WS+3}], s35 offen offset:{i*1024}")
    g.e(f"""
    s_lshl_b32 s38, s{s_wn}, 13
    v_add_u32 v{TA+1}, s38, v{TA}
    s_cmp_eq_u32 s{s_wm}, 0
    s_cbranch_scc1 {name}_red0
    """)
    for q in range(4):
        g.e(f"ds_write_b128 v{TA+1}, v[{KV+4*q}:{KV+4*q+3}] offset:{q*1024}")
    for q in range(4):
        g.e(f"ds_write_b128 v{TA+1}, v[{Z+4*q}:{Z+4*q+3}] offset:{4096+q*1024}")
    g.e("s_waitcnt lgkmcnt(0)")
    g.e("s_barrier")
    g.e("s_waitcnt vmcnt(0)")
    g.e("s_endpgm")
    g.lab(f"{name}_red0")
    g.e("s_barrier")
    for q in range(4):
        g.e(f"ds_read_b128 v[{0+4*q}:{0+4*q+3}], v{TA+1} offset:{q*1024}")
    for q in range(4):
        g.e(f"ds_read_b128 v[{16+4*q}:{16+4*q+3}], v{TA+1} offset:{4096+q*1024}")
    g.e("s_waitcnt lgkmcnt(0)")
    for r in range(0, 16, 2):
        g.e(f"v_pk_add_f32 v[{KV+r}:{KV+r+1}], v[{KV+r}:{KV+r+1}], v[{r}:{r+1}]")
    for r in range(0, 16, 2):
        g.e(f"v_pk_add_f32 v[{Z+r}:{Z+r+1}], v[{Z+r}:{Z+r+1}], v[{16+r}:{16+r+1}]")
    g.e(f"""
    s_lshl_b32 s35, s{s_hp}, 4
    s_add_u32 s35, s35, s{s_rb}
    s_lshl_b32 s35, s35, 1
    s_add_u32 s35, s35, s{s_wn}
    s_mul_i32 s35, s35, 4224
    s_add_u32 s35, s35, {WS_KVP}
    """)
    for q in range(4):
        g.e(f"buffer_store_dwordx4 v[{KV+4*q}:{KV+4*q+3}], v{TA}, s[{S_WS}:{S_WS+3}], s35 offen offset:{q*1024}")
    g.e(f"""
    v_lshrrev_b32 v{TA+2}, 5, v{l}
    v_lshlrev_b32 v{TA+2}, 5, v{TA+2}
    v_add_u32 v{TA+2}, 4096, v{TA+2}
    v_and_b32 v{TA+3}, 31, v{l}
    v_cmp_eq_u32 vcc, 0, v{TA+3}
    s_and_saveexec_b64 s[48:49], vcc
    """)
    for q in range(4):
        off = (q >> 1)*64 + (q & 1)*16
        g.e(f"buffer_store_dwordx4 v[{Z+4*q}:{Z+4*q+3}], v{TA+2}, s[{S_WS}:{S_WS+3}], s35 offen offset:{off}")
    g.e("s_waitcnt vmcnt(0)")
    g.e("s_endpgm")

    g.lab(f"{name}_helper")
    s_hw = 33
    vOA = [2, 3, 4, 5]; vOB = [[6, 7, 8], [9, 10, 11]]
    T = 12
    g.e(f"""
    s_sub_u32 s{s_hw}, s{s_wave}, 4
    v_lshrrev_b32 v{T}, 3, v{l}
    s_lshl_b32 s35, s{s_rb}, 7
    s_lshl_b32 s38, s{s_hw}, 5
    s_add_u32 s35, s35, s38
    v_add_u32 v{T+1}, s35, v{T}
    v_lshlrev_b32 v{T+1}, 11, v{T+1}
    v_lshrrev_b32 v{T+2}, 4, v{l}
    v_and_b32 v{T+3}, 7, v{l}
    """)
    for t in range(4):
        g.e(f"v_add_u32 v{T+4}, {4*t}, v{T+2}")
        g.e(f"v_and_b32 v{T+4}, 7, v{T+4}")
        g.e(f"v_xor_b32 v{T+4}, v{T+4}, v{T+3}")
        g.e(f"v_lshl_add_u32 v{T+4}, v{T+4}, 4, v{T+1}")
        g.e(f"v_add_u32 v{vOA[t]}, {t*8*2048}, v{T+4}")
    g.e(f"""
    s_lshl_b32 s35, s{s_hw}, 4
    v_add_u32 v{T+1}, s35, v{T}
    s_movk_i32 s38, 6144
    v_mul_lo_u32 v{T+1}, v{T+1}, s38
    v_and_b32 v{T+2}, 1, v{T+2}
    v_lshlrev_b32 v{T+2}, 2, v{T+2}
    v_xor_b32 v{T+2}, v{T+2}, v{T+3}
    v_lshl_add_u32 v{T+1}, v{T+2}, 4, v{T+1}
    s_lshl_b32 s35, s{s_hp}, 7
    v_add_u32 v{T+1}, s35, v{T+1}
    """)
    for b2 in range(2):
        for sec in range(3):
            g.e(f"v_add_u32 v{vOB[b2][sec]}, {b2*8*6144 + sec*2048}, v{T+1}")
    s_hwA, s_hwB, s_oA, s_oB = 40, 41, 42, 43
    g.e(f"s_lshl_b32 s{s_hwA}, s{s_hw}, 12")
    g.e(f"s_lshl_b32 s{s_hwB}, s{s_hw}, 11")
    g.vm_reset()
    def issue_stage(st):
        slot = st % 3
        g.e(f"s_mov_b32 s{s_oA}, {st*128}")
        g.e(f"s_mov_b32 s{s_oB}, {st*64*6144}")
        last = None
        for t in range(4):
            g.e(f"s_add_u32 m0, s{s_hwA}, {slot*16384 + t*1024}")
            g.e("s_nop 0")
            last = g.vm(f"buffer_load_dwordx4 v{vOA[t]}, s[{S_X}:{S_X+3}], s{s_oA} offen lds")
        for b2 in range(2):
            for sec in range(3):
                g.e(f"s_add_u32 m0, s{s_hwB}, {49152 + slot*24576 + sec*8192 + b2*1024}")
                g.e("s_nop 0")
                last = g.vm(f"buffer_load_dwordx4 v{vOB[b2][sec]}, s[{S_W}:{S_W+3}], s{s_oB} offen lds")
        return last
    st_last = {}
    st_last[0] = issue_stage(0)
    st_last[1] = issue_stage(1)
    vCol, vS0, vKb = 20, 21, 22
    vNeg = [23, 24, 25]
    KR = 32
    VR = 54
    WR = 70
    g.e(f"""
    v_and_b32 v{vCol}, 15, v{l}
    v_lshlrev_b32 v{vCol}, 3, v{vCol}
    s_lshl_b32 s35, s{s_hp}, 7
    v_add_u32 v{vCol}, s35, v{vCol}
    v_lshrrev_b32 v{vS0}, 4, v{l}
    s_lshl_b32 s35, s{s_hw}, 2
    v_add_u32 v{vS0}, s35, v{vS0}
    v_lshlrev_b32 v{vS0}, 3, v{vS0}
    s_lshl_b32 s35, s{s_rb}, 7
    v_add_u32 v{vS0}, s35, v{vS0}
    v_lshl_add_u32 v{vKb}, v{vS0}, 11, v{vCol}
    v_mov_b32 v26, 0x80000000
    v_cmp_eq_u32 vcc, 0, v{vS0}
    """)
    for i in range(3):
        g.e(f"v_subrev_u32 v{vNeg[i]}, {(3-i)*2048}, v{vKb}")
    for i in range(3):
        g.e(f"v_cndmask_b32 v{vNeg[i]}, v{vNeg[i]}, v26, vcc")
    for m in range(1, 4):
        g.e(f"s_mov_b32 s{44+m}, {m*4096}")
    def soff(row): return "0" if row < 2 else f"s{44 + row//2}"
    pl = None
    for i in range(3):
        pl = g.vm(f"buffer_load_dwordx2 v[{KR+2*i}:{KR+2*i+1}], v{vNeg[i]}, s[{S_K}:{S_K+3}], 0 offen")
    for r in range(8):
        pl = g.vm(f"buffer_load_dwordx2 v[{KR+6+2*r}:{KR+6+2*r+1}], v{vKb}, s[{S_K}:{S_K+3}], {soff(r)} offen offset:{(r&1)*2048}")
    for r in range(8):
        pl = g.vm(f"buffer_load_dwordx2 v[{VR+2*r}:{VR+2*r+1}], v{vKb}, s[{S_V}:{S_V+3}], {soff(r)} offen offset:{(r&1)*2048}")
    g.e(f"v_lshlrev_b32 v27, 2, v{vCol}")
    pl = g.vm(f"buffer_load_dwordx4 v[{WR}:{WR+3}], v27, s[{S_SK}:{S_SK+3}], 0 offen")
    pl = g.vm(f"buffer_load_dwordx4 v[{WR+4}:{WR+7}], v27, s[{S_SK}:{S_SK+3}], 0 offen offset:16")
    pre_last = pl
    KF = 80
    WF = 124
    XO = 140
    VF = 172
    OUT = 176
    def unpack2(dst, src):
        g.e(f"v_lshlrev_b32 v{dst}, 16, v{src}")
        g.e(f"v_and_b32 v{dst+1}, 0xffff0000, v{src}")
        g.e(f"v_lshlrev_b32 v{dst+2}, 16, v{src+1}")
        g.e(f"v_and_b32 v{dst+3}, 0xffff0000, v{src+1}")
    slices = []
    def sl_unpack_w():
        for c in range(4):
            g.e(f"v_lshlrev_b32 v{WF+0*4+c}, 16, v{WR+2*c}")
            g.e(f"v_and_b32 v{WF+1*4+c}, 0xffff0000, v{WR+2*c}")
            g.e(f"v_lshlrev_b32 v{WF+2*4+c}, 16, v{WR+2*c+1}")
            g.e(f"v_and_b32 v{WF+3*4+c}, 0xffff0000, v{WR+2*c+1}")
    def sl_unpack_k(a, b):
        for i in range(a, b): unpack2(KF+4*i, KR+2*i)
    def sl_fir(sa, sb):
        for s in range(sa, sb):
            for p in range(2):
                o = XO + 4*s + 2*p
                for j in range(4):
                    k = KF + 4*(s + 3 - j) + 2*p; w = WF + 4*j + 2*p
                    if j == 0: g.e(f"v_pk_mul_f32 v[{o}:{o+1}], v[{k}:{k+1}], v[{w}:{w+1}]")
                    else: g.e(f"v_pk_fma_f32 v[{o}:{o+1}], v[{k}:{k+1}], v[{w}:{w+1}], v[{o}:{o+1}]")
            unpack2(VF, VR+2*s)
            for p in range(2):
                o = XO + 4*s + 2*p
                g.e(f"v_pk_mul_f32 v[{o}:{o+1}], v[{o}:{o+1}], v[{VF+2*p}:{VF+2*p+1}]")
    def sl_store():
        for c in range(4):
            for m in range(4):
                g.e(f"v_cvt_pk_bf16_f32 v{OUT+4*c+m}, v{XO+4*(7-2*m)+c}, v{XO+4*(6-2*m)+c}")
        g.e(f"""
        v_lshrrev_b32 v28, 1, v{vCol}
        s_movk_i32 s35, {XR_STRIDE}
        v_mul_lo_u32 v28, v28, s35
        v_lshlrev_b32 v29, 1, v{vS0}
        v_sub_u32 v29, 4080, v29
        v_add_u32 v28, v28, v29
        """)
        for c in range(4):
            g.e(f"s_mov_b32 s35, {WS_XR + c*XR_STRIDE}")
            g.vm(f"buffer_store_dwordx4 v[{OUT+4*c}:{OUT+4*c+3}], v28, s[{S_WS}:{S_WS+3}], s35 offen")
        lab = g.newlabel("zp")
        g.e(f"""
        s_cmp_lg_u32 s{s_rb}, 0
        s_cbranch_scc1 {lab}
        s_lshl_b32 s35, s{s_hw}, 6
        v_add_u32 v28, s35, v{l}
        v_lshrrev_b32 v29, 2, v28
        s_lshl_b32 s35, s{s_hp}, 6
        v_add_u32 v29, s35, v29
        s_movk_i32 s35, {XR_STRIDE}
        v_mul_lo_u32 v29, v29, s35
        v_and_b32 v28, 3, v28
        v_lshl_add_u32 v29, v28, 5, v29
        v_mov_b32 v{OUT}, 0
        v_mov_b32 v{OUT+1}, 0
        v_mov_b32 v{OUT+2}, 0
        v_mov_b32 v{OUT+3}, 0
        s_mov_b32 s35, {WS_XR + 4096}
        s_nop 4
        buffer_store_dwordx4 v[{OUT}:{OUT+3}], v29, s[{S_WS}:{S_WS+3}], s35 offen
        buffer_store_dwordx4 v[{OUT}:{OUT+3}], v29, s[{S_WS}:{S_WS+3}], s35 offen offset:16
        s_waitcnt vmcnt(0)
        """)
        g.lab(lab)
    side = {
        1: [lambda: (g.vm_wait(pre_last), sl_unpack_w(), sl_unpack_k(0, 6))],
        2: [lambda: (sl_unpack_k(6, 11), sl_fir(0, 2))],
        3: [lambda: sl_fir(2, 5)],
        4: [lambda: sl_fir(5, 8)],
        5: [sl_store],
    }
    g.vm_wait(st_last[0])
    g.e("s_barrier")
    for t in range(16):
        if t + 2 <= 15: st_last[t+2] = issue_stage(t + 2)
        for f in side.get(t, []): f()
        if t + 1 <= 15: g.vm_wait(st_last[t+1])
        g.e("s_barrier")
    g.e("s_waitcnt vmcnt(0)")
    g.e("s_endpgm")
    g.lab(f"{name}_end")
    g.e("s_endpgm")
    return g.text() + kdesc(name, 200)

def gen_k2(name):
    g = G()
    g.L.append(khead(name))
    S_WS, S_H, S_D = 4, 8, 12
    s_rb, s_hp, s_wave = 28, 29, 30
    l = 200
    g.e(f"s_cmp_ge_u32 s2, 256")
    g.e(f"s_cbranch_scc1 {name}_end")
    srd(g, S_WS, 88, WS_SIZE)
    srd(g, S_H, 32, NB_SD)
    srd(g, S_D, 40, 2048)
    decode_wg(g, s_rb, s_hp, s_wave, 31, 32, l)
    g.e("s_waitcnt lgkmcnt(0)")
    g.e(f"s_cmp_ge_u32 s{s_wave}, 4")
    g.e(f"s_cbranch_scc1 {name}_ophase")
    LW = 12928
    s_ch, s_lb = 33, 34
    ACC = 0; S = [32, 96]; vA = list(range(160, 168)); vB = 168; T = 170
    g.e(f"""
    s_lshl_b32 s{s_ch}, s{s_hp}, 6
    s_lshl_b32 s35, s{s_rb}, 2
    s_add_u32 s{s_ch}, s{s_ch}, s35
    s_add_u32 s{s_ch}, s{s_ch}, s{s_wave}
    s_mul_i32 s{s_lb}, s{s_wave}, {LW}
    v_lshlrev_b32 v{T}, 4, v{l}
    v_add_u32 v{T+1}, 2, v{T}
    s_mul_i32 s36, s{s_ch}, {XR_STRIDE}
    s_add_u32 s36, s36, {WS_XR}
    s_lshl_b32 s37, s{s_ch}, 12
    s_lshl_b32 s38, s{s_ch}, 1
    v_mov_b32 v{T+2}, s38
    """)
    g.vm_reset()
    g.e(f"buffer_load_ushort v{T+3}, v{T+2}, s[{S_D}:{S_D+3}], 0 offen")
    g.e(f"s_add_u32 m0, s{s_lb}, {8320+480}")
    g.e("s_nop 0")
    for m in range(4):
        g.e(f"buffer_load_dwordx4 v{T}, s[{S_H}:{S_H+3}], s37 offen offset:{m*1024} lds")
    g.e(f"s_mov_b32 m0, s{s_lb}")
    g.e("s_nop 0")
    for m in range(4):
        g.e(f"buffer_load_dwordx4 v{T}, s[{S_WS}:{S_WS+3}], s36 offen offset:{m*1024} lds")
    g.e(f"s_add_u32 m0, s{s_lb}, 4160")
    g.e("s_nop 0")
    for m in range(4):
        g.e(f"buffer_load_dwordx4 v{T+1}, s[{S_WS}:{S_WS+3}], s36 offen offset:{m*1024} lds")
    g.e(f"""
    s_add_u32 s39, s36, 4096
    s_mov_b64 s[40:41], exec
    s_mov_b64 exec, 15
    s_add_u32 m0, s{s_lb}, 4096
    s_nop 0
    buffer_load_dwordx4 v{T}, s[{S_WS}:{S_WS+3}], s39 offen lds
    s_add_u32 m0, s{s_lb}, {4160+4096}
    s_nop 0
    buffer_load_dwordx4 v{T+1}, s[{S_WS}:{S_WS+3}], s39 offen lds
    s_mov_b64 exec, s[40:41]
    """)
    g.e(f"""
    v_mov_b32 v0, 0
    v_mov_b32 v1, 0
    v_mov_b32 v2, 0
    v_mov_b32 v3, 0
    s_add_u32 s39, s{s_lb}, 8320
    v_add_u32 v{T+4}, s39, v{T}
    v_cmp_gt_u32 vcc, 30, v{l}
    s_and_saveexec_b64 s[40:41], vcc
    ds_write_b128 v{T+4}, v[0:3]
    s_mov_b64 exec, s[40:41]
    """)
    g.e(f"""
    v_and_b32 v{T+5}, 15, v{l}
    v_lshrrev_b32 v{T+6}, 4, v{l}
    v_sub_u32 v{T+7}, 2031, v{T+5}
    v_and_b32 v{T+7}, -2, v{T+7}
    v_lshl_add_u32 v{T+7}, v{T+6}, 3, v{T+7}
    v_lshlrev_b32 v{T+7}, 1, v{T+7}
    v_and_b32 v{T+8}, 1, v{T+5}
    v_xor_b32 v{T+8}, 1, v{T+8}
    v_mul_u32_u24 v{T+8}, 4160, v{T+8}
    v_add_u32 v{T+7}, v{T+7}, v{T+8}
    v_add_u32 v{T+7}, s{s_lb}, v{T+7}
    """)
    for a in range(8):
        g.e(f"v_subrev_u32 v{vA[a]}, {512*a}, v{T+7}")
    g.e(f"""
    v_lshlrev_b32 v{vB}, 5, v{T+5}
    v_lshl_add_u32 v{vB}, v{T+6}, 4, v{vB}
    s_add_u32 s39, s{s_lb}, 8768
    v_add_u32 v{vB}, s39, v{vB}
    """)
    for r in range(32): g.e(f"v_mov_b32 v{ACC+r}, 0")
    g.e("s_waitcnt vmcnt(0)")
    g.e(f"""
    s_add_u32 s39, s{s_lb}, 8800
    v_mov_b32 v{T+4}, s39
    ds_read_u16 v{T+5}, v{T+4}
    v_lshlrev_b32 v{T+3}, 16, v{T+3}
    s_waitcnt lgkmcnt(0)
    v_lshlrev_b32 v{T+5}, 16, v{T+5}
    v_add_f32 v{T+5}, v{T+5}, v{T+3}
    v_cvt_pk_bf16_f32 v{T+5}, v{T+5}, v{T+5}
    ds_write_b16 v{T+4}, v{T+5}
    s_waitcnt lgkmcnt(0)
    """)
    def creads(sb):
        R = []
        seq = []
        for x in range(8):
            seq.append(("A", x)); seq.append(("B", x))
        for kind, x in seq:
            if kind == "A":
                d = sb + 4*x
                R.append((f"ds_read2_b32 v[{d}:{d+1}], v{vA[x]} offset0:0 offset1:1", f"A{x}a_{sb}"))
                R.append((f"ds_read2_b32 v[{d+2}:{d+3}], v{vA[x]} offset0:2 offset1:3", f"A{x}_{sb}"))
            else:
                d = sb + 32 + 4*x
                R.append((f"ds_read_b128 v[{d}:{d+3}], v{vB} offset:{512*x}", f"B{x}_{sb}"))
        return R
    def adv():
        for a in range(8): g.e(f"v_subrev_u32 v{vA[a]}, 64, v{vA[a]}")
        g.e(f"v_subrev_u32 v{vB}, 64, v{vB}")
    def cm(sb):
        M = []
        pairs = [(a, w) for a in range(8) for w in range(8) if a + w <= 7]
        pairs.sort(key=lambda p: (max(p), p[0]))
        for a, w in pairs:
            cb = a + w
            A = sb + 4*a; B = sb + 32 + 4*w; D = ACC + 4*cb
            M.append(f"v_mfma_f32_16x16x32_bf16 v[{D}:{D+3}], v[{A}:{A+3}], v[{B}:{B+3}], v[{D}:{D+3}]")
        return M
    R = creads(S[0])
    for i, (asm, tag) in enumerate(R):
        g.e(asm)
        if i == 11: g.e("s_waitcnt lgkmcnt(4)")
        if i == 19: g.e("s_waitcnt lgkmcnt(4)")
    adv()
    g.e("s_mov_b32 s37, 4")
    g.e("s_setprio 2")
    g.lab(f"{name}_cloop")
    for half in range(2):
        cur, nxt = S[half], S[1-half]
        g.e("s_waitcnt lgkmcnt(0)")
        M = cm(cur); R = creads(nxt)
        ri = 0
        for mi, asm in enumerate(M):
            g.e(asm)
            if mi < 32 and ri < 24 and (mi % 4 != 3):
                g.e(R[ri][0]); ri += 1
            if mi == 33:
                adv()
        assert ri == 24, ri
    g.e("s_sub_u32 s37, s37, 1")
    g.e("s_cmp_lg_u32 s37, 0")
    g.e(f"s_cbranch_scc1 {name}_cloop")
    g.e("s_setprio 0")
    g.e("s_waitcnt lgkmcnt(0)")
    g.e("s_nop 7")
    g.e(f"""
    v_and_b32 v{T+5}, 15, v{l}
    v_lshrrev_b32 v{T+6}, 4, v{l}
    v_lshlrev_b32 v{T+5}, 5, v{T+5}
    v_lshl_add_u32 v{T+5}, v{T+6}, 3, v{T+5}
    s_lshl_b32 s37, s{s_ch}, 12
    s_add_u32 s37, s37, {WS_YT}
    """)
    for cb in range(8):
        d = 32 + 2*cb
        g.e(f"v_cvt_pk_bf16_f32 v{d}, v{ACC+4*cb}, v{ACC+4*cb+1}")
        g.e(f"v_cvt_pk_bf16_f32 v{d+1}, v{ACC+4*cb+2}, v{ACC+4*cb+3}")
    for cb in range(8):
        d = 32 + 2*cb
        g.e(f"buffer_store_dwordx2 v[{d}:{d+1}], v{T+5}, s[{S_WS}:{S_WS+3}], s37 offen offset:{512*cb}")
    g.e("s_waitcnt vmcnt(0)")
    g.e("s_endpgm")

    g.lab(f"{name}_ophase")
    s_w4, s_wm, s_wn = 33, 34, 35
    PQ = 0
    KVS = 16
    BUF = [32, 96]
    T = 170
    g.e(f"""
    s_sub_u32 s{s_w4}, s{s_wave}, 4
    s_lshr_b32 s{s_wm}, s{s_w4}, 1
    s_and_b32 s{s_wn}, s{s_w4}, 1
    v_lshlrev_b32 v{T}, 4, v{l}
    s_lshl_b32 s36, s{s_rb}, 4
    s_add_u32 s36, s36, s{s_hp}
    s_lshl_b32 s36, s36, 2
    s_add_u32 s36, s36, s{s_w4}
    s_lshl_b32 s36, s36, 12
    s_add_u32 s36, s36, {WS_PQ}
    """)
    g.vm_reset()
    for i in range(4):
        pqi = g.vm(f"buffer_load_dwordx4 v[{PQ+4*i}:{PQ+4*i+3}], v{T}, s[{S_WS}:{S_WS+3}], s36 offen offset:{i*1024}")
    g.e(f"""
    s_lshl_b32 s37, s{s_hp}, 5
    s_add_u32 s37, s37, s{s_wn}
    s_mul_i32 s37, s37, 4224
    s_add_u32 s37, s37, {WS_KVP}
    v_and_b32 v{T+1}, 31, v{l}
    v_lshlrev_b32 v{T+1}, 2, v{T+1}
    v_add_u32 v{T+1}, 4096, v{T+1}
    """)
    ZB = 180
    for rbp in range(16):
        g.e(f"s_add_u32 s38, s37, {rbp*2*4224}")
        zi = g.vm(f"buffer_load_dword v{ZB+rbp}, v{T+1}, s[{S_WS}:{S_WS+3}], s38 offen")
    def load_batch(b):
        last = None
        for u in range(4):
            rbp = 4*b + u
            g.e(f"s_add_u32 s38, s37, {rbp*2*4224}")
            for q in range(4):
                d = BUF[b & 1] + 16*u + 4*q
                last = g.vm(f"buffer_load_dwordx4 v[{d}:{d+3}], v{T}, s[{S_WS}:{S_WS+3}], s38 offen offset:{q*1024}")
        return last
    bl = {}
    bl[0] = load_batch(0)
    bl[1] = load_batch(1)
    g.vm_wait(zi)
    for i in range(1, 16): g.e(f"v_add_f32 v{ZB}, v{ZB}, v{ZB+i}")
    g.e(f"v_cvt_pk_bf16_f32 v{ZB}, v{ZB}, v{ZB}")
    g.e(f"""
    s_lshl_b32 s38, s{s_w4}, 6
    s_add_u32 s38, s38, 52224
    v_and_b32 v{T+2}, 31, v{l}
    v_lshlrev_b32 v{T+2}, 1, v{T+2}
    v_add_u32 v{T+2}, s38, v{T+2}
    ds_write_b16 v{T+2}, v{ZB}
    v_lshrrev_b32 v{T+3}, 5, v{l}
    v_lshlrev_b32 v{T+3}, 4, v{T+3}
    v_add_u32 v{T+3}, s38, v{T+3}
    s_waitcnt lgkmcnt(0)
    ds_read_b128 v[{ZB+4}:{ZB+7}], v{T+3}
    ds_read_b128 v[{ZB+8}:{ZB+11}], v{T+3} offset:32
    """)
    for b in range(4):
        g.vm_wait(bl[b])
        for u in range(4):
            src = BUF[b & 1] + 16*u
            for r in range(0, 16, 2):
                if b == 0 and u == 0:
                    g.e(f"v_mov_b32 v{KVS+r}, v{src+r}")
                    g.e(f"v_mov_b32 v{KVS+r+1}, v{src+r+1}")
                else:
                    g.e(f"v_pk_add_f32 v[{KVS+r}:{KVS+r+1}], v[{KVS+r}:{KVS+r+1}], v[{src+r}:{src+r+1}]")
        if b + 2 < 4: bl[b+2] = load_batch(b + 2)
    KF = 32
    for r in range(0, 16, 2):
        g.e(f"v_cvt_pk_bf16_f32 v{KF + r//2}, v{KVS+r}, v{KVS+r+1}")
    g.vm_wait(pqi)
    g.e("s_waitcnt lgkmcnt(0)")
    g.e("s_nop 1")
    NUM = [48, 64]; DEN = [80, 96]
    for mt in range(2):
        for q2 in range(2):
            a = KF + 4*q2; z = ZB + 4 + 4*q2; b = PQ + mt*8 + q2*4
            c = "0" if q2 == 0 else f"v[{NUM[mt]}:{NUM[mt]+15}]"
            g.e(f"v_mfma_f32_32x32x16_bf16 v[{NUM[mt]}:{NUM[mt]+15}], v[{a}:{a+3}], v[{b}:{b+3}], {c}")
            c = "0" if q2 == 0 else f"v[{DEN[mt]}:{DEN[mt]+15}]"
            g.e(f"v_mfma_f32_32x32x16_bf16 v[{DEN[mt]}:{DEN[mt]+15}], v[{z}:{z+3}], v[{b}:{b+3}], {c}")
    g.e("s_nop 15")
    g.e(f"s_mov_b32 s40, {EPS}")
    for mt in range(2):
        g.e(f"v_add_f32 v{DEN[mt]}, s40, v{DEN[mt]}")
    for mt in range(2):
        g.e(f"v_rcp_f32 v{DEN[mt]}, v{DEN[mt]}")
    g.e("s_nop 1")
    OUT = 112
    for mt in range(2):
        for r in range(16):
            g.e(f"v_mul_f32 v{NUM[mt]+r}, v{NUM[mt]+r}, v{DEN[mt]}")
        for r in range(0, 16, 2):
            g.e(f"v_cvt_pk_bf16_f32 v{OUT + mt*8 + r//2}, v{NUM[mt]+r}, v{NUM[mt]+r+1}")
    g.e(f"""
    s_lshl_b32 s36, s{s_rb}, 18
    s_lshl_b32 s38, s{s_hp}, 1
    s_add_u32 s38, s38, s{s_wn}
    s_lshl_b32 s38, s38, 13
    s_add_u32 s36, s36, s38
    s_lshl_b32 s38, s{s_wm}, 10
    s_add_u32 s36, s36, s38
    s_add_u32 s36, s36, {WS_O}
    v_and_b32 v{T+1}, 31, v{l}
    v_lshlrev_b32 v{T+1}, 4, v{T+1}
    v_lshrrev_b32 v{T+2}, 5, v{l}
    v_lshl_add_u32 v{T+1}, v{T+2}, 11, v{T+1}
    """)
    for mt in range(2):
        for q2 in range(2):
            d = OUT + mt*8 + q2*4
            g.e(f"s_add_u32 s38, s36, {q2*4096 + mt*512}")
            g.e(f"buffer_store_dwordx4 v[{d}:{d+3}], v{T+1}, s[{S_WS}:{S_WS+3}], s38 offen")
    g.e("s_waitcnt vmcnt(0)")
    g.e("s_endpgm")
    g.lab(f"{name}_end")
    g.e("s_endpgm")
    return g.text() + kdesc(name, 208)

def gen_k3(name):
    g = G()
    g.L.append(khead(name))
    S_WS, S_WO, S_OUT, S_Q = 4, 8, 12, 16
    s_rb, s_hp, s_wave = 28, 29, 30
    l = 200
    g.e(f"s_cmp_ge_u32 s2, 256")
    g.e(f"s_cbranch_scc1 {name}_end")
    srd(g, S_WS, 88, WS_SIZE)
    srd(g, S_WO, 64, 1024*1024*2)
    srd(g, S_OUT, 72, 2048*2048*2)
    srd(g, S_Q, 0, NB_SD)
    decode_wg(g, s_rb, s_hp, s_wave, 31, 32, l)
    s_rb2, s_cb2 = 33, 34
    g.e(f"""
    s_and_b32 s{s_rb2}, s2, 7
    s_lshl_b32 s{s_rb2}, s{s_rb2}, 1
    s_lshr_b32 s35, s2, 3
    s_and_b32 s35, s35, 1
    s_or_b32 s{s_rb2}, s{s_rb2}, s35
    s_lshr_b32 s{s_cb2}, s2, 4
    """)
    g.e("s_waitcnt lgkmcnt(0)")
    T = 170
    g.e(f"""
    v_lshrrev_b32 v{T}, 3, v{l}
    s_lshl_b32 s35, s{s_wave}, 7
    v_add_u32 v{T}, s35, v{T}
    v_lshlrev_b32 v{T}, 11, v{T}
    v_lshrrev_b32 v{T+1}, 4, v{l}
    v_and_b32 v{T+1}, 1, v{T+1}
    v_lshlrev_b32 v{T+1}, 2, v{T+1}
    v_and_b32 v{T+2}, 7, v{l}
    v_xor_b32 v{T+1}, v{T+1}, v{T+2}
    v_lshl_add_u32 v{T}, v{T+1}, 4, v{T}
    s_lshl_b32 s35, s{s_cb2}, 7
    v_add_u32 v{T}, s35, v{T}
    s_lshl_b32 s36, s{s_wave}, 14
    """)
    g.vm_reset()
    for i in range(16):
        g.e(f"s_add_u32 m0, s36, {i*1024}")
        g.e(f"s_mov_b32 s37, {i*8*2048}")
        g.vm(f"buffer_load_dwordx4 v{T}, s[{S_WO}:{S_WO+3}], s37 offen lds")
    dma_last = g.vmq - 1
    g.e(f"s_cmp_ge_u32 s{s_wave}, 4")
    g.e(f"s_cbranch_scc1 {name}_post")
    ACC = [0, 16]; AR = 32
    BF = [96, 104]
    vAo = 112; vBn = [113, 114]
    g.e(f"""
    v_and_b32 v{vAo}, 31, v{l}
    v_lshlrev_b32 v{vAo}, 4, v{vAo}
    v_lshrrev_b32 v{T+1}, 5, v{l}
    v_lshl_add_u32 v{vAo}, v{T+1}, 11, v{vAo}
    s_lshl_b32 s38, s{s_rb2}, 18
    s_lshl_b32 s39, s{s_wave}, 9
    s_add_u32 s38, s38, s39
    s_add_u32 s38, s38, {WS_O}
    """)
    PF = 16
    aid = {}
    def aload(t_static_reg, soff):
        d = AR + 4*t_static_reg
        return g.vm(f"buffer_load_dwordx4 v[{d}:{d+3}], v{vAo}, s[{S_WS}:{S_WS+3}], {soff} offen")
    for t in range(PF):
        g.e(f"s_add_u32 s39, s38, {t*4096}")
        aload(t, "s39")
    g.e(f"""
    v_lshrrev_b32 v{T}, 5, v{l}
    v_lshlrev_b32 v{T}, 2, v{T}
    v_and_b32 v{T+1}, 15, v{l}
    v_lshrrev_b32 v{T+1}, 2, v{T+1}
    v_add_u32 v{T}, v{T}, v{T+1}
    v_lshlrev_b32 v{T}, 7, v{T}
    v_lshrrev_b32 v{T+1}, 4, v{l}
    v_and_b32 v{T+1}, 1, v{T+1}
    v_lshlrev_b32 v{T+1}, 1, v{T+1}
    v_and_b32 v{T+2}, 3, v{l}
    v_lshrrev_b32 v{T+2}, 1, v{T+2}
    v_add_u32 v{T+1}, v{T+1}, v{T+2}
    v_lshrrev_b32 v{T+2}, 3, v{l}
    v_and_b32 v{T+2}, 1, v{T+2}
    v_lshlrev_b32 v{T+2}, 2, v{T+2}
    v_xor_b32 v{T+1}, v{T+1}, v{T+2}
    v_and_b32 v{T+3}, 1, v{l}
    v_lshl_add_u32 v{T}, v{T+3}, 3, v{T}
    v_lshl_add_u32 v{vBn[0]}, v{T+1}, 4, v{T}
    v_xor_b32 v{T+1}, 4, v{T+1}
    v_lshl_add_u32 v{vBn[1]}, v{T+1}, 4, v{T}
    """)
    for r in range(32): g.e(f"v_mov_b32 v{r}, 0")
    g.vm_wait(dma_last)
    g.e("s_barrier")
    def breads(setb, t16):
        R = []
        for nt in range(2):
            for q in range(2):
                d = setb + 4*nt + 2*q
                R.append(f"ds_read_b64_tr_b16 v[{d}:{d+1}], v{vBn[nt]} offset:{2048*t16 + 1024*q}")
        return R
    for x in breads(BF[0], 0): g.e(x)
    g.e(f"s_add_u32 s38, s38, {PF*4096}")
    g.e("s_mov_b32 s37, 4")
    g.e("s_setprio 2")
    g.lab(f"{name}_gloop")
    for t in range(16):
        cur, nxt = BF[t & 1], BF[(t + 1) & 1]
        A = AR + 4*t
        g.e("s_waitcnt vmcnt(15) lgkmcnt(0)")
        if t == 15:
            g.e(f"v_add_u32 v{vBn[0]}, 32768, v{vBn[0]}")
            g.e(f"v_add_u32 v{vBn[1]}, 32768, v{vBn[1]}")
        R = breads(nxt, (t + 1) & 15)
        g.e(f"v_mfma_f32_32x32x16_bf16 v[{ACC[0]}:{ACC[0]+15}], v[{cur}:{cur+3}], v[{A}:{A+3}], v[{ACC[0]}:{ACC[0]+15}]")
        g.e(R[0]); g.e(R[1]); g.e(R[2]); g.e(R[3])
        g.e(f"v_mfma_f32_32x32x16_bf16 v[{ACC[1]}:{ACC[1]+15}], v[{cur+4}:{cur+7}], v[{A}:{A+3}], v[{ACC[1]}:{ACC[1]+15}]")
        g.e(f"s_add_u32 s39, s38, {t*4096}")
        g.e(f"buffer_load_dwordx4 v[{A}:{A+3}], v{vAo}, s[{S_WS}:{S_WS+3}], s39 offen")
    g.e(f"s_add_u32 s38, s38, {PF*4096}")
    g.e("s_sub_u32 s37, s37, 1")
    g.e("s_cmp_lg_u32 s37, 0")
    g.e(f"s_cbranch_scc1 {name}_gloop")
    g.e("s_setprio 0")
    g.e("s_waitcnt vmcnt(0) lgkmcnt(0)")
    g.e("s_nop 7")
    O = 32
    for nt in range(2):
        for r in range(0, 16, 2):
            g.e(f"v_cvt_pk_bf16_f32 v{O + nt*8 + r//2}, v{ACC[nt]+r}, v{ACC[nt]+r+1}")
    g.e("s_nop 1")
    for nt in range(2):
        for p in range(2):
            x = O + nt*8 + 4*p
            g.e(f"v_permlane32_swap_b32 v{x}, v{x+2}")
            g.e(f"v_permlane32_swap_b32 v{x+1}, v{x+3}")
    g.e(f"""
    v_and_b32 v{T}, 31, v{l}
    s_lshl_b32 s38, s{s_rb2}, 7
    s_lshl_b32 s39, s{s_wave}, 5
    s_add_u32 s38, s38, s39
    v_add_u32 v{T}, s38, v{T}
    v_lshlrev_b32 v{T}, 12, v{T}
    v_lshrrev_b32 v{T+1}, 5, v{l}
    v_lshl_add_u32 v{T}, v{T+1}, 4, v{T}
    s_lshl_b32 s38, s{s_cb2}, 7
    s_add_u32 s38, s38, 2048
    """)
    for nt in range(2):
        for p in range(2):
            x = O + nt*8 + 4*p
            g.e(f"buffer_store_dwordx4 v[{x}:{x+3}], v{T}, s[{S_OUT}:{S_OUT+3}], s38 offen offset:{nt*64 + p*32}")
    g.e("s_waitcnt vmcnt(0)")
    g.e("s_endpgm")

    g.lab(f"{name}_post")
    g.vm_wait(dma_last)
    g.e("s_barrier")
    g.e(f"s_cmp_ge_u32 s{s_wave}, 6")
    g.e(f"s_cbranch_scc1 {name}_end")
    Y = 0; Q = 32; F = 64; OUT = 140
    g.e(f"""
    v_and_b32 v{T}, 7, v{l}
    v_lshrrev_b32 v{T+1}, 3, v{l}
    s_sub_u32 s35, s{s_wave}, 4
    s_lshl_b32 s35, s35, 3
    v_add_u32 v{T+1}, s35, v{T+1}
    v_lshlrev_b32 v{T+1}, 3, v{T+1}
    s_lshl_b32 s35, s{s_rb}, 7
    v_add_u32 v{T+1}, s35, v{T+1}
    v_lshlrev_b32 v{T+2}, 3, v{T}
    s_lshl_b32 s35, s{s_hp}, 6
    v_add_u32 v{T+2}, s35, v{T+2}
    v_lshlrev_b32 v{T+3}, 12, v{T+2}
    v_lshl_add_u32 v{T+3}, v{T+1}, 1, v{T+3}
    v_lshlrev_b32 v{T+4}, 11, v{T+1}
    v_lshl_add_u32 v{T+4}, v{T+2}, 1, v{T+4}
    v_lshlrev_b32 v{T+5}, 12, v{T+1}
    v_lshl_add_u32 v{T+5}, v{T+2}, 1, v{T+5}
    """)
    for j in range(8):
        g.e(f"s_mov_b32 s35, {WS_YT + j*4096}")
        g.e(f"buffer_load_dwordx4 v[{Y+4*j}:{Y+4*j+3}], v{T+3}, s[{S_WS}:{S_WS+3}], s35 offen")
    for i in range(8):
        g.e(f"s_mov_b32 s35, {i*2048}")
        g.e(f"buffer_load_dwordx4 v[{Q+4*i}:{Q+4*i+3}], v{T+4}, s[{S_Q}:{S_Q+3}], s35 offen")
    g.e("s_waitcnt vmcnt(0)")
    for i in range(8):
        for m in range(4):
            a, b, c, d = F, F+1, F+2, F+3
            qd = Q + 4*i + m
            y0 = Y + 4*(2*m) + i//2; y1 = Y + 4*(2*m+1) + i//2
            g.e(f"v_lshlrev_b32 v{a}, 16, v{qd}")
            g.e(f"v_and_b32 v{b}, 0xffff0000, v{qd}")
            if i % 2 == 0:
                g.e(f"v_lshlrev_b32 v{c}, 16, v{y0}")
                g.e(f"v_lshlrev_b32 v{d}, 16, v{y1}")
            else:
                g.e(f"v_and_b32 v{c}, 0xffff0000, v{y0}")
                g.e(f"v_and_b32 v{d}, 0xffff0000, v{y1}")
            g.e(f"v_pk_mul_f32 v[{a}:{b}], v[{a}:{b}], v[{c}:{d}]")
            g.e(f"v_cvt_pk_bf16_f32 v{OUT+4*i+m}, v{a}, v{b}")
    for i in range(8):
        g.e(f"s_mov_b32 s35, {i*4096}")
        g.e(f"buffer_store_dwordx4 v[{OUT+4*i}:{OUT+4*i+3}], v{T+5}, s[{S_OUT}:{S_OUT+3}], s35 offen")
    g.e("s_waitcnt vmcnt(0)")
    g.lab(f"{name}_end")
    g.e("s_endpgm")
    return g.text() + kdesc(name, 208)

HDR = open("concat_heads__ssm_conv_h3__linear_attn_block__prompt.s.ref").read().split("; Override")[0]
def full():
    s = HDR
    s += "; @launch kernel=k1_kernel grid=(256,1,1) block=(512,1,1) lds=122880\n"
    s += "; @launch kernel=k2_kernel grid=(256,1,1) block=(512,1,1) lds=52736\n"
    s += "; @launch kernel=k3_kernel grid=(256,1,1) block=(512,1,1) lds=131072\n"
    s += '.amdgcn_target "amdgcn-amd-amdhsa--gfx950"\n.text\n'
    s += gen_k1("k1_kernel") + gen_k2("k2_kernel") + gen_k3("k3_kernel")
    return s
if __name__ == "__main__":
    out = sys.argv[1] if len(sys.argv) > 1 else "concat_heads__ssm_conv_h3__linear_attn_block__prompt.s"
    open(out, "w").write(full())
    print("wrote", out)
```

```python
import sys
sys.path.insert(0,'gen')
import gen3
from dsl import *
base = gen3.full()
def empty(name):
    return khead(name) + "  s_endpgm\n" + kdesc(name, 8)
L1 = "; @launch kernel=k1_kernel"
def variant(pre, post, grid=1):
    s = base
    lines = s.split("\n")
    idx = [i for i,l in enumerate(lines) if l.startswith("; @launch")]
    e = f"; @launch kernel=e_kernel grid=({grid},1,1) block=(64,1,1) lds=0"
    lines = lines[:idx[0]] + [e]*pre + lines[idx[0]:idx[-1]+1] + [e]*post + lines[idx[-1]+1:]
    return "\n".join(lines) + empty("e_kernel")
open("a_base.s","w").write(base)
open("b_post1.s","w").write(variant(0,1))
open("c_post3.s","w").write(variant(0,3))
open("d_pre3.s","w").write(variant(3,0))
open("e_post6.s","w").write(variant(0,6))
```

```python
import sys
sys.path.insert(0,'gen')
import gen3
from dsl import *
base = gen3.full()
def body(name, nins, loop):
    s = khead(name)
    s += "  s_cmp_ge_u32 s2, 256\n  s_cbranch_scc1 %s_end\n" % name
    s += "  v_mov_b32 v1, 0\n  v_mov_b32 v2, 0\n  v_mov_b32 v3, 0\n  v_mov_b32 v4, 0\n"
    s += f"  s_mov_b32 s4, {loop}\n{name}_l:\n"
    for j in range(nins):
        s += f"  v_add3_u32 v{1+(j&3)}, v{1+(j&3)}, v0, v0\n"
    s += f"  s_sub_u32 s4, s4, 1\n  s_cmp_lg_u32 s4, 0\n  s_cbranch_scc1 {name}_l\n"
    s += f"{name}_end:\n  s_endpgm\n" + kdesc(name, 8)
    return s
def variant(nins, loop, pos="post", block=64):
    s = base
    lines = s.split("\n")
    idx = [i for i,l in enumerate(lines) if l.startswith("; @launch")]
    e = f"; @launch kernel=e_kernel grid=(256,1,1) block=({block},1,1) lds=0"
    if pos == "post":
        lines = lines[:idx[-1]+1] + [e] + lines[idx[-1]+1:]
    else:
        lines = lines[:idx[0]] + [e] + lines[idx[0]:]
    return "\n".join(lines) + body("e_kernel", nins, loop)
open("a_loop.s","w").write(variant(64, 64))
open("b_line.s","w").write(variant(4096, 1))
open("c_line8.s","w").write(variant(4096, 1, block=512))
open("d_loop8.s","w").write(variant(64, 64, block=512))
open("e_line_small.s","w").write(variant(1024, 1))
open("f_loop_small.s","w").write(variant(64, 16))
```

```python
import sys
from dsl import *
WS_XR  = 0x0
XR_STRIDE = 4224
WS_YT  = 0x500000
WS_PQ  = 0x900000
WS_O   = 0xD00000
WS_KVP = 0x1100000
WS_SIZE = 0x1400000
LOG2E = 0x3fb8aa3b
EPS   = 0x358637bd
NB_SD = 2048*1024*2

PROF = False
PROF_OFF = 0x8000000
def stamp(g, k):
    if not PROF: return
    g.e(f"s_memrealtime s[88:89]")
    g.e("s_waitcnt lgkmcnt(0)")
    g.e(f"s_mov_b32 s{70+k}, s88")
def flush_stamps(g, li, n, s_wave=30):
    if not PROF: return
    stamp(g, n-1)
    g.e(f"""
    s_load_dwordx2 s[64:65], s[0:1], 88
    s_mov_b32 s66, 0x10000000
    s_mov_b32 s67, 0x20000
    s_lshl_b32 s68, s2, 3
    s_add_u32 s68, s68, s{s_wave}
    s_add_u32 s68, s68, {li*2048}
    s_lshl_b32 s68, s68, 6
    s_add_u32 s68, s68, {PROF_OFF}
    s_mov_b64 exec, 1
    v_mov_b32 v2, 0
    s_waitcnt lgkmcnt(0)
    """)
    for k in range(n):
        g.e(f"v_mov_b32 v1, s{70+k}")
        g.e(f"buffer_store_dword v1, v2, s[64:67], s68 offen offset:{4*k}")
    g.e("s_waitcnt vmcnt(0)")

def srd(g, base, koff, nbytes):
    g.e(f"s_load_dwordx2 s[{base}:{base+1}], s[0:1], {koff}")
    g.e(f"s_mov_b32 s{base+2}, {nbytes}")
    g.e(f"s_mov_b32 s{base+3}, 0x20000")

def decode_wg(g, s_rb, s_hp, s_wave, t0, t1, vlane):
    g.e(f"""
    v_lshrrev_b32 v1, 6, v0
    s_and_b32 s{t0}, s2, 7
    s_lshr_b32 s{t1}, s2, 3
    s_and_b32 s{s_rb}, s{t0}, 1
    s_lshl_b32 s{s_rb}, s{s_rb}, 3
    v_readfirstlane_b32 s{s_wave}, v1
    s_lshr_b32 s{t0}, s{t0}, 1
    s_lshl_b32 s{s_hp}, s{t0}, 2
    s_and_b32 s{t0}, s{t1}, 7
    s_or_b32 s{s_rb}, s{s_rb}, s{t0}
    s_lshr_b32 s{t0}, s{t1}, 3
    s_or_b32 s{s_hp}, s{s_hp}, s{t0}
    v_and_b32 v{vlane}, 63, v0
    """)

def phi_pairs(g, regs, tmp, s_log2e, s_eps, outs):
    n = len(regs)
    for i in range(0, n, 2):
        a, b = regs[i], regs[i+1]
        ta, tb = tmp, tmp + 2
        g.e(f"v_pk_mul_f32 v[{ta}:{ta+1}], v[{a}:{a+1}], s[{s_log2e}:{s_log2e+1}]")
        g.e(f"v_pk_mul_f32 v[{tb}:{tb+1}], v[{b}:{b+1}], s[{s_log2e}:{s_log2e+1}]")
        g.e(f"v_exp_f32_e64 v{ta}, v{ta} clamp")
        g.e(f"v_exp_f32_e64 v{ta+1}, v{ta+1} clamp")
        g.e(f"v_exp_f32_e64 v{tb}, v{tb} clamp")
        g.e(f"v_exp_f32_e64 v{tb+1}, v{tb+1} clamp")
        g.e(f"v_max_f32 v{a}, 0, v{a}")
        g.e(f"v_max_f32 v{a+1}, 0, v{a+1}")
        g.e(f"v_max_f32 v{b}, 0, v{b}")
        g.e(f"v_max_f32 v{b+1}, 0, v{b+1}")
        g.e(f"v_pk_add_f32 v[{a}:{a+1}], v[{a}:{a+1}], v[{ta}:{ta+1}]")
        g.e(f"v_pk_add_f32 v[{b}:{b+1}], v[{b}:{b+1}], v[{tb}:{tb+1}]")
        g.e(f"v_pk_add_f32 v[{a}:{a+1}], v[{a}:{a+1}], s[{s_eps}:{s_eps+1}]")
        g.e(f"v_pk_add_f32 v[{b}:{b+1}], v[{b}:{b+1}], s[{s_eps}:{s_eps+1}]")
        g.e(f"v_cvt_pk_bf16_f32 v{outs[i]}, v{a}, v{a+1}")
        g.e(f"v_cvt_pk_bf16_f32 v{outs[i+1]}, v{b}, v{b+1}")

def gen_k1(name):
    g = G()
    g.L.append(khead(name))
    S_X, S_W, S_WS, S_K, S_V, S_SK = 4, 8, 12, 16, 20, 24
    s_rb, s_hp, s_wave = 28, 29, 30
    l = 192
    g.e(f"s_cmp_ge_u32 s2, 256")
    g.e(f"s_cbranch_scc1 {name}_end")
    stamp(g, 0)
    srd(g, S_X, 48, NB_SD)
    srd(g, S_W, 56, 1024*3072*2)
    srd(g, S_WS, 88, WS_SIZE)
    srd(g, S_K, 8, NB_SD)
    srd(g, S_V, 16, NB_SD)
    srd(g, S_SK, 24, 1024*4*2)
    decode_wg(g, s_rb, s_hp, s_wave, 31, 32, l)
    g.e("s_waitcnt lgkmcnt(0)")
    g.e(f"s_cmp_ge_u32 s{s_wave}, 4")
    g.e(f"s_cbranch_scc1 {name}_helper")

    ACCQ = [0, 16]; ACCK = [32, 48]; ACCV = [64, 80]
    P = [96, 116]
    vA = [136, 137, 138, 139]; vB = 140
    T = 150
    s_wm, s_wn = 33, 34
    g.e(f"""
    s_lshr_b32 s{s_wm}, s{s_wave}, 1
    s_and_b32 s{s_wn}, s{s_wave}, 1
    v_and_b32 v{T}, 31, v{l}
    s_lshl_b32 s35, s{s_wm}, 6
    v_add_u32 v{T}, s35, v{T}
    v_lshlrev_b32 v{T}, 7, v{T}
    v_lshrrev_b32 v{T+1}, 1, v{l}
    v_and_b32 v{T+1}, 7, v{T+1}
    v_lshrrev_b32 v{T+2}, 5, v{l}
    v_xor_b32 v{T+1}, v{T+1}, v{T+2}
    """)
    for j in range(4):
        g.e(f"v_xor_b32 v{T+3}, {2*j}, v{T+1}")
        g.e(f"v_lshl_add_u32 v{vA[j]}, v{T+3}, 4, v{T}")
    g.e(f"""
    v_lshrrev_b32 v{T}, 5, v{l}
    v_lshlrev_b32 v{T}, 3, v{T}
    v_and_b32 v{T+1}, 15, v{l}
    v_lshrrev_b32 v{T+1}, 2, v{T+1}
    v_add_u32 v{T}, v{T}, v{T+1}
    v_lshlrev_b32 v{T}, 7, v{T}
    v_lshrrev_b32 v{T+1}, 4, v{l}
    v_and_b32 v{T+1}, 1, v{T+1}
    v_lshlrev_b32 v{T+1}, 1, v{T+1}
    v_and_b32 v{T+2}, 3, v{l}
    v_lshrrev_b32 v{T+2}, 1, v{T+2}
    v_add_u32 v{T+1}, v{T+1}, v{T+2}
    s_lshl_b32 s35, s{s_wn}, 2
    v_add_u32 v{T+1}, s35, v{T+1}
    v_lshrrev_b32 v{T+2}, 3, v{l}
    v_and_b32 v{T+2}, 1, v{T+2}
    v_lshlrev_b32 v{T+2}, 2, v{T+2}
    v_xor_b32 v{T+1}, v{T+1}, v{T+2}
    v_lshl_add_u32 v{T}, v{T+1}, 4, v{T}
    v_and_b32 v{T+1}, 1, v{l}
    v_lshl_add_u32 v{T}, v{T+1}, 3, v{T}
    v_add_u32 v{vB}, 49152, v{T}
    """)
    for r in range(96):
        g.e(f"v_mov_b32 v{r}, 0")
    g.e("""
    s_mov_b32 s40, 16384
    s_mov_b32 s41, -32768
    s_mov_b32 s42, 24576
    s_mov_b32 s43, -49152
    s_mov_b32 s36, 0
    s_mov_b32 s37, 16
    s_setprio 2
    """)
    def reads(setb, j):
        A0, A1, Bq, Bk, Bv = setb, setb+4, setb+8, setb+12, setb+16
        def tr(dst, sec, q):
            return f"ds_read_b64_tr_b16 v[{dst+2*q}:{dst+2*q+1}], v{vB} offset:{sec*8192 + j*2048 + q*512}"
        return [
            (f"ds_read_b128 v[{A0}:{A0+3}], v{vA[j]} offset:0", f"A0_{setb}"),
            (tr(Bq, 0, 0), f"Bqa_{setb}"),
            (tr(Bq, 0, 1), f"Bq_{setb}"),
            (f"ds_read_b128 v[{A1}:{A1+3}], v{vA[j]} offset:4096", f"A1_{setb}"),
            (tr(Bk, 1, 0), f"Bka_{setb}"),
            (tr(Bk, 1, 1), f"Bk_{setb}"),
            (tr(Bv, 2, 0), f"Bva_{setb}"),
            (tr(Bv, 2, 1), f"Bv_{setb}"),
        ]
    def mfmas(setb):
        A0, A1, Bq, Bk, Bv = setb, setb+4, setb+8, setb+12, setb+16
        def m(acc, a, b): return f"v_mfma_f32_32x32x16_bf16 v[{acc}:{acc+15}], v[{a}:{a+3}], v[{b}:{b+3}], v[{acc}:{acc+15}]"
        return [
            (m(ACCQ[0], Bq, A0), [f"A0_{setb}", f"Bq_{setb}"]),
            (m(ACCQ[1], Bq, A1), [f"A1_{setb}"]),
            (m(ACCK[0], A0, Bk), [f"Bk_{setb}"]),
            (m(ACCK[1], A1, Bk), []),
            (m(ACCV[0], A0, Bv), [f"Bv_{setb}"]),
            (m(ACCV[1], A1, Bv), []),
        ]
    stamp(g, 1)
    g.e("s_barrier")
    stamp(g, 2)
    g.lg_reset()
    for asm, tag in reads(P[0], 0): g.lg(asm, tag)
    g.lab(f"{name}_loop")
    g.lg_reset([t for _, t in reads(P[0], 0)])
    for j in range(4):
        cur, nxt = P[j & 1], P[(j + 1) & 1]
        M = mfmas(cur)
        if j < 3:
            R = reads(nxt, j + 1)
            sched = [2, 2, 2, 2, 0, 0]
            ri = 0
            for mi, (asm, needs) in enumerate(M):
                if needs: g.lg_need(*needs)
                g.e(asm)
                for _ in range(sched[mi]):
                    g.lg(*R[ri]); ri += 1
        else:
            R = reads(nxt, 0)
            for mi in range(2):
                asm, needs = M[mi]
                if needs: g.lg_need(*needs)
                g.e(asm)
            g.e("""
            s_add_u32 s38, s36, 1
            s_cmp_eq_u32 s36, 2
            s_cselect_b32 s36, 0, s38
            s_cselect_b32 s38, s41, s40
            s_cselect_b32 s39, s43, s42
            """)
            for jj in range(4): g.e(f"v_add_u32 v{vA[jj]}, s38, v{vA[jj]}")
            g.e(f"v_add_u32 v{vB}, s39, v{vB}")
            g.lg_all()
            g.e("s_barrier")
            ri = 0
            for mi in range(2, 6):
                asm, needs = M[mi]
                if needs: g.lg_need(*needs)
                g.e(asm)
                for _ in range(2):
                    g.lg(*R[ri]); ri += 1
    g.e("s_sub_u32 s37, s37, 1")
    g.e("s_cmp_lg_u32 s37, 0")
    g.e(f"s_cbranch_scc1 {name}_loop")
    g.e("s_waitcnt lgkmcnt(0)")
    g.e("s_setprio 0")
    stamp(g, 3)
    PK, VF, ONES, PQ, TMP, TA = 96, 112, 128, 132, 148, 152
    s_l2e, s_eps = 44, 46
    g.e(f"""
    s_mov_b32 s{s_l2e}, {LOG2E}
    s_mov_b32 s{s_l2e+1}, {LOG2E}
    s_mov_b32 s{s_eps}, {EPS}
    s_mov_b32 s{s_eps+1}, {EPS}
    v_mov_b32 v{ONES}, 0x3f803f80
    v_mov_b32 v{ONES+1}, 0x3f803f80
    v_mov_b32 v{ONES+2}, 0x3f803f80
    v_mov_b32 v{ONES+3}, 0x3f803f80
    s_nop 7
    """)
    regs = [ACCK[mt] + r for mt in range(2) for r in range(0, 16, 2)]
    outs = [PK + mt*8 + r//2 for mt in range(2) for r in range(0, 16, 2)]
    phi_pairs(g, regs, TMP, s_l2e, s_eps, outs)
    for mt in range(2):
        for r in range(0, 16, 2):
            g.e(f"v_cvt_pk_bf16_f32 v{VF + mt*8 + r//2}, v{ACCV[mt]+r}, v{ACCV[mt]+r+1}")
    KV, Z = 64, 80
    g.e("s_nop 1")
    first = True
    for mt in range(2):
        for q2 in range(2):
            a = PK + mt*8 + q2*4; b = VF + mt*8 + q2*4
            c = "0" if first else f"v[{KV}:{KV+15}]"
            g.e(f"v_mfma_f32_32x32x16_bf16 v[{KV}:{KV+15}], v[{a}:{a+3}], v[{b}:{b+3}], {c}")
            c = "0" if first else f"v[{Z}:{Z+15}]"
            g.e(f"v_mfma_f32_32x32x16_bf16 v[{Z}:{Z+15}], v[{a}:{a+3}], v[{ONES}:{ONES+3}], {c}")
            first = False
    regs = [ACCQ[mt] + r for mt in range(2) for r in range(0, 16, 2)]
    outs = [PQ + mt*8 + r//2 for mt in range(2) for r in range(0, 16, 2)]
    phi_pairs(g, regs, TMP, s_l2e, s_eps, outs)
    stamp(g, 4)
    g.e(f"""
    s_lshl_b32 s35, s{s_rb}, 4
    s_add_u32 s35, s35, s{s_hp}
    s_lshl_b32 s35, s35, 2
    s_add_u32 s35, s35, s{s_wave}
    s_lshl_b32 s35, s35, 12
    s_add_u32 s35, s35, {WS_PQ}
    v_lshlrev_b32 v{TA}, 4, v{l}
    """)
    for i in range(4):
        g.e(f"buffer_store_dwordx4 v[{PQ+4*i}:{PQ+4*i+3}], v{TA}, s[{S_WS}:{S_WS+3}], s35 offen offset:{i*1024}")
    g.e(f"""
    s_lshl_b32 s38, s{s_wn}, 13
    v_add_u32 v{TA+1}, s38, v{TA}
    s_cmp_eq_u32 s{s_wm}, 0
    s_cbranch_scc1 {name}_red0
    """)
    for q in range(4):
        g.e(f"ds_write_b128 v{TA+1}, v[{KV+4*q}:{KV+4*q+3}] offset:{q*1024}")
    for q in range(4):
        g.e(f"ds_write_b128 v{TA+1}, v[{Z+4*q}:{Z+4*q+3}] offset:{4096+q*1024}")
    g.e("s_waitcnt lgkmcnt(0)")
    g.e("s_barrier")
    g.e("s_waitcnt vmcnt(0)")
    flush_stamps(g, 0, 6)
    g.e("s_endpgm")
    g.lab(f"{name}_red0")
    g.e("s_barrier")
    for q in range(4):
        g.e(f"ds_read_b128 v[{0+4*q}:{0+4*q+3}], v{TA+1} offset:{q*1024}")
    for q in range(4):
        g.e(f"ds_read_b128 v[{16+4*q}:{16+4*q+3}], v{TA+1} offset:{4096+q*1024}")
    g.e("s_waitcnt lgkmcnt(0)")
    for r in range(0, 16, 2):
        g.e(f"v_pk_add_f32 v[{KV+r}:{KV+r+1}], v[{KV+r}:{KV+r+1}], v[{r}:{r+1}]")
    for r in range(0, 16, 2):
        g.e(f"v_pk_add_f32 v[{Z+r}:{Z+r+1}], v[{Z+r}:{Z+r+1}], v[{16+r}:{16+r+1}]")
    g.e(f"""
    s_lshl_b32 s35, s{s_hp}, 4
    s_add_u32 s35, s35, s{s_rb}
    s_lshl_b32 s35, s35, 1
    s_add_u32 s35, s35, s{s_wn}
    s_mul_i32 s35, s35, 4224
    s_add_u32 s35, s35, {WS_KVP}
    """)
    for q in range(4):
        g.e(f"buffer_store_dwordx4 v[{KV+4*q}:{KV+4*q+3}], v{TA}, s[{S_WS}:{S_WS+3}], s35 offen offset:{q*1024}")
    g.e(f"""
    v_lshrrev_b32 v{TA+2}, 5, v{l}
    v_lshlrev_b32 v{TA+2}, 5, v{TA+2}
    v_add_u32 v{TA+2}, 4096, v{TA+2}
    v_and_b32 v{TA+3}, 31, v{l}
    v_cmp_eq_u32 vcc, 0, v{TA+3}
    s_and_saveexec_b64 s[48:49], vcc
    """)
    for q in range(4):
        off = (q >> 1)*64 + (q & 1)*16
        g.e(f"buffer_store_dwordx4 v[{Z+4*q}:{Z+4*q+3}], v{TA+2}, s[{S_WS}:{S_WS+3}], s35 offen offset:{off}")
    g.e("s_waitcnt vmcnt(0)")
    flush_stamps(g, 0, 6)
    g.e("s_endpgm")

    g.lab(f"{name}_helper")
    s_hw = 33
    vOA = [2, 3, 4, 5]; vOB = [[6, 7, 8], [9, 10, 11]]
    T = 12
    g.e(f"""
    s_sub_u32 s{s_hw}, s{s_wave}, 4
    v_lshrrev_b32 v{T}, 3, v{l}
    s_lshl_b32 s35, s{s_rb}, 7
    s_lshl_b32 s38, s{s_hw}, 5
    s_add_u32 s35, s35, s38
    v_add_u32 v{T+1}, s35, v{T}
    v_lshlrev_b32 v{T+1}, 11, v{T+1}
    v_lshrrev_b32 v{T+2}, 4, v{l}
    v_and_b32 v{T+3}, 7, v{l}
    """)
    for t in range(4):
        g.e(f"v_add_u32 v{T+4}, {4*t}, v{T+2}")
        g.e(f"v_and_b32 v{T+4}, 7, v{T+4}")
        g.e(f"v_xor_b32 v{T+4}, v{T+4}, v{T+3}")
        g.e(f"v_lshl_add_u32 v{T+4}, v{T+4}, 4, v{T+1}")
        g.e(f"v_add_u32 v{vOA[t]}, {t*8*2048}, v{T+4}")
    g.e(f"""
    s_lshl_b32 s35, s{s_hw}, 4
    v_add_u32 v{T+1}, s35, v{T}
    s_movk_i32 s38, 6144
    v_mul_lo_u32 v{T+1}, v{T+1}, s38
    v_and_b32 v{T+2}, 1, v{T+2}
    v_lshlrev_b32 v{T+2}, 2, v{T+2}
    v_xor_b32 v{T+2}, v{T+2}, v{T+3}
    v_lshl_add_u32 v{T+1}, v{T+2}, 4, v{T+1}
    s_lshl_b32 s35, s{s_hp}, 7
    v_add_u32 v{T+1}, s35, v{T+1}
    """)
    for b2 in range(2):
        for sec in range(3):
            g.e(f"v_add_u32 v{vOB[b2][sec]}, {b2*8*6144 + sec*2048}, v{T+1}")
    s_hwA, s_hwB, s_oA, s_oB = 40, 41, 42, 43
    g.e(f"s_lshl_b32 s{s_hwA}, s{s_hw}, 12")
    g.e(f"s_lshl_b32 s{s_hwB}, s{s_hw}, 11")
    g.vm_reset()
    def issue_stage(st):
        slot = st % 3
        g.e(f"s_mov_b32 s{s_oA}, {st*128}")
        g.e(f"s_mov_b32 s{s_oB}, {st*64*6144}")
        last = None
        for t in range(4):
            g.e(f"s_add_u32 m0, s{s_hwA}, {slot*16384 + t*1024}")
            g.e("s_nop 0")
            last = g.vm(f"buffer_load_dwordx4 v{vOA[t]}, s[{S_X}:{S_X+3}], s{s_oA} offen lds")
        for b2 in range(2):
            for sec in range(3):
                g.e(f"s_add_u32 m0, s{s_hwB}, {49152 + slot*24576 + sec*8192 + b2*1024}")
                g.e("s_nop 0")
                last = g.vm(f"buffer_load_dwordx4 v{vOB[b2][sec]}, s[{S_W}:{S_W+3}], s{s_oB} offen lds")
        return last
    st_last = {}
    stamp(g, 1)
    st_last[0] = issue_stage(0)
    st_last[1] = issue_stage(1)
    vCol, vS0, vKb = 20, 21, 22
    vNeg = [23, 24, 25]
    KR = 32
    VR = 54
    WR = 70
    g.e(f"""
    v_and_b32 v{vCol}, 15, v{l}
    v_lshlrev_b32 v{vCol}, 3, v{vCol}
    s_lshl_b32 s35, s{s_hp}, 7
    v_add_u32 v{vCol}, s35, v{vCol}
    v_lshrrev_b32 v{vS0}, 4, v{l}
    s_lshl_b32 s35, s{s_hw}, 2
    v_add_u32 v{vS0}, s35, v{vS0}
    v_lshlrev_b32 v{vS0}, 3, v{vS0}
    s_lshl_b32 s35, s{s_rb}, 7
    v_add_u32 v{vS0}, s35, v{vS0}
    v_lshl_add_u32 v{vKb}, v{vS0}, 11, v{vCol}
    v_mov_b32 v26, 0x80000000
    v_cmp_eq_u32 vcc, 0, v{vS0}
    """)
    for i in range(3):
        g.e(f"v_subrev_u32 v{vNeg[i]}, {(3-i)*2048}, v{vKb}")
    for i in range(3):
        g.e(f"v_cndmask_b32 v{vNeg[i]}, v{vNeg[i]}, v26, vcc")
    for m in range(1, 4):
        g.e(f"s_mov_b32 s{44+m}, {m*4096}")
    def soff(row): return "0" if row < 2 else f"s{44 + row//2}"
    pl = None
    for i in range(3):
        pl = g.vm(f"buffer_load_dwordx2 v[{KR+2*i}:{KR+2*i+1}], v{vNeg[i]}, s[{S_K}:{S_K+3}], 0 offen")
    for r in range(8):
        pl = g.vm(f"buffer_load_dwordx2 v[{KR+6+2*r}:{KR+6+2*r+1}], v{vKb}, s[{S_K}:{S_K+3}], {soff(r)} offen offset:{(r&1)*2048}")
    for r in range(8):
        pl = g.vm(f"buffer_load_dwordx2 v[{VR+2*r}:{VR+2*r+1}], v{vKb}, s[{S_V}:{S_V+3}], {soff(r)} offen offset:{(r&1)*2048}")
    g.e(f"v_lshlrev_b32 v27, 2, v{vCol}")
    pl = g.vm(f"buffer_load_dwordx4 v[{WR}:{WR+3}], v27, s[{S_SK}:{S_SK+3}], 0 offen")
    pl = g.vm(f"buffer_load_dwordx4 v[{WR+4}:{WR+7}], v27, s[{S_SK}:{S_SK+3}], 0 offen offset:16")
    pre_last = pl
    KF = 80
    WF = 124
    XO = 140
    VF = 172
    OUT = 176
    def unpack2(dst, src):
        g.e(f"v_lshlrev_b32 v{dst}, 16, v{src}")
        g.e(f"v_and_b32 v{dst+1}, 0xffff0000, v{src}")
        g.e(f"v_lshlrev_b32 v{dst+2}, 16, v{src+1}")
        g.e(f"v_and_b32 v{dst+3}, 0xffff0000, v{src+1}")
    slices = []
    def sl_unpack_w():
        for c in range(4):
            g.e(f"v_lshlrev_b32 v{WF+0*4+c}, 16, v{WR+2*c}")
            g.e(f"v_and_b32 v{WF+1*4+c}, 0xffff0000, v{WR+2*c}")
            g.e(f"v_lshlrev_b32 v{WF+2*4+c}, 16, v{WR+2*c+1}")
            g.e(f"v_and_b32 v{WF+3*4+c}, 0xffff0000, v{WR+2*c+1}")
    def sl_unpack_k(a, b):
        for i in range(a, b): unpack2(KF+4*i, KR+2*i)
    def sl_fir(sa, sb):
        for s in range(sa, sb):
            for p in range(2):
                o = XO + 4*s + 2*p
                for j in range(4):
                    k = KF + 4*(s + 3 - j) + 2*p; w = WF + 4*j + 2*p
                    if j == 0: g.e(f"v_pk_mul_f32 v[{o}:{o+1}], v[{k}:{k+1}], v[{w}:{w+1}]")
                    else: g.e(f"v_pk_fma_f32 v[{o}:{o+1}], v[{k}:{k+1}], v[{w}:{w+1}], v[{o}:{o+1}]")
            unpack2(VF, VR+2*s)
            for p in range(2):
                o = XO + 4*s + 2*p
                g.e(f"v_pk_mul_f32 v[{o}:{o+1}], v[{o}:{o+1}], v[{VF+2*p}:{VF+2*p+1}]")
    def sl_store():
        for c in range(4):
            for m in range(4):
                g.e(f"v_cvt_pk_bf16_f32 v{OUT+4*c+m}, v{XO+4*(7-2*m)+c}, v{XO+4*(6-2*m)+c}")
        g.e(f"""
        v_lshrrev_b32 v28, 1, v{vCol}
        s_movk_i32 s35, {XR_STRIDE}
        v_mul_lo_u32 v28, v28, s35
        v_lshlrev_b32 v29, 1, v{vS0}
        v_sub_u32 v29, 4080, v29
        v_add_u32 v28, v28, v29
        """)
        for c in range(4):
            g.e(f"s_mov_b32 s35, {WS_XR + c*XR_STRIDE}")
            g.vm(f"buffer_store_dwordx4 v[{OUT+4*c}:{OUT+4*c+3}], v28, s[{S_WS}:{S_WS+3}], s35 offen")
        lab = g.newlabel("zp")
        g.e(f"""
        s_cmp_lg_u32 s{s_rb}, 0
        s_cbranch_scc1 {lab}
        s_lshl_b32 s35, s{s_hw}, 6
        v_add_u32 v28, s35, v{l}
        v_lshrrev_b32 v29, 2, v28
        s_lshl_b32 s35, s{s_hp}, 6
        v_add_u32 v29, s35, v29
        s_movk_i32 s35, {XR_STRIDE}
        v_mul_lo_u32 v29, v29, s35
        v_and_b32 v28, 3, v28
        v_lshl_add_u32 v29, v28, 5, v29
        v_mov_b32 v{OUT}, 0
        v_mov_b32 v{OUT+1}, 0
        v_mov_b32 v{OUT+2}, 0
        v_mov_b32 v{OUT+3}, 0
        s_mov_b32 s35, {WS_XR + 4096}
        s_nop 4
        buffer_store_dwordx4 v[{OUT}:{OUT+3}], v29, s[{S_WS}:{S_WS+3}], s35 offen
        buffer_store_dwordx4 v[{OUT}:{OUT+3}], v29, s[{S_WS}:{S_WS+3}], s35 offen offset:16
        s_waitcnt vmcnt(0)
        """)
        g.lab(lab)
    side = {
        1: [lambda: (g.vm_wait(pre_last), sl_unpack_w(), sl_unpack_k(0, 6))],
        2: [lambda: (sl_unpack_k(6, 11), sl_fir(0, 2))],
        3: [lambda: sl_fir(2, 5)],
        4: [lambda: sl_fir(5, 8)],
        5: [sl_store],
    }
    stamp(g, 2)
    g.vm_wait(st_last[0])
    stamp(g, 3)
    g.e("s_barrier")
    for t in range(16):
        if t + 2 <= 15: st_last[t+2] = issue_stage(t + 2)
        for f in side.get(t, []): f()
        if t + 1 <= 15: g.vm_wait(st_last[t+1])
        if t == 7: stamp(g, 4)
        g.e("s_barrier")
    g.e("s_waitcnt vmcnt(0)")
    flush_stamps(g, 0, 6)
    g.e("s_endpgm")
    g.lab(f"{name}_end")
    g.e("s_endpgm")
    return g.text() + kdesc(name, 200)

def gen_k2(name):
    g = G()
    g.L.append(khead(name))
    S_WS, S_H, S_D = 4, 8, 12
    s_rb, s_hp, s_wave = 28, 29, 30
    l = 200
    g.e(f"s_cmp_ge_u32 s2, 256")
    g.e(f"s_cbranch_scc1 {name}_end")
    stamp(g, 0)
    srd(g, S_WS, 88, WS_SIZE)
    srd(g, S_H, 32, NB_SD)
    srd(g, S_D, 40, 2048)
    decode_wg(g, s_rb, s_hp, s_wave, 31, 32, l)
    g.e("s_waitcnt lgkmcnt(0)")
    g.e(f"s_cmp_ge_u32 s{s_wave}, 4")
    g.e(f"s_cbranch_scc1 {name}_ophase")
    LW = 12928
    s_ch, s_lb = 33, 34
    ACC = 0; S = [32, 96]; vA = list(range(160, 168)); vB = 168; T = 170
    g.e(f"""
    s_lshl_b32 s{s_ch}, s{s_hp}, 6
    s_lshl_b32 s35, s{s_rb}, 2
    s_add_u32 s{s_ch}, s{s_ch}, s35
    s_add_u32 s{s_ch}, s{s_ch}, s{s_wave}
    s_mul_i32 s{s_lb}, s{s_wave}, {LW}
    v_lshlrev_b32 v{T}, 4, v{l}
    v_add_u32 v{T+1}, 2, v{T}
    s_mul_i32 s36, s{s_ch}, {XR_STRIDE}
    s_add_u32 s36, s36, {WS_XR}
    s_lshl_b32 s37, s{s_ch}, 12
    s_lshl_b32 s38, s{s_ch}, 1
    v_mov_b32 v{T+2}, s38
    """)
    g.vm_reset()
    g.e(f"buffer_load_ushort v{T+3}, v{T+2}, s[{S_D}:{S_D+3}], 0 offen")
    g.e(f"s_add_u32 m0, s{s_lb}, {8320+480}")
    g.e("s_nop 0")
    for m in range(4):
        g.e(f"buffer_load_dwordx4 v{T}, s[{S_H}:{S_H+3}], s37 offen offset:{m*1024} lds")
    g.e(f"s_mov_b32 m0, s{s_lb}")
    g.e("s_nop 0")
    for m in range(4):
        g.e(f"buffer_load_dwordx4 v{T}, s[{S_WS}:{S_WS+3}], s36 offen offset:{m*1024} lds")
    g.e(f"s_add_u32 m0, s{s_lb}, 4160")
    g.e("s_nop 0")
    for m in range(4):
        g.e(f"buffer_load_dwordx4 v{T+1}, s[{S_WS}:{S_WS+3}], s36 offen offset:{m*1024} lds")
    g.e(f"""
    s_add_u32 s39, s36, 4096
    s_mov_b64 s[40:41], exec
    s_mov_b64 exec, 15
    s_add_u32 m0, s{s_lb}, 4096
    s_nop 0
    buffer_load_dwordx4 v{T}, s[{S_WS}:{S_WS+3}], s39 offen lds
    s_add_u32 m0, s{s_lb}, {4160+4096}
    s_nop 0
    buffer_load_dwordx4 v{T+1}, s[{S_WS}:{S_WS+3}], s39 offen lds
    s_mov_b64 exec, s[40:41]
    """)
    g.e(f"""
    v_mov_b32 v0, 0
    v_mov_b32 v1, 0
    v_mov_b32 v2, 0
    v_mov_b32 v3, 0
    s_add_u32 s39, s{s_lb}, 8320
    v_add_u32 v{T+4}, s39, v{T}
    v_cmp_gt_u32 vcc, 30, v{l}
    s_and_saveexec_b64 s[40:41], vcc
    ds_write_b128 v{T+4}, v[0:3]
    s_mov_b64 exec, s[40:41]
    """)
    g.e(f"""
    v_and_b32 v{T+5}, 15, v{l}
    v_lshrrev_b32 v{T+6}, 4, v{l}
    v_sub_u32 v{T+7}, 2031, v{T+5}
    v_and_b32 v{T+7}, -2, v{T+7}
    v_lshl_add_u32 v{T+7}, v{T+6}, 3, v{T+7}
    v_lshlrev_b32 v{T+7}, 1, v{T+7}
    v_and_b32 v{T+8}, 1, v{T+5}
    v_xor_b32 v{T+8}, 1, v{T+8}
    v_mul_u32_u24 v{T+8}, 4160, v{T+8}
    v_add_u32 v{T+7}, v{T+7}, v{T+8}
    v_add_u32 v{T+7}, s{s_lb}, v{T+7}
    """)
    for a in range(8):
        g.e(f"v_subrev_u32 v{vA[a]}, {512*a}, v{T+7}")
    g.e(f"""
    v_lshlrev_b32 v{vB}, 5, v{T+5}
    v_lshl_add_u32 v{vB}, v{T+6}, 4, v{vB}
    s_add_u32 s39, s{s_lb}, 8768
    v_add_u32 v{vB}, s39, v{vB}
    """)
    for r in range(32): g.e(f"v_mov_b32 v{ACC+r}, 0")
    stamp(g, 1)
    g.e("s_waitcnt vmcnt(0)")
    stamp(g, 2)
    g.e(f"""
    s_add_u32 s39, s{s_lb}, 8800
    v_mov_b32 v{T+4}, s39
    ds_read_u16 v{T+5}, v{T+4}
    v_lshlrev_b32 v{T+3}, 16, v{T+3}
    s_waitcnt lgkmcnt(0)
    v_lshlrev_b32 v{T+5}, 16, v{T+5}
    v_add_f32 v{T+5}, v{T+5}, v{T+3}
    v_cvt_pk_bf16_f32 v{T+5}, v{T+5}, v{T+5}
    ds_write_b16 v{T+4}, v{T+5}
    s_waitcnt lgkmcnt(0)
    """)
    def creads(sb):
        R = []
        seq = []
        for x in range(8):
            seq.append(("A", x)); seq.append(("B", x))
        for kind, x in seq:
            if kind == "A":
                d = sb + 4*x
                R.append((f"ds_read2_b32 v[{d}:{d+1}], v{vA[x]} offset0:0 offset1:1", f"A{x}a_{sb}"))
                R.append((f"ds_read2_b32 v[{d+2}:{d+3}], v{vA[x]} offset0:2 offset1:3", f"A{x}_{sb}"))
            else:
                d = sb + 32 + 4*x
                R.append((f"ds_read_b128 v[{d}:{d+3}], v{vB} offset:{512*x}", f"B{x}_{sb}"))
        return R
    def adv():
        for a in range(8): g.e(f"v_subrev_u32 v{vA[a]}, 64, v{vA[a]}")
        g.e(f"v_subrev_u32 v{vB}, 64, v{vB}")
    def cm(sb):
        M = []
        pairs = [(a, w) for a in range(8) for w in range(8) if a + w <= 7]
        pairs.sort(key=lambda p: (max(p), p[0]))
        for a, w in pairs:
            cb = a + w
            A = sb + 4*a; B = sb + 32 + 4*w; D = ACC + 4*cb
            M.append(f"v_mfma_f32_16x16x32_bf16 v[{D}:{D+3}], v[{A}:{A+3}], v[{B}:{B+3}], v[{D}:{D+3}]")
        return M
    R = creads(S[0])
    for i, (asm, tag) in enumerate(R):
        g.e(asm)
        if i == 11: g.e("s_waitcnt lgkmcnt(4)")
        if i == 19: g.e("s_waitcnt lgkmcnt(4)")
    adv()
    g.e("s_mov_b32 s37, 4")
    g.e("s_setprio 2")
    g.lab(f"{name}_cloop")
    for half in range(2):
        cur, nxt = S[half], S[1-half]
        g.e("s_waitcnt lgkmcnt(0)")
        M = cm(cur); R = creads(nxt)
        ri = 0
        for mi, asm in enumerate(M):
            g.e(asm)
            if mi < 32 and ri < 24 and (mi % 4 != 3):
                g.e(R[ri][0]); ri += 1
            if mi == 33:
                adv()
        assert ri == 24, ri
    g.e("s_sub_u32 s37, s37, 1")
    g.e("s_cmp_lg_u32 s37, 0")
    g.e(f"s_cbranch_scc1 {name}_cloop")
    g.e("s_setprio 0")
    g.e("s_waitcnt lgkmcnt(0)")
    g.e("s_nop 7")
    stamp(g, 3)
    g.e(f"""
    v_and_b32 v{T+5}, 15, v{l}
    v_lshrrev_b32 v{T+6}, 4, v{l}
    v_lshlrev_b32 v{T+5}, 5, v{T+5}
    v_lshl_add_u32 v{T+5}, v{T+6}, 3, v{T+5}
    s_lshl_b32 s37, s{s_ch}, 12
    s_add_u32 s37, s37, {WS_YT}
    """)
    for cb in range(8):
        d = 32 + 2*cb
        g.e(f"v_cvt_pk_bf16_f32 v{d}, v{ACC+4*cb}, v{ACC+4*cb+1}")
        g.e(f"v_cvt_pk_bf16_f32 v{d+1}, v{ACC+4*cb+2}, v{ACC+4*cb+3}")
    for cb in range(8):
        d = 32 + 2*cb
        g.e(f"buffer_store_dwordx2 v[{d}:{d+1}], v{T+5}, s[{S_WS}:{S_WS+3}], s37 offen offset:{512*cb}")
    g.e("s_waitcnt vmcnt(0)")
    flush_stamps(g, 1, 5)
    g.e("s_endpgm")

    g.lab(f"{name}_ophase")
    s_w4, s_wm, s_wn = 33, 34, 35
    PQ = 0
    KVS = 16
    BUF = [32, 96]
    T = 170
    g.e(f"""
    s_sub_u32 s{s_w4}, s{s_wave}, 4
    s_lshr_b32 s{s_wm}, s{s_w4}, 1
    s_and_b32 s{s_wn}, s{s_w4}, 1
    v_lshlrev_b32 v{T}, 4, v{l}
    s_lshl_b32 s36, s{s_rb}, 4
    s_add_u32 s36, s36, s{s_hp}
    s_lshl_b32 s36, s36, 2
    s_add_u32 s36, s36, s{s_w4}
    s_lshl_b32 s36, s36, 12
    s_add_u32 s36, s36, {WS_PQ}
    """)
    g.vm_reset()
    for i in range(4):
        pqi = g.vm(f"buffer_load_dwordx4 v[{PQ+4*i}:{PQ+4*i+3}], v{T}, s[{S_WS}:{S_WS+3}], s36 offen offset:{i*1024}")
    g.e(f"""
    s_lshl_b32 s37, s{s_hp}, 5
    s_add_u32 s37, s37, s{s_wn}
    s_mul_i32 s37, s37, 4224
    s_add_u32 s37, s37, {WS_KVP}
    v_and_b32 v{T+1}, 31, v{l}
    v_lshlrev_b32 v{T+1}, 2, v{T+1}
    v_add_u32 v{T+1}, 4096, v{T+1}
    """)
    ZB = 180
    for rbp in range(16):
        g.e(f"s_add_u32 s38, s37, {rbp*2*4224}")
        zi = g.vm(f"buffer_load_dword v{ZB+rbp}, v{T+1}, s[{S_WS}:{S_WS+3}], s38 offen")
    def load_batch(b):
        last = None
        for u in range(4):
            rbp = 4*b + u
            g.e(f"s_add_u32 s38, s37, {rbp*2*4224}")
            for q in range(4):
                d = BUF[b & 1] + 16*u + 4*q
                last = g.vm(f"buffer_load_dwordx4 v[{d}:{d+3}], v{T}, s[{S_WS}:{S_WS+3}], s38 offen offset:{q*1024}")
        return last
    bl = {}
    bl[0] = load_batch(0)
    bl[1] = load_batch(1)
    stamp(g, 1)
    g.vm_wait(zi)
    stamp(g, 2)
    for i in range(1, 16): g.e(f"v_add_f32 v{ZB}, v{ZB}, v{ZB+i}")
    g.e(f"v_cvt_pk_bf16_f32 v{ZB}, v{ZB}, v{ZB}")
    g.e(f"""
    s_lshl_b32 s38, s{s_w4}, 6
    s_add_u32 s38, s38, 52224
    v_and_b32 v{T+2}, 31, v{l}
    v_lshlrev_b32 v{T+2}, 1, v{T+2}
    v_add_u32 v{T+2}, s38, v{T+2}
    ds_write_b16 v{T+2}, v{ZB}
    v_lshrrev_b32 v{T+3}, 5, v{l}
    v_lshlrev_b32 v{T+3}, 4, v{T+3}
    v_add_u32 v{T+3}, s38, v{T+3}
    s_waitcnt lgkmcnt(0)
    ds_read_b128 v[{ZB+4}:{ZB+7}], v{T+3}
    ds_read_b128 v[{ZB+8}:{ZB+11}], v{T+3} offset:32
    """)
    for b in range(4):
        g.vm_wait(bl[b])
        for u in range(4):
            src = BUF[b & 1] + 16*u
            for r in range(0, 16, 2):
                if b == 0 and u == 0:
                    g.e(f"v_mov_b32 v{KVS+r}, v{src+r}")
                    g.e(f"v_mov_b32 v{KVS+r+1}, v{src+r+1}")
                else:
                    g.e(f"v_pk_add_f32 v[{KVS+r}:{KVS+r+1}], v[{KVS+r}:{KVS+r+1}], v[{src+r}:{src+r+1}]")
        if b + 2 < 4: bl[b+2] = load_batch(b + 2)
    stamp(g, 3)
    KF = 32
    for r in range(0, 16, 2):
        g.e(f"v_cvt_pk_bf16_f32 v{KF + r//2}, v{KVS+r}, v{KVS+r+1}")
    g.vm_wait(pqi)
    g.e("s_waitcnt lgkmcnt(0)")
    g.e("s_nop 1")
    NUM = [48, 64]; DEN = [80, 96]
    for mt in range(2):
        for q2 in range(2):
            a = KF + 4*q2; z = ZB + 4 + 4*q2; b = PQ + mt*8 + q2*4
            c = "0" if q2 == 0 else f"v[{NUM[mt]}:{NUM[mt]+15}]"
            g.e(f"v_mfma_f32_32x32x16_bf16 v[{NUM[mt]}:{NUM[mt]+15}], v[{a}:{a+3}], v[{b}:{b+3}], {c}")
            c = "0" if q2 == 0 else f"v[{DEN[mt]}:{DEN[mt]+15}]"
            g.e(f"v_mfma_f32_32x32x16_bf16 v[{DEN[mt]}:{DEN[mt]+15}], v[{z}:{z+3}], v[{b}:{b+3}], {c}")
    g.e("s_nop 15")
    g.e(f"s_mov_b32 s40, {EPS}")
    for mt in range(2):
        g.e(f"v_add_f32 v{DEN[mt]}, s40, v{DEN[mt]}")
    for mt in range(2):
        g.e(f"v_rcp_f32 v{DEN[mt]}, v{DEN[mt]}")
    g.e("s_nop 1")
    OUT = 112
    for mt in range(2):
        for r in range(16):
            g.e(f"v_mul_f32 v{NUM[mt]+r}, v{NUM[mt]+r}, v{DEN[mt]}")
        for r in range(0, 16, 2):
            g.e(f"v_cvt_pk_bf16_f32 v{OUT + mt*8 + r//2}, v{NUM[mt]+r}, v{NUM[mt]+r+1}")
    g.e(f"""
    s_lshl_b32 s36, s{s_rb}, 18
    s_lshl_b32 s38, s{s_hp}, 1
    s_add_u32 s38, s38, s{s_wn}
    s_lshl_b32 s38, s38, 13
    s_add_u32 s36, s36, s38
    s_lshl_b32 s38, s{s_wm}, 10
    s_add_u32 s36, s36, s38
    s_add_u32 s36, s36, {WS_O}
    v_and_b32 v{T+1}, 31, v{l}
    v_lshlrev_b32 v{T+1}, 4, v{T+1}
    v_lshrrev_b32 v{T+2}, 5, v{l}
    v_lshl_add_u32 v{T+1}, v{T+2}, 11, v{T+1}
    """)
    for mt in range(2):
        for q2 in range(2):
            d = OUT + mt*8 + q2*4
            g.e(f"s_add_u32 s38, s36, {q2*4096 + mt*512}")
            g.e(f"buffer_store_dwordx4 v[{d}:{d+3}], v{T+1}, s[{S_WS}:{S_WS+3}], s38 offen")
    g.e("s_waitcnt vmcnt(0)")
    flush_stamps(g, 1, 5)
    g.e("s_endpgm")
    g.lab(f"{name}_end")
    g.e("s_endpgm")
    return g.text() + kdesc(name, 208)

def gen_k3(name):
    g = G()
    g.L.append(khead(name))
    S_WS, S_WO, S_OUT, S_Q = 4, 8, 12, 16
    s_rb, s_hp, s_wave = 28, 29, 30
    l = 200
    g.e(f"s_cmp_ge_u32 s2, 256")
    g.e(f"s_cbranch_scc1 {name}_end")
    stamp(g, 0)
    srd(g, S_WS, 88, WS_SIZE)
    srd(g, S_WO, 64, 1024*1024*2)
    srd(g, S_OUT, 72, 2048*2048*2)
    srd(g, S_Q, 0, NB_SD)
    decode_wg(g, s_rb, s_hp, s_wave, 31, 32, l)
    s_rb2, s_cb2 = 33, 34
    g.e(f"""
    s_and_b32 s{s_rb2}, s2, 7
    s_lshl_b32 s{s_rb2}, s{s_rb2}, 1
    s_lshr_b32 s35, s2, 3
    s_and_b32 s35, s35, 1
    s_or_b32 s{s_rb2}, s{s_rb2}, s35
    s_lshr_b32 s{s_cb2}, s2, 4
    """)
    g.e("s_waitcnt lgkmcnt(0)")
    T = 170
    g.e(f"""
    v_lshrrev_b32 v{T}, 3, v{l}
    s_lshl_b32 s35, s{s_wave}, 7
    v_add_u32 v{T}, s35, v{T}
    v_lshlrev_b32 v{T}, 11, v{T}
    v_lshrrev_b32 v{T+1}, 4, v{l}
    v_and_b32 v{T+1}, 1, v{T+1}
    v_lshlrev_b32 v{T+1}, 2, v{T+1}
    v_and_b32 v{T+2}, 7, v{l}
    v_xor_b32 v{T+1}, v{T+1}, v{T+2}
    v_lshl_add_u32 v{T}, v{T+1}, 4, v{T}
    s_lshl_b32 s35, s{s_cb2}, 7
    v_add_u32 v{T}, s35, v{T}
    s_lshl_b32 s36, s{s_wave}, 14
    """)
    g.vm_reset()
    for i in range(16):
        g.e(f"s_add_u32 m0, s36, {i*1024}")
        g.e(f"s_mov_b32 s37, {i*8*2048}")
        g.vm(f"buffer_load_dwordx4 v{T}, s[{S_WO}:{S_WO+3}], s37 offen lds")
    dma_last = g.vmq - 1
    g.e(f"s_cmp_ge_u32 s{s_wave}, 4")
    g.e(f"s_cbranch_scc1 {name}_post")
    ACC = [0, 16]; AR = 32
    BF = [96, 104]
    vAo = 112; vBn = [113, 114]
    g.e(f"""
    v_and_b32 v{vAo}, 31, v{l}
    v_lshlrev_b32 v{vAo}, 4, v{vAo}
    v_lshrrev_b32 v{T+1}, 5, v{l}
    v_lshl_add_u32 v{vAo}, v{T+1}, 11, v{vAo}
    s_lshl_b32 s38, s{s_rb2}, 18
    s_lshl_b32 s39, s{s_wave}, 9
    s_add_u32 s38, s38, s39
    s_add_u32 s38, s38, {WS_O}
    """)
    PF = 16
    aid = {}
    def aload(t_static_reg, soff):
        d = AR + 4*t_static_reg
        return g.vm(f"buffer_load_dwordx4 v[{d}:{d+3}], v{vAo}, s[{S_WS}:{S_WS+3}], {soff} offen")
    for t in range(PF):
        g.e(f"s_add_u32 s39, s38, {t*4096}")
        aload(t, "s39")
    g.e(f"""
    v_lshrrev_b32 v{T}, 5, v{l}
    v_lshlrev_b32 v{T}, 2, v{T}
    v_and_b32 v{T+1}, 15, v{l}
    v_lshrrev_b32 v{T+1}, 2, v{T+1}
    v_add_u32 v{T}, v{T}, v{T+1}
    v_lshlrev_b32 v{T}, 7, v{T}
    v_lshrrev_b32 v{T+1}, 4, v{l}
    v_and_b32 v{T+1}, 1, v{T+1}
    v_lshlrev_b32 v{T+1}, 1, v{T+1}
    v_and_b32 v{T+2}, 3, v{l}
    v_lshrrev_b32 v{T+2}, 1, v{T+2}
    v_add_u32 v{T+1}, v{T+1}, v{T+2}
    v_lshrrev_b32 v{T+2}, 3, v{l}
    v_and_b32 v{T+2}, 1, v{T+2}
    v_lshlrev_b32 v{T+2}, 2, v{T+2}
    v_xor_b32 v{T+1}, v{T+1}, v{T+2}
    v_and_b32 v{T+3}, 1, v{l}
    v_lshl_add_u32 v{T}, v{T+3}, 3, v{T}
    v_lshl_add_u32 v{vBn[0]}, v{T+1}, 4, v{T}
    v_xor_b32 v{T+1}, 4, v{T+1}
    v_lshl_add_u32 v{vBn[1]}, v{T+1}, 4, v{T}
    """)
    for r in range(32): g.e(f"v_mov_b32 v{r}, 0")
    stamp(g, 1)
    g.vm_wait(dma_last)
    g.e("s_barrier")
    stamp(g, 2)
    def breads(setb, t16):
        R = []
        for nt in range(2):
            for q in range(2):
                d = setb + 4*nt + 2*q
                R.append(f"ds_read_b64_tr_b16 v[{d}:{d+1}], v{vBn[nt]} offset:{2048*t16 + 1024*q}")
        return R
    for x in breads(BF[0], 0): g.e(x)
    g.e(f"s_add_u32 s38, s38, {PF*4096}")
    g.e("s_mov_b32 s37, 4")
    g.e("s_setprio 2")
    g.lab(f"{name}_gloop")
    for t in range(16):
        cur, nxt = BF[t & 1], BF[(t + 1) & 1]
        A = AR + 4*t
        g.e("s_waitcnt vmcnt(15) lgkmcnt(0)")
        if t == 15:
            g.e(f"v_add_u32 v{vBn[0]}, 32768, v{vBn[0]}")
            g.e(f"v_add_u32 v{vBn[1]}, 32768, v{vBn[1]}")
        R = breads(nxt, (t + 1) & 15)
        g.e(f"v_mfma_f32_32x32x16_bf16 v[{ACC[0]}:{ACC[0]+15}], v[{cur}:{cur+3}], v[{A}:{A+3}], v[{ACC[0]}:{ACC[0]+15}]")
        g.e(R[0]); g.e(R[1]); g.e(R[2]); g.e(R[3])
        g.e(f"v_mfma_f32_32x32x16_bf16 v[{ACC[1]}:{ACC[1]+15}], v[{cur+4}:{cur+7}], v[{A}:{A+3}], v[{ACC[1]}:{ACC[1]+15}]")
        g.e(f"s_add_u32 s39, s38, {t*4096}")
        g.e(f"buffer_load_dwordx4 v[{A}:{A+3}], v{vAo}, s[{S_WS}:{S_WS+3}], s39 offen")
    g.e(f"s_add_u32 s38, s38, {PF*4096}")
    g.e("s_sub_u32 s37, s37, 1")
    g.e("s_cmp_lg_u32 s37, 0")
    g.e(f"s_cbranch_scc1 {name}_gloop")
    g.e("s_setprio 0")
    g.e("s_waitcnt vmcnt(0) lgkmcnt(0)")
    g.e("s_nop 7")
    stamp(g, 3)
    O = 32
    for nt in range(2):
        for r in range(0, 16, 2):
            g.e(f"v_cvt_pk_bf16_f32 v{O + nt*8 + r//2}, v{ACC[nt]+r}, v{ACC[nt]+r+1}")
    g.e("s_nop 1")
    for nt in range(2):
        for p in range(2):
            x = O + nt*8 + 4*p
            g.e(f"v_permlane32_swap_b32 v{x}, v{x+2}")
            g.e(f"v_permlane32_swap_b32 v{x+1}, v{x+3}")
    g.e(f"""
    v_and_b32 v{T}, 31, v{l}
    s_lshl_b32 s38, s{s_rb2}, 7
    s_lshl_b32 s39, s{s_wave}, 5
    s_add_u32 s38, s38, s39
    v_add_u32 v{T}, s38, v{T}
    v_lshlrev_b32 v{T}, 12, v{T}
    v_lshrrev_b32 v{T+1}, 5, v{l}
    v_lshl_add_u32 v{T}, v{T+1}, 4, v{T}
    s_lshl_b32 s38, s{s_cb2}, 7
    s_add_u32 s38, s38, 2048
    """)
    for nt in range(2):
        for p in range(2):
            x = O + nt*8 + 4*p
            g.e(f"buffer_store_dwordx4 v[{x}:{x+3}], v{T}, s[{S_OUT}:{S_OUT+3}], s38 offen offset:{nt*64 + p*32}")
    g.e("s_waitcnt vmcnt(0)")
    flush_stamps(g, 2, 5)
    g.e("s_endpgm")

    g.lab(f"{name}_post")
    stamp(g, 1)
    g.vm_wait(dma_last)
    g.e("s_barrier")
    stamp(g, 2)
    g.e(f"s_cmp_ge_u32 s{s_wave}, 6")
    g.e(f"s_cbranch_scc1 {name}_end")
    Y = 0; Q = 32; F = 64; OUT = 140
    g.e(f"""
    v_and_b32 v{T}, 7, v{l}
    v_lshrrev_b32 v{T+1}, 3, v{l}
    s_sub_u32 s35, s{s_wave}, 4
    s_lshl_b32 s35, s35, 3
    v_add_u32 v{T+1}, s35, v{T+1}
    v_lshlrev_b32 v{T+1}, 3, v{T+1}
    s_lshl_b32 s35, s{s_rb}, 7
    v_add_u32 v{T+1}, s35, v{T+1}
    v_lshlrev_b32 v{T+2}, 3, v{T}
    s_lshl_b32 s35, s{s_hp}, 6
    v_add_u32 v{T+2}, s35, v{T+2}
    v_lshlrev_b32 v{T+3}, 12, v{T+2}
    v_lshl_add_u32 v{T+3}, v{T+1}, 1, v{T+3}
    v_lshlrev_b32 v{T+4}, 11, v{T+1}
    v_lshl_add_u32 v{T+4}, v{T+2}, 1, v{T+4}
    v_lshlrev_b32 v{T+5}, 12, v{T+1}
    v_lshl_add_u32 v{T+5}, v{T+2}, 1, v{T+5}
    """)
    for j in range(8):
        g.e(f"s_mov_b32 s35, {WS_YT + j*4096}")
        g.e(f"buffer_load_dwordx4 v[{Y+4*j}:{Y+4*j+3}], v{T+3}, s[{S_WS}:{S_WS+3}], s35 offen")
    for i in range(8):
        g.e(f"s_mov_b32 s35, {i*2048}")
        g.e(f"buffer_load_dwordx4 v[{Q+4*i}:{Q+4*i+3}], v{T+4}, s[{S_Q}:{S_Q+3}], s35 offen")
    g.e("s_waitcnt vmcnt(0)")
    stamp(g, 3)
    for i in range(8):
        for m in range(4):
            a, b, c, d = F, F+1, F+2, F+3
            qd = Q + 4*i + m
            y0 = Y + 4*(2*m) + i//2; y1 = Y + 4*(2*m+1) + i//2
            g.e(f"v_lshlrev_b32 v{a}, 16, v{qd}")
            g.e(f"v_and_b32 v{b}, 0xffff0000, v{qd}")
            if i % 2 == 0:
                g.e(f"v_lshlrev_b32 v{c}, 16, v{y0}")
                g.e(f"v_lshlrev_b32 v{d}, 16, v{y1}")
            else:
                g.e(f"v_and_b32 v{c}, 0xffff0000, v{y0}")
                g.e(f"v_and_b32 v{d}, 0xffff0000, v{y1}")
            g.e(f"v_pk_mul_f32 v[{a}:{b}], v[{a}:{b}], v[{c}:{d}]")
            g.e(f"v_cvt_pk_bf16_f32 v{OUT+4*i+m}, v{a}, v{b}")
    for i in range(8):
        g.e(f"s_mov_b32 s35, {i*4096}")
        g.e(f"buffer_store_dwordx4 v[{OUT+4*i}:{OUT+4*i+3}], v{T+5}, s[{S_OUT}:{S_OUT+3}], s35 offen")
    g.e("s_waitcnt vmcnt(0)")
    flush_stamps(g, 2, 5)
    g.lab(f"{name}_end")
    g.e("s_endpgm")
    return g.text() + kdesc(name, 208)

HDR = open("concat_heads__ssm_conv_h3__linear_attn_block__prompt.s.ref").read().split("; Override")[0]
def full():
    s = HDR
    s += "; @launch kernel=k1_kernel grid=(256,1,1) block=(512,1,1) lds=122880\n"
    s += "; @launch kernel=k2_kernel grid=(256,1,1) block=(512,1,1) lds=52736\n"
    s += "; @launch kernel=k3_kernel grid=(256,1,1) block=(512,1,1) lds=131072\n"
    s += '.amdgcn_target "amdgcn-amd-amdhsa--gfx950"\n.text\n'
    s += gen_k1("k1_kernel") + gen_k2("k2_kernel") + gen_k3("k3_kernel")
    return s
if __name__ == "__main__":
    if "--prof" in sys.argv:
        PROF = True; sys.argv.remove("--prof")
    out = sys.argv[1] if len(sys.argv) > 1 else "concat_heads__ssm_conv_h3__linear_attn_block__prompt.s"
    open(out, "w").write(full())
    print("wrote", out)
```

```python
import sys
sys.path.insert(0,'gen')
import gen3
from dsl import *
base = gen3.full()
def variant(body, grid=256, block=64, lds=0, vgpr=8, pos="post", reps=1):
    s = base
    lines = s.split("\n")
    idx = [i for i,l in enumerate(lines) if l.startswith("; @launch")]
    e = f"; @launch kernel=e_kernel grid=({grid},1,1) block=({block},1,1) lds={lds}"
    if pos == "post":
        lines = lines[:idx[-1]+1] + [e]*reps + lines[idx[-1]+1:]
    else:
        lines = lines[:idx[0]] + [e]*reps + lines[idx[0]:]
    k = khead("e_kernel") + f"  s_cmp_ge_u32 s2, {grid}\n  s_cbranch_scc1 e_end\n" + body + "e_end:\n  s_endpgm\n" + kdesc("e_kernel", vgpr)
    return "\n".join(lines) + k
def ld(koff, nbytes, base_off, stride_log):
    return f"""  s_load_dwordx2 s[4:5], s[0:1], {koff}
  s_mov_b32 s6, {nbytes}
  s_mov_b32 s7, 0x20000
  s_lshl_b32 s8, s2, {stride_log}
  s_add_u32 s8, s8, {base_off}
  v_lshlrev_b32 v1, 2, v0
  s_waitcnt lgkmcnt(0)
  buffer_load_dword v2, v1, s[4:7], s8 offen
  s_waitcnt vmcnt(0)
"""
open("a.s","w").write(variant("", 256, 512, 0, 8, reps=3))
open("b.s","w").write(variant("", 256, 512, 131072, 200, reps=3))
open("c.s","w").write(variant("", 256, 64, 0, 8, reps=3))
open("d.s","w").write(variant(ld(88, 0x10000000, 200<<20, 12), 256, 64, 0, 8, reps=1))
open("e.s","w").write(variant(ld(72, 2048*2048*2, 0, 12), 256, 64, 0, 8, reps=1))
open("f.s","w").write(base)
```

```python
import sys
from dsl import *
WS_XR  = 0x0
XR_STRIDE = 4224
WS_YT  = 0x500000
WS_PQ  = 0x900000
WS_O   = 0xD00000
WS_KVP = 0x1100000
WS_SIZE = 0x1400000
LOG2E = 0x3fb8aa3b
EPS   = 0x358637bd
NB_SD = 2048*1024*2

PROF = False
PROF_OFF = 0x8000000
def stamp(g, k):
    if not PROF: return
    g.e(f"s_memrealtime s[88:89]")
    g.e("s_waitcnt lgkmcnt(0)")
    g.e(f"s_mov_b32 s{70+k}, s88")
DBGSTAMP = False
def flush_stamps(g, li, n, s_wave=30):
    if not PROF: return
    stamp(g, n-1)
    if DBGSTAMP:
        g.e(f"""
        s_load_dwordx2 s[64:65], s[0:1], 80
        s_mov_b32 s66, 256
        s_mov_b32 s67, 0x20000
        s_mov_b64 exec, 1
        v_mov_b32 v2, 0
        s_waitcnt lgkmcnt(0)
        s_sub_u32 s64, s64, {li*512}
        s_subb_u32 s65, s65, 0
        s_not_b32 s68, s70
        s_not_b32 s69, s{70+n-1}
        """)
        for k, sreg in enumerate(["s68", "s70", f"s{70+2}", f"s{70+n-1}", "s69"]):
            g.e(f"v_mov_b32 v1, {sreg}")
            g.e(f"buffer_atomic_umax v1, v2, s[64:67], 0 offen offset:{4*(li*5+k)}")
        g.e("s_waitcnt vmcnt(0)")
        return
    g.e(f"""
    s_load_dwordx2 s[64:65], s[0:1], 88
    s_mov_b32 s66, 0x10000000
    s_mov_b32 s67, 0x20000
    s_lshl_b32 s68, s2, 3
    s_add_u32 s68, s68, s{s_wave}
    s_add_u32 s68, s68, {li*2048}
    s_lshl_b32 s68, s68, 6
    s_add_u32 s68, s68, {PROF_OFF}
    s_mov_b64 exec, 1
    v_mov_b32 v2, 0
    s_waitcnt lgkmcnt(0)
    """)
    for k in range(n):
        g.e(f"v_mov_b32 v1, s{70+k}")
        g.e(f"buffer_store_dword v1, v2, s[64:67], s68 offen offset:{4*k}")
    g.e("s_waitcnt vmcnt(0)")

def srd(g, base, koff, nbytes):
    g.e(f"s_load_dwordx2 s[{base}:{base+1}], s[0:1], {koff}")
    g.e(f"s_mov_b32 s{base+2}, {nbytes}")
    g.e(f"s_mov_b32 s{base+3}, 0x20000")

def decode_wg(g, s_rb, s_hp, s_wave, t0, t1, vlane):
    g.e(f"""
    v_lshrrev_b32 v1, 6, v0
    s_and_b32 s{t0}, s2, 7
    s_lshr_b32 s{t1}, s2, 3
    s_and_b32 s{s_rb}, s{t0}, 1
    s_lshl_b32 s{s_rb}, s{s_rb}, 3
    v_readfirstlane_b32 s{s_wave}, v1
    s_lshr_b32 s{t0}, s{t0}, 1
    s_lshl_b32 s{s_hp}, s{t0}, 2
    s_and_b32 s{t0}, s{t1}, 7
    s_or_b32 s{s_rb}, s{s_rb}, s{t0}
    s_lshr_b32 s{t0}, s{t1}, 3
    s_or_b32 s{s_hp}, s{s_hp}, s{t0}
    v_and_b32 v{vlane}, 63, v0
    """)

def phi_pairs(g, regs, tmp, s_log2e, s_eps, outs):
    n = len(regs)
    for i in range(0, n, 2):
        a, b = regs[i], regs[i+1]
        ta, tb = tmp, tmp + 2
        g.e(f"v_pk_mul_f32 v[{ta}:{ta+1}], v[{a}:{a+1}], s[{s_log2e}:{s_log2e+1}]")
        g.e(f"v_pk_mul_f32 v[{tb}:{tb+1}], v[{b}:{b+1}], s[{s_log2e}:{s_log2e+1}]")
        g.e(f"v_exp_f32_e64 v{ta}, v{ta} clamp")
        g.e(f"v_exp_f32_e64 v{ta+1}, v{ta+1} clamp")
        g.e(f"v_exp_f32_e64 v{tb}, v{tb} clamp")
        g.e(f"v_exp_f32_e64 v{tb+1}, v{tb+1} clamp")
        g.e(f"v_max_f32 v{a}, 0, v{a}")
        g.e(f"v_max_f32 v{a+1}, 0, v{a+1}")
        g.e(f"v_max_f32 v{b}, 0, v{b}")
        g.e(f"v_max_f32 v{b+1}, 0, v{b+1}")
        g.e(f"v_pk_add_f32 v[{a}:{a+1}], v[{a}:{a+1}], v[{ta}:{ta+1}]")
        g.e(f"v_pk_add_f32 v[{b}:{b+1}], v[{b}:{b+1}], v[{tb}:{tb+1}]")
        g.e(f"v_pk_add_f32 v[{a}:{a+1}], v[{a}:{a+1}], s[{s_eps}:{s_eps+1}]")
        g.e(f"v_pk_add_f32 v[{b}:{b+1}], v[{b}:{b+1}], s[{s_eps}:{s_eps+1}]")
        g.e(f"v_cvt_pk_bf16_f32 v{outs[i]}, v{a}, v{a+1}")
        g.e(f"v_cvt_pk_bf16_f32 v{outs[i+1]}, v{b}, v{b+1}")

def gen_k1(name):
    g = G()
    g.L.append(khead(name))
    S_X, S_W, S_WS, S_K, S_V, S_SK = 4, 8, 12, 16, 20, 24
    s_rb, s_hp, s_wave = 28, 29, 30
    l = 192
    g.e(f"s_cmp_ge_u32 s2, 256")
    g.e(f"s_cbranch_scc1 {name}_end")
    stamp(g, 0)
    srd(g, S_X, 48, NB_SD)
    srd(g, S_W, 56, 1024*3072*2)
    srd(g, S_WS, 88, WS_SIZE)
    srd(g, S_K, 8, NB_SD)
    srd(g, S_V, 16, NB_SD)
    srd(g, S_SK, 24, 1024*4*2)
    decode_wg(g, s_rb, s_hp, s_wave, 31, 32, l)
    g.e("s_waitcnt lgkmcnt(0)")
    g.e(f"s_cmp_ge_u32 s{s_wave}, 4")
    g.e(f"s_cbranch_scc1 {name}_helper")

    ACCQ = [0, 16]; ACCK = [32, 48]; ACCV = [64, 80]
    P = [96, 116]
    vA = [136, 137, 138, 139]; vB = 140
    T = 150
    s_wm, s_wn = 33, 34
    g.e(f"""
    s_lshr_b32 s{s_wm}, s{s_wave}, 1
    s_and_b32 s{s_wn}, s{s_wave}, 1
    v_and_b32 v{T}, 31, v{l}
    s_lshl_b32 s35, s{s_wm}, 6
    v_add_u32 v{T}, s35, v{T}
    v_lshlrev_b32 v{T}, 7, v{T}
    v_lshrrev_b32 v{T+1}, 1, v{l}
    v_and_b32 v{T+1}, 7, v{T+1}
    v_lshrrev_b32 v{T+2}, 5, v{l}
    v_xor_b32 v{T+1}, v{T+1}, v{T+2}
    """)
    for j in range(4):
        g.e(f"v_xor_b32 v{T+3}, {2*j}, v{T+1}")
        g.e(f"v_lshl_add_u32 v{vA[j]}, v{T+3}, 4, v{T}")
    g.e(f"""
    v_lshrrev_b32 v{T}, 5, v{l}
    v_lshlrev_b32 v{T}, 3, v{T}
    v_and_b32 v{T+1}, 15, v{l}
    v_lshrrev_b32 v{T+1}, 2, v{T+1}
    v_add_u32 v{T}, v{T}, v{T+1}
    v_lshlrev_b32 v{T}, 7, v{T}
    v_lshrrev_b32 v{T+1}, 4, v{l}
    v_and_b32 v{T+1}, 1, v{T+1}
    v_lshlrev_b32 v{T+1}, 1, v{T+1}
    v_and_b32 v{T+2}, 3, v{l}
    v_lshrrev_b32 v{T+2}, 1, v{T+2}
    v_add_u32 v{T+1}, v{T+1}, v{T+2}
    s_lshl_b32 s35, s{s_wn}, 2
    v_add_u32 v{T+1}, s35, v{T+1}
    v_lshrrev_b32 v{T+2}, 3, v{l}
    v_and_b32 v{T+2}, 1, v{T+2}
    v_lshlrev_b32 v{T+2}, 2, v{T+2}
    v_xor_b32 v{T+1}, v{T+1}, v{T+2}
    v_lshl_add_u32 v{T}, v{T+1}, 4, v{T}
    v_and_b32 v{T+1}, 1, v{l}
    v_lshl_add_u32 v{T}, v{T+1}, 3, v{T}
    v_add_u32 v{vB}, 49152, v{T}
    """)
    for r in range(96):
        g.e(f"v_mov_b32 v{r}, 0")
    g.e("""
    s_mov_b32 s40, 16384
    s_mov_b32 s41, -32768
    s_mov_b32 s42, 24576
    s_mov_b32 s43, -49152
    s_mov_b32 s36, 0
    s_mov_b32 s37, 16
    s_setprio 2
    """)
    def reads(setb, j):
        A0, A1, Bq, Bk, Bv = setb, setb+4, setb+8, setb+12, setb+16
        def tr(dst, sec, q):
            return f"ds_read_b64_tr_b16 v[{dst+2*q}:{dst+2*q+1}], v{vB} offset:{sec*8192 + j*2048 + q*512}"
        return [
            (f"ds_read_b128 v[{A0}:{A0+3}], v{vA[j]} offset:0", f"A0_{setb}"),
            (tr(Bq, 0, 0), f"Bqa_{setb}"),
            (tr(Bq, 0, 1), f"Bq_{setb}"),
            (f"ds_read_b128 v[{A1}:{A1+3}], v{vA[j]} offset:4096", f"A1_{setb}"),
            (tr(Bk, 1, 0), f"Bka_{setb}"),
            (tr(Bk, 1, 1), f"Bk_{setb}"),
            (tr(Bv, 2, 0), f"Bva_{setb}"),
            (tr(Bv, 2, 1), f"Bv_{setb}"),
        ]
    def mfmas(setb):
        A0, A1, Bq, Bk, Bv = setb, setb+4, setb+8, setb+12, setb+16
        def m(acc, a, b): return f"v_mfma_f32_32x32x16_bf16 v[{acc}:{acc+15}], v[{a}:{a+3}], v[{b}:{b+3}], v[{acc}:{acc+15}]"
        return [
            (m(ACCQ[0], Bq, A0), [f"A0_{setb}", f"Bq_{setb}"]),
            (m(ACCQ[1], Bq, A1), [f"A1_{setb}"]),
            (m(ACCK[0], A0, Bk), [f"Bk_{setb}"]),
            (m(ACCK[1], A1, Bk), []),
            (m(ACCV[0], A0, Bv), [f"Bv_{setb}"]),
            (m(ACCV[1], A1, Bv), []),
        ]
    stamp(g, 1)
    g.e("s_barrier")
    stamp(g, 2)
    g.lg_reset()
    for asm, tag in reads(P[0], 0): g.lg(asm, tag)
    g.lab(f"{name}_loop")
    g.lg_reset([t for _, t in reads(P[0], 0)])
    for j in range(4):
        cur, nxt = P[j & 1], P[(j + 1) & 1]
        M = mfmas(cur)
        if j < 3:
            R = reads(nxt, j + 1)
            sched = [2, 2, 2, 2, 0, 0]
            ri = 0
            for mi, (asm, needs) in enumerate(M):
                if needs: g.lg_need(*needs)
                g.e(asm)
                for _ in range(sched[mi]):
                    g.lg(*R[ri]); ri += 1
        else:
            R = reads(nxt, 0)
            for mi in range(2):
                asm, needs = M[mi]
                if needs: g.lg_need(*needs)
                g.e(asm)
            g.e("""
            s_add_u32 s38, s36, 1
            s_cmp_eq_u32 s36, 2
            s_cselect_b32 s36, 0, s38
            s_cselect_b32 s38, s41, s40
            s_cselect_b32 s39, s43, s42
            """)
            for jj in range(4): g.e(f"v_add_u32 v{vA[jj]}, s38, v{vA[jj]}")
            g.e(f"v_add_u32 v{vB}, s39, v{vB}")
            g.lg_all()
            g.e("s_barrier")
            ri = 0
            for mi in range(2, 6):
                asm, needs = M[mi]
                if needs: g.lg_need(*needs)
                g.e(asm)
                for _ in range(2):
                    g.lg(*R[ri]); ri += 1
    g.e("s_sub_u32 s37, s37, 1")
    g.e("s_cmp_lg_u32 s37, 0")
    g.e(f"s_cbranch_scc1 {name}_loop")
    g.e("s_waitcnt lgkmcnt(0)")
    g.e("s_setprio 0")
    stamp(g, 3)
    PK, VF, ONES, PQ, TMP, TA = 96, 112, 128, 132, 148, 152
    s_l2e, s_eps = 44, 46
    g.e(f"""
    s_mov_b32 s{s_l2e}, {LOG2E}
    s_mov_b32 s{s_l2e+1}, {LOG2E}
    s_mov_b32 s{s_eps}, {EPS}
    s_mov_b32 s{s_eps+1}, {EPS}
    v_mov_b32 v{ONES}, 0x3f803f80
    v_mov_b32 v{ONES+1}, 0x3f803f80
    v_mov_b32 v{ONES+2}, 0x3f803f80
    v_mov_b32 v{ONES+3}, 0x3f803f80
    s_nop 7
    """)
    regs = [ACCK[mt] + r for mt in range(2) for r in range(0, 16, 2)]
    outs = [PK + mt*8 + r//2 for mt in range(2) for r in range(0, 16, 2)]
    phi_pairs(g, regs, TMP, s_l2e, s_eps, outs)
    for mt in range(2):
        for r in range(0, 16, 2):
            g.e(f"v_cvt_pk_bf16_f32 v{VF + mt*8 + r//2}, v{ACCV[mt]+r}, v{ACCV[mt]+r+1}")
    KV, Z = 64, 80
    g.e("s_nop 1")
    first = True
    for mt in range(2):
        for q2 in range(2):
            a = PK + mt*8 + q2*4; b = VF + mt*8 + q2*4
            c = "0" if first else f"v[{KV}:{KV+15}]"
            g.e(f"v_mfma_f32_32x32x16_bf16 v[{KV}:{KV+15}], v[{a}:{a+3}], v[{b}:{b+3}], {c}")
            c = "0" if first else f"v[{Z}:{Z+15}]"
            g.e(f"v_mfma_f32_32x32x16_bf16 v[{Z}:{Z+15}], v[{a}:{a+3}], v[{ONES}:{ONES+3}], {c}")
            first = False
    regs = [ACCQ[mt] + r for mt in range(2) for r in range(0, 16, 2)]
    outs = [PQ + mt*8 + r//2 for mt in range(2) for r in range(0, 16, 2)]
    phi_pairs(g, regs, TMP, s_l2e, s_eps, outs)
    stamp(g, 4)
    g.e(f"""
    s_lshl_b32 s35, s{s_rb}, 4
    s_add_u32 s35, s35, s{s_hp}
    s_lshl_b32 s35, s35, 2
    s_add_u32 s35, s35, s{s_wave}
    s_lshl_b32 s35, s35, 12
    s_add_u32 s35, s35, {WS_PQ}
    v_lshlrev_b32 v{TA}, 4, v{l}
    """)
    for i in range(4):
        g.e(f"buffer_store_dwordx4 v[{PQ+4*i}:{PQ+4*i+3}], v{TA}, s[{S_WS}:{S_WS+3}], s35 offen offset:{i*1024}")
    g.e(f"""
    s_lshl_b32 s38, s{s_wn}, 13
    v_add_u32 v{TA+1}, s38, v{TA}
    s_cmp_eq_u32 s{s_wm}, 0
    s_cbranch_scc1 {name}_red0
    """)
    for q in range(4):
        g.e(f"ds_write_b128 v{TA+1}, v[{KV+4*q}:{KV+4*q+3}] offset:{q*1024}")
    for q in range(4):
        g.e(f"ds_write_b128 v{TA+1}, v[{Z+4*q}:{Z+4*q+3}] offset:{4096+q*1024}")
    g.e("s_waitcnt lgkmcnt(0)")
    g.e("s_barrier")
    g.e("s_waitcnt vmcnt(0)")
    flush_stamps(g, 0, 6)
    g.e("s_endpgm")
    g.lab(f"{name}_red0")
    g.e("s_barrier")
    for q in range(4):
        g.e(f"ds_read_b128 v[{0+4*q}:{0+4*q+3}], v{TA+1} offset:{q*1024}")
    for q in range(4):
        g.e(f"ds_read_b128 v[{16+4*q}:{16+4*q+3}], v{TA+1} offset:{4096+q*1024}")
    g.e("s_waitcnt lgkmcnt(0)")
    for r in range(0, 16, 2):
        g.e(f"v_pk_add_f32 v[{KV+r}:{KV+r+1}], v[{KV+r}:{KV+r+1}], v[{r}:{r+1}]")
    for r in range(0, 16, 2):
        g.e(f"v_pk_add_f32 v[{Z+r}:{Z+r+1}], v[{Z+r}:{Z+r+1}], v[{16+r}:{16+r+1}]")
    g.e(f"""
    s_lshl_b32 s35, s{s_hp}, 4
    s_add_u32 s35, s35, s{s_rb}
    s_lshl_b32 s35, s35, 1
    s_add_u32 s35, s35, s{s_wn}
    s_mul_i32 s35, s35, 4224
    s_add_u32 s35, s35, {WS_KVP}
    """)
    for q in range(4):
        g.e(f"buffer_store_dwordx4 v[{KV+4*q}:{KV+4*q+3}], v{TA}, s[{S_WS}:{S_WS+3}], s35 offen offset:{q*1024}")
    g.e(f"""
    v_lshrrev_b32 v{TA+2}, 5, v{l}
    v_lshlrev_b32 v{TA+2}, 5, v{TA+2}
    v_add_u32 v{TA+2}, 4096, v{TA+2}
    v_and_b32 v{TA+3}, 31, v{l}
    v_cmp_eq_u32 vcc, 0, v{TA+3}
    s_and_saveexec_b64 s[48:49], vcc
    """)
    for q in range(4):
        off = (q >> 1)*64 + (q & 1)*16
        g.e(f"buffer_store_dwordx4 v[{Z+4*q}:{Z+4*q+3}], v{TA+2}, s[{S_WS}:{S_WS+3}], s35 offen offset:{off}")
    g.e("s_waitcnt vmcnt(0)")
    flush_stamps(g, 0, 6)
    g.e("s_endpgm")

    g.lab(f"{name}_helper")
    s_hw = 33
    vOA = [2, 3, 4, 5]; vOB = [[6, 7, 8], [9, 10, 11]]
    T = 12
    g.e(f"""
    s_sub_u32 s{s_hw}, s{s_wave}, 4
    v_lshrrev_b32 v{T}, 3, v{l}
    s_lshl_b32 s35, s{s_rb}, 7
    s_lshl_b32 s38, s{s_hw}, 5
    s_add_u32 s35, s35, s38
    v_add_u32 v{T+1}, s35, v{T}
    v_lshlrev_b32 v{T+1}, 11, v{T+1}
    v_lshrrev_b32 v{T+2}, 4, v{l}
    v_and_b32 v{T+3}, 7, v{l}
    """)
    for t in range(4):
        g.e(f"v_add_u32 v{T+4}, {4*t}, v{T+2}")
        g.e(f"v_and_b32 v{T+4}, 7, v{T+4}")
        g.e(f"v_xor_b32 v{T+4}, v{T+4}, v{T+3}")
        g.e(f"v_lshl_add_u32 v{T+4}, v{T+4}, 4, v{T+1}")
        g.e(f"v_add_u32 v{vOA[t]}, {t*8*2048}, v{T+4}")
    g.e(f"""
    s_lshl_b32 s35, s{s_hw}, 4
    v_add_u32 v{T+1}, s35, v{T}
    s_movk_i32 s38, 6144
    v_mul_lo_u32 v{T+1}, v{T+1}, s38
    v_and_b32 v{T+2}, 1, v{T+2}
    v_lshlrev_b32 v{T+2}, 2, v{T+2}
    v_xor_b32 v{T+2}, v{T+2}, v{T+3}
    v_lshl_add_u32 v{T+1}, v{T+2}, 4, v{T+1}
    s_lshl_b32 s35, s{s_hp}, 7
    v_add_u32 v{T+1}, s35, v{T+1}
    """)
    for b2 in range(2):
        for sec in range(3):
            g.e(f"v_add_u32 v{vOB[b2][sec]}, {b2*8*6144 + sec*2048}, v{T+1}")
    s_hwA, s_hwB, s_oA, s_oB = 40, 41, 42, 43
    g.e(f"s_lshl_b32 s{s_hwA}, s{s_hw}, 12")
    g.e(f"s_lshl_b32 s{s_hwB}, s{s_hw}, 11")
    g.vm_reset()
    def issue_stage(st):
        slot = st % 3
        g.e(f"s_mov_b32 s{s_oA}, {st*128}")
        g.e(f"s_mov_b32 s{s_oB}, {st*64*6144}")
        last = None
        for t in range(4):
            g.e(f"s_add_u32 m0, s{s_hwA}, {slot*16384 + t*1024}")
            g.e("s_nop 0")
            last = g.vm(f"buffer_load_dwordx4 v{vOA[t]}, s[{S_X}:{S_X+3}], s{s_oA} offen lds")
        for b2 in range(2):
            for sec in range(3):
                g.e(f"s_add_u32 m0, s{s_hwB}, {49152 + slot*24576 + sec*8192 + b2*1024}")
                g.e("s_nop 0")
                last = g.vm(f"buffer_load_dwordx4 v{vOB[b2][sec]}, s[{S_W}:{S_W+3}], s{s_oB} offen lds")
        return last
    st_last = {}
    stamp(g, 1)
    st_last[0] = issue_stage(0)
    st_last[1] = issue_stage(1)
    vCol, vS0, vKb = 20, 21, 22
    vNeg = [23, 24, 25]
    KR = 32
    VR = 54
    WR = 70
    g.e(f"""
    v_and_b32 v{vCol}, 15, v{l}
    v_lshlrev_b32 v{vCol}, 3, v{vCol}
    s_lshl_b32 s35, s{s_hp}, 7
    v_add_u32 v{vCol}, s35, v{vCol}
    v_lshrrev_b32 v{vS0}, 4, v{l}
    s_lshl_b32 s35, s{s_hw}, 2
    v_add_u32 v{vS0}, s35, v{vS0}
    v_lshlrev_b32 v{vS0}, 3, v{vS0}
    s_lshl_b32 s35, s{s_rb}, 7
    v_add_u32 v{vS0}, s35, v{vS0}
    v_lshl_add_u32 v{vKb}, v{vS0}, 11, v{vCol}
    v_mov_b32 v26, 0x80000000
    v_cmp_eq_u32 vcc, 0, v{vS0}
    """)
    for i in range(3):
        g.e(f"v_subrev_u32 v{vNeg[i]}, {(3-i)*2048}, v{vKb}")
    for i in range(3):
        g.e(f"v_cndmask_b32 v{vNeg[i]}, v{vNeg[i]}, v26, vcc")
    for m in range(1, 4):
        g.e(f"s_mov_b32 s{44+m}, {m*4096}")
    def soff(row): return "0" if row < 2 else f"s{44 + row//2}"
    pl = None
    for i in range(3):
        pl = g.vm(f"buffer_load_dwordx2 v[{KR+2*i}:{KR+2*i+1}], v{vNeg[i]}, s[{S_K}:{S_K+3}], 0 offen")
    for r in range(8):
        pl = g.vm(f"buffer_load_dwordx2 v[{KR+6+2*r}:{KR+6+2*r+1}], v{vKb}, s[{S_K}:{S_K+3}], {soff(r)} offen offset:{(r&1)*2048}")
    for r in range(8):
        pl = g.vm(f"buffer_load_dwordx2 v[{VR+2*r}:{VR+2*r+1}], v{vKb}, s[{S_V}:{S_V+3}], {soff(r)} offen offset:{(r&1)*2048}")
    g.e(f"v_lshlrev_b32 v27, 2, v{vCol}")
    pl = g.vm(f"buffer_load_dwordx4 v[{WR}:{WR+3}], v27, s[{S_SK}:{S_SK+3}], 0 offen")
    pl = g.vm(f"buffer_load_dwordx4 v[{WR+4}:{WR+7}], v27, s[{S_SK}:{S_SK+3}], 0 offen offset:16")
    pre_last = pl
    KF = 80
    WF = 124
    XO = 140
    VF = 172
    OUT = 176
    def unpack2(dst, src):
        g.e(f"v_lshlrev_b32 v{dst}, 16, v{src}")
        g.e(f"v_and_b32 v{dst+1}, 0xffff0000, v{src}")
        g.e(f"v_lshlrev_b32 v{dst+2}, 16, v{src+1}")
        g.e(f"v_and_b32 v{dst+3}, 0xffff0000, v{src+1}")
    slices = []
    def sl_unpack_w():
        for c in range(4):
            g.e(f"v_lshlrev_b32 v{WF+0*4+c}, 16, v{WR+2*c}")
            g.e(f"v_and_b32 v{WF+1*4+c}, 0xffff0000, v{WR+2*c}")
            g.e(f"v_lshlrev_b32 v{WF+2*4+c}, 16, v{WR+2*c+1}")
            g.e(f"v_and_b32 v{WF+3*4+c}, 0xffff0000, v{WR+2*c+1}")
    def sl_unpack_k(a, b):
        for i in range(a, b): unpack2(KF+4*i, KR+2*i)
    def sl_fir(sa, sb):
        for s in range(sa, sb):
            for p in range(2):
                o = XO + 4*s + 2*p
                for j in range(4):
                    k = KF + 4*(s + 3 - j) + 2*p; w = WF + 4*j + 2*p
                    if j == 0: g.e(f"v_pk_mul_f32 v[{o}:{o+1}], v[{k}:{k+1}], v[{w}:{w+1}]")
                    else: g.e(f"v_pk_fma_f32 v[{o}:{o+1}], v[{k}:{k+1}], v[{w}:{w+1}], v[{o}:{o+1}]")
            unpack2(VF, VR+2*s)
            for p in range(2):
                o = XO + 4*s + 2*p
                g.e(f"v_pk_mul_f32 v[{o}:{o+1}], v[{o}:{o+1}], v[{VF+2*p}:{VF+2*p+1}]")
    def sl_store():
        for c in range(4):
            for m in range(4):
                g.e(f"v_cvt_pk_bf16_f32 v{OUT+4*c+m}, v{XO+4*(7-2*m)+c}, v{XO+4*(6-2*m)+c}")
        g.e(f"""
        v_lshrrev_b32 v28, 1, v{vCol}
        s_movk_i32 s35, {XR_STRIDE}
        v_mul_lo_u32 v28, v28, s35
        v_lshlrev_b32 v29, 1, v{vS0}
        v_sub_u32 v29, 4080, v29
        v_add_u32 v28, v28, v29
        """)
        for c in range(4):
            g.e(f"s_mov_b32 s35, {WS_XR + c*XR_STRIDE}")
            g.vm(f"buffer_store_dwordx4 v[{OUT+4*c}:{OUT+4*c+3}], v28, s[{S_WS}:{S_WS+3}], s35 offen")
        lab = g.newlabel("zp")
        g.e(f"""
        s_cmp_lg_u32 s{s_rb}, 0
        s_cbranch_scc1 {lab}
        s_lshl_b32 s35, s{s_hw}, 6
        v_add_u32 v28, s35, v{l}
        v_lshrrev_b32 v29, 2, v28
        s_lshl_b32 s35, s{s_hp}, 6
        v_add_u32 v29, s35, v29
        s_movk_i32 s35, {XR_STRIDE}
        v_mul_lo_u32 v29, v29, s35
        v_and_b32 v28, 3, v28
        v_lshl_add_u32 v29, v28, 5, v29
        v_mov_b32 v{OUT}, 0
        v_mov_b32 v{OUT+1}, 0
        v_mov_b32 v{OUT+2}, 0
        v_mov_b32 v{OUT+3}, 0
        s_mov_b32 s35, {WS_XR + 4096}
        s_nop 4
        buffer_store_dwordx4 v[{OUT}:{OUT+3}], v29, s[{S_WS}:{S_WS+3}], s35 offen
        buffer_store_dwordx4 v[{OUT}:{OUT+3}], v29, s[{S_WS}:{S_WS+3}], s35 offen offset:16
        s_waitcnt vmcnt(0)
        """)
        g.lab(lab)
    side = {
        1: [lambda: (g.vm_wait(pre_last), sl_unpack_w(), sl_unpack_k(0, 6))],
        2: [lambda: (sl_unpack_k(6, 11), sl_fir(0, 2))],
        3: [lambda: sl_fir(2, 5)],
        4: [lambda: sl_fir(5, 8)],
        5: [sl_store],
    }
    stamp(g, 2)
    g.vm_wait(st_last[0])
    stamp(g, 3)
    g.e("s_barrier")
    for t in range(16):
        if t + 2 <= 15: st_last[t+2] = issue_stage(t + 2)
        for f in side.get(t, []): f()
        if t + 1 <= 15: g.vm_wait(st_last[t+1])
        if t == 7: stamp(g, 4)
        g.e("s_barrier")
    g.e("s_waitcnt vmcnt(0)")
    flush_stamps(g, 0, 6)
    g.e("s_endpgm")
    g.lab(f"{name}_end")
    g.e("s_endpgm")
    return g.text() + kdesc(name, 200)

def gen_k2(name):
    g = G()
    g.L.append(khead(name))
    S_WS, S_H, S_D = 4, 8, 12
    s_rb, s_hp, s_wave = 28, 29, 30
    l = 200
    g.e(f"s_cmp_ge_u32 s2, 256")
    g.e(f"s_cbranch_scc1 {name}_end")
    stamp(g, 0)
    srd(g, S_WS, 88, WS_SIZE)
    srd(g, S_H, 32, NB_SD)
    srd(g, S_D, 40, 2048)
    decode_wg(g, s_rb, s_hp, s_wave, 31, 32, l)
    g.e("s_waitcnt lgkmcnt(0)")
    g.e(f"s_cmp_ge_u32 s{s_wave}, 4")
    g.e(f"s_cbranch_scc1 {name}_ophase")
    LW = 12928
    s_ch, s_lb = 33, 34
    ACC = 0; S = [32, 96]; vA = list(range(160, 168)); vB = 168; T = 170
    g.e(f"""
    s_lshl_b32 s{s_ch}, s{s_hp}, 6
    s_lshl_b32 s35, s{s_rb}, 2
    s_add_u32 s{s_ch}, s{s_ch}, s35
    s_add_u32 s{s_ch}, s{s_ch}, s{s_wave}
    s_mul_i32 s{s_lb}, s{s_wave}, {LW}
    v_lshlrev_b32 v{T}, 4, v{l}
    v_add_u32 v{T+1}, 2, v{T}
    s_mul_i32 s36, s{s_ch}, {XR_STRIDE}
    s_add_u32 s36, s36, {WS_XR}
    s_lshl_b32 s37, s{s_ch}, 12
    s_lshl_b32 s38, s{s_ch}, 1
    v_mov_b32 v{T+2}, s38
    """)
    g.vm_reset()
    g.e(f"buffer_load_ushort v{T+3}, v{T+2}, s[{S_D}:{S_D+3}], 0 offen")
    g.e(f"s_add_u32 m0, s{s_lb}, {8320+480}")
    g.e("s_nop 0")
    for m in range(4):
        g.e(f"buffer_load_dwordx4 v{T}, s[{S_H}:{S_H+3}], s37 offen offset:{m*1024} lds")
    g.e(f"s_mov_b32 m0, s{s_lb}")
    g.e("s_nop 0")
    for m in range(4):
        g.e(f"buffer_load_dwordx4 v{T}, s[{S_WS}:{S_WS+3}], s36 offen offset:{m*1024} lds")
    g.e(f"s_add_u32 m0, s{s_lb}, 4160")
    g.e("s_nop 0")
    for m in range(4):
        g.e(f"buffer_load_dwordx4 v{T+1}, s[{S_WS}:{S_WS+3}], s36 offen offset:{m*1024} lds")
    g.e(f"""
    s_add_u32 s39, s36, 4096
    s_mov_b64 s[40:41], exec
    s_mov_b64 exec, 15
    s_add_u32 m0, s{s_lb}, 4096
    s_nop 0
    buffer_load_dwordx4 v{T}, s[{S_WS}:{S_WS+3}], s39 offen lds
    s_add_u32 m0, s{s_lb}, {4160+4096}
    s_nop 0
    buffer_load_dwordx4 v{T+1}, s[{S_WS}:{S_WS+3}], s39 offen lds
    s_mov_b64 exec, s[40:41]
    """)
    g.e(f"""
    v_mov_b32 v0, 0
    v_mov_b32 v1, 0
    v_mov_b32 v2, 0
    v_mov_b32 v3, 0
    s_add_u32 s39, s{s_lb}, 8320
    v_add_u32 v{T+4}, s39, v{T}
    v_cmp_gt_u32 vcc, 30, v{l}
    s_and_saveexec_b64 s[40:41], vcc
    ds_write_b128 v{T+4}, v[0:3]
    s_mov_b64 exec, s[40:41]
    """)
    g.e(f"""
    v_and_b32 v{T+5}, 15, v{l}
    v_lshrrev_b32 v{T+6}, 4, v{l}
    v_sub_u32 v{T+7}, 2031, v{T+5}
    v_and_b32 v{T+7}, -2, v{T+7}
    v_lshl_add_u32 v{T+7}, v{T+6}, 3, v{T+7}
    v_lshlrev_b32 v{T+7}, 1, v{T+7}
    v_and_b32 v{T+8}, 1, v{T+5}
    v_xor_b32 v{T+8}, 1, v{T+8}
    v_mul_u32_u24 v{T+8}, 4160, v{T+8}
    v_add_u32 v{T+7}, v{T+7}, v{T+8}
    v_add_u32 v{T+7}, s{s_lb}, v{T+7}
    """)
    for a in range(8):
        g.e(f"v_subrev_u32 v{vA[a]}, {512*a}, v{T+7}")
    g.e(f"""
    v_lshlrev_b32 v{vB}, 5, v{T+5}
    v_lshl_add_u32 v{vB}, v{T+6}, 4, v{vB}
    s_add_u32 s39, s{s_lb}, 8768
    v_add_u32 v{vB}, s39, v{vB}
    """)
    for r in range(32): g.e(f"v_mov_b32 v{ACC+r}, 0")
    stamp(g, 1)
    g.e("s_waitcnt vmcnt(0)")
    stamp(g, 2)
    g.e(f"""
    s_add_u32 s39, s{s_lb}, 8800
    v_mov_b32 v{T+4}, s39
    ds_read_u16 v{T+5}, v{T+4}
    v_lshlrev_b32 v{T+3}, 16, v{T+3}
    s_waitcnt lgkmcnt(0)
    v_lshlrev_b32 v{T+5}, 16, v{T+5}
    v_add_f32 v{T+5}, v{T+5}, v{T+3}
    v_cvt_pk_bf16_f32 v{T+5}, v{T+5}, v{T+5}
    ds_write_b16 v{T+4}, v{T+5}
    s_waitcnt lgkmcnt(0)
    """)
    def creads(sb):
        R = []
        seq = []
        for x in range(8):
            seq.append(("A", x)); seq.append(("B", x))
        for kind, x in seq:
            if kind == "A":
                d = sb + 4*x
                R.append((f"ds_read2_b32 v[{d}:{d+1}], v{vA[x]} offset0:0 offset1:1", f"A{x}a_{sb}"))
                R.append((f"ds_read2_b32 v[{d+2}:{d+3}], v{vA[x]} offset0:2 offset1:3", f"A{x}_{sb}"))
            else:
                d = sb + 32 + 4*x
                R.append((f"ds_read_b128 v[{d}:{d+3}], v{vB} offset:{512*x}", f"B{x}_{sb}"))
        return R
    def adv():
        for a in range(8): g.e(f"v_subrev_u32 v{vA[a]}, 64, v{vA[a]}")
        g.e(f"v_subrev_u32 v{vB}, 64, v{vB}")
    def cm(sb):
        M = []
        pairs = [(a, w) for a in range(8) for w in range(8) if a + w <= 7]
        pairs.sort(key=lambda p: (max(p), p[0]))
        for a, w in pairs:
            cb = a + w
            A = sb + 4*a; B = sb + 32 + 4*w; D = ACC + 4*cb
            M.append(f"v_mfma_f32_16x16x32_bf16 v[{D}:{D+3}], v[{A}:{A+3}], v[{B}:{B+3}], v[{D}:{D+3}]")
        return M
    R = creads(S[0])
    for i, (asm, tag) in enumerate(R):
        g.e(asm)
        if i == 11: g.e("s_waitcnt lgkmcnt(4)")
        if i == 19: g.e("s_waitcnt lgkmcnt(4)")
    adv()
    g.e("s_mov_b32 s37, 4")
    g.e("s_setprio 2")
    g.lab(f"{name}_cloop")
    for half in range(2):
        cur, nxt = S[half], S[1-half]
        g.e("s_waitcnt lgkmcnt(0)")
        M = cm(cur); R = creads(nxt)
        ri = 0
        for mi, asm in enumerate(M):
            g.e(asm)
            if mi < 32 and ri < 24 and (mi % 4 != 3):
                g.e(R[ri][0]); ri += 1
            if mi == 33:
                adv()
        assert ri == 24, ri
    g.e("s_sub_u32 s37, s37, 1")
    g.e("s_cmp_lg_u32 s37, 0")
    g.e(f"s_cbranch_scc1 {name}_cloop")
    g.e("s_setprio 0")
    g.e("s_waitcnt lgkmcnt(0)")
    g.e("s_nop 7")
    stamp(g, 3)
    g.e(f"""
    v_and_b32 v{T+5}, 15, v{l}
    v_lshrrev_b32 v{T+6}, 4, v{l}
    v_lshlrev_b32 v{T+5}, 5, v{T+5}
    v_lshl_add_u32 v{T+5}, v{T+6}, 3, v{T+5}
    s_lshl_b32 s37, s{s_ch}, 12
    s_add_u32 s37, s37, {WS_YT}
    """)
    for cb in range(8):
        d = 32 + 2*cb
        g.e(f"v_cvt_pk_bf16_f32 v{d}, v{ACC+4*cb}, v{ACC+4*cb+1}")
        g.e(f"v_cvt_pk_bf16_f32 v{d+1}, v{ACC+4*cb+2}, v{ACC+4*cb+3}")
    for cb in range(8):
        d = 32 + 2*cb
        g.e(f"buffer_store_dwordx2 v[{d}:{d+1}], v{T+5}, s[{S_WS}:{S_WS+3}], s37 offen offset:{512*cb}")
    g.e("s_waitcnt vmcnt(0)")
    flush_stamps(g, 1, 5)
    g.e("s_endpgm")

    g.lab(f"{name}_ophase")
    s_w4, s_wm, s_wn = 33, 34, 35
    PQ = 0
    KVS = 16
    BUF = [32, 96]
    T = 170
    g.e(f"""
    s_sub_u32 s{s_w4}, s{s_wave}, 4
    s_lshr_b32 s{s_wm}, s{s_w4}, 1
    s_and_b32 s{s_wn}, s{s_w4}, 1
    v_lshlrev_b32 v{T}, 4, v{l}
    s_lshl_b32 s36, s{s_rb}, 4
    s_add_u32 s36, s36, s{s_hp}
    s_lshl_b32 s36, s36, 2
    s_add_u32 s36, s36, s{s_w4}
    s_lshl_b32 s36, s36, 12
    s_add_u32 s36, s36, {WS_PQ}
    """)
    g.vm_reset()
    for i in range(4):
        pqi = g.vm(f"buffer_load_dwordx4 v[{PQ+4*i}:{PQ+4*i+3}], v{T}, s[{S_WS}:{S_WS+3}], s36 offen offset:{i*1024}")
    g.e(f"""
    s_lshl_b32 s37, s{s_hp}, 5
    s_add_u32 s37, s37, s{s_wn}
    s_mul_i32 s37, s37, 4224
    s_add_u32 s37, s37, {WS_KVP}
    v_and_b32 v{T+1}, 31, v{l}
    v_lshlrev_b32 v{T+1}, 2, v{T+1}
    v_add_u32 v{T+1}, 4096, v{T+1}
    """)
    ZB = 180
    for rbp in range(16):
        g.e(f"s_add_u32 s38, s37, {rbp*2*4224}")
        zi = g.vm(f"buffer_load_dword v{ZB+rbp}, v{T+1}, s[{S_WS}:{S_WS+3}], s38 offen")
    def load_batch(b):
        last = None
        for u in range(4):
            rbp = 4*b + u
            g.e(f"s_add_u32 s38, s37, {rbp*2*4224}")
            for q in range(4):
                d = BUF[b & 1] + 16*u + 4*q
                last = g.vm(f"buffer_load_dwordx4 v[{d}:{d+3}], v{T}, s[{S_WS}:{S_WS+3}], s38 offen offset:{q*1024}")
        return last
    bl = {}
    bl[0] = load_batch(0)
    bl[1] = load_batch(1)
    stamp(g, 1)
    g.vm_wait(zi)
    stamp(g, 2)
    for i in range(1, 16): g.e(f"v_add_f32 v{ZB}, v{ZB}, v{ZB+i}")
    g.e(f"v_cvt_pk_bf16_f32 v{ZB}, v{ZB}, v{ZB}")
    g.e(f"""
    s_lshl_b32 s38, s{s_w4}, 6
    s_add_u32 s38, s38, 52224
    v_and_b32 v{T+2}, 31, v{l}
    v_lshlrev_b32 v{T+2}, 1, v{T+2}
    v_add_u32 v{T+2}, s38, v{T+2}
    ds_write_b16 v{T+2}, v{ZB}
    v_lshrrev_b32 v{T+3}, 5, v{l}
    v_lshlrev_b32 v{T+3}, 4, v{T+3}
    v_add_u32 v{T+3}, s38, v{T+3}
    s_waitcnt lgkmcnt(0)
    ds_read_b128 v[{ZB+4}:{ZB+7}], v{T+3}
    ds_read_b128 v[{ZB+8}:{ZB+11}], v{T+3} offset:32
    """)
    for b in range(4):
        g.vm_wait(bl[b])
        for u in range(4):
            src = BUF[b & 1] + 16*u
            for r in range(0, 16, 2):
                if b == 0 and u == 0:
                    g.e(f"v_mov_b32 v{KVS+r}, v{src+r}")
                    g.e(f"v_mov_b32 v{KVS+r+1}, v{src+r+1}")
                else:
                    g.e(f"v_pk_add_f32 v[{KVS+r}:{KVS+r+1}], v[{KVS+r}:{KVS+r+1}], v[{src+r}:{src+r+1}]")
        if b + 2 < 4: bl[b+2] = load_batch(b + 2)
    stamp(g, 3)
    KF = 32
    for r in range(0, 16, 2):
        g.e(f"v_cvt_pk_bf16_f32 v{KF + r//2}, v{KVS+r}, v{KVS+r+1}")
    g.vm_wait(pqi)
    g.e("s_waitcnt lgkmcnt(0)")
    g.e("s_nop 1")
    NUM = [48, 64]; DEN = [80, 96]
    for mt in range(2):
        for q2 in range(2):
            a = KF + 4*q2; z = ZB + 4 + 4*q2; b = PQ + mt*8 + q2*4
            c = "0" if q2 == 0 else f"v[{NUM[mt]}:{NUM[mt]+15}]"
            g.e(f"v_mfma_f32_32x32x16_bf16 v[{NUM[mt]}:{NUM[mt]+15}], v[{a}:{a+3}], v[{b}:{b+3}], {c}")
            c = "0" if q2 == 0 else f"v[{DEN[mt]}:{DEN[mt]+15}]"
            g.e(f"v_mfma_f32_32x32x16_bf16 v[{DEN[mt]}:{DEN[mt]+15}], v[{z}:{z+3}], v[{b}:{b+3}], {c}")
    g.e("s_nop 15")
    g.e(f"s_mov_b32 s40, {EPS}")
    for mt in range(2):
        g.e(f"v_add_f32 v{DEN[mt]}, s40, v{DEN[mt]}")
    for mt in range(2):
        g.e(f"v_rcp_f32 v{DEN[mt]}, v{DEN[mt]}")
    g.e("s_nop 1")
    OUT = 112
    for mt in range(2):
        for r in range(16):
            g.e(f"v_mul_f32 v{NUM[mt]+r}, v{NUM[mt]+r}, v{DEN[mt]}")
        for r in range(0, 16, 2):
            g.e(f"v_cvt_pk_bf16_f32 v{OUT + mt*8 + r//2}, v{NUM[mt]+r}, v{NUM[mt]+r+1}")
    g.e(f"""
    s_lshl_b32 s36, s{s_rb}, 18
    s_lshl_b32 s38, s{s_hp}, 1
    s_add_u32 s38, s38, s{s_wn}
    s_lshl_b32 s38, s38, 13
    s_add_u32 s36, s36, s38
    s_lshl_b32 s38, s{s_wm}, 10
    s_add_u32 s36, s36, s38
    s_add_u32 s36, s36, {WS_O}
    v_and_b32 v{T+1}, 31, v{l}
    v_lshlrev_b32 v{T+1}, 4, v{T+1}
    v_lshrrev_b32 v{T+2}, 5, v{l}
    v_lshl_add_u32 v{T+1}, v{T+2}, 11, v{T+1}
    """)
    for mt in range(2):
        for q2 in range(2):
            d = OUT + mt*8 + q2*4
            g.e(f"s_add_u32 s38, s36, {q2*4096 + mt*512}")
            g.e(f"buffer_store_dwordx4 v[{d}:{d+3}], v{T+1}, s[{S_WS}:{S_WS+3}], s38 offen")
    g.e("s_waitcnt vmcnt(0)")
    flush_stamps(g, 1, 5)
    g.e("s_endpgm")
    g.lab(f"{name}_end")
    g.e("s_endpgm")
    return g.text() + kdesc(name, 208)

def gen_k3(name):
    g = G()
    g.L.append(khead(name))
    S_WS, S_WO, S_OUT, S_Q = 4, 8, 12, 16
    s_rb, s_hp, s_wave = 28, 29, 30
    l = 200
    g.e(f"s_cmp_ge_u32 s2, 256")
    g.e(f"s_cbranch_scc1 {name}_end")
    stamp(g, 0)
    srd(g, S_WS, 88, WS_SIZE)
    srd(g, S_WO, 64, 1024*1024*2)
    srd(g, S_OUT, 72, 2048*2048*2)
    srd(g, S_Q, 0, NB_SD)
    decode_wg(g, s_rb, s_hp, s_wave, 31, 32, l)
    s_rb2, s_cb2 = 33, 34
    g.e(f"""
    s_and_b32 s{s_rb2}, s2, 7
    s_lshl_b32 s{s_rb2}, s{s_rb2}, 1
    s_lshr_b32 s35, s2, 3
    s_and_b32 s35, s35, 1
    s_or_b32 s{s_rb2}, s{s_rb2}, s35
    s_lshr_b32 s{s_cb2}, s2, 4
    """)
    g.e("s_waitcnt lgkmcnt(0)")
    T = 170
    g.e(f"""
    v_lshrrev_b32 v{T}, 3, v{l}
    s_lshl_b32 s35, s{s_wave}, 7
    v_add_u32 v{T}, s35, v{T}
    v_lshlrev_b32 v{T}, 11, v{T}
    v_lshrrev_b32 v{T+1}, 4, v{l}
    v_and_b32 v{T+1}, 1, v{T+1}
    v_lshlrev_b32 v{T+1}, 2, v{T+1}
    v_and_b32 v{T+2}, 7, v{l}
    v_xor_b32 v{T+1}, v{T+1}, v{T+2}
    v_lshl_add_u32 v{T}, v{T+1}, 4, v{T}
    s_lshl_b32 s35, s{s_cb2}, 7
    v_add_u32 v{T}, s35, v{T}
    s_lshl_b32 s36, s{s_wave}, 14
    """)
    g.vm_reset()
    for i in range(16):
        g.e(f"s_add_u32 m0, s36, {i*1024}")
        g.e(f"s_mov_b32 s37, {i*8*2048}")
        g.vm(f"buffer_load_dwordx4 v{T}, s[{S_WO}:{S_WO+3}], s37 offen lds")
    dma_last = g.vmq - 1
    g.e(f"s_cmp_ge_u32 s{s_wave}, 4")
    g.e(f"s_cbranch_scc1 {name}_post")
    ACC = [0, 16]; AR = 32
    BF = [96, 104]
    vAo = 112; vBn = [113, 114]
    g.e(f"""
    v_and_b32 v{vAo}, 31, v{l}
    v_lshlrev_b32 v{vAo}, 4, v{vAo}
    v_lshrrev_b32 v{T+1}, 5, v{l}
    v_lshl_add_u32 v{vAo}, v{T+1}, 11, v{vAo}
    s_lshl_b32 s38, s{s_rb2}, 18
    s_lshl_b32 s39, s{s_wave}, 9
    s_add_u32 s38, s38, s39
    s_add_u32 s38, s38, {WS_O}
    """)
    PF = 16
    aid = {}
    def aload(t_static_reg, soff):
        d = AR + 4*t_static_reg
        return g.vm(f"buffer_load_dwordx4 v[{d}:{d+3}], v{vAo}, s[{S_WS}:{S_WS+3}], {soff} offen")
    for t in range(PF):
        g.e(f"s_add_u32 s39, s38, {t*4096}")
        aload(t, "s39")
    g.e(f"""
    v_lshrrev_b32 v{T}, 5, v{l}
    v_lshlrev_b32 v{T}, 2, v{T}
    v_and_b32 v{T+1}, 15, v{l}
    v_lshrrev_b32 v{T+1}, 2, v{T+1}
    v_add_u32 v{T}, v{T}, v{T+1}
    v_lshlrev_b32 v{T}, 7, v{T}
    v_lshrrev_b32 v{T+1}, 4, v{l}
    v_and_b32 v{T+1}, 1, v{T+1}
    v_lshlrev_b32 v{T+1}, 1, v{T+1}
    v_and_b32 v{T+2}, 3, v{l}
    v_lshrrev_b32 v{T+2}, 1, v{T+2}
    v_add_u32 v{T+1}, v{T+1}, v{T+2}
    v_lshrrev_b32 v{T+2}, 3, v{l}
    v_and_b32 v{T+2}, 1, v{T+2}
    v_lshlrev_b32 v{T+2}, 2, v{T+2}
    v_xor_b32 v{T+1}, v{T+1}, v{T+2}
    v_and_b32 v{T+3}, 1, v{l}
    v_lshl_add_u32 v{T}, v{T+3}, 3, v{T}
    v_lshl_add_u32 v{vBn[0]}, v{T+1}, 4, v{T}
    v_xor_b32 v{T+1}, 4, v{T+1}
    v_lshl_add_u32 v{vBn[1]}, v{T+1}, 4, v{T}
    """)
    for r in range(32): g.e(f"v_mov_b32 v{r}, 0")
    stamp(g, 1)
    g.vm_wait(dma_last)
    g.e("s_barrier")
    stamp(g, 2)
    def breads(setb, t16):
        R = []
        for nt in range(2):
            for q in range(2):
                d = setb + 4*nt + 2*q
                R.append(f"ds_read_b64_tr_b16 v[{d}:{d+1}], v{vBn[nt]} offset:{2048*t16 + 1024*q}")
        return R
    for x in breads(BF[0], 0): g.e(x)
    g.e(f"s_add_u32 s38, s38, {PF*4096}")
    g.e("s_mov_b32 s37, 4")
    g.e("s_setprio 2")
    g.lab(f"{name}_gloop")
    for t in range(16):
        cur, nxt = BF[t & 1], BF[(t + 1) & 1]
        A = AR + 4*t
        g.e("s_waitcnt vmcnt(15) lgkmcnt(0)")
        if t == 15:
            g.e(f"v_add_u32 v{vBn[0]}, 32768, v{vBn[0]}")
            g.e(f"v_add_u32 v{vBn[1]}, 32768, v{vBn[1]}")
        R = breads(nxt, (t + 1) & 15)
        g.e(f"v_mfma_f32_32x32x16_bf16 v[{ACC[0]}:{ACC[0]+15}], v[{cur}:{cur+3}], v[{A}:{A+3}], v[{ACC[0]}:{ACC[0]+15}]")
        g.e(R[0]); g.e(R[1]); g.e(R[2]); g.e(R[3])
        g.e(f"v_mfma_f32_32x32x16_bf16 v[{ACC[1]}:{ACC[1]+15}], v[{cur+4}:{cur+7}], v[{A}:{A+3}], v[{ACC[1]}:{ACC[1]+15}]")
        g.e(f"s_add_u32 s39, s38, {t*4096}")
        g.e(f"buffer_load_dwordx4 v[{A}:{A+3}], v{vAo}, s[{S_WS}:{S_WS+3}], s39 offen")
    g.e(f"s_add_u32 s38, s38, {PF*4096}")
    g.e("s_sub_u32 s37, s37, 1")
    g.e("s_cmp_lg_u32 s37, 0")
    g.e(f"s_cbranch_scc1 {name}_gloop")
    g.e("s_setprio 0")
    g.e("s_waitcnt vmcnt(0) lgkmcnt(0)")
    g.e("s_nop 7")
    stamp(g, 3)
    O = 32
    for nt in range(2):
        for r in range(0, 16, 2):
            g.e(f"v_cvt_pk_bf16_f32 v{O + nt*8 + r//2}, v{ACC[nt]+r}, v{ACC[nt]+r+1}")
    g.e("s_nop 1")
    for nt in range(2):
        for p in range(2):
            x = O + nt*8 + 4*p
            g.e(f"v_permlane32_swap_b32 v{x}, v{x+2}")
            g.e(f"v_permlane32_swap_b32 v{x+1}, v{x+3}")
    g.e(f"""
    v_and_b32 v{T}, 31, v{l}
    s_lshl_b32 s38, s{s_rb2}, 7
    s_lshl_b32 s39, s{s_wave}, 5
    s_add_u32 s38, s38, s39
    v_add_u32 v{T}, s38, v{T}
    v_lshlrev_b32 v{T}, 12, v{T}
    v_lshrrev_b32 v{T+1}, 5, v{l}
    v_lshl_add_u32 v{T}, v{T+1}, 4, v{T}
    s_lshl_b32 s38, s{s_cb2}, 7
    s_add_u32 s38, s38, 2048
    """)
    for nt in range(2):
        for p in range(2):
            x = O + nt*8 + 4*p
            g.e(f"buffer_store_dwordx4 v[{x}:{x+3}], v{T}, s[{S_OUT}:{S_OUT+3}], s38 offen offset:{nt*64 + p*32}")
    g.e("s_waitcnt vmcnt(0)")
    flush_stamps(g, 2, 5)
    g.e("s_endpgm")

    g.lab(f"{name}_post")
    stamp(g, 1)
    g.vm_wait(dma_last)
    g.e("s_barrier")
    stamp(g, 2)
    g.e(f"s_cmp_ge_u32 s{s_wave}, 6")
    g.e(f"s_cbranch_scc1 {name}_end")
    Y = 0; Q = 32; F = 64; OUT = 140
    g.e(f"""
    v_and_b32 v{T}, 7, v{l}
    v_lshrrev_b32 v{T+1}, 3, v{l}
    s_sub_u32 s35, s{s_wave}, 4
    s_lshl_b32 s35, s35, 3
    v_add_u32 v{T+1}, s35, v{T+1}
    v_lshlrev_b32 v{T+1}, 3, v{T+1}
    s_lshl_b32 s35, s{s_rb}, 7
    v_add_u32 v{T+1}, s35, v{T+1}
    v_lshlrev_b32 v{T+2}, 3, v{T}
    s_lshl_b32 s35, s{s_hp}, 6
    v_add_u32 v{T+2}, s35, v{T+2}
    v_lshlrev_b32 v{T+3}, 12, v{T+2}
    v_lshl_add_u32 v{T+3}, v{T+1}, 1, v{T+3}
    v_lshlrev_b32 v{T+4}, 11, v{T+1}
    v_lshl_add_u32 v{T+4}, v{T+2}, 1, v{T+4}
    v_lshlrev_b32 v{T+5}, 12, v{T+1}
    v_lshl_add_u32 v{T+5}, v{T+2}, 1, v{T+5}
    """)
    for j in range(8):
        g.e(f"s_mov_b32 s35, {WS_YT + j*4096}")
        g.e(f"buffer_load_dwordx4 v[{Y+4*j}:{Y+4*j+3}], v{T+3}, s[{S_WS}:{S_WS+3}], s35 offen")
    for i in range(8):
        g.e(f"s_mov_b32 s35, {i*2048}")
        g.e(f"buffer_load_dwordx4 v[{Q+4*i}:{Q+4*i+3}], v{T+4}, s[{S_Q}:{S_Q+3}], s35 offen")
    g.e("s_waitcnt vmcnt(0)")
    stamp(g, 3)
    for i in range(8):
        for m in range(4):
            a, b, c, d = F, F+1, F+2, F+3
            qd = Q + 4*i + m
            y0 = Y + 4*(2*m) + i//2; y1 = Y + 4*(2*m+1) + i//2
            g.e(f"v_lshlrev_b32 v{a}, 16, v{qd}")
            g.e(f"v_and_b32 v{b}, 0xffff0000, v{qd}")
            if i % 2 == 0:
                g.e(f"v_lshlrev_b32 v{c}, 16, v{y0}")
                g.e(f"v_lshlrev_b32 v{d}, 16, v{y1}")
            else:
                g.e(f"v_and_b32 v{c}, 0xffff0000, v{y0}")
                g.e(f"v_and_b32 v{d}, 0xffff0000, v{y1}")
            g.e(f"v_pk_mul_f32 v[{a}:{b}], v[{a}:{b}], v[{c}:{d}]")
            g.e(f"v_cvt_pk_bf16_f32 v{OUT+4*i+m}, v{a}, v{b}")
    for i in range(8):
        g.e(f"s_mov_b32 s35, {i*4096}")
        g.e(f"buffer_store_dwordx4 v[{OUT+4*i}:{OUT+4*i+3}], v{T+5}, s[{S_OUT}:{S_OUT+3}], s35 offen")
    g.e("s_waitcnt vmcnt(0)")
    flush_stamps(g, 2, 5)
    g.lab(f"{name}_end")
    g.e("s_endpgm")
    return g.text() + kdesc(name, 208)

HDR = open("concat_heads__ssm_conv_h3__linear_attn_block__prompt.s.ref").read().split("; Override")[0]
def full():
    s = HDR
    s += "; @launch kernel=k1_kernel grid=(256,1,1) block=(512,1,1) lds=122880\n"
    s += "; @launch kernel=k2_kernel grid=(256,1,1) block=(512,1,1) lds=52736\n"
    s += "; @launch kernel=k3_kernel grid=(256,1,1) block=(512,1,1) lds=131072\n"
    s += '.amdgcn_target "amdgcn-amd-amdhsa--gfx950"\n.text\n'
    s += gen_k1("k1_kernel") + gen_k2("k2_kernel") + gen_k3("k3_kernel")
    return s
if __name__ == "__main__":
    if "--prof" in sys.argv:
        PROF = True; sys.argv.remove("--prof")
    if "--dbg" in sys.argv:
        PROF = True; DBGSTAMP = True; sys.argv.remove("--dbg")
    out = sys.argv[1] if len(sys.argv) > 1 else "concat_heads__ssm_conv_h3__linear_attn_block__prompt.s"
    open(out, "w").write(full())
    print("wrote", out)
```

```python
class G:
    def __init__(s):
        s.L = []
        s.vmq = 0
        s.vmdone = 0
        s.lq = []
        s.ldone = 0
        s.uid = 0
    def e(s, x):
        for ln in x.split("\n"):
            ln = ln.strip()
            if ln: s.L.append("  " + ln)
    def lab(s, x): s.L.append(x + ":")
    def c(s, x): s.L.append("  ; " + x)
    def text(s): return "\n".join(s.L) + "\n"
    def newlabel(s, p="L"):
        s.uid += 1
        return f"{p}_{s.uid}"
    def vm_reset(s): s.vmq = 0; s.vmdone = 0
    def vm(s, x):
        s.e(x); s.vmq += 1
        return s.vmq - 1
    def vm_wait(s, idx):
        if idx < s.vmdone: return
        n = s.vmq - 1 - idx
        n = min(n, 63)
        s.e(f"s_waitcnt vmcnt({n})")
        s.vmdone = s.vmq - n
    def vm_wait_all(s):
        s.e("s_waitcnt vmcnt(0)"); s.vmdone = s.vmq
    def lg_reset(s, tags=()):
        s.lq = list(tags); s.ldone = 0
    def lg(s, x, tag):
        s.e(x)
        if not x.startswith("s_nop"): s.lq.append(tag)
    def lg_need(s, *tags):
        idx = -1
        for t in tags:
            if t not in s.lq: continue
            i = len(s.lq) - 1 - s.lq[::-1].index(t)
            idx = max(idx, i)
        if idx < s.ldone or idx < 0: return
        n = len(s.lq) - 1 - idx
        assert n <= 15
        s.e(f"s_waitcnt lgkmcnt({n})")
        s.ldone = idx + 1
    def lg_all(s):
        s.e("s_waitcnt lgkmcnt(0)"); s.ldone = len(s.lq)
    def lg_out(s): return len(s.lq) - s.ldone

def vr(b, n=1):
    return f"v{b}" if n == 1 else f"v[{b}:{b+n-1}]"
def sr(b, n=1):
    return f"s{b}" if n == 1 else f"s[{b}:{b+n-1}]"

def kdesc(name, vgpr, sgpr=102):
    acc = min(256, (vgpr + 3)//4*4)
    return f""".section .rodata,"a"
.p2align 6
.amdhsa_kernel {name}
  .amdhsa_next_free_vgpr {vgpr}
  .amdhsa_next_free_sgpr {sgpr}
  .amdhsa_accum_offset {acc}
  .amdhsa_group_segment_fixed_size 0
  .amdhsa_kernarg_size 96
  .amdhsa_user_sgpr_count 2
  .amdhsa_user_sgpr_kernarg_segment_ptr 1
  .amdhsa_system_sgpr_workgroup_id_x 1
.end_amdhsa_kernel
.text
"""
def khead(name):
    return f""".globl {name}
.p2align 8
.type {name},@function
{name}:
"""
```

```python
import sys
from dsl import *
WS_XR  = 0x0
XR_STRIDE = 4224
WS_YT  = 0x500000
WS_PQ  = 0x900000
WS_O   = 0xD00000
WS_KVP = 0x1100000
WS_SIZE = 0x1400000
LOG2E = 0x3fb8aa3b
EPS   = 0x358637bd
NB_SD = 2048*1024*2

PROF = False
ABL = set()
PROF_OFF = 0x8000000
def stamp(g, k):
    if not PROF: return
    g.e(f"s_memrealtime s[88:89]")
    g.e("s_waitcnt lgkmcnt(0)")
    g.e(f"s_mov_b32 s{70+k}, s88")
DBGSTAMP = False
def stampc(g, k):
    if not PROF: return
    g.e(f"s_memtime s[88:89]")
    g.e("s_waitcnt lgkmcnt(0)")
    g.e(f"s_mov_b32 s{70+k}, s88")
def flush_stamps(g, li, n, s_wave=30):
    if not PROF: return
    stamp(g, n-1)
    if DBGSTAMP:
        g.e(f"""
        s_load_dwordx2 s[64:65], s[0:1], 80
        s_mov_b32 s66, 256
        s_mov_b32 s67, 0x20000
        s_mov_b64 exec, 1
        v_mov_b32 v2, 0
        s_waitcnt lgkmcnt(0)
        s_sub_u32 s64, s64, {li*512}
        s_subb_u32 s65, s65, 0
        s_not_b32 s68, s70
        s_not_b32 s69, s{70+n-1}
        """)
        for k, sreg in enumerate(["s68", "s70", f"s{70+2}", f"s{70+n-1}", "s69"]):
            g.e(f"v_mov_b32 v1, {sreg}")
            g.e(f"buffer_atomic_umax v1, v2, s[64:67], 0 offen offset:{4*(li*5+k)}")
        g.e("s_waitcnt vmcnt(0)")
        return
    g.e(f"""
    s_load_dwordx2 s[64:65], s[0:1], 88
    s_mov_b32 s66, 0x10000000
    s_mov_b32 s67, 0x20000
    s_lshl_b32 s68, s2, 3
    s_add_u32 s68, s68, s{s_wave}
    s_add_u32 s68, s68, {li*2048}
    s_lshl_b32 s68, s68, 6
    s_add_u32 s68, s68, {PROF_OFF}
    s_mov_b64 exec, 1
    v_mov_b32 v2, 0
    s_waitcnt lgkmcnt(0)
    """)
    for k in list(range(n)) + ([6, 7] if li == 0 else []):
        g.e(f"v_mov_b32 v1, s{70+k}")
        g.e(f"buffer_store_dword v1, v2, s[64:67], s68 offen offset:{4*k}")
    g.e("s_waitcnt vmcnt(0)")

def srd(g, base, koff, nbytes):
    g.e(f"s_load_dwordx2 s[{base}:{base+1}], s[0:1], {koff}")
    g.e(f"s_mov_b32 s{base+2}, {nbytes}")
    g.e(f"s_mov_b32 s{base+3}, 0x20000")

def decode_wg(g, s_rb, s_hp, s_wave, t0, t1, vlane):
    g.e(f"""
    v_lshrrev_b32 v1, 6, v0
    s_and_b32 s{t0}, s2, 7
    s_lshr_b32 s{t1}, s2, 3
    s_and_b32 s{s_rb}, s{t0}, 1
    s_lshl_b32 s{s_rb}, s{s_rb}, 3
    v_readfirstlane_b32 s{s_wave}, v1
    s_lshr_b32 s{t0}, s{t0}, 1
    s_lshl_b32 s{s_hp}, s{t0}, 2
    s_and_b32 s{t0}, s{t1}, 7
    s_or_b32 s{s_rb}, s{s_rb}, s{t0}
    s_lshr_b32 s{t0}, s{t1}, 3
    s_or_b32 s{s_hp}, s{s_hp}, s{t0}
    v_and_b32 v{vlane}, 63, v0
    """)

def phi_pairs(g, regs, tmp, s_log2e, s_eps, outs):
    n = len(regs)
    for i in range(0, n, 2):
        a, b = regs[i], regs[i+1]
        ta, tb = tmp, tmp + 2
        g.e(f"v_pk_mul_f32 v[{ta}:{ta+1}], v[{a}:{a+1}], s[{s_log2e}:{s_log2e+1}]")
        g.e(f"v_pk_mul_f32 v[{tb}:{tb+1}], v[{b}:{b+1}], s[{s_log2e}:{s_log2e+1}]")
        g.e(f"v_exp_f32_e64 v{ta}, v{ta} clamp")
        g.e(f"v_exp_f32_e64 v{ta+1}, v{ta+1} clamp")
        g.e(f"v_exp_f32_e64 v{tb}, v{tb} clamp")
        g.e(f"v_exp_f32_e64 v{tb+1}, v{tb+1} clamp")
        g.e(f"v_max_f32 v{a}, 0, v{a}")
        g.e(f"v_max_f32 v{a+1}, 0, v{a+1}")
        g.e(f"v_max_f32 v{b}, 0, v{b}")
        g.e(f"v_max_f32 v{b+1}, 0, v{b+1}")
        g.e(f"v_pk_add_f32 v[{a}:{a+1}], v[{a}:{a+1}], v[{ta}:{ta+1}]")
        g.e(f"v_pk_add_f32 v[{b}:{b+1}], v[{b}:{b+1}], v[{tb}:{tb+1}]")
        g.e(f"v_pk_add_f32 v[{a}:{a+1}], v[{a}:{a+1}], s[{s_eps}:{s_eps+1}]")
        g.e(f"v_pk_add_f32 v[{b}:{b+1}], v[{b}:{b+1}], s[{s_eps}:{s_eps+1}]")
        g.e(f"v_cvt_pk_bf16_f32 v{outs[i]}, v{a}, v{a+1}")
        g.e(f"v_cvt_pk_bf16_f32 v{outs[i+1]}, v{b}, v{b+1}")

def gen_k1(name):
    g = G()
    g.L.append(khead(name))
    S_X, S_W, S_WS, S_K, S_V, S_SK = 4, 8, 12, 16, 20, 24
    s_rb, s_hp, s_wave = 28, 29, 30
    l = 192
    g.e(f"s_cmp_ge_u32 s2, 256")
    g.e(f"s_cbranch_scc1 {name}_end")
    stamp(g, 0)
    srd(g, S_X, 48, NB_SD)
    srd(g, S_W, 56, 1024*3072*2)
    srd(g, S_WS, 88, WS_SIZE)
    srd(g, S_K, 8, NB_SD)
    srd(g, S_V, 16, NB_SD)
    srd(g, S_SK, 24, 1024*4*2)
    decode_wg(g, s_rb, s_hp, s_wave, 31, 32, l)
    g.e("s_waitcnt lgkmcnt(0)")
    g.e(f"s_cmp_ge_u32 s{s_wave}, 4")
    g.e(f"s_cbranch_scc1 {name}_helper")

    ACCQ = [0, 16]; ACCK = [32, 48]; ACCV = [64, 80]
    P = [96, 116]
    vA = [136, 137, 138, 139]; vB = 140
    T = 150
    s_wm, s_wn = 33, 34
    g.e(f"""
    s_lshr_b32 s{s_wm}, s{s_wave}, 1
    s_and_b32 s{s_wn}, s{s_wave}, 1
    v_and_b32 v{T}, 31, v{l}
    s_lshl_b32 s35, s{s_wm}, 6
    v_add_u32 v{T}, s35, v{T}
    v_lshlrev_b32 v{T}, 7, v{T}
    v_lshrrev_b32 v{T+1}, 1, v{l}
    v_and_b32 v{T+1}, 7, v{T+1}
    v_lshrrev_b32 v{T+2}, 5, v{l}
    v_xor_b32 v{T+1}, v{T+1}, v{T+2}
    """)
    for j in range(4):
        g.e(f"v_xor_b32 v{T+3}, {2*j}, v{T+1}")
        g.e(f"v_lshl_add_u32 v{vA[j]}, v{T+3}, 4, v{T}")
    g.e(f"""
    v_lshrrev_b32 v{T}, 5, v{l}
    v_lshlrev_b32 v{T}, 3, v{T}
    v_and_b32 v{T+1}, 15, v{l}
    v_lshrrev_b32 v{T+1}, 2, v{T+1}
    v_add_u32 v{T}, v{T}, v{T+1}
    v_lshlrev_b32 v{T}, 7, v{T}
    v_lshrrev_b32 v{T+1}, 4, v{l}
    v_and_b32 v{T+1}, 1, v{T+1}
    v_lshlrev_b32 v{T+1}, 1, v{T+1}
    v_and_b32 v{T+2}, 3, v{l}
    v_lshrrev_b32 v{T+2}, 1, v{T+2}
    v_add_u32 v{T+1}, v{T+1}, v{T+2}
    s_lshl_b32 s35, s{s_wn}, 2
    v_add_u32 v{T+1}, s35, v{T+1}
    v_lshrrev_b32 v{T+2}, 3, v{l}
    v_and_b32 v{T+2}, 1, v{T+2}
    v_lshlrev_b32 v{T+2}, 2, v{T+2}
    v_xor_b32 v{T+1}, v{T+1}, v{T+2}
    v_lshl_add_u32 v{T}, v{T+1}, 4, v{T}
    v_and_b32 v{T+1}, 1, v{l}
    v_lshl_add_u32 v{T}, v{T+1}, 3, v{T}
    v_add_u32 v{vB}, 49152, v{T}
    """)
    for r in range(96):
        g.e(f"v_mov_b32 v{r}, 0")
    g.e("""
    s_mov_b32 s40, 16384
    s_mov_b32 s41, -32768
    s_mov_b32 s42, 24576
    s_mov_b32 s43, -49152
    s_mov_b32 s36, 0
    s_mov_b32 s37, 16
    s_setprio 2
    """)
    def reads(setb, j):
        A0, A1, Bq, Bk, Bv = setb, setb+4, setb+8, setb+12, setb+16
        def tr(dst, sec, q):
            return f"ds_read_b64_tr_b16 v[{dst+2*q}:{dst+2*q+1}], v{vB} offset:{sec*8192 + j*2048 + q*512}"
        RR = [
            (f"ds_read_b128 v[{A0}:{A0+3}], v{vA[j]} offset:0", f"A0_{setb}"),
            (tr(Bq, 0, 0), f"Bqa_{setb}"),
            (tr(Bq, 0, 1), f"Bq_{setb}"),
            (f"ds_read_b128 v[{A1}:{A1+3}], v{vA[j]} offset:4096", f"A1_{setb}"),
            (tr(Bk, 1, 0), f"Bka_{setb}"),
            (tr(Bk, 1, 1), f"Bk_{setb}"),
            (tr(Bv, 2, 0), f"Bva_{setb}"),
            (tr(Bv, 2, 1), f"Bv_{setb}"),
        ]
        if "noArd" in ABL: RR = [(("s_nop 0" if t.startswith("A") else a), t) for a, t in RR]
        if "noBrd" in ABL: RR = [(("s_nop 0" if t.startswith("B") else a), t) for a, t in RR]
        return RR
    def mfmas(setb):
        A0, A1, Bq, Bk, Bv = setb, setb+4, setb+8, setb+12, setb+16
        def m(acc, a, b): return f"v_mfma_f32_32x32x16_bf16 v[{acc}:{acc+15}], v[{a}:{a+3}], v[{b}:{b+3}], v[{acc}:{acc+15}]"
        return [
            (m(ACCQ[0], Bq, A0), [f"A0_{setb}", f"Bq_{setb}"]),
            (m(ACCQ[1], Bq, A1), [f"A1_{setb}"]),
            (m(ACCK[0], A0, Bk), [f"Bk_{setb}"]),
            (m(ACCK[1], A1, Bk), []),
            (m(ACCV[0], A0, Bv), [f"Bv_{setb}"]),
            (m(ACCV[1], A1, Bv), []),
        ]
    stamp(g, 1)
    g.e("s_barrier")
    stamp(g, 2)
    stampc(g, 6)
    g.lg_reset()
    for asm, tag in reads(P[0], 0): g.lg(asm, tag)
    g.lab(f"{name}_loop")
    g.lg_reset([t for a, t in reads(P[0], 0) if not a.startswith("s_nop")])
    for j in range(4):
        cur, nxt = P[j & 1], P[(j + 1) & 1]
        M = mfmas(cur)
        if j < 3:
            R = reads(nxt, j + 1)
            sched = [2, 2, 2, 2, 0, 0]
            ri = 0
            for mi, (asm, needs) in enumerate(M):
                if needs: g.lg_need(*needs)
                if "nomfma" not in ABL: g.e(asm)
                for _ in range(sched[mi]):
                    g.lg(*R[ri]); ri += 1
        else:
            R = reads(nxt, 0)
            for mi in range(2):
                asm, needs = M[mi]
                if needs: g.lg_need(*needs)
                if "nomfma" not in ABL: g.e(asm)
            g.e("""
            s_add_u32 s38, s36, 1
            s_cmp_eq_u32 s36, 2
            s_cselect_b32 s36, 0, s38
            s_cselect_b32 s38, s41, s40
            s_cselect_b32 s39, s43, s42
            """)
            for jj in range(4): g.e(f"v_add_u32 v{vA[jj]}, s38, v{vA[jj]}")
            g.e(f"v_add_u32 v{vB}, s39, v{vB}")
            g.lg_all()
            g.e("s_barrier")
            ri = 0
            for mi in range(2, 6):
                asm, needs = M[mi]
                if needs: g.lg_need(*needs)
                if "nomfma" not in ABL: g.e(asm)
                for _ in range(2):
                    g.lg(*R[ri]); ri += 1
    g.e("s_sub_u32 s37, s37, 1")
    g.e("s_cmp_lg_u32 s37, 0")
    g.e(f"s_cbranch_scc1 {name}_loop")
    g.e("s_waitcnt lgkmcnt(0)")
    g.e("s_setprio 0")
    stamp(g, 3)
    stampc(g, 7)
    PK, VF, ONES, PQ, TMP, TA = 96, 112, 128, 132, 148, 152
    s_l2e, s_eps = 44, 46
    g.e(f"""
    s_mov_b32 s{s_l2e}, {LOG2E}
    s_mov_b32 s{s_l2e+1}, {LOG2E}
    s_mov_b32 s{s_eps}, {EPS}
    s_mov_b32 s{s_eps+1}, {EPS}
    v_mov_b32 v{ONES}, 0x3f803f80
    v_mov_b32 v{ONES+1}, 0x3f803f80
    v_mov_b32 v{ONES+2}, 0x3f803f80
    v_mov_b32 v{ONES+3}, 0x3f803f80
    s_nop 7
    """)
    regs = [ACCK[mt] + r for mt in range(2) for r in range(0, 16, 2)]
    outs = [PK + mt*8 + r//2 for mt in range(2) for r in range(0, 16, 2)]
    phi_pairs(g, regs, TMP, s_l2e, s_eps, outs)
    for mt in range(2):
        for r in range(0, 16, 2):
            g.e(f"v_cvt_pk_bf16_f32 v{VF + mt*8 + r//2}, v{ACCV[mt]+r}, v{ACCV[mt]+r+1}")
    KV, Z = 64, 80
    g.e("s_nop 1")
    first = True
    for mt in range(2):
        for q2 in range(2):
            a = PK + mt*8 + q2*4; b = VF + mt*8 + q2*4
            c = "0" if first else f"v[{KV}:{KV+15}]"
            g.e(f"v_mfma_f32_32x32x16_bf16 v[{KV}:{KV+15}], v[{a}:{a+3}], v[{b}:{b+3}], {c}")
            c = "0" if first else f"v[{Z}:{Z+15}]"
            g.e(f"v_mfma_f32_32x32x16_bf16 v[{Z}:{Z+15}], v[{a}:{a+3}], v[{ONES}:{ONES+3}], {c}")
            first = False
    regs = [ACCQ[mt] + r for mt in range(2) for r in range(0, 16, 2)]
    outs = [PQ + mt*8 + r//2 for mt in range(2) for r in range(0, 16, 2)]
    phi_pairs(g, regs, TMP, s_l2e, s_eps, outs)
    stamp(g, 4)
    g.e(f"""
    s_lshl_b32 s35, s{s_rb}, 4
    s_add_u32 s35, s35, s{s_hp}
    s_lshl_b32 s35, s35, 2
    s_add_u32 s35, s35, s{s_wave}
    s_lshl_b32 s35, s35, 12
    s_add_u32 s35, s35, {WS_PQ}
    v_lshlrev_b32 v{TA}, 4, v{l}
    """)
    for i in range(4):
        g.e(f"buffer_store_dwordx4 v[{PQ+4*i}:{PQ+4*i+3}], v{TA}, s[{S_WS}:{S_WS+3}], s35 offen offset:{i*1024}")
    g.e(f"""
    s_lshl_b32 s38, s{s_wn}, 13
    v_add_u32 v{TA+1}, s38, v{TA}
    s_cmp_eq_u32 s{s_wm}, 0
    s_cbranch_scc1 {name}_red0
    """)
    for q in range(4):
        g.e(f"ds_write_b128 v{TA+1}, v[{KV+4*q}:{KV+4*q+3}] offset:{q*1024}")
    for q in range(4):
        g.e(f"ds_write_b128 v{TA+1}, v[{Z+4*q}:{Z+4*q+3}] offset:{4096+q*1024}")
    g.e("s_waitcnt lgkmcnt(0)")
    g.e("s_barrier")
    g.e("s_waitcnt vmcnt(0)")
    flush_stamps(g, 0, 6)
    g.e("s_endpgm")
    g.lab(f"{name}_red0")
    g.e("s_barrier")
    for q in range(4):
        g.e(f"ds_read_b128 v[{0+4*q}:{0+4*q+3}], v{TA+1} offset:{q*1024}")
    for q in range(4):
        g.e(f"ds_read_b128 v[{16+4*q}:{16+4*q+3}], v{TA+1} offset:{4096+q*1024}")
    g.e("s_waitcnt lgkmcnt(0)")
    for r in range(0, 16, 2):
        g.e(f"v_pk_add_f32 v[{KV+r}:{KV+r+1}], v[{KV+r}:{KV+r+1}], v[{r}:{r+1}]")
    for r in range(0, 16, 2):
        g.e(f"v_pk_add_f32 v[{Z+r}:{Z+r+1}], v[{Z+r}:{Z+r+1}], v[{16+r}:{16+r+1}]")
    g.e(f"""
    s_lshl_b32 s35, s{s_hp}, 4
    s_add_u32 s35, s35, s{s_rb}
    s_lshl_b32 s35, s35, 1
    s_add_u32 s35, s35, s{s_wn}
    s_mul_i32 s35, s35, 4224
    s_add_u32 s35, s35, {WS_KVP}
    """)
    for q in range(4):
        g.e(f"buffer_store_dwordx4 v[{KV+4*q}:{KV+4*q+3}], v{TA}, s[{S_WS}:{S_WS+3}], s35 offen offset:{q*1024}")
    g.e(f"""
    v_lshrrev_b32 v{TA+2}, 5, v{l}
    v_lshlrev_b32 v{TA+2}, 5, v{TA+2}
    v_add_u32 v{TA+2}, 4096, v{TA+2}
    v_and_b32 v{TA+3}, 31, v{l}
    v_cmp_eq_u32 vcc, 0, v{TA+3}
    s_and_saveexec_b64 s[48:49], vcc
    """)
    for q in range(4):
        off = (q >> 1)*64 + (q & 1)*16
        g.e(f"buffer_store_dwordx4 v[{Z+4*q}:{Z+4*q+3}], v{TA+2}, s[{S_WS}:{S_WS+3}], s35 offen offset:{off}")
    g.e("s_waitcnt vmcnt(0)")
    flush_stamps(g, 0, 6)
    g.e("s_endpgm")

    g.lab(f"{name}_helper")
    s_hw = 33
    vOA = [2, 3, 4, 5]; vOB = [[6, 7, 8], [9, 10, 11]]
    T = 12
    g.e(f"""
    s_sub_u32 s{s_hw}, s{s_wave}, 4
    v_lshrrev_b32 v{T}, 3, v{l}
    s_lshl_b32 s35, s{s_rb}, 7
    s_lshl_b32 s38, s{s_hw}, 5
    s_add_u32 s35, s35, s38
    v_add_u32 v{T+1}, s35, v{T}
    v_lshlrev_b32 v{T+1}, 11, v{T+1}
    v_lshrrev_b32 v{T+2}, 4, v{l}
    v_and_b32 v{T+3}, 7, v{l}
    """)
    for t in range(4):
        g.e(f"v_add_u32 v{T+4}, {4*t}, v{T+2}")
        g.e(f"v_and_b32 v{T+4}, 7, v{T+4}")
        g.e(f"v_xor_b32 v{T+4}, v{T+4}, v{T+3}")
        g.e(f"v_lshl_add_u32 v{T+4}, v{T+4}, 4, v{T+1}")
        g.e(f"v_add_u32 v{vOA[t]}, {t*8*2048}, v{T+4}")
    g.e(f"""
    s_lshl_b32 s35, s{s_hw}, 4
    v_add_u32 v{T+1}, s35, v{T}
    s_movk_i32 s38, 6144
    v_mul_lo_u32 v{T+1}, v{T+1}, s38
    v_and_b32 v{T+2}, 1, v{T+2}
    v_lshlrev_b32 v{T+2}, 2, v{T+2}
    v_xor_b32 v{T+2}, v{T+2}, v{T+3}
    v_lshl_add_u32 v{T+1}, v{T+2}, 4, v{T+1}
    s_lshl_b32 s35, s{s_hp}, 7
    v_add_u32 v{T+1}, s35, v{T+1}
    """)
    for b2 in range(2):
        for sec in range(3):
            g.e(f"v_add_u32 v{vOB[b2][sec]}, {b2*8*6144 + sec*2048}, v{T+1}")
    s_hwA, s_hwB, s_oA, s_oB = 40, 41, 42, 43
    g.e(f"s_lshl_b32 s{s_hwA}, s{s_hw}, 12")
    g.e(f"s_lshl_b32 s{s_hwB}, s{s_hw}, 11")
    g.vm_reset()
    def issue_stage(st):
        slot = st % 3
        g.e(f"s_mov_b32 s{s_oA}, {st*128}")
        g.e(f"s_mov_b32 s{s_oB}, {st*64*6144}")
        last = None
        for t in range(4):
            g.e(f"s_add_u32 m0, s{s_hwA}, {slot*16384 + t*1024}")
            g.e("s_nop 0")
            if "noload" in ABL and st >= 2: continue
            if "noA" in ABL and st >= 2: continue
            last = g.vm(f"buffer_load_dwordx4 v{vOA[t]}, s[{S_X}:{S_X+3}], s{s_oA} offen lds")
        for b2 in range(2):
            for sec in range(3):
                g.e(f"s_add_u32 m0, s{s_hwB}, {49152 + slot*24576 + sec*8192 + b2*1024}")
                g.e("s_nop 0")
                if "noload" in ABL and st >= 2: continue
                last = g.vm(f"buffer_load_dwordx4 v{vOB[b2][sec]}, s[{S_W}:{S_W+3}], s{s_oB} offen lds")
        if last is None: last = g.vmq - 1
        return last
    st_last = {}
    stamp(g, 1)
    st_last[0] = issue_stage(0)
    st_last[1] = issue_stage(1)
    vCol, vS0, vKb = 20, 21, 22
    vNeg = [23, 24, 25]
    KR = 32
    VR = 54
    WR = 70
    g.e(f"""
    v_and_b32 v{vCol}, 15, v{l}
    v_lshlrev_b32 v{vCol}, 3, v{vCol}
    s_lshl_b32 s35, s{s_hp}, 7
    v_add_u32 v{vCol}, s35, v{vCol}
    v_lshrrev_b32 v{vS0}, 4, v{l}
    s_lshl_b32 s35, s{s_hw}, 2
    v_add_u32 v{vS0}, s35, v{vS0}
    v_lshlrev_b32 v{vS0}, 3, v{vS0}
    s_lshl_b32 s35, s{s_rb}, 7
    v_add_u32 v{vS0}, s35, v{vS0}
    v_lshl_add_u32 v{vKb}, v{vS0}, 11, v{vCol}
    v_mov_b32 v26, 0x80000000
    v_cmp_eq_u32 vcc, 0, v{vS0}
    """)
    for i in range(3):
        g.e(f"v_subrev_u32 v{vNeg[i]}, {(3-i)*2048}, v{vKb}")
    for i in range(3):
        g.e(f"v_cndmask_b32 v{vNeg[i]}, v{vNeg[i]}, v26, vcc")
    for m in range(1, 4):
        g.e(f"s_mov_b32 s{44+m}, {m*4096}")
    def soff(row): return "0" if row < 2 else f"s{44 + row//2}"
    pl = None
    for i in range(3):
        pl = g.vm(f"buffer_load_dwordx2 v[{KR+2*i}:{KR+2*i+1}], v{vNeg[i]}, s[{S_K}:{S_K+3}], 0 offen")
    for r in range(8):
        pl = g.vm(f"buffer_load_dwordx2 v[{KR+6+2*r}:{KR+6+2*r+1}], v{vKb}, s[{S_K}:{S_K+3}], {soff(r)} offen offset:{(r&1)*2048}")
    for r in range(8):
        pl = g.vm(f"buffer_load_dwordx2 v[{VR+2*r}:{VR+2*r+1}], v{vKb}, s[{S_V}:{S_V+3}], {soff(r)} offen offset:{(r&1)*2048}")
    g.e(f"v_lshlrev_b32 v27, 2, v{vCol}")
    pl = g.vm(f"buffer_load_dwordx4 v[{WR}:{WR+3}], v27, s[{S_SK}:{S_SK+3}], 0 offen")
    pl = g.vm(f"buffer_load_dwordx4 v[{WR+4}:{WR+7}], v27, s[{S_SK}:{S_SK+3}], 0 offen offset:16")
    pre_last = pl
    KF = 80
    WF = 124
    XO = 140
    VF = 172
    OUT = 176
    def unpack2(dst, src):
        g.e(f"v_lshlrev_b32 v{dst}, 16, v{src}")
        g.e(f"v_and_b32 v{dst+1}, 0xffff0000, v{src}")
        g.e(f"v_lshlrev_b32 v{dst+2}, 16, v{src+1}")
        g.e(f"v_and_b32 v{dst+3}, 0xffff0000, v{src+1}")
    slices = []
    def sl_unpack_w():
        for c in range(4):
            g.e(f"v_lshlrev_b32 v{WF+0*4+c}, 16, v{WR+2*c}")
            g.e(f"v_and_b32 v{WF+1*4+c}, 0xffff0000, v{WR+2*c}")
            g.e(f"v_lshlrev_b32 v{WF+2*4+c}, 16, v{WR+2*c+1}")
            g.e(f"v_and_b32 v{WF+3*4+c}, 0xffff0000, v{WR+2*c+1}")
    def sl_unpack_k(a, b):
        for i in range(a, b): unpack2(KF+4*i, KR+2*i)
    def sl_fir(sa, sb):
        for s in range(sa, sb):
            for p in range(2):
                o = XO + 4*s + 2*p
                for j in range(4):
                    k = KF + 4*(s + 3 - j) + 2*p; w = WF + 4*j + 2*p
                    if j == 0: g.e(f"v_pk_mul_f32 v[{o}:{o+1}], v[{k}:{k+1}], v[{w}:{w+1}]")
                    else: g.e(f"v_pk_fma_f32 v[{o}:{o+1}], v[{k}:{k+1}], v[{w}:{w+1}], v[{o}:{o+1}]")
            unpack2(VF, VR+2*s)
            for p in range(2):
                o = XO + 4*s + 2*p
                g.e(f"v_pk_mul_f32 v[{o}:{o+1}], v[{o}:{o+1}], v[{VF+2*p}:{VF+2*p+1}]")
    def sl_store():
        for c in range(4):
            for m in range(4):
                g.e(f"v_cvt_pk_bf16_f32 v{OUT+4*c+m}, v{XO+4*(7-2*m)+c}, v{XO+4*(6-2*m)+c}")
        g.e(f"""
        v_lshrrev_b32 v28, 1, v{vCol}
        s_movk_i32 s35, {XR_STRIDE}
        v_mul_lo_u32 v28, v28, s35
        v_lshlrev_b32 v29, 1, v{vS0}
        v_sub_u32 v29, 4080, v29
        v_add_u32 v28, v28, v29
        """)
        for c in range(4):
            g.e(f"s_mov_b32 s35, {WS_XR + c*XR_STRIDE}")
            g.vm(f"buffer_store_dwordx4 v[{OUT+4*c}:{OUT+4*c+3}], v28, s[{S_WS}:{S_WS+3}], s35 offen")
        lab = g.newlabel("zp")
        g.e(f"""
        s_cmp_lg_u32 s{s_rb}, 0
        s_cbranch_scc1 {lab}
        s_lshl_b32 s35, s{s_hw}, 6
        v_add_u32 v28, s35, v{l}
        v_lshrrev_b32 v29, 2, v28
        s_lshl_b32 s35, s{s_hp}, 6
        v_add_u32 v29, s35, v29
        s_movk_i32 s35, {XR_STRIDE}
        v_mul_lo_u32 v29, v29, s35
        v_and_b32 v28, 3, v28
        v_lshl_add_u32 v29, v28, 5, v29
        v_mov_b32 v{OUT}, 0
        v_mov_b32 v{OUT+1}, 0
        v_mov_b32 v{OUT+2}, 0
        v_mov_b32 v{OUT+3}, 0
        s_mov_b32 s35, {WS_XR + 4096}
        s_nop 4
        buffer_store_dwordx4 v[{OUT}:{OUT+3}], v29, s[{S_WS}:{S_WS+3}], s35 offen
        buffer_store_dwordx4 v[{OUT}:{OUT+3}], v29, s[{S_WS}:{S_WS+3}], s35 offen offset:16
        s_waitcnt vmcnt(0)
        """)
        g.lab(lab)
    side = {
        1: [lambda: (g.vm_wait(pre_last), sl_unpack_w(), sl_unpack_k(0, 6))],
        2: [lambda: (sl_unpack_k(6, 11), sl_fir(0, 2))],
        3: [lambda: sl_fir(2, 5)],
        4: [lambda: sl_fir(5, 8)],
        5: [sl_store],
    }
    stamp(g, 2)
    g.vm_wait(st_last[0])
    stamp(g, 3)
    g.e("s_barrier")
    if "hloop" in ABL:
        g.e("s_mov_b32 s50, 16")
        g.lab("k1_hl")
        g.e("s_barrier")
        g.e("s_sub_u32 s50, s50, 1")
        g.e("s_cmp_lg_u32 s50, 0")
        g.e("s_cbranch_scc1 k1_hl")
        stamp(g, 4)
    for t in range(16 if "hloop" not in ABL else 0):
        if t + 2 <= 15: st_last[t+2] = issue_stage(t + 2)
        if "nopre" not in ABL:
            for f in side.get(t, []): f()
        if t + 1 <= 15: g.vm_wait(st_last[t+1])
        if t == 7: stamp(g, 4)
        g.e("s_barrier")
    g.e("s_waitcnt vmcnt(0)")
    flush_stamps(g, 0, 6)
    g.e("s_endpgm")
    g.lab(f"{name}_end")
    g.e("s_endpgm")
    return g.text() + kdesc(name, 200)

def gen_k2(name):
    g = G()
    g.L.append(khead(name))
    S_WS, S_H, S_D = 4, 8, 12
    s_rb, s_hp, s_wave = 28, 29, 30
    l = 200
    g.e(f"s_cmp_ge_u32 s2, 256")
    g.e(f"s_cbranch_scc1 {name}_end")
    stamp(g, 0)
    srd(g, S_WS, 88, WS_SIZE)
    srd(g, S_H, 32, NB_SD)
    srd(g, S_D, 40, 2048)
    decode_wg(g, s_rb, s_hp, s_wave, 31, 32, l)
    g.e("s_waitcnt lgkmcnt(0)")
    g.e(f"s_cmp_ge_u32 s{s_wave}, 4")
    g.e(f"s_cbranch_scc1 {name}_ophase")
    LW = 12928
    s_ch, s_lb = 33, 34
    ACC = 0; S = [32, 96]; vA = list(range(160, 168)); vB = 168; T = 170
    g.e(f"""
    s_lshl_b32 s{s_ch}, s{s_hp}, 6
    s_lshl_b32 s35, s{s_rb}, 2
    s_add_u32 s{s_ch}, s{s_ch}, s35
    s_add_u32 s{s_ch}, s{s_ch}, s{s_wave}
    s_mul_i32 s{s_lb}, s{s_wave}, {LW}
    v_lshlrev_b32 v{T}, 4, v{l}
    v_add_u32 v{T+1}, 2, v{T}
    s_mul_i32 s36, s{s_ch}, {XR_STRIDE}
    s_add_u32 s36, s36, {WS_XR}
    s_lshl_b32 s37, s{s_ch}, 12
    s_lshl_b32 s38, s{s_ch}, 1
    v_mov_b32 v{T+2}, s38
    """)
    g.vm_reset()
    g.e(f"buffer_load_ushort v{T+3}, v{T+2}, s[{S_D}:{S_D+3}], 0 offen")
    g.e(f"s_add_u32 m0, s{s_lb}, {8320+480}")
    g.e("s_nop 0")
    for m in range(4):
        g.e(f"buffer_load_dwordx4 v{T}, s[{S_H}:{S_H+3}], s37 offen offset:{m*1024} lds")
    g.e(f"s_mov_b32 m0, s{s_lb}")
    g.e("s_nop 0")
    for m in range(4):
        g.e(f"buffer_load_dwordx4 v{T}, s[{S_WS}:{S_WS+3}], s36 offen offset:{m*1024} lds")
    g.e(f"s_add_u32 m0, s{s_lb}, 4160")
    g.e("s_nop 0")
    for m in range(4):
        g.e(f"buffer_load_dwordx4 v{T+1}, s[{S_WS}:{S_WS+3}], s36 offen offset:{m*1024} lds")
    g.e(f"""
    s_add_u32 s39, s36, 4096
    s_mov_b64 s[40:41], exec
    s_mov_b64 exec, 15
    s_add_u32 m0, s{s_lb}, 4096
    s_nop 0
    buffer_load_dwordx4 v{T}, s[{S_WS}:{S_WS+3}], s39 offen lds
    s_add_u32 m0, s{s_lb}, {4160+4096}
    s_nop 0
    buffer_load_dwordx4 v{T+1}, s[{S_WS}:{S_WS+3}], s39 offen lds
    s_mov_b64 exec, s[40:41]
    """)
    g.e(f"""
    v_mov_b32 v0, 0
    v_mov_b32 v1, 0
    v_mov_b32 v2, 0
    v_mov_b32 v3, 0
    s_add_u32 s39, s{s_lb}, 8320
    v_add_u32 v{T+4}, s39, v{T}
    v_cmp_gt_u32 vcc, 30, v{l}
    s_and_saveexec_b64 s[40:41], vcc
    ds_write_b128 v{T+4}, v[0:3]
    s_mov_b64 exec, s[40:41]
    """)
    g.e(f"""
    v_and_b32 v{T+5}, 15, v{l}
    v_lshrrev_b32 v{T+6}, 4, v{l}
    v_sub_u32 v{T+7}, 2031, v{T+5}
    v_and_b32 v{T+7}, -2, v{T+7}
    v_lshl_add_u32 v{T+7}, v{T+6}, 3, v{T+7}
    v_lshlrev_b32 v{T+7}, 1, v{T+7}
    v_and_b32 v{T+8}, 1, v{T+5}
    v_xor_b32 v{T+8}, 1, v{T+8}
    v_mul_u32_u24 v{T+8}, 4160, v{T+8}
    v_add_u32 v{T+7}, v{T+7}, v{T+8}
    v_add_u32 v{T+7}, s{s_lb}, v{T+7}
    """)
    for a in range(8):
        g.e(f"v_subrev_u32 v{vA[a]}, {512*a}, v{T+7}")
    g.e(f"""
    v_lshlrev_b32 v{vB}, 5, v{T+5}
    v_lshl_add_u32 v{vB}, v{T+6}, 4, v{vB}
    s_add_u32 s39, s{s_lb}, 8768
    v_add_u32 v{vB}, s39, v{vB}
    """)
    for r in range(32): g.e(f"v_mov_b32 v{ACC+r}, 0")
    stamp(g, 1)
    g.e("s_waitcnt vmcnt(0)")
    stamp(g, 2)
    g.e(f"""
    s_add_u32 s39, s{s_lb}, 8800
    v_mov_b32 v{T+4}, s39
    ds_read_u16 v{T+5}, v{T+4}
    v_lshlrev_b32 v{T+3}, 16, v{T+3}
    s_waitcnt lgkmcnt(0)
    v_lshlrev_b32 v{T+5}, 16, v{T+5}
    v_add_f32 v{T+5}, v{T+5}, v{T+3}
    v_cvt_pk_bf16_f32 v{T+5}, v{T+5}, v{T+5}
    ds_write_b16 v{T+4}, v{T+5}
    s_waitcnt lgkmcnt(0)
    """)
    def creads(sb):
        R = []
        seq = []
        for x in range(8):
            seq.append(("A", x)); seq.append(("B", x))
        for kind, x in seq:
            if kind == "A":
                d = sb + 4*x
                R.append((f"ds_read2_b32 v[{d}:{d+1}], v{vA[x]} offset0:0 offset1:1", f"A{x}a_{sb}"))
                R.append((f"ds_read2_b32 v[{d+2}:{d+3}], v{vA[x]} offset0:2 offset1:3", f"A{x}_{sb}"))
            else:
                d = sb + 32 + 4*x
                R.append((f"ds_read_b128 v[{d}:{d+3}], v{vB} offset:{512*x}", f"B{x}_{sb}"))
        return R
    def adv():
        for a in range(8): g.e(f"v_subrev_u32 v{vA[a]}, 64, v{vA[a]}")
        g.e(f"v_subrev_u32 v{vB}, 64, v{vB}")
    def cm(sb):
        M = []
        pairs = [(a, w) for a in range(8) for w in range(8) if a + w <= 7]
        pairs.sort(key=lambda p: (max(p), p[0]))
        for a, w in pairs:
            cb = a + w
            A = sb + 4*a; B = sb + 32 + 4*w; D = ACC + 4*cb
            M.append(f"v_mfma_f32_16x16x32_bf16 v[{D}:{D+3}], v[{A}:{A+3}], v[{B}:{B+3}], v[{D}:{D+3}]")
        return M
    R = creads(S[0])
    for i, (asm, tag) in enumerate(R):
        g.e(asm)
        if i == 11: g.e("s_waitcnt lgkmcnt(4)")
        if i == 19: g.e("s_waitcnt lgkmcnt(4)")
    adv()
    g.e("s_mov_b32 s37, 4")
    g.e("s_setprio 2")
    g.lab(f"{name}_cloop")
    for half in range(2):
        cur, nxt = S[half], S[1-half]
        g.e("s_waitcnt lgkmcnt(0)")
        M = cm(cur); R = creads(nxt)
        ri = 0
        for mi, asm in enumerate(M):
            g.e(asm)
            if mi < 32 and ri < 24 and (mi % 4 != 3):
                g.e(R[ri][0]); ri += 1
            if mi == 33:
                adv()
        assert ri == 24, ri
    g.e("s_sub_u32 s37, s37, 1")
    g.e("s_cmp_lg_u32 s37, 0")
    g.e(f"s_cbranch_scc1 {name}_cloop")
    g.e("s_setprio 0")
    g.e("s_waitcnt lgkmcnt(0)")
    g.e("s_nop 7")
    stamp(g, 3)
    g.e(f"""
    v_and_b32 v{T+5}, 15, v{l}
    v_lshrrev_b32 v{T+6}, 4, v{l}
    v_lshlrev_b32 v{T+5}, 5, v{T+5}
    v_lshl_add_u32 v{T+5}, v{T+6}, 3, v{T+5}
    s_lshl_b32 s37, s{s_ch}, 12
    s_add_u32 s37, s37, {WS_YT}
    """)
    for cb in range(8):
        d = 32 + 2*cb
        g.e(f"v_cvt_pk_bf16_f32 v{d}, v{ACC+4*cb}, v{ACC+4*cb+1}")
        g.e(f"v_cvt_pk_bf16_f32 v{d+1}, v{ACC+4*cb+2}, v{ACC+4*cb+3}")
    for cb in range(8):
        d = 32 + 2*cb
        g.e(f"buffer_store_dwordx2 v[{d}:{d+1}], v{T+5}, s[{S_WS}:{S_WS+3}], s37 offen offset:{512*cb}")
    g.e("s_waitcnt vmcnt(0)")
    flush_stamps(g, 1, 5)
    g.e("s_endpgm")

    g.lab(f"{name}_ophase")
    s_w4, s_wm, s_wn = 33, 34, 35
    PQ = 0
    KVS = 16
    BUF = [32, 96]
    T = 170
    g.e(f"""
    s_sub_u32 s{s_w4}, s{s_wave}, 4
    s_lshr_b32 s{s_wm}, s{s_w4}, 1
    s_and_b32 s{s_wn}, s{s_w4}, 1
    v_lshlrev_b32 v{T}, 4, v{l}
    s_lshl_b32 s36, s{s_rb}, 4
    s_add_u32 s36, s36, s{s_hp}
    s_lshl_b32 s36, s36, 2
    s_add_u32 s36, s36, s{s_w4}
    s_lshl_b32 s36, s36, 12
    s_add_u32 s36, s36, {WS_PQ}
    """)
    g.vm_reset()
    for i in range(4):
        pqi = g.vm(f"buffer_load_dwordx4 v[{PQ+4*i}:{PQ+4*i+3}], v{T}, s[{S_WS}:{S_WS+3}], s36 offen offset:{i*1024}")
    g.e(f"""
    s_lshl_b32 s37, s{s_hp}, 5
    s_add_u32 s37, s37, s{s_wn}
    s_mul_i32 s37, s37, 4224
    s_add_u32 s37, s37, {WS_KVP}
    v_and_b32 v{T+1}, 31, v{l}
    v_lshlrev_b32 v{T+1}, 2, v{T+1}
    v_add_u32 v{T+1}, 4096, v{T+1}
    """)
    ZB = 180
    for rbp in range(16):
        g.e(f"s_add_u32 s38, s37, {rbp*2*4224}")
        zi = g.vm(f"buffer_load_dword v{ZB+rbp}, v{T+1}, s[{S_WS}:{S_WS+3}], s38 offen")
    def load_batch(b):
        last = None
        for u in range(4):
            rbp = 4*b + u
            g.e(f"s_add_u32 s38, s37, {rbp*2*4224}")
            for q in range(4):
                d = BUF[b & 1] + 16*u + 4*q
                last = g.vm(f"buffer_load_dwordx4 v[{d}:{d+3}], v{T}, s[{S_WS}:{S_WS+3}], s38 offen offset:{q*1024}")
        return last
    bl = {}
    bl[0] = load_batch(0)
    bl[1] = load_batch(1)
    stamp(g, 1)
    g.vm_wait(zi)
    stamp(g, 2)
    for i in range(1, 16): g.e(f"v_add_f32 v{ZB}, v{ZB}, v{ZB+i}")
    g.e(f"v_cvt_pk_bf16_f32 v{ZB}, v{ZB}, v{ZB}")
    g.e(f"""
    s_lshl_b32 s38, s{s_w4}, 6
    s_add_u32 s38, s38, 52224
    v_and_b32 v{T+2}, 31, v{l}
    v_lshlrev_b32 v{T+2}, 1, v{T+2}
    v_add_u32 v{T+2}, s38, v{T+2}
    ds_write_b16 v{T+2}, v{ZB}
    v_lshrrev_b32 v{T+3}, 5, v{l}
    v_lshlrev_b32 v{T+3}, 4, v{T+3}
    v_add_u32 v{T+3}, s38, v{T+3}
    s_waitcnt lgkmcnt(0)
    ds_read_b128 v[{ZB+4}:{ZB+7}], v{T+3}
    ds_read_b128 v[{ZB+8}:{ZB+11}], v{T+3} offset:32
    """)
    for b in range(4):
        g.vm_wait(bl[b])
        for u in range(4):
            src = BUF[b & 1] + 16*u
            for r in range(0, 16, 2):
                if b == 0 and u == 0:
                    g.e(f"v_mov_b32 v{KVS+r}, v{src+r}")
                    g.e(f"v_mov_b32 v{KVS+r+1}, v{src+r+1}")
                else:
                    g.e(f"v_pk_add_f32 v[{KVS+r}:{KVS+r+1}], v[{KVS+r}:{KVS+r+1}], v[{src+r}:{src+r+1}]")
        if b + 2 < 4: bl[b+2] = load_batch(b + 2)
    stamp(g, 3)
    KF = 32
    for r in range(0, 16, 2):
        g.e(f"v_cvt_pk_bf16_f32 v{KF + r//2}, v{KVS+r}, v{KVS+r+1}")
    g.vm_wait(pqi)
    g.e("s_waitcnt lgkmcnt(0)")
    g.e("s_nop 1")
    NUM = [48, 64]; DEN = [80, 96]
    for mt in range(2):
        for q2 in range(2):
            a = KF + 4*q2; z = ZB + 4 + 4*q2; b = PQ + mt*8 + q2*4
            c = "0" if q2 == 0 else f"v[{NUM[mt]}:{NUM[mt]+15}]"
            g.e(f"v_mfma_f32_32x32x16_bf16 v[{NUM[mt]}:{NUM[mt]+15}], v[{a}:{a+3}], v[{b}:{b+3}], {c}")
            c = "0" if q2 == 0 else f"v[{DEN[mt]}:{DEN[mt]+15}]"
            g.e(f"v_mfma_f32_32x32x16_bf16 v[{DEN[mt]}:{DEN[mt]+15}], v[{z}:{z+3}], v[{b}:{b+3}], {c}")
    g.e("s_nop 15")
    g.e(f"s_mov_b32 s40, {EPS}")
    for mt in range(2):
        g.e(f"v_add_f32 v{DEN[mt]}, s40, v{DEN[mt]}")
    for mt in range(2):
        g.e(f"v_rcp_f32 v{DEN[mt]}, v{DEN[mt]}")
    g.e("s_nop 1")
    OUT = 112
    for mt in range(2):
        for r in range(16):
            g.e(f"v_mul_f32 v{NUM[mt]+r}, v{NUM[mt]+r}, v{DEN[mt]}")
        for r in range(0, 16, 2):
            g.e(f"v_cvt_pk_bf16_f32 v{OUT + mt*8 + r//2}, v{NUM[mt]+r}, v{NUM[mt]+r+1}")
    g.e(f"""
    s_lshl_b32 s36, s{s_rb}, 18
    s_lshl_b32 s38, s{s_hp}, 1
    s_add_u32 s38, s38, s{s_wn}
    s_lshl_b32 s38, s38, 13
    s_add_u32 s36, s36, s38
    s_lshl_b32 s38, s{s_wm}, 10
    s_add_u32 s36, s36, s38
    s_add_u32 s36, s36, {WS_O}
    v_and_b32 v{T+1}, 31, v{l}
    v_lshlrev_b32 v{T+1}, 4, v{T+1}
    v_lshrrev_b32 v{T+2}, 5, v{l}
    v_lshl_add_u32 v{T+1}, v{T+2}, 11, v{T+1}
    """)
    for mt in range(2):
        for q2 in range(2):
            d = OUT + mt*8 + q2*4
            g.e(f"s_add_u32 s38, s36, {q2*4096 + mt*512}")
            g.e(f"buffer_store_dwordx4 v[{d}:{d+3}], v{T+1}, s[{S_WS}:{S_WS+3}], s38 offen")
    g.e("s_waitcnt vmcnt(0)")
    flush_stamps(g, 1, 5)
    g.e("s_endpgm")
    g.lab(f"{name}_end")
    g.e("s_endpgm")
    return g.text() + kdesc(name, 208)

def gen_k3(name):
    g = G()
    g.L.append(khead(name))
    S_WS, S_WO, S_OUT, S_Q = 4, 8, 12, 16
    s_rb, s_hp, s_wave = 28, 29, 30
    l = 200
    g.e(f"s_cmp_ge_u32 s2, 256")
    g.e(f"s_cbranch_scc1 {name}_end")
    stamp(g, 0)
    srd(g, S_WS, 88, WS_SIZE)
    srd(g, S_WO, 64, 1024*1024*2)
    srd(g, S_OUT, 72, 2048*2048*2)
    srd(g, S_Q, 0, NB_SD)
    decode_wg(g, s_rb, s_hp, s_wave, 31, 32, l)
    s_rb2, s_cb2 = 33, 34
    g.e(f"""
    s_and_b32 s{s_rb2}, s2, 7
    s_lshl_b32 s{s_rb2}, s{s_rb2}, 1
    s_lshr_b32 s35, s2, 3
    s_and_b32 s35, s35, 1
    s_or_b32 s{s_rb2}, s{s_rb2}, s35
    s_lshr_b32 s{s_cb2}, s2, 4
    """)
    g.e("s_waitcnt lgkmcnt(0)")
    T = 170
    g.e(f"""
    v_lshrrev_b32 v{T}, 3, v{l}
    s_lshl_b32 s35, s{s_wave}, 7
    v_add_u32 v{T}, s35, v{T}
    v_lshlrev_b32 v{T}, 11, v{T}
    v_lshrrev_b32 v{T+1}, 4, v{l}
    v_and_b32 v{T+1}, 1, v{T+1}
    v_lshlrev_b32 v{T+1}, 2, v{T+1}
    v_and_b32 v{T+2}, 7, v{l}
    v_xor_b32 v{T+1}, v{T+1}, v{T+2}
    v_lshl_add_u32 v{T}, v{T+1}, 4, v{T}
    s_lshl_b32 s35, s{s_cb2}, 7
    v_add_u32 v{T}, s35, v{T}
    s_lshl_b32 s36, s{s_wave}, 14
    """)
    g.vm_reset()
    for i in range(16):
        g.e(f"s_add_u32 m0, s36, {i*1024}")
        g.e(f"s_mov_b32 s37, {i*8*2048}")
        g.vm(f"buffer_load_dwordx4 v{T}, s[{S_WO}:{S_WO+3}], s37 offen lds")
    dma_last = g.vmq - 1
    g.e(f"s_cmp_ge_u32 s{s_wave}, 4")
    g.e(f"s_cbranch_scc1 {name}_post")
    ACC = [0, 16]; AR = 32
    BF = [96, 104]
    vAo = 112; vBn = [113, 114]
    g.e(f"""
    v_and_b32 v{vAo}, 31, v{l}
    v_lshlrev_b32 v{vAo}, 4, v{vAo}
    v_lshrrev_b32 v{T+1}, 5, v{l}
    v_lshl_add_u32 v{vAo}, v{T+1}, 11, v{vAo}
    s_lshl_b32 s38, s{s_rb2}, 18
    s_lshl_b32 s39, s{s_wave}, 9
    s_add_u32 s38, s38, s39
    s_add_u32 s38, s38, {WS_O}
    """)
    PF = 16
    aid = {}
    def aload(t_static_reg, soff):
        d = AR + 4*t_static_reg
        return g.vm(f"buffer_load_dwordx4 v[{d}:{d+3}], v{vAo}, s[{S_WS}:{S_WS+3}], {soff} offen")
    for t in range(PF):
        g.e(f"s_add_u32 s39, s38, {t*4096}")
        aload(t, "s39")
    g.e(f"""
    v_lshrrev_b32 v{T}, 5, v{l}
    v_lshlrev_b32 v{T}, 2, v{T}
    v_and_b32 v{T+1}, 15, v{l}
    v_lshrrev_b32 v{T+1}, 2, v{T+1}
    v_add_u32 v{T}, v{T}, v{T+1}
    v_lshlrev_b32 v{T}, 7, v{T}
    v_lshrrev_b32 v{T+1}, 4, v{l}
    v_and_b32 v{T+1}, 1, v{T+1}
    v_lshlrev_b32 v{T+1}, 1, v{T+1}
    v_and_b32 v{T+2}, 3, v{l}
    v_lshrrev_b32 v{T+2}, 1, v{T+2}
    v_add_u32 v{T+1}, v{T+1}, v{T+2}
    v_lshrrev_b32 v{T+2}, 3, v{l}
    v_and_b32 v{T+2}, 1, v{T+2}
    v_lshlrev_b32 v{T+2}, 2, v{T+2}
    v_xor_b32 v{T+1}, v{T+1}, v{T+2}
    v_and_b32 v{T+3}, 1, v{l}
    v_lshl_add_u32 v{T}, v{T+3}, 3, v{T}
    v_lshl_add_u32 v{vBn[0]}, v{T+1}, 4, v{T}
    v_xor_b32 v{T+1}, 4, v{T+1}
    v_lshl_add_u32 v{vBn[1]}, v{T+1}, 4, v{T}
    """)
    for r in range(32): g.e(f"v_mov_b32 v{r}, 0")
    stamp(g, 1)
    g.vm_wait(dma_last)
    g.e("s_barrier")
    stamp(g, 2)
    def breads(setb, t16):
        R = []
        for nt in range(2):
            for q in range(2):
                d = setb + 4*nt + 2*q
                R.append(f"ds_read_b64_tr_b16 v[{d}:{d+1}], v{vBn[nt]} offset:{2048*t16 + 1024*q}")
        return R
    for x in breads(BF[0], 0): g.e(x)
    g.e(f"s_add_u32 s38, s38, {PF*4096}")
    g.e("s_mov_b32 s37, 4")
    g.e("s_setprio 2")
    g.lab(f"{name}_gloop")
    for t in range(16):
        cur, nxt = BF[t & 1], BF[(t + 1) & 1]
        A = AR + 4*t
        g.e("s_waitcnt vmcnt(15) lgkmcnt(0)")
        if t == 15:
            g.e(f"v_add_u32 v{vBn[0]}, 32768, v{vBn[0]}")
            g.e(f"v_add_u32 v{vBn[1]}, 32768, v{vBn[1]}")
        R = breads(nxt, (t + 1) & 15)
        g.e(f"v_mfma_f32_32x32x16_bf16 v[{ACC[0]}:{ACC[0]+15}], v[{cur}:{cur+3}], v[{A}:{A+3}], v[{ACC[0]}:{ACC[0]+15}]")
        g.e(R[0]); g.e(R[1]); g.e(R[2]); g.e(R[3])
        g.e(f"v_mfma_f32_32x32x16_bf16 v[{ACC[1]}:{ACC[1]+15}], v[{cur+4}:{cur+7}], v[{A}:{A+3}], v[{ACC[1]}:{ACC[1]+15}]")
        g.e(f"s_add_u32 s39, s38, {t*4096}")
        g.e(f"buffer_load_dwordx4 v[{A}:{A+3}], v{vAo}, s[{S_WS}:{S_WS+3}], s39 offen")
    g.e(f"s_add_u32 s38, s38, {PF*4096}")
    g.e("s_sub_u32 s37, s37, 1")
    g.e("s_cmp_lg_u32 s37, 0")
    g.e(f"s_cbranch_scc1 {name}_gloop")
    g.e("s_setprio 0")
    g.e("s_waitcnt vmcnt(0) lgkmcnt(0)")
    g.e("s_nop 7")
    stamp(g, 3)
    O = 32
    for nt in range(2):
        for r in range(0, 16, 2):
            g.e(f"v_cvt_pk_bf16_f32 v{O + nt*8 + r//2}, v{ACC[nt]+r}, v{ACC[nt]+r+1}")
    g.e("s_nop 1")
    for nt in range(2):
        for p in range(2):
            x = O + nt*8 + 4*p
            g.e(f"v_permlane32_swap_b32 v{x}, v{x+2}")
            g.e(f"v_permlane32_swap_b32 v{x+1}, v{x+3}")
    g.e(f"""
    v_and_b32 v{T}, 31, v{l}
    s_lshl_b32 s38, s{s_rb2}, 7
    s_lshl_b32 s39, s{s_wave}, 5
    s_add_u32 s38, s38, s39
    v_add_u32 v{T}, s38, v{T}
    v_lshlrev_b32 v{T}, 12, v{T}
    v_lshrrev_b32 v{T+1}, 5, v{l}
    v_lshl_add_u32 v{T}, v{T+1}, 4, v{T}
    s_lshl_b32 s38, s{s_cb2}, 7
    s_add_u32 s38, s38, 2048
    """)
    for nt in range(2):
        for p in range(2):
            x = O + nt*8 + 4*p
            g.e(f"buffer_store_dwordx4 v[{x}:{x+3}], v{T}, s[{S_OUT}:{S_OUT+3}], s38 offen offset:{nt*64 + p*32}")
    g.e("s_waitcnt vmcnt(0)")
    flush_stamps(g, 2, 5)
    g.e("s_endpgm")

    g.lab(f"{name}_post")
    stamp(g, 1)
    g.vm_wait(dma_last)
    g.e("s_barrier")
    stamp(g, 2)
    g.e(f"s_cmp_ge_u32 s{s_wave}, 6")
    g.e(f"s_cbranch_scc1 {name}_end")
    Y = 0; Q = 32; F = 64; OUT = 140
    g.e(f"""
    v_and_b32 v{T}, 7, v{l}
    v_lshrrev_b32 v{T+1}, 3, v{l}
    s_sub_u32 s35, s{s_wave}, 4
    s_lshl_b32 s35, s35, 3
    v_add_u32 v{T+1}, s35, v{T+1}
    v_lshlrev_b32 v{T+1}, 3, v{T+1}
    s_lshl_b32 s35, s{s_rb}, 7
    v_add_u32 v{T+1}, s35, v{T+1}
    v_lshlrev_b32 v{T+2}, 3, v{T}
    s_lshl_b32 s35, s{s_hp}, 6
    v_add_u32 v{T+2}, s35, v{T+2}
    v_lshlrev_b32 v{T+3}, 12, v{T+2}
    v_lshl_add_u32 v{T+3}, v{T+1}, 1, v{T+3}
    v_lshlrev_b32 v{T+4}, 11, v{T+1}
    v_lshl_add_u32 v{T+4}, v{T+2}, 1, v{T+4}
    v_lshlrev_b32 v{T+5}, 12, v{T+1}
    v_lshl_add_u32 v{T+5}, v{T+2}, 1, v{T+5}
    """)
    for j in range(8):
        g.e(f"s_mov_b32 s35, {WS_YT + j*4096}")
        g.e(f"buffer_load_dwordx4 v[{Y+4*j}:{Y+4*j+3}], v{T+3}, s[{S_WS}:{S_WS+3}], s35 offen")
    for i in range(8):
        g.e(f"s_mov_b32 s35, {i*2048}")
        g.e(f"buffer_load_dwordx4 v[{Q+4*i}:{Q+4*i+3}], v{T+4}, s[{S_Q}:{S_Q+3}], s35 offen")
    g.e("s_waitcnt vmcnt(0)")
    stamp(g, 3)
    for i in range(8):
        for m in range(4):
            a, b, c, d = F, F+1, F+2, F+3
            qd = Q + 4*i + m
            y0 = Y + 4*(2*m) + i//2; y1 = Y + 4*(2*m+1) + i//2
            g.e(f"v_lshlrev_b32 v{a}, 16, v{qd}")
            g.e(f"v_and_b32 v{b}, 0xffff0000, v{qd}")
            if i % 2 == 0:
                g.e(f"v_lshlrev_b32 v{c}, 16, v{y0}")
                g.e(f"v_lshlrev_b32 v{d}, 16, v{y1}")
            else:
                g.e(f"v_and_b32 v{c}, 0xffff0000, v{y0}")
                g.e(f"v_and_b32 v{d}, 0xffff0000, v{y1}")
            g.e(f"v_pk_mul_f32 v[{a}:{b}], v[{a}:{b}], v[{c}:{d}]")
            g.e(f"v_cvt_pk_bf16_f32 v{OUT+4*i+m}, v{a}, v{b}")
    for i in range(8):
        g.e(f"s_mov_b32 s35, {i*4096}")
        g.e(f"buffer_store_dwordx4 v[{OUT+4*i}:{OUT+4*i+3}], v{T+5}, s[{S_OUT}:{S_OUT+3}], s35 offen")
    g.e("s_waitcnt vmcnt(0)")
    flush_stamps(g, 2, 5)
    g.lab(f"{name}_end")
    g.e("s_endpgm")
    return g.text() + kdesc(name, 208)

HDR = open("concat_heads__ssm_conv_h3__linear_attn_block__prompt.s.ref").read().split("; Override")[0]
def full():
    s = HDR
    s += "; @launch kernel=k1_kernel grid=(256,1,1) block=(512,1,1) lds=122880\n"
    s += "; @launch kernel=k2_kernel grid=(256,1,1) block=(512,1,1) lds=52736\n"
    s += "; @launch kernel=k3_kernel grid=(256,1,1) block=(512,1,1) lds=131072\n"
    s += '.amdgcn_target "amdgcn-amd-amdhsa--gfx950"\n.text\n'
    s += gen_k1("k1_kernel") + gen_k2("k2_kernel") + gen_k3("k3_kernel")
    return s
if __name__ == "__main__":
    if "--prof" in sys.argv:
        PROF = True; sys.argv.remove("--prof")
    for a in list(sys.argv):
        if a.startswith("--abl="):
            ABL = set(a[6:].split(",")); sys.argv.remove(a)
    if "--dbg" in sys.argv:
        PROF = True; DBGSTAMP = True; sys.argv.remove("--dbg")
    out = sys.argv[1] if len(sys.argv) > 1 else "concat_heads__ssm_conv_h3__linear_attn_block__prompt.s"
    open(out, "w").write(full())
    print("wrote", out)
```

```python
import sys
sys.path.insert(0,'gen')
import gen3
from dsl import *
base = gen3.full()
def variant(body, grid=1, block=64, lds=0, vgpr=8, pos="post", reps=1):
    s = base
    lines = s.split("\n")
    idx = [i for i,l in enumerate(lines) if l.startswith("; @launch")]
    e = f"; @launch kernel=e_kernel grid=({grid},1,1) block=({block},1,1) lds={lds}"
    if pos == "post":
        lines = lines[:idx[-1]+1] + [e]*reps + lines[idx[-1]+1:]
    else:
        lines = lines[:idx[0]] + [e]*reps + lines[idx[0]:]
    k = khead("e_kernel") + f"  s_cmp_ge_u32 s2, {grid}\n  s_cbranch_scc1 e_end\n" + body + "e_end:\n  s_endpgm\n" + kdesc("e_kernel", vgpr)
    return "\n".join(lines) + k
def chase(koff, nbytes, base_off, stride, n):
    return f"""  s_load_dwordx2 s[4:5], s[0:1], {koff}
  s_mov_b32 s6, {nbytes}
  s_mov_b32 s7, 0x20000
  s_mov_b32 s8, {base_off}
  s_mov_b32 s9, {n}
  v_mov_b32 v1, 0
  s_waitcnt lgkmcnt(0)
e_l:
  buffer_load_dword v2, v1, s[4:7], s8 offen
  s_waitcnt vmcnt(0)
  v_and_b32 v2, 0, v2
  v_add_u32 v1, v1, v2
  s_add_u32 s8, s8, {stride}
  s_sub_u32 s9, s9, 1
  s_cmp_lg_u32 s9, 0
  s_cbranch_scc1 e_l
"""
N = 32
for nm, st in (("128", 128), ("4k", 4096), ("64k", 65536), ("2m", 2<<20), ("4m", 4<<20)):
    open(f"ch_{nm}.s","w").write(variant(chase(88, 0x10000000, 64<<20, st, N)))
open("ch_0.s","w").write(variant(chase(88, 0x10000000, 64<<20, 0, N)))
```

```python
import sys
from dsl import *
NAME = "concat_heads__ssm_conv_h3__linear_attn_block__prompt_kernel"
WS_EPOCH = 0x0
WS_F1 = 0x1000
WS_F2 = 0x2000
WS_F3 = 0x3000
WS_F4 = 0x4000
WS_XR = 0x10000
WS_YT = 0x410000
WS_O  = 0x810000
WS_KVP = 0xC10000
KVP_STRIDE = 8448
WS_SIZE = 0x1000000
LA, LB = 0, 49152
LH = 122880; H_STRIDE = 8320
LX = 73728; X_STRIDE = 4576
LPQ = 92160
LRED = 108544
LKVX = 156160
LZX = 160256
LFLAG = 160512
LDS_TOTAL = 163840
LOG2E = 0x3fb8aa3b
EPS   = 0x358637bd
NB_SD = 2048*1024*2
MAXSPIN = 20000

PROF = False
OPT = {}
NT = set(["kv", "h"])
def ntf(k): return ' nt' if k in NT else ''
PROF_OFF = 0x8000000
def opt(k, d=None): return OPT.get(k, d)

S_X, S_W, S_WS, S_K, S_V, S_SK, S_H, S_D, S_WO, S_OUT, S_Q = 4, 8, 12, 16, 20, 24, 28, 32, 36, 40, 44
s_rb, s_hp, s_wave, s_tag, s_wm, s_wn, s_rb2, s_cb2 = 48, 49, 50, 51, 52, 53, 54, 55
t0, t1, t2, t3, t4, t5, t6, t7 = 56, 57, 58, 59, 60, 61, 62, 63
S_PF = 92
vL = 250
vJ = 251
vWO = 244

vST = 249
def stamp(g, k, sreg=None):
    if not PROF: return
    g.e(f"s_memrealtime s[88:89]")
    if sreg is not None: g.e(f"s_add_u32 m0, s{sreg}, {k}")
    g.e("s_waitcnt lgkmcnt(0)")
    g.e(f"v_writelane_b32 v{vST}, s88, {k if sreg is None else 'm0'}")
def stampc(g, k):
    if not PROF: return
    g.e(f"s_memtime s[88:89]")
    g.e("s_waitcnt lgkmcnt(0)")
    g.e(f"v_writelane_b32 v{vST}, s88, {k}")
def init_stamps(g):
    if not PROF: return
    g.e(f"v_mov_b32 v{vST}, 0")
def flush_stamps(g):
    if not PROF: return
    stamp(g, 15)
    g.e(f"""
    s_load_dwordx2 s[64:65], s[0:1], 88
    s_mov_b32 s66, 0x10000000
    s_mov_b32 s67, 0x20000
    s_lshl_b32 s68, s2, 3
    s_add_u32 s68, s68, s{s_wave}
    s_lshl_b32 s68, s68, 8
    s_add_u32 s68, s68, {PROF_OFF}
    v_lshlrev_b32 v2, 2, v{vL}
    s_waitcnt lgkmcnt(0)
    buffer_store_dword v{vST}, v2, s[64:67], s68 offen
    s_waitcnt vmcnt(0)
    """)

def srd_load(g, base, koff):
    g.e(f"s_load_dwordx2 s[{base}:{base+1}], s[0:1], {koff}")
def srd_const(g, base, nbytes):
    g.e(f"s_mov_b32 s{base+2}, {nbytes}")
    g.e(f"s_mov_b32 s{base+3}, 0x20000")
SRD_INFO = {S_X: (48, NB_SD), S_W: (56, 1024*3072*2), S_WS: (88, WS_SIZE), S_K: (8, NB_SD), S_V: (16, NB_SD),
            S_SK: (24, 1024*4*2), S_H: (32, NB_SD), S_D: (40, 2048), S_WO: (64, 1024*1024*2),
            S_OUT: (72, 2048*2048*2), S_Q: (0, NB_SD)}
def srds(g, lst):
    for b in lst: srd_load(g, b, SRD_INFO[b][0])
    for b in lst: srd_const(g, b, SRD_INFO[b][1])

def poll(g, vaddr, vtmp, soff, name):
    lab = g.newlabel(name); done = g.newlabel(name + "d")
    g.e(f"s_mov_b32 s{t7}, {MAXSPIN}")
    g.lab(lab)
    g.e(f"buffer_load_dword v{vtmp}, v{vaddr}, s[{S_WS}:{S_WS+3}], s{soff} offen sc1")
    g.e("s_waitcnt vmcnt(0)")
    g.e(f"v_cmp_ne_u32 vcc, s{s_tag}, v{vtmp}")
    g.e(f"s_cbranch_vccz {done}")
    g.e(f"s_sub_u32 s{t7}, s{t7}, 1")
    g.e(f"s_cbranch_scc1 {done}")
    g.e("s_sleep 1")
    g.e(f"s_branch {lab}")
    g.lab(done)

def post_flag(g, soff, vz, vt):
    g.e(f"""
    v_mov_b32 v{vz}, 0
    v_mov_b32 v{vt}, s{s_tag}
    s_mov_b64 exec, 1
    buffer_store_dword v{vt}, v{vz}, s[{S_WS}:{S_WS+3}], s{soff} offen sc1
    s_mov_b64 exec, -1
    """)

def phi_pairs(g, regs, tmp, s_l2e, s_eps, outs):
    n = len(regs)
    for i in range(0, n, 2):
        a, b = regs[i], regs[i+1]
        ta, tb = tmp, tmp + 2
        g.e(f"v_pk_mul_f32 v[{ta}:{ta+1}], v[{a}:{a+1}], s[{s_l2e}:{s_l2e+1}]")
        g.e(f"v_pk_mul_f32 v[{tb}:{tb+1}], v[{b}:{b+1}], s[{s_l2e}:{s_l2e+1}]")
        g.e(f"v_exp_f32_e64 v{ta}, v{ta} clamp")
        g.e(f"v_exp_f32_e64 v{ta+1}, v{ta+1} clamp")
        g.e(f"v_exp_f32_e64 v{tb}, v{tb} clamp")
        g.e(f"v_exp_f32_e64 v{tb+1}, v{tb+1} clamp")
        g.e(f"v_max_f32 v{a}, 0, v{a}")
        g.e(f"v_max_f32 v{a+1}, 0, v{a+1}")
        g.e(f"v_max_f32 v{b}, 0, v{b}")
        g.e(f"v_max_f32 v{b+1}, 0, v{b+1}")
        g.e(f"v_pk_add_f32 v[{a}:{a+1}], v[{a}:{a+1}], v[{ta}:{ta+1}]")
        g.e(f"v_pk_add_f32 v[{b}:{b+1}], v[{b}:{b+1}], v[{tb}:{tb+1}]")
        g.e(f"v_pk_add_f32 v[{a}:{a+1}], v[{a}:{a+1}], s[{s_eps}:{s_eps+1}]")
        g.e(f"v_pk_add_f32 v[{b}:{b+1}], v[{b}:{b+1}], s[{s_eps}:{s_eps+1}]")
        g.e(f"v_cvt_pk_bf16_f32 v{outs[i]}, v{a}, v{a+1}")
        g.e(f"v_cvt_pk_bf16_f32 v{outs[i+1]}, v{b}, v{b+1}")

def gen_entry(g):
    g.e(f"s_cmp_ge_u32 s2, 256")
    g.e(f"s_cbranch_scc1 L_end")
    init_stamps(g)
    stamp(g, 0)
    srd_load(g, S_X, 48); srd_load(g, S_W, 56); srd_load(g, S_WS, 88)
    g.e(f"""
    v_lshrrev_b32 v1, 6, v0
    s_and_b32 s{t0}, s2, 7
    s_lshr_b32 s{t1}, s2, 3
    v_readfirstlane_b32 s{s_wave}, v1
    s_and_b32 s{s_rb}, s{t0}, 1
    s_lshl_b32 s{s_rb}, s{s_rb}, 3
    s_lshr_b32 s{t2}, s{t0}, 1
    s_lshl_b32 s{s_hp}, s{t2}, 2
    s_and_b32 s{t2}, s{t1}, 7
    s_or_b32 s{s_rb}, s{s_rb}, s{t2}
    s_lshr_b32 s{t2}, s{t1}, 3
    s_or_b32 s{s_hp}, s{s_hp}, s{t2}
    v_and_b32 v{vL}, 63, v0
    s_lshl_b32 s{s_rb2}, s{t0}, 1
    s_and_b32 s{t2}, s{t1}, 1
    s_or_b32 s{s_rb2}, s{s_rb2}, s{t2}
    s_lshr_b32 s{s_cb2}, s2, 4
    """)
    for b in (S_X, S_W, S_WS): srd_const(g, b, SRD_INFO[b][1])
    g.e(f"s_cmp_ge_u32 s{s_wave}, 6")
    g.e(f"s_cbranch_scc1 L_aux")
    g.e(f"s_cmp_lt_u32 s{s_wave}, 4")
    g.e(f"s_cbranch_scc1 L_compute")

def wo_dma_setup(g, vW, T):
    g.e(f"""
    v_lshrrev_b32 v{T}, 3, v{vL}
    v_lshlrev_b32 v{T}, 11, v{T}
    v_lshrrev_b32 v{T+1}, 4, v{vL}
    v_and_b32 v{T+1}, 1, v{T+1}
    v_lshlrev_b32 v{T+1}, 2, v{T+1}
    v_and_b32 v{T+2}, 7, v{vL}
    v_xor_b32 v{T+1}, v{T+1}, v{T+2}
    v_lshl_add_u32 v{T}, v{T+1}, 4, v{T}
    s_lshl_b32 s{t0}, s{s_cb2}, 7
    v_add_u32 v{vW}, s{t0}, v{T}
    """)
    for m in range(1, 4):
        g.e(f"v_add_u32 v{vW+m}, {m*(8*2048 - 1024)}, v{vW}")
def wo_dma(g, vW, s_row0, nblk, name):
    lab = g.newlabel(name)
    g.e(f"""
    s_lshl_b32 s{t0}, s{s_row0}, 7
    s_lshl_b32 s{t1}, s{s_row0}, 11
    s_mov_b32 s{t2}, {nblk}
    """)
    g.lab(lab)
    g.e(f"s_mov_b32 m0, s{t0}")
    g.e(f"s_add_u32 s{t0}, s{t0}, 4096")
    for m in range(4):
        g.e(f"buffer_load_dwordx4 v{vW+m}, s[{S_WO}:{S_WO+3}], s{t1} offen offset:{m*1024}{ntf('wo')} lds")
    g.e(f"s_add_u32 s{t1}, s{t1}, {32*2048}")
    g.e(f"s_sub_u32 s{t2}, s{t2}, 1")
    g.e(f"s_cmp_lg_u32 s{t2}, 0")
    g.e(f"s_cbranch_scc1 {lab}")

def gen_loader(g):
    g.lab("L_loader")
    vAo = list(range(2, 10)); vBo = [[10 + 4*sec + i for i in range(4)] for sec in range(3)]
    T = 24
    s_a = s_wm
    g.e(f"""
    s_sub_u32 s{s_a}, s{s_wave}, 4
    v_lshrrev_b32 v{T}, 3, v{vL}
    s_lshl_b32 s{t0}, s{s_rb}, 7
    s_lshl_b32 s{t1}, s{s_a}, 6
    s_add_u32 s{t0}, s{t0}, s{t1}
    v_add_u32 v{T+1}, s{t0}, v{T}
    v_lshlrev_b32 v{T+1}, 11, v{T+1}
    v_lshrrev_b32 v{T+2}, 4, v{vL}
    v_and_b32 v{T+3}, 7, v{vL}
    v_xor_b32 v{T+4}, v{T+2}, v{T+3}
    v_xor_b32 v{T+5}, 4, v{T+4}
    v_lshl_add_u32 v{T+4}, v{T+4}, 4, v{T+1}
    v_lshl_add_u32 v{T+5}, v{T+5}, 4, v{T+1}
    """)
    for i in range(8):
        g.e(f"v_add_u32 v{vAo[i]}, {i*8*2048 - 1024*(i&3)}, v{T + 4 + (i&1)}")
    g.e(f"""
    s_lshl_b32 s{t0}, s{s_a}, 5
    v_add_u32 v{T+1}, s{t0}, v{T}
    s_movk_i32 s{t1}, 6144
    v_mul_lo_u32 v{T+1}, v{T+1}, s{t1}
    v_and_b32 v{T+2}, 1, v{T+2}
    v_lshlrev_b32 v{T+2}, 2, v{T+2}
    v_xor_b32 v{T+2}, v{T+2}, v{T+3}
    v_lshl_add_u32 v{T+1}, v{T+2}, 4, v{T+1}
    s_lshl_b32 s{t0}, s{s_hp}, 7
    v_add_u32 v{T+1}, s{t0}, v{T+1}
    """)
    for sec in range(3):
        for i in range(4):
            g.e(f"v_add_u32 v{vBo[sec][i]}, {i*(8*6144 - 1024) + sec*2048}, v{T+1}")
    s_SA, s_SB, s_OA, s_OB, s_cnt = 64, 65, 66, 67, 68
    g.e(f"""
    s_lshl_b32 s{s_SA}, s{s_a}, 13
    s_lshl_b32 s{s_SB}, s{s_a}, 12
    s_add_u32 s{s_SB}, s{s_SB}, {LB}
    s_mov_b32 s{s_OA}, 0
    s_mov_b32 s{s_OB}, 0
    s_mov_b32 s{s_cnt}, 0
    s_add_u32 s{t3}, s{s_SA}, {3*16384}
    s_waitcnt lgkmcnt(0)
    s_load_dword s{s_tag}, s[{S_WS}:{S_WS+1}], {WS_EPOCH}
    """)
    srd_load(g, S_WO, 64)
    def issue():
        g.e(f"s_mov_b32 m0, s{s_SA}")
        g.e("s_nop 0")
        for i in range(4):
            g.e(f"buffer_load_dwordx4 v{vAo[i]}, s[{S_X}:{S_X+3}], s{s_OA} offen offset:{1024*i}{ntf('x')} lds")
        g.e(f"s_add_u32 m0, s{s_SA}, 4096")
        g.e(f"s_add_u32 s{s_SA}, s{s_SA}, 16384")
        for i in range(4, 8):
            g.e(f"buffer_load_dwordx4 v{vAo[i]}, s[{S_X}:{S_X+3}], s{s_OA} offen offset:{1024*(i&3)}{ntf('x')} lds")
        for sec in range(3):
            g.e(f"s_add_u32 m0, s{s_SB}, {sec*8192}")
            if sec == 0: g.e(f"s_add_u32 s{s_OA}, s{s_OA}, 128")
            else: g.e("s_nop 0")
            for i in range(4):
                g.e(f"buffer_load_dwordx4 v{vBo[sec][i]}, s[{S_W}:{S_W+3}], s{s_OB} offen offset:{1024*i}{ntf('w')} lds")
        g.e(f"""
        s_add_u32 s{s_OB}, s{s_OB}, {64*6144}
        s_add_u32 s{s_SB}, s{s_SB}, 24576
        s_cmp_eq_u32 s{s_SA}, s{t3}
        s_cselect_b32 s{t0}, {3*16384}, 0
        s_cselect_b32 s{t1}, {3*24576}, 0
        s_sub_u32 s{s_SA}, s{s_SA}, s{t0}
        s_sub_u32 s{s_SB}, s{s_SB}, s{t1}
        """)
    issue()
    stamp(g, 1)
    issue()
    srd_const(g, S_WO, SRD_INFO[S_WO][1])
    srds(g, [S_Q, S_OUT])
    wo_dma_setup(g, vWO, 240)
    g.e("s_setprio 1")
    g.e("s_waitcnt vmcnt(20) lgkmcnt(0)")
    g.e(f"s_add_u32 s{s_tag}, s{s_tag}, 1")
    stamp(g, 2)
    g.e("s_barrier")
    g.lab("L_ldloop")
    issue()
    if opt("bar"): stamp(g, 32, s_cnt)
    g.e("s_waitcnt vmcnt(20)")
    if opt("bar"): stamp(g, 16, s_cnt)
    g.e(f"s_add_u32 s{s_cnt}, s{s_cnt}, 1")
    g.e(f"s_cmp_lg_u32 s{s_cnt}, 14")
    g.e("s_barrier")
    g.e("s_cbranch_scc1 L_ldloop")
    g.e("s_waitcnt vmcnt(0)")
    g.e("s_barrier")
    g.e("s_barrier")
    stamp(g, 3)
    g.e(f"s_lshl_b32 s{t3}, s{s_a}, 8")
    wo_dma(g, vWO, t3, 8, "wo01")
    g.e("s_barrier")
    g.e("s_barrier")
    g.e("s_branch L_helper")

def gen_compute(g):
    g.lab("L_compute")
    srds(g, [S_WO, S_Q, S_OUT])
    ACCQ = [0, 16]; ACCK = [32, 48]; ACCV = [64, 80]
    P = [96, 116]
    vA = [136, 137, 138, 139]; vB = 140
    T = 150
    l = vL
    g.e(f"""
    s_lshr_b32 s{s_wm}, s{s_wave}, 1
    s_and_b32 s{s_wn}, s{s_wave}, 1
    v_and_b32 v{T}, 31, v{l}
    s_lshl_b32 s{t0}, s{s_wm}, 6
    v_add_u32 v{T}, s{t0}, v{T}
    v_lshlrev_b32 v{T}, 7, v{T}
    v_lshrrev_b32 v{T+1}, 1, v{l}
    v_and_b32 v{T+1}, 7, v{T+1}
    v_lshrrev_b32 v{T+2}, 5, v{l}
    v_xor_b32 v{T+1}, v{T+1}, v{T+2}
    """)
    for j in range(4):
        g.e(f"v_xor_b32 v{T+3}, {2*j}, v{T+1}")
        g.e(f"v_lshl_add_u32 v{vA[j]}, v{T+3}, 4, v{T}")
    g.e(f"""
    v_lshrrev_b32 v{T}, 5, v{l}
    v_lshlrev_b32 v{T}, 3, v{T}
    v_and_b32 v{T+1}, 15, v{l}
    v_lshrrev_b32 v{T+1}, 2, v{T+1}
    v_add_u32 v{T}, v{T}, v{T+1}
    v_lshlrev_b32 v{T}, 7, v{T}
    v_lshrrev_b32 v{T+1}, 4, v{l}
    v_and_b32 v{T+1}, 1, v{T+1}
    v_lshlrev_b32 v{T+1}, 1, v{T+1}
    v_and_b32 v{T+2}, 3, v{l}
    v_lshrrev_b32 v{T+2}, 1, v{T+2}
    v_add_u32 v{T+1}, v{T+1}, v{T+2}
    s_lshl_b32 s{t0}, s{s_wn}, 2
    v_add_u32 v{T+1}, s{t0}, v{T+1}
    v_lshrrev_b32 v{T+2}, 3, v{l}
    v_and_b32 v{T+2}, 1, v{T+2}
    v_lshlrev_b32 v{T+2}, 2, v{T+2}
    v_xor_b32 v{T+1}, v{T+1}, v{T+2}
    v_lshl_add_u32 v{T}, v{T+1}, 4, v{T}
    v_and_b32 v{T+1}, 1, v{l}
    v_lshl_add_u32 v{T}, v{T+1}, 3, v{T}
    v_add_u32 v{vB}, {LB}, v{T}
    """)
    for r in range(96):
        g.e(f"v_mov_b32 v{r}, 0")
    g.e("s_waitcnt lgkmcnt(0)")
    g.e(f"s_load_dword s{s_tag}, s[{S_WS}:{S_WS+1}], {WS_EPOCH}")
    vPa, vPb = 252, 253
    s_po, s_pi, s_p0, s_pn = 96, 97, 98, 99
    PV = 160
    LA_ = int(opt("la", 8))
    g.e(f"""
    s_and_b32 s{t0}, s2, 7
    s_lshr_b32 s{t1}, s2, 3
    s_mov_b32 s{S_PF+3}, 0x20000
    s_cmp_eq_u32 s{s_wave}, 1
    s_cbranch_scc1 L_pf1
    s_cmp_eq_u32 s{s_wave}, 2
    s_cbranch_scc1 L_pf2
    s_cmp_eq_u32 s{s_wave}, 3
    s_cbranch_scc1 L_pf3
    """)
    g.e(f"""
    s_mov_b32 s{S_PF}, s{S_X}
    s_mov_b32 s{S_PF+1}, s{S_X+1}
    s_mov_b32 s{S_PF+2}, {NB_SD}
    s_and_b32 s{t2}, s{t0}, 1
    s_lshl_b32 s{t2}, s{t2}, 10
    s_lshl_b32 s{t3}, s{t1}, 5
    s_add_u32 s{t2}, s{t2}, s{t3}
    v_and_b32 v{PV}, 31, v{l}
    v_add_u32 v{PV}, s{t2}, v{PV}
    v_lshlrev_b32 v{PV}, 11, v{PV}
    v_lshrrev_b32 v{PV+1}, 5, v{l}
    v_lshl_add_u32 v{vPa}, v{PV+1}, 7, v{PV}
    v_mov_b32 v{PV+2}, 0x80000000
    v_cmp_gt_u32 vcc, 32, v{l}
    s_movk_i32 s{s_pi}, 128
    s_mov_b32 s{s_p0}, 0
    s_mov_b32 s{s_pn}, {16 - LA_}
    v_cndmask_b32 v{vPb}, v{PV+2}, v{vPa}, vcc
    s_branch L_pfburst
    """)
    g.lab("L_pf1")
    g.e(f"""
    s_mov_b32 s{S_PF}, s{S_W}
    s_mov_b32 s{S_PF+1}, s{S_W+1}
    s_mov_b32 s{S_PF+2}, {1024*3072*2}
    v_and_b32 v{PV}, 31, v{l}
    v_cmp_le_u32 vcc, 12, v{PV}
    s_lshl_b32 s{t3}, s{t1}, 1
    s_nop 0
    v_cndmask_b32 v{PV+1}, 0, 1, vcc
    v_mul_u32_u24 v{PV+3}, 12, v{PV+1}
    v_sub_u32 v{PV+3}, v{PV}, v{PV+3}
    v_add_u32 v{PV+1}, s{t3}, v{PV+1}
    v_lshrrev_b32 v{PV+4}, 5, v{l}
    v_lshl_add_u32 v{PV+1}, v{PV+4}, 6, v{PV+1}
    v_mul_u32_u24 v{PV+1}, 6144, v{PV+1}
    v_lshrrev_b32 v{PV+4}, 2, v{PV+3}
    v_lshl_add_u32 v{PV+1}, v{PV+4}, 11, v{PV+1}
    v_and_b32 v{PV+4}, 3, v{PV+3}
    v_lshl_add_u32 v{PV+1}, v{PV+4}, 7, v{PV+1}
    s_lshr_b32 s{t3}, s{t0}, 1
    s_lshl_b32 s{t3}, s{t3}, 9
    v_add_u32 v{PV+1}, s{t3}, v{PV+1}
    v_cmp_le_u32 vcc, 24, v{PV}
    v_mov_b32 v{PV+4}, 0x80000000
    s_mov_b32 s{s_pi}, {64*6144}
    v_cndmask_b32 v{vPa}, v{PV+1}, v{PV+4}, vcc
    v_cmp_gt_u32 vcc, 32, v{l}
    s_mov_b32 s{s_p0}, 0
    s_mov_b32 s{s_pn}, {16 - LA_}
    v_cndmask_b32 v{vPb}, v{PV+4}, v{vPa}, vcc
    """)
    g.lab("L_pfburst")
    g.e(f"s_lshl_b32 s{s_po}, s{s_pi}, 1")
    for st in range(2, LA_, 2):
        g.e(f"buffer_load_dword v{vJ}, v{vPa}, s[{S_PF}:{S_PF+3}], s{s_po} offen")
        g.e(f"s_lshl_b32 s{t2}, s{s_pi}, 1")
        g.e(f"s_add_u32 s{s_po}, s{s_po}, s{t2}")
    g.e("s_branch L_pfdone")
    g.lab("L_pf2")
    g.e(f"""
    s_mov_b32 s{S_PF}, s{S_WO}
    s_mov_b32 s{S_PF+1}, s{S_WO+1}
    s_mov_b32 s{S_PF+2}, {1024*1024*2}
    s_lshl_b32 s{s_po}, s{t1}, 16
    v_lshlrev_b32 v{vPb}, 7, v{l}
    s_movk_i32 s{s_pi}, 8192
    s_mov_b32 s{s_p0}, {int(opt('wo0', 4))}
    s_mov_b32 s{s_pn}, 8
    s_branch L_pfdone
    """)
    g.lab("L_pf3")
    g.e(f"""
    s_mov_b32 s{S_PF}, s{S_Q}
    s_mov_b32 s{S_PF+1}, s{S_Q+1}
    s_mov_b32 s{S_PF+2}, {NB_SD}
    s_lshl_b32 s{s_po}, s{s_rb}, 18
    s_lshl_b32 s{t2}, s{s_hp}, 7
    s_add_u32 s{s_po}, s{s_po}, s{t2}
    v_lshlrev_b32 v{vPb}, 11, v{l}
    s_mov_b32 s{s_pi}, {64*2048}
    s_mov_b32 s{s_p0}, {int(opt('q0', 10))}
    s_mov_b32 s{s_pn}, 2
    """)
    g.lab("L_pfdone")
    g.e(f"""
    s_mov_b32 s64, 16384
    s_mov_b32 s65, -32768
    s_mov_b32 s66, 24576
    s_mov_b32 s67, -49152
    s_mov_b32 s68, 0
    s_mov_b32 s69, 0
    s_waitcnt lgkmcnt(0)
    s_add_u32 s{s_tag}, s{s_tag}, 1
    s_setprio 3
    """)
    s_slot, s_it = 68, 69
    def reads(setb, j):
        A0, A1, Bq, Bk, Bv = setb, setb+4, setb+8, setb+12, setb+16
        def tr(dst, sec, q):
            return f"ds_read_b64_tr_b16 v[{dst+2*q}:{dst+2*q+1}], v{vB} offset:{sec*8192 + j*2048 + q*512}"
        return [
            (f"ds_read_b128 v[{A0}:{A0+3}], v{vA[j]} offset:0", f"A0_{setb}"),
            (tr(Bq, 0, 0), f"Bqa_{setb}"),
            (tr(Bq, 0, 1), f"Bq_{setb}"),
            (f"ds_read_b128 v[{A1}:{A1+3}], v{vA[j]} offset:4096", f"A1_{setb}"),
            (tr(Bk, 1, 0), f"Bka_{setb}"),
            (tr(Bk, 1, 1), f"Bk_{setb}"),
            (tr(Bv, 2, 0), f"Bva_{setb}"),
            (tr(Bv, 2, 1), f"Bv_{setb}"),
        ]
    def mfmas(setb):
        A0, A1, Bq, Bk, Bv = setb, setb+4, setb+8, setb+12, setb+16
        def m(acc, a, b): return f"v_mfma_f32_32x32x16_bf16 v[{acc}:{acc+15}], v[{a}:{a+3}], v[{b}:{b+3}], v[{acc}:{acc+15}]"
        return [
            (m(ACCQ[0], Bq, A0), [f"A0_{setb}", f"Bq_{setb}"]),
            (m(ACCQ[1], Bq, A1), [f"A1_{setb}"]),
            (m(ACCK[0], A0, Bk), [f"Bk_{setb}"]),
            (m(ACCK[1], A1, Bk), []),
            (m(ACCV[0], A0, Bv), [f"Bv_{setb}"]),
            (m(ACCV[1], A1, Bv), []),
        ]
    stamp(g, 1)
    g.e("s_barrier")
    stamp(g, 2)
    stampc(g, 13)
    g.lg_reset()
    for asm, tag in reads(P[0], 0): g.lg(asm, tag)
    g.lab("L_g1loop")
    g.lg_reset([t for a, t in reads(P[0], 0)])
    for j in range(4):
        cur, nxt = P[j & 1], P[(j + 1) & 1]
        M = mfmas(cur)
        if j < 3:
            R = reads(nxt, j + 1)
            sched = [2, 2, 2, 2, 0, 0]
            ri = 0
            for mi, (asm, needs) in enumerate(M):
                if needs: g.lg_need(*needs)
                g.e(asm)
                for _ in range(sched[mi]):
                    g.lg(*R[ri]); ri += 1
                if j == 0 and mi == 4:
                    g.e(f"s_sub_u32 s{t0}, s{s_it}, s{s_p0}")
                    g.e(f"s_cmp_lt_u32 s{t0}, s{s_pn}")
                    g.e(f"s_cbranch_scc0 L_nopf")
                    g.e(f"buffer_load_dword v{vJ}, v{vPb}, s[{S_PF}:{S_PF+3}], s{s_po} offen")
                    g.e(f"s_add_u32 s{s_po}, s{s_po}, s{s_pi}")
                    g.lab("L_nopf")
        else:
            R = reads(nxt, 0)
            for mi in range(2):
                asm, needs = M[mi]
                if needs: g.lg_need(*needs)
                g.e(asm)
            g.e(f"""
            s_add_u32 s{t0}, s{s_slot}, 1
            s_cmp_eq_u32 s{s_slot}, 2
            s_cselect_b32 s{s_slot}, 0, s{t0}
            s_cselect_b32 s{t0}, s65, s64
            s_cselect_b32 s{t1}, s67, s66
            """)
            for jj in range(4): g.e(f"v_add_u32 v{vA[jj]}, s{t0}, v{vA[jj]}")
            g.e(f"v_add_u32 v{vB}, s{t1}, v{vB}")
            g.lg_all()
            if opt("bar"): stamp(g, 16, s_it)
            g.e("s_barrier")
            if opt("bar"): stamp(g, 32, s_it)
            ri = 0
            for mi in range(2, 6):
                asm, needs = M[mi]
                if needs: g.lg_need(*needs)
                g.e(asm)
                for _ in range(2):
                    g.lg(*R[ri]); ri += 1
    g.e(f"s_add_u32 s{s_it}, s{s_it}, 1")
    g.e(f"s_cmp_lg_u32 s{s_it}, 16")
    g.e(f"s_cbranch_scc1 L_g1loop")
    g.e("s_waitcnt lgkmcnt(0)")
    stamp(g, 3)
    stampc(g, 14)
    PK, VF, ONES, PQ, TMP, TA = 96, 112, 128, 132, 148, 152
    s_l2e, s_eps = 64, 66
    g.e(f"""
    s_mov_b32 s{s_l2e}, {LOG2E}
    s_mov_b32 s{s_l2e+1}, {LOG2E}
    s_mov_b32 s{s_eps}, {EPS}
    s_mov_b32 s{s_eps+1}, {EPS}
    v_mov_b32 v{ONES}, 0x3f803f80
    v_mov_b32 v{ONES+1}, 0x3f803f80
    v_mov_b32 v{ONES+2}, 0x3f803f80
    v_mov_b32 v{ONES+3}, 0x3f803f80
    v_lshlrev_b32 v{TA}, 4, v{l}
    s_mul_i32 s{t0}, s{s_wn}, 4224
    s_add_u32 s{t0}, s{t0}, {LRED}
    v_add_u32 v{TA+1}, s{t0}, v{TA}
    v_lshrrev_b32 v{TA+2}, 5, v{l}
    v_lshlrev_b32 v{TA+2}, 5, v{TA+2}
    v_and_b32 v{TA+3}, 31, v{l}
    s_nop 3
    """)
    regs = [ACCK[mt] + r for mt in range(2) for r in range(0, 16, 2)]
    outs = [PK + mt*8 + r//2 for mt in range(2) for r in range(0, 16, 2)]
    phi_pairs(g, regs, TMP, s_l2e, s_eps, outs)
    for mt in range(2):
        for r in range(0, 16, 2):
            g.e(f"v_cvt_pk_bf16_f32 v{VF + mt*8 + r//2}, v{ACCV[mt]+r}, v{ACCV[mt]+r+1}")
    KV, Z = 64, 80
    g.e("s_nop 1")
    first = True
    for mt in range(2):
        for q2 in range(2):
            a = PK + mt*8 + q2*4; b = VF + mt*8 + q2*4
            c = "0" if first else f"v[{KV}:{KV+15}]"
            g.e(f"v_mfma_f32_32x32x16_bf16 v[{KV}:{KV+15}], v[{a}:{a+3}], v[{b}:{b+3}], {c}")
            c = "0" if first else f"v[{Z}:{Z+15}]"
            g.e(f"v_mfma_f32_32x32x16_bf16 v[{Z}:{Z+15}], v[{a}:{a+3}], v[{ONES}:{ONES+3}], {c}")
            first = False
    g.e(f"""
    s_add_u32 s{t1}, s{t0}, 4096
    v_add_u32 v{TA+4}, s{t1}, v{TA+2}
    v_cmp_eq_u32 vcc, 0, v{TA+3}
    s_mov_b64 s[{t4}:{t4+1}], vcc
    s_cmp_eq_u32 s{s_wm}, 0
    s_cbranch_scc1 L_red0
    s_nop 7
    s_nop 3
    """)
    for q in range(4):
        g.e(f"ds_write_b128 v{TA+1}, v[{KV+4*q}:{KV+4*q+3}] offset:{q*1024}")
    g.e(f"s_mov_b64 exec, s[{t4}:{t4+1}]")
    for q in range(4):
        g.e(f"ds_write_b128 v{TA+4}, v[{Z+4*q}:{Z+4*q+3}] offset:{(q>>1)*64 + (q&1)*16}")
    g.e("s_mov_b64 exec, -1")
    g.e("s_waitcnt lgkmcnt(0)")
    g.e("s_barrier")
    g.e("s_branch L_phiq")
    g.lab("L_red0")
    g.e(f"""
    s_lshl_b32 s{t2}, s{s_hp}, 4
    s_add_u32 s{t2}, s{t2}, s{s_rb}
    s_mul_i32 s{t2}, s{t2}, {KVP_STRIDE}
    s_add_u32 s{t2}, s{t2}, {WS_KVP}
    s_lshl_b32 s{t3}, s{s_wn}, 12
    s_add_u32 s{t3}, s{t3}, s{t2}
    s_lshl_b32 s{t1}, s{s_wn}, 7
    s_add_u32 s{t2}, s{t2}, s{t1}
    s_add_u32 s{t2}, s{t2}, 8192
    """)
    g.e("s_barrier")
    for q in range(4):
        g.e(f"ds_read_b128 v[{0+32+4*q}:{0+32+4*q+3}], v{TA+1} offset:{q*1024}")
    for q in range(4):
        g.e(f"ds_read_b128 v[{48+4*q}:{48+4*q+3}], v{TA+4} offset:{(q>>1)*64 + (q&1)*16}")
    g.e("s_waitcnt lgkmcnt(4)")
    for r in range(0, 16, 2):
        g.e(f"v_pk_add_f32 v[{KV+r}:{KV+r+1}], v[{KV+r}:{KV+r+1}], v[{32+r}:{32+r+1}]")
    g.e("s_waitcnt lgkmcnt(0)")
    for q in range(4):
        g.e(f"buffer_store_dwordx4 v[{KV+4*q}:{KV+4*q+3}], v{TA}, s[{S_WS}:{S_WS+3}], s{t3} offen offset:{q*1024} sc1")
    for r in range(0, 16, 2):
        g.e(f"v_pk_add_f32 v[{Z+r}:{Z+r+1}], v[{Z+r}:{Z+r+1}], v[{48+r}:{48+r+1}]")
    g.e(f"s_mov_b64 exec, s[{t4}:{t4+1}]")
    for q in range(4):
        g.e(f"buffer_store_dwordx4 v[{Z+4*q}:{Z+4*q+3}], v{TA+2}, s[{S_WS}:{S_WS+3}], s{t2} offen offset:{(q>>1)*64 + (q&1)*16} sc1")
    g.e("s_mov_b64 exec, -1")
    g.lab("L_phiq")
    stamp(g, 4)
    regs = [ACCQ[mt] + r for mt in range(2) for r in range(0, 16, 2)]
    outs = [PQ + mt*8 + r//2 for mt in range(2) for r in range(0, 16, 2)]
    phi_pairs(g, regs, TMP, s_l2e, s_eps, outs)
    g.e(f"""
    s_lshl_b32 s{t0}, s{s_wave}, 12
    s_add_u32 s{t0}, s{t0}, {LPQ}
    v_add_u32 v{TA+1}, s{t0}, v{TA}
    """)
    for i in range(4):
        g.e(f"ds_write_b128 v{TA+1}, v[{PQ+4*i}:{PQ+4*i+3}] offset:{i*1024}")
    g.e(f"""
    s_cmp_lg_u32 s{s_wm}, 0
    s_cbranch_scc1 L_nof2
    s_lshl_b32 s{t0}, s{s_hp}, 7
    s_lshl_b32 s{t1}, s{s_rb}, 3
    s_add_u32 s{t0}, s{t0}, s{t1}
    s_lshl_b32 s{t1}, s{s_wn}, 2
    s_add_u32 s{t0}, s{t0}, s{t1}
    s_add_u32 s{t0}, s{t0}, {WS_F2}
    s_waitcnt vmcnt(0)
    """)
    post_flag(g, t0, TA+5, TA+6)
    g.lab("L_nof2")
    ACC = 0; S = [32, 96]; cA = list(range(160, 168)); cB = 168; T = 170
    g.e(f"""
    v_and_b32 v{T+5}, 15, v{l}
    v_lshrrev_b32 v{T+6}, 4, v{l}
    v_add_u32 v{T+7}, 1, v{T+5}
    v_and_b32 v{T+7}, -2, v{T+7}
    v_lshlrev_b32 v{T+7}, 1, v{T+7}
    v_lshl_add_u32 v{T+7}, v{T+6}, 4, v{T+7}
    v_and_b32 v{T+8}, 1, v{T+5}
    v_xor_b32 v{T+8}, 1, v{T+8}
    v_mul_u32_u24 v{T+8}, 4160, v{T+8}
    v_add_u32 v{T+7}, v{T+7}, v{T+8}
    s_mul_i32 s{t0}, s{s_wave}, {H_STRIDE}
    s_add_u32 s{t0}, s{t0}, {LH + 448}
    v_add_u32 v{cA[0]}, s{t0}, v{T+7}
    """)
    for a in range(1, 8):
        g.e(f"v_add_u32 v{cA[a]}, {512*a}, v{cA[0]}")
    g.e(f"""
    v_lshlrev_b32 v{cB}, 4, v{T+6}
    v_lshlrev_b32 v{T+7}, 5, v{T+5}
    v_sub_u32 v{cB}, v{cB}, v{T+7}
    s_mul_i32 s{t0}, s{s_wave}, {X_STRIDE}
    s_add_u32 s{t0}, s{t0}, {LX + 4512 - 3584}
    v_add_u32 v{cB}, s{t0}, v{cB}
    """)
    for r in range(32): g.e(f"v_mov_b32 v{ACC+r}, 0")
    g.e("s_waitcnt lgkmcnt(0)")
    stamp(g, 5)
    g.e("s_barrier")
    stamp(g, 6)
    g.e("s_setprio 1")
    def creads(sb):
        R = []
        for x in range(8):
            d = sb + 4*x
            R.append(f"ds_read2_b32 v[{d}:{d+1}], v{cA[x]} offset0:0 offset1:1")
            R.append(f"ds_read2_b32 v[{d+2}:{d+3}], v{cA[x]} offset0:2 offset1:3")
            d = sb + 32 + 4*x
            R.append(f"ds_read_b128 v[{d}:{d+3}], v{cB} offset:{512*(7-x)}")
        return R
    def adv():
        for a in range(8): g.e(f"v_subrev_u32 v{cA[a]}, 64, v{cA[a]}")
        g.e(f"v_subrev_u32 v{cB}, 64, v{cB}")
    def cm(sb):
        pairs = [(a, w) for a in range(8) for w in range(8) if a + w <= 7]
        pairs.sort(key=lambda p: (max(p), p[0]))
        M = []
        for a, w in pairs:
            A = sb + 4*a; B = sb + 32 + 4*w; D = ACC + 4*(a + w)
            M.append(f"v_mfma_f32_16x16x32_bf16 v[{D}:{D+3}], v[{A}:{A+3}], v[{B}:{B+3}], v[{D}:{D+3}]")
        return M
    R = creads(S[0])
    for i, asm in enumerate(R):
        g.e(asm)
        if i == 11: g.e("s_waitcnt lgkmcnt(4)")
        if i == 19: g.e("s_waitcnt lgkmcnt(4)")
    adv()
    g.e(f"s_mov_b32 s{s_it}, 4")
    g.lab("L_cloop")
    for half in range(2):
        cur, nxt = S[half], S[1-half]
        g.e("s_waitcnt lgkmcnt(0)")
        M = cm(cur); R = creads(nxt)
        ri = 0
        for mi, asm in enumerate(M):
            g.e(asm)
            if mi < 32 and ri < 24 and (mi % 4 != 3):
                g.e(R[ri]); ri += 1
            if mi == 33: adv()
        assert ri == 24
    g.e(f"s_sub_u32 s{s_it}, s{s_it}, 1")
    g.e(f"s_cmp_lg_u32 s{s_it}, 0")
    g.e(f"s_cbranch_scc1 L_cloop")
    g.e("s_waitcnt lgkmcnt(0)")
    g.e("s_nop 7")
    stamp(g, 7)
    g.e(f"""
    v_and_b32 v{T+5}, 15, v{l}
    v_lshrrev_b32 v{T+6}, 4, v{l}
    v_lshlrev_b32 v{T+5}, 5, v{T+5}
    v_and_b32 v{T+7}, 1, v{T+6}
    v_lshl_add_u32 v{T+5}, v{T+7}, 9, v{T+5}
    v_lshrrev_b32 v{T+6}, 1, v{T+6}
    v_lshl_add_u32 v{T+5}, v{T+6}, 4, v{T+5}
    s_lshl_b32 s{t0}, s{s_hp}, 6
    s_lshl_b32 s{t1}, s{s_rb}, 2
    s_add_u32 s{t0}, s{t0}, s{t1}
    s_add_u32 s{t0}, s{t0}, s{s_wave}
    s_lshl_b32 s{t0}, s{t0}, 12
    s_add_u32 s{t0}, s{t0}, {WS_YT}
    """)
    for cb in range(8):
        d = 32 + 2*cb
        g.e(f"v_cvt_pk_bf16_f32 v{d}, v{ACC+4*cb}, v{ACC+4*cb+1}")
        g.e(f"v_cvt_pk_bf16_f32 v{d+1}, v{ACC+4*cb+2}, v{ACC+4*cb+3}")
    g.e("s_nop 1")
    for cp in range(4):
        d = 32 + 4*cp
        g.e(f"v_permlane16_swap_b32 v{d}, v{d+2}")
        g.e(f"v_permlane16_swap_b32 v{d+1}, v{d+3}")
    g.e("s_nop 1")
    for cp in range(4):
        d = 32 + 4*cp
        g.e(f"buffer_store_dwordx4 v[{d}:{d+3}], v{T+5}, s[{S_WS}:{S_WS+3}], s{t0} offen offset:{1024*cp} sc1")
    ACC2 = [0, 16]; AR = 64; PFD = 32
    BF = [32, 40]
    vAo = 200; vBn = [201, 202]; T = 204
    g.e(f"""
    v_and_b32 v{vAo}, 31, v{l}
    v_lshlrev_b32 v{T}, 2, v{vAo}
    v_lshlrev_b32 v{vAo}, 4, v{vAo}
    v_lshrrev_b32 v{T+1}, 5, v{l}
    v_lshl_add_u32 v{vAo}, v{T+1}, 11, v{vAo}
    s_lshl_b32 s{t1}, s{s_rb2}, 1
    s_lshr_b32 s{t2}, s{s_wave}, 1
    s_add_u32 s{t1}, s{t1}, s{t2}
    s_lshl_b32 s{t1}, s{t1}, 7
    s_add_u32 s{t1}, s{t1}, {WS_F3}
    """)
    poll(g, T, T+1, t1, "pf3")
    stamp(g, 8)
    g.e(f"""
    s_lshl_b32 s{t0}, s{s_hp}, 8
    s_lshl_b32 s{t1}, s{s_rb}, 4
    s_add_u32 s{t0}, s{t0}, s{t1}
    s_lshl_b32 s{t1}, s{s_wave}, 2
    s_add_u32 s{t0}, s{t0}, s{t1}
    s_add_u32 s{t0}, s{t0}, {WS_F4}
    """)
    post_flag(g, t0, T+2, T+3)
    s_ab = 64
    g.e(f"""
    s_lshl_b32 s{s_ab}, s{s_rb2}, 18
    s_lshl_b32 s{t1}, s{s_wave}, 9
    s_add_u32 s{s_ab}, s{s_ab}, s{t1}
    s_add_u32 s{s_ab}, s{s_ab}, {WS_O}
    """)
    for t in range(PFD):
        d = AR + 4*t
        g.e(f"s_add_u32 s{t1}, s{s_ab}, {t*4096}")
        g.e(f"buffer_load_dwordx4 v[{d}:{d+3}], v{vAo}, s[{S_WS}:{S_WS+3}], s{t1} offen sc1")
    g.e(f"""
    v_lshrrev_b32 v{T}, 5, v{l}
    v_lshlrev_b32 v{T}, 2, v{T}
    v_and_b32 v{T+1}, 15, v{l}
    v_lshrrev_b32 v{T+1}, 2, v{T+1}
    v_add_u32 v{T}, v{T}, v{T+1}
    v_lshlrev_b32 v{T}, 7, v{T}
    v_lshrrev_b32 v{T+1}, 4, v{l}
    v_and_b32 v{T+1}, 1, v{T+1}
    v_lshlrev_b32 v{T+1}, 1, v{T+1}
    v_and_b32 v{T+2}, 3, v{l}
    v_lshrrev_b32 v{T+2}, 1, v{T+2}
    v_add_u32 v{T+1}, v{T+1}, v{T+2}
    v_lshrrev_b32 v{T+2}, 3, v{l}
    v_and_b32 v{T+2}, 1, v{T+2}
    v_lshlrev_b32 v{T+2}, 2, v{T+2}
    v_xor_b32 v{T+1}, v{T+1}, v{T+2}
    v_and_b32 v{T+3}, 1, v{l}
    v_lshl_add_u32 v{T}, v{T+3}, 3, v{T}
    v_lshl_add_u32 v{vBn[0]}, v{T+1}, 4, v{T}
    v_xor_b32 v{T+1}, 4, v{T+1}
    v_lshl_add_u32 v{vBn[1]}, v{T+1}, 4, v{T}
    """)
    for r in range(32): g.e(f"v_mov_b32 v{r}, 0")
    g.e("s_barrier")
    stamp(g, 9)
    g.e("s_setprio 3")
    def breads(setb, t16):
        R = []
        for nt in range(2):
            for q in range(2):
                d = setb + 4*nt + 2*q
                R.append(f"ds_read_b64_tr_b16 v[{d}:{d+1}], v{vBn[nt]} offset:{2048*t16 + 1024*q}")
        return R
    for x in breads(BF[0], 0): g.e(x)
    g.e(f"s_add_u32 s{s_ab}, s{s_ab}, {PFD*4096}")
    g.e(f"s_mov_b32 s{s_it}, 2")
    g.lab("L_gloop")
    for t in range(32):
        cur, nxt = BF[t & 1], BF[(t + 1) & 1]
        A = AR + 4*t
        g.e(f"s_waitcnt vmcnt({PFD-1}) lgkmcnt(0)")
        if t == 31:
            g.e(f"v_add_u32 v{vBn[0]}, 65536, v{vBn[0]}")
            g.e(f"v_add_u32 v{vBn[1]}, 65536, v{vBn[1]}")
            g.e(f"s_cmp_lg_u32 s{s_it}, 2")
            g.e(f"s_cbranch_scc1 L_nox4")
            g.e("s_barrier")
            g.lab("L_nox4")
        R = breads(nxt, (t + 1) & 31)
        g.e(f"v_mfma_f32_32x32x16_bf16 v[{ACC2[0]}:{ACC2[0]+15}], v[{cur}:{cur+3}], v[{A}:{A+3}], v[{ACC2[0]}:{ACC2[0]+15}]")
        g.e(R[0]); g.e(R[1]); g.e(R[2]); g.e(R[3])
        g.e(f"v_mfma_f32_32x32x16_bf16 v[{ACC2[1]}:{ACC2[1]+15}], v[{cur+4}:{cur+7}], v[{A}:{A+3}], v[{ACC2[1]}:{ACC2[1]+15}]")
        g.e(f"s_add_u32 s{t1}, s{s_ab}, {t*4096}")
        g.e(f"buffer_load_dwordx4 v[{A}:{A+3}], v{vAo}, s[{S_WS}:{S_WS+3}], s{t1} offen sc1")
    g.e(f"s_mov_b32 s{s_ab}, 0x40000000")
    g.e(f"s_sub_u32 s{s_it}, s{s_it}, 1")
    g.e(f"s_cmp_lg_u32 s{s_it}, 0")
    g.e(f"s_cbranch_scc1 L_gloop")
    g.e("s_waitcnt vmcnt(0) lgkmcnt(0)")
    g.e("s_nop 7")
    g.e("s_nop 3")
    stamp(g, 10)
    O = 32
    for nt in range(2):
        for r in range(0, 16, 2):
            g.e(f"v_cvt_pk_bf16_f32 v{O + nt*8 + r//2}, v{ACC2[nt]+r}, v{ACC2[nt]+r+1}")
    g.e("s_nop 1")
    for nt in range(2):
        for p in range(2):
            x = O + nt*8 + 4*p
            g.e(f"v_permlane32_swap_b32 v{x}, v{x+2}")
            g.e(f"v_permlane32_swap_b32 v{x+1}, v{x+3}")
    g.e(f"""
    v_and_b32 v{T}, 31, v{l}
    s_lshl_b32 s{t0}, s{s_rb2}, 7
    s_lshl_b32 s{t1}, s{s_wave}, 5
    s_add_u32 s{t0}, s{t0}, s{t1}
    v_add_u32 v{T}, s{t0}, v{T}
    v_lshlrev_b32 v{T}, 12, v{T}
    v_lshrrev_b32 v{T+1}, 5, v{l}
    v_lshl_add_u32 v{T}, v{T+1}, 4, v{T}
    s_lshl_b32 s{t0}, s{s_cb2}, 7
    s_add_u32 s{t0}, s{t0}, 2048
    """)
    for nt_ in range(2):
        for p in range(2):
            x = O + nt_*8 + 4*p
            g.e(f"buffer_store_dwordx4 v[{x}:{x+3}], v{T}, s[{S_OUT}:{S_OUT+3}], s{t0} offen offset:{nt_*64 + p*32}{ntf('out')}")
    g.e(f"""
    s_or_b32 s{t0}, s2, s{s_wave}
    s_cmp_lg_u32 s{t0}, 0
    s_cbranch_scc1 L_noep
    s_mov_b32 s{t0}, {WS_EPOCH}
    """)
    post_flag(g, t0, T+2, T+3)
    g.lab("L_noep")
    g.e("s_waitcnt vmcnt(0)")
    flush_stamps(g)
    g.e("s_endpgm")

def gen_aux(g):
    g.lab("L_aux")
    srds(g, [S_K, S_V, S_SK, S_H])
    l = vL
    s_a = s_wm
    vCol, vS0, vKb = 2, 3, 4
    vNeg = [5, 6, 7]
    KR = 16
    VR = 60
    WR = 92
    T = 8
    g.e(f"""
    s_sub_u32 s{s_a}, s{s_wave}, 6
    v_and_b32 v{vCol}, 7, v{l}
    v_lshlrev_b32 v{vCol}, 4, v{vCol}
    s_lshl_b32 s{t0}, s{s_hp}, 7
    v_add_u32 v{vCol}, s{t0}, v{vCol}
    v_lshrrev_b32 v{vS0}, 3, v{l}
    s_lshl_b32 s{t0}, s{s_a}, 3
    v_add_u32 v{vS0}, s{t0}, v{vS0}
    v_lshlrev_b32 v{vS0}, 3, v{vS0}
    s_lshl_b32 s{t0}, s{s_rb}, 7
    v_add_u32 v{vS0}, s{t0}, v{vS0}
    v_lshl_add_u32 v{vKb}, v{vS0}, 11, v{vCol}
    v_mov_b32 v{T}, 0x80000000
    v_cmp_eq_u32 vcc, 0, v{vS0}
    """)
    for i in range(3):
        g.e(f"v_subrev_u32 v{vNeg[i]}, {(3-i)*2048}, v{vKb}")
    for i in range(3):
        g.e(f"v_cndmask_b32 v{vNeg[i]}, v{vNeg[i]}, v{T}, vcc")
    for m in range(1, 4):
        g.e(f"s_mov_b32 s{63+m}, {m*4096}")
    def soff(row): return "0" if row < 2 else f"s{63 + row//2}"
    g.e("s_waitcnt lgkmcnt(0)")
    g.e(f"s_load_dword s{s_tag}, s[{S_WS}:{S_WS+1}], {WS_EPOCH}")
    srds(g, [S_D, S_Q, S_OUT, S_WO])
    g.e(f"v_lshlrev_b32 v{T+1}, 2, v{vCol}")
    def kv_loads():
        for i in range(3):
            g.e(f"buffer_load_dwordx4 v[{KR+4*i}:{KR+4*i+3}], v{vNeg[i]}, s[{S_K}:{S_K+3}], 0 offen{ntf('kv')}")
        for r in range(8):
            g.e(f"buffer_load_dwordx4 v[{KR+12+4*r}:{KR+12+4*r+3}], v{vKb}, s[{S_K}:{S_K+3}], {soff(r)} offen offset:{(r&1)*2048}{ntf('kv')}")
        for r in range(8):
            g.e(f"buffer_load_dwordx4 v[{VR+4*r}:{VR+4*r+3}], v{vKb}, s[{S_V}:{S_V+3}], {soff(r)} offen offset:{(r&1)*2048}{ntf('kv')}")
        for i in range(4):
            g.e(f"buffer_load_dwordx4 v[{WR+4*i}:{WR+4*i+3}], v{T+1}, s[{S_SK}:{S_SK+3}], 0 offen offset:{16*i}")
    early = opt("kvearly", "0") == "1"
    if early: kv_loads()
    wo_dma_setup(g, vWO, 240)
    g.e(f"""
    s_waitcnt lgkmcnt(0)
    s_add_u32 s{s_tag}, s{s_tag}, 1
    s_not_b32 s{t0}, s{s_tag}
    v_mov_b32 v{T+2}, s{t0}
    v_mov_b32 v{T+3}, {LFLAG}
    v_lshl_add_u32 v{T+3}, v{l}, 2, v{T+3}
    s_mov_b64 exec, 15
    ds_write_b32 v{T+3}, v{T+2}
    s_mov_b64 exec, -1
    """)
    stamp(g, 1)
    g.e("s_waitcnt lgkmcnt(0)")
    g.e("s_barrier")
    stamp(g, 2)
    if not early: kv_loads()
    s_ch = 68
    KF, WF, XO, VF, OUT = 112, 134, 142, 158, 160
    vSt = 12
    g.e(f"""
    s_lshl_b32 s{s_ch}, s{s_hp}, 6
    s_lshl_b32 s{t0}, s{s_rb}, 2
    s_add_u32 s{s_ch}, s{s_ch}, s{t0}
    s_lshl_b32 s{t0}, s{s_a}, 1
    s_add_u32 s{s_ch}, s{s_ch}, s{t0}
    v_lshlrev_b32 v{vSt}, 11, v{vCol}
    v_lshlrev_b32 v{T}, 1, v{vS0}
    v_sub_u32 v{T}, 4080, v{T}
    v_add_u32 v{vSt}, v{vSt}, v{T}
    v_lshlrev_b32 v13, 4, v{l}
    v_add_u32 v14, 2, v13
    """)
    def h_dma():
        for c in range(2):
            g.e(f"s_add_u32 s{t0}, s{s_ch}, {c}")
            g.e(f"s_lshl_b32 s{t0}, s{t0}, 12")
            g.e(f"s_lshl_b32 s{t1}, s{s_a}, 1")
            g.e(f"s_add_u32 s{t1}, s{t1}, {c}")
            g.e(f"s_mul_i32 s{t1}, s{t1}, {H_STRIDE}")
            g.e(f"s_add_u32 m0, s{t1}, {LH + 32}")
            g.e("s_nop 0")
            for m in range(4):
                g.e(f"buffer_load_dwordx4 v13, s[{S_H}:{S_H+3}], s{t0} offen offset:{m*1024}{ntf('h')} lds")
            g.e(f"s_add_u32 m0, s{t1}, {LH + 4160 + 32}")
            g.e("s_nop 0")
            for m in range(4):
                g.e(f"buffer_load_dwordx4 v14, s[{S_H}:{S_H+3}], s{t0} offen offset:{m*1024}{ntf('h')} lds")
        g.e(f"s_lshl_b32 s{t0}, s{s_ch}, 1")
        g.e(f"v_lshlrev_b32 v15, 1, v{l}")
        g.e(f"v_and_b32 v15, 2, v15")
        g.e(f"buffer_load_ushort v15, v15, s[{S_D}:{S_D+3}], s{t0} offen")
    def unpack(dst, src):
        g.e(f"v_lshlrev_b32 v{dst}, 16, v{src}")
        g.e(f"v_and_b32 v{dst+1}, 0xffff0000, v{src}")
    def slice_p(p):
        for c in range(2):
            w = WR + 2*(2*p + c)
            g.e(f"v_lshlrev_b32 v{WF+0+c}, 16, v{w}")
            g.e(f"v_and_b32 v{WF+2+c}, 0xffff0000, v{w}")
            g.e(f"v_lshlrev_b32 v{WF+4+c}, 16, v{w+1}")
            g.e(f"v_and_b32 v{WF+6+c}, 0xffff0000, v{w+1}")
        for r in range(11): unpack(KF + 2*r, KR + 4*r + p)
        for s in range(8):
            o = XO + 2*s
            for j in range(4):
                k = KF + 2*(s + 3 - j); w = WF + 2*j
                if j == 0: g.e(f"v_pk_mul_f32 v[{o}:{o+1}], v[{k}:{k+1}], v[{w}:{w+1}]")
                else: g.e(f"v_pk_fma_f32 v[{o}:{o+1}], v[{k}:{k+1}], v[{w}:{w+1}], v[{o}:{o+1}]")
            unpack(VF, VR + 4*s + p)
            g.e(f"v_pk_mul_f32 v[{o}:{o+1}], v[{o}:{o+1}], v[{VF}:{VF+1}]")
        ob = OUT + 8*(p & 1)
        for c in range(2):
            for m in range(4):
                g.e(f"v_cvt_pk_bf16_f32 v{ob+4*c+m}, v{XO+2*(7-2*m)+c}, v{XO+2*(6-2*m)+c}")
        for c in range(2):
            g.e(f"s_mov_b32 s{t0}, {WS_XR + (2*p + c)*4096}")
            g.e(f"buffer_store_dwordx4 v[{ob+4*c}:{ob+4*c+3}], v{vSt}, s[{S_WS}:{S_WS+3}], s{t0} offen sc1")
    def f1_flag():
        g.e(f"""
        s_lshl_b32 s{t0}, s{s_hp}, 7
        s_lshl_b32 s{t1}, s{s_rb}, 3
        s_add_u32 s{t0}, s{t0}, s{t1}
        s_lshl_b32 s{t1}, s{s_a}, 2
        s_add_u32 s{t0}, s{t0}, s{t1}
        s_add_u32 s{t0}, s{t0}, {WS_F1}
        s_waitcnt vmcnt(0)
        """)
        post_flag(g, t0, T, T+1)
    def h_fix():
        g.e(f"""
        s_lshl_b32 s{t1}, s{s_a}, 1
        s_mul_i32 s{t1}, s{t1}, {H_STRIDE}
        s_add_u32 s{t1}, s{t1}, {LH}
        v_and_b32 v{T}, 1, v{l}
        v_mul_u32_u24 v{T}, {H_STRIDE}, v{T}
        v_add_u32 v{T}, s{t1}, v{T}
        ds_read_u16 v{T+1}, v{T} offset:32
        v_lshlrev_b32 v15, 16, v15
        v_mov_b32 v176, 0
        v_mov_b32 v177, 0
        v_mov_b32 v178, 0
        v_mov_b32 v179, 0
        s_waitcnt lgkmcnt(0)
        v_lshlrev_b32 v{T+1}, 16, v{T+1}
        v_add_f32 v{T+1}, v{T+1}, v15
        v_cvt_pk_bf16_f32 v{T+1}, v{T+1}, v{T+1}
        v_and_b32 v{T+2}, 0xffff0000, v{T+1}
        s_mov_b64 exec, 3
        ds_write_b128 v{T}, v[176:179]
        ds_write_b128 v{T}, v[176:179] offset:16
        ds_write_b16 v{T}, v{T+1} offset:32
        ds_write_b128 v{T}, v[176:179] offset:4160
        ds_write_b64 v{T}, v[176:177] offset:4176
        ds_write_b32 v{T}, v176 offset:4184
        ds_write_b32 v{T}, v{T+2} offset:4188
        s_mov_b64 exec, -1
        """)
    k0 = int(opt("kvit", 3))
    side = {k0: [lambda: g.e("s_waitcnt vmcnt(0)"), h_dma, lambda: slice_p(0)],
            k0+1: [lambda: slice_p(1)], k0+2: [lambda: slice_p(2)], k0+3: [lambda: slice_p(3)],
            k0+5: [f1_flag], k0+6: [h_fix]}
    for t in range(16):
        for f in side.get(t, []): f()
        if t == k0: stamp(g, 3)
        if t == k0+5: stamp(g, 4)
        if opt("bar"): stamp(g, 16 + t)
        g.e("s_waitcnt lgkmcnt(0)")
        g.e("s_barrier")
    stamp(g, 5)
    g.e(f"""
    v_and_b32 v{T}, 31, v{l}
    v_lshlrev_b32 v{T}, 2, v{T}
    s_lshl_b32 s{t1}, s{s_hp}, 7
    s_add_u32 s{t1}, s{t1}, {WS_F1}
    """)
    poll(g, T, T+1, t1, "pf1")
    stamp(g, 6)
    XR_ = 16
    for c in range(2):
        g.e(f"s_add_u32 s{t0}, s{s_ch}, {c}")
        g.e(f"s_lshl_b32 s{t0}, s{t0}, 12")
        g.e(f"s_add_u32 s{t0}, s{t0}, {WS_XR}")
        for m in range(4):
            d = XR_ + 16*c + 4*m
            g.e(f"buffer_load_dwordx4 v[{d}:{d+3}], v13, s[{S_WS}:{S_WS+3}], s{t0} offen offset:{m*1024} sc1")
    g.e("s_barrier")
    g.e(f"""
    s_lshl_b32 s{t1}, s{s_a}, 1
    s_mul_i32 s{t1}, s{t1}, {X_STRIDE}
    s_add_u32 s{t1}, s{t1}, {LX}
    v_add_u32 v{T}, s{t1}, v13
    v_cmp_gt_u32 vcc, 30, v{l}
    s_and_saveexec_b64 s[{t4}:{t4+1}], vcc
    ds_write_b128 v{T}, v[176:179] offset:4096
    ds_write_b128 v{T}, v[176:179] offset:{X_STRIDE + 4096}
    s_mov_b64 exec, s[{t4}:{t4+1}]
    """)
    for c in range(2):
        g.e(f"s_waitcnt vmcnt({4*(1-c)})")
        for m in range(4):
            d = XR_ + 16*c + 4*m
            g.e(f"ds_write_b128 v{T}, v[{d}:{d+3}] offset:{c*X_STRIDE + m*1024}")
    g.e("s_waitcnt lgkmcnt(0)")
    stamp(g, 7)
    g.e("s_barrier")

def gen_helper(g):
    g.lab("L_helper")
    l = vL
    s_hw = 69
    T = 2
    g.e(f"""
    s_setprio 3
    s_sub_u32 s{s_hw}, s{s_wave}, 4
    s_lshr_b32 s{s_wm}, s{s_hw}, 1
    s_and_b32 s{s_wn}, s{s_hw}, 1
    v_and_b32 v{T}, 31, v{l}
    v_lshlrev_b32 v{T}, 2, v{T}
    s_lshl_b32 s{t1}, s{s_hp}, 7
    s_add_u32 s{t1}, s{t1}, {WS_F2}
    v_lshlrev_b32 v{T+2}, 4, v{l}
    v_lshlrev_b32 v{T+3}, 2, v{l}
    v_mov_b32 v{T+4}, 0x80000000
    v_cmp_gt_u32 vcc, 16, v{l}
    s_lshl_b32 s{t2}, s{s_hp}, 4
    s_mul_i32 s{t2}, s{t2}, {KVP_STRIDE}
    s_add_u32 s{t2}, s{t2}, {WS_KVP}
    v_cndmask_b32 v{T+3}, v{T+4}, v{T+3}, vcc
    s_lshl_b32 s{t3}, s{s_hw}, 11
    s_add_u32 s{t3}, s{t3}, s{t2}
    s_lshl_b32 s{t4}, s{s_hw}, 6
    s_add_u32 s{t4}, s{t4}, s{t2}
    s_add_u32 s{t4}, s{t4}, 8192
    """)
    stamp(g, 8)
    poll(g, T, T+1, t1, "pf2")
    stamp(g, 9)
    PB = 32; ZB = 160
    for r in range(16):
        d = PB + 8*r
        g.e(f"buffer_load_dwordx4 v[{d}:{d+3}], v{T+2}, s[{S_WS}:{S_WS+3}], s{t3} offen sc1")
        g.e(f"buffer_load_dwordx4 v[{d+4}:{d+7}], v{T+2}, s[{S_WS}:{S_WS+3}], s{t3} offen offset:1024 sc1")
        g.e(f"buffer_load_dword v{ZB+r}, v{T+3}, s[{S_WS}:{S_WS+3}], s{t4} offen sc1")
        if r < 15:
            g.e(f"s_add_u32 s{t3}, s{t3}, {KVP_STRIDE}")
            g.e(f"s_add_u32 s{t4}, s{t4}, {KVP_STRIDE}")
    PQ = 200
    g.e(f"""
    s_lshl_b32 s{t0}, s{s_hw}, 12
    s_add_u32 s{t0}, s{t0}, {LPQ}
    v_add_u32 v{T+5}, s{t0}, v{T+2}
    """)
    for i in range(4):
        g.e(f"ds_read_b128 v[{PQ+4*i}:{PQ+4*i+3}], v{T+5} offset:{i*1024}")
    for r in range(1, 16):
        g.e(f"s_waitcnt vmcnt({3*(15-r)})")
        d = PB + 8*r
        for u in range(0, 8, 2):
            g.e(f"v_pk_add_f32 v[{PB+u}:{PB+u+1}], v[{PB+u}:{PB+u+1}], v[{d+u}:{d+u+1}]")
        g.e(f"v_add_f32 v{ZB}, v{ZB}, v{ZB+r}")
    KX = 180
    for u in range(0, 8, 2):
        g.e(f"v_cvt_pk_bf16_f32 v{KX+u//2}, v{PB+u}, v{PB+u+1}")
    g.e(f"v_cvt_pk_bf16_f32 v{ZB}, v{ZB}, v{ZB}")
    g.e(f"""
    s_lshl_b32 s{t0}, s{s_hw}, 10
    s_add_u32 s{t0}, s{t0}, {LKVX}
    v_add_u32 v{T+5}, s{t0}, v{T+2}
    ds_write_b128 v{T+5}, v[{KX}:{KX+3}]
    s_lshl_b32 s{t0}, s{s_hw}, 5
    s_add_u32 s{t0}, s{t0}, {LZX}
    v_lshlrev_b32 v{T+6}, 1, v{l}
    v_add_u32 v{T+6}, s{t0}, v{T+6}
    s_mov_b64 exec, 0xffff
    ds_write_b16 v{T+6}, v{ZB}
    s_mov_b64 exec, 1
    s_lshl_b32 s{t0}, s{s_hw}, 2
    s_add_u32 s{t0}, s{t0}, {LFLAG}
    v_mov_b32 v{T+6}, s{t0}
    v_mov_b32 v{T+7}, s{s_tag}
    s_waitcnt lgkmcnt(0)
    ds_write_b32 v{T+6}, v{T+7}
    s_mov_b64 exec, -1
    v_mov_b32 v{T+6}, {LFLAG}
    v_and_b32 v{T+7}, 3, v{l}
    v_lshl_add_u32 v{T+6}, v{T+7}, 2, v{T+6}
    s_mov_b32 s{t7}, {MAXSPIN*8}
    """)
    g.lab("L_hsync")
    g.e(f"""
    ds_read_b32 v{T+7}, v{T+6}
    s_waitcnt lgkmcnt(0)
    v_cmp_ne_u32 vcc, s{s_tag}, v{T+7}
    s_cbranch_vccz L_hsyncd
    s_sub_u32 s{t7}, s{t7}, 1
    s_cbranch_scc0 L_hsync
    """)
    g.lab("L_hsyncd")
    stamp(g, 10)
    KF = 184; ZF = 192
    g.e(f"""
    s_lshl_b32 s{t0}, s{s_wn}, 11
    s_add_u32 s{t0}, s{t0}, {LKVX}
    v_add_u32 v{T+5}, s{t0}, v{T+2}
    ds_read_b128 v[{KF}:{KF+3}], v{T+5}
    ds_read_b128 v[{KF+4}:{KF+7}], v{T+5} offset:1024
    s_lshl_b32 s{t0}, s{s_wn}, 6
    s_add_u32 s{t0}, s{t0}, {LZX}
    v_lshrrev_b32 v{T+6}, 5, v{l}
    v_lshlrev_b32 v{T+6}, 4, v{T+6}
    v_add_u32 v{T+6}, s{t0}, v{T+6}
    ds_read_b128 v[{ZF}:{ZF+3}], v{T+6}
    ds_read_b128 v[{ZF+4}:{ZF+7}], v{T+6} offset:32
    s_waitcnt lgkmcnt(0)
    """)
    NUM = [48, 64]; DEN = [80, 96]
    for mt in range(2):
        for q2 in range(2):
            a = KF + 4*q2; z = ZF + 4*q2; b = PQ + mt*8 + q2*4
            c = "0" if q2 == 0 else f"v[{NUM[mt]}:{NUM[mt]+15}]"
            g.e(f"v_mfma_f32_32x32x16_bf16 v[{NUM[mt]}:{NUM[mt]+15}], v[{a}:{a+3}], v[{b}:{b+3}], {c}")
            c = "0" if q2 == 0 else f"v[{DEN[mt]}:{DEN[mt]+15}]"
            g.e(f"v_mfma_f32_32x32x16_bf16 v[{DEN[mt]}:{DEN[mt]+15}], v[{z}:{z+3}], v[{b}:{b+3}], {c}")
    g.e(f"""
    s_lshl_b32 s{t2}, s{s_rb}, 18
    s_lshl_b32 s{t0}, s{s_hp}, 1
    s_add_u32 s{t0}, s{t0}, s{s_wn}
    s_lshl_b32 s{t0}, s{t0}, 13
    s_add_u32 s{t2}, s{t2}, s{t0}
    s_lshl_b32 s{t0}, s{s_wm}, 10
    s_add_u32 s{t2}, s{t2}, s{t0}
    s_add_u32 s{t2}, s{t2}, {WS_O}
    v_and_b32 v{T+5}, 31, v{l}
    v_lshlrev_b32 v{T+5}, 4, v{T+5}
    v_lshrrev_b32 v{T+6}, 5, v{l}
    v_lshl_add_u32 v{T+5}, v{T+6}, 11, v{T+5}
    s_mov_b32 s{t3}, {EPS}
    s_nop 7
    """)
    for mt in range(2):
        g.e(f"v_add_f32 v{DEN[mt]}, s{t3}, v{DEN[mt]}")
    for mt in range(2):
        g.e(f"v_rcp_f32 v{DEN[mt]}, v{DEN[mt]}")
    g.e("s_nop 1")
    OUT = 112
    for mt in range(2):
        for r in range(0, 16, 2):
            g.e(f"v_mul_f32 v{NUM[mt]+r}, v{NUM[mt]+r}, v{DEN[mt]}")
            g.e(f"v_mul_f32 v{NUM[mt]+r+1}, v{NUM[mt]+r+1}, v{DEN[mt]}")
            g.e(f"v_cvt_pk_bf16_f32 v{OUT + mt*8 + r//2}, v{NUM[mt]+r}, v{NUM[mt]+r+1}")
        for q2 in range(2):
            d = OUT + mt*8 + q2*4
            g.e(f"s_add_u32 s{t0}, s{t2}, {q2*4096 + mt*512}")
            g.e(f"buffer_store_dwordx4 v[{d}:{d+3}], v{T+5}, s[{S_WS}:{S_WS+3}], s{t0} offen sc1")
    g.e(f"""
    s_lshl_b32 s{t0}, s{s_rb}, 1
    s_add_u32 s{t0}, s{t0}, s{s_wm}
    s_lshl_b32 s{t0}, s{t0}, 7
    s_lshl_b32 s{t1}, s{s_hp}, 3
    s_add_u32 s{t0}, s{t0}, s{t1}
    s_lshl_b32 s{t1}, s{s_wn}, 2
    s_add_u32 s{t0}, s{t0}, s{t1}
    s_add_u32 s{t0}, s{t0}, {WS_F3}
    s_waitcnt vmcnt(0)
    """)
    post_flag(g, t0, T+6, T+7)
    stamp(g, 11)
    g.e("s_barrier")
    g.e(f"s_lshl_b32 s{t3}, s{s_hw}, 7")
    g.e(f"s_add_u32 s{t3}, s{t3}, 512")
    wo_dma(g, vWO, t3, 4, "wo23")
    Y = 32; Q = 64; F = 96; OUT = 112
    g.e(f"""
    v_and_b32 v{T}, 7, v{l}
    v_lshrrev_b32 v{T+1}, 3, v{l}
    s_lshl_b32 s{t0}, s{s_hw}, 3
    v_add_u32 v{T+1}, s{t0}, v{T+1}
    v_lshlrev_b32 v{T+1}, 2, v{T+1}
    s_lshl_b32 s{t0}, s{s_rb}, 7
    v_add_u32 v{T+1}, s{t0}, v{T+1}
    v_lshlrev_b32 v{T+2}, 3, v{T}
    s_lshl_b32 s{t0}, s{s_hp}, 6
    v_add_u32 v{T+2}, s{t0}, v{T+2}
    v_lshlrev_b32 v{T+3}, 12, v{T+2}
    v_lshl_add_u32 v{T+3}, v{T+1}, 1, v{T+3}
    v_lshlrev_b32 v{T+4}, 11, v{T+1}
    v_lshl_add_u32 v{T+4}, v{T+2}, 1, v{T+4}
    v_lshlrev_b32 v{T+5}, 12, v{T+1}
    v_lshl_add_u32 v{T+5}, v{T+2}, 1, v{T+5}
    s_mov_b32 s{t1}, 4096
    """)
    for i in range(4):
        so = "0" if i < 2 else f"s{t1}"
        g.e(f"buffer_load_dwordx4 v[{Q+4*i}:{Q+4*i+3}], v{T+4}, s[{S_Q}:{S_Q+3}], {so} offen offset:{(i&1)*2048}{ntf('q')}")
    g.e("s_waitcnt vmcnt(4)")
    g.e("s_barrier")
    stamp(g, 12)
    g.e(f"""
    v_lshlrev_b32 v{T}, 2, v{l}
    s_lshl_b32 s{t1}, s{s_hp}, 8
    s_add_u32 s{t1}, s{t1}, {WS_F4}
    s_setprio 0
    """)
    poll(g, T, T+6, t1, "pf4")
    stamp(g, 13)
    for j in range(8):
        g.e(f"s_mov_b32 s{t0}, {WS_YT + j*4096}")
        g.e(f"buffer_load_dwordx2 v[{Y+2*j}:{Y+2*j+1}], v{T+3}, s[{S_WS}:{S_WS+3}], s{t0} offen sc1")
    g.e("s_waitcnt vmcnt(0)")
    for i in range(4):
        for m in range(4):
            a, b, c, d = F + 4*(m & 1), F+1 + 4*(m & 1), F+2 + 4*(m & 1), F+3 + 4*(m & 1)
            qd = Q + 4*i + m
            y0 = Y + 2*(2*m) + i//2; y1 = Y + 2*(2*m+1) + i//2
            g.e(f"v_lshlrev_b32 v{a}, 16, v{qd}")
            g.e(f"v_and_b32 v{b}, 0xffff0000, v{qd}")
            if i % 2 == 0:
                g.e(f"v_lshlrev_b32 v{c}, 16, v{y0}")
                g.e(f"v_lshlrev_b32 v{d}, 16, v{y1}")
            else:
                g.e(f"v_and_b32 v{c}, 0xffff0000, v{y0}")
                g.e(f"v_and_b32 v{d}, 0xffff0000, v{y1}")
            g.e(f"v_pk_mul_f32 v[{a}:{b}], v[{a}:{b}], v[{c}:{d}]")
            g.e(f"v_cvt_pk_bf16_f32 v{OUT+4*i+m}, v{a}, v{b}")
        g.e(f"s_mov_b32 s{t0}, {i*4096}")
        g.e(f"buffer_store_dwordx4 v[{OUT+4*i}:{OUT+4*i+3}], v{T+5}, s[{S_OUT}:{S_OUT+3}], s{t0} offen{ntf('out')}")
    g.e("s_waitcnt vmcnt(0)")
    flush_stamps(g)
    g.lab("L_end")
    g.e("s_endpgm")

HDR = open("concat_heads__ssm_conv_h3__linear_attn_block__prompt.s.ref").read().split("; Override")[0]
def full():
    g = G()
    g.L.append(khead(NAME))
    gen_entry(g)
    gen_loader(g)
    gen_compute(g)
    gen_aux(g)
    gen_helper(g)
    s = HDR
    s += f"; @launch grid=(256,1,1) block=(512,1,1) lds={LDS_TOTAL}\n"
    s += '.amdgcn_target "amdgcn-amd-amdhsa--gfx950"\n.text\n'
    s += g.text() + kdesc(NAME, 256)
    return s
if __name__ == "__main__":
    if "--prof" in sys.argv:
        PROF = True; sys.argv.remove("--prof")
    for a in list(sys.argv):
        if a.startswith("--opt="):
            for kv in a[6:].split(","):
                k, v = kv.split("="); OPT[k] = v
            sys.argv.remove(a)
    for a in list(sys.argv):
        if a.startswith("--nt="):
            NT = set(a[5:].split(",")); sys.argv.remove(a)
    out = sys.argv[1] if len(sys.argv) > 1 else "v4.s"
    open(out, "w").write(full())
    print("wrote", out)
```

```python
import sys
from dsl import *
NAME = "concat_heads__ssm_conv_h3__linear_attn_block__prompt_kernel"
WS_EPOCH = 0x0
WS_F1 = 0x1000
WS_F2 = 0x2000
WS_F3 = 0x3000
WS_F4 = 0x4000
WS_XR = 0x10000
WS_YT = 0x410000
WS_O  = 0x810000
WS_KVP = 0xC10000
KVP_STRIDE = 8448
WS_SIZE = 0x1000000
LA, LB = 0, 49152
LH = 122880; H_STRIDE = 8320
LX = 73728; X_STRIDE = 4576
LPQ = 92160
LRED = 108544
LKVX = 156160
LZX = 160256
LFLAG = 160512
LDS_TOTAL = 163840
LOG2E = 0x3fb8aa3b
EPS   = 0x358637bd
NB_SD = 2048*1024*2
MAXSPIN = int(__import__("os").environ.get("MAXSPIN", 20000))

PROF = False
OPT = {}
NT = set(["kv", "h"])
def ntf(k): return ' nt' if k in NT else ''
PROF_OFF = 0x8000000
def opt(k, d=None): return OPT.get(k, d)

S_X, S_W, S_WS, S_K, S_V, S_SK, S_H, S_D, S_WO, S_OUT, S_Q = 4, 8, 12, 16, 20, 24, 28, 32, 36, 40, 44
s_rb, s_hp, s_wave, s_tag, s_wm, s_wn, s_rb2, s_cb2 = 48, 49, 50, 51, 52, 53, 54, 55
t0, t1, t2, t3, t4, t5, t6, t7 = 56, 57, 58, 59, 60, 61, 62, 63
S_PF = 92
vL = 250
vJ = 251
vWO = 244

vST = 249
def stamp(g, k, sreg=None):
    if not PROF: return
    g.e(f"s_memrealtime s[88:89]")
    if sreg is not None: g.e(f"s_add_u32 m0, s{sreg}, {k}")
    g.e("s_waitcnt lgkmcnt(0)")
    g.e(f"v_writelane_b32 v{vST}, s88, {k if sreg is None else 'm0'}")
def stampc(g, k):
    if not PROF: return
    g.e(f"s_memtime s[88:89]")
    g.e("s_waitcnt lgkmcnt(0)")
    g.e(f"v_writelane_b32 v{vST}, s88, {k}")
def init_stamps(g):
    if not PROF: return
    g.e(f"v_mov_b32 v{vST}, 0")
def flush_stamps(g):
    if not PROF: return
    stamp(g, 15)
    g.e(f"""
    s_load_dwordx2 s[64:65], s[0:1], 88
    s_mov_b32 s66, 0x10000000
    s_mov_b32 s67, 0x20000
    s_lshl_b32 s68, s2, 3
    s_add_u32 s68, s68, s{s_wave}
    s_lshl_b32 s68, s68, 8
    s_add_u32 s68, s68, {PROF_OFF}
    v_lshlrev_b32 v2, 2, v{vL}
    s_waitcnt lgkmcnt(0)
    buffer_store_dword v{vST}, v2, s[64:67], s68 offen
    s_waitcnt vmcnt(0)
    """)

def srd_load(g, base, koff):
    g.e(f"s_load_dwordx2 s[{base}:{base+1}], s[0:1], {koff}")
def srd_const(g, base, nbytes):
    g.e(f"s_mov_b32 s{base+2}, {nbytes}")
    g.e(f"s_mov_b32 s{base+3}, 0x20000")
SRD_INFO = {S_X: (48, NB_SD), S_W: (56, 1024*3072*2), S_WS: (88, WS_SIZE), S_K: (8, NB_SD), S_V: (16, NB_SD),
            S_SK: (24, 1024*4*2), S_H: (32, NB_SD), S_D: (40, 2048), S_WO: (64, 1024*1024*2),
            S_OUT: (72, 2048*2048*2), S_Q: (0, NB_SD)}
def srds(g, lst):
    for b in lst: srd_load(g, b, SRD_INFO[b][0])
    for b in lst: srd_const(g, b, SRD_INFO[b][1])

def poll(g, vaddr, vtmp, soff, name):
    lab = g.newlabel(name); done = g.newlabel(name + "d")
    g.e(f"s_mov_b32 s{t7}, {MAXSPIN}")
    g.lab(lab)
    g.e(f"buffer_load_dword v{vtmp}, v{vaddr}, s[{S_WS}:{S_WS+3}], s{soff} offen sc1")
    g.e("s_waitcnt vmcnt(0)")
    g.e(f"v_cmp_ne_u32 vcc, s{s_tag}, v{vtmp}")
    g.e(f"s_cbranch_vccz {done}")
    g.e(f"s_sub_u32 s{t7}, s{t7}, 1")
    g.e(f"s_cbranch_scc1 {done}")
    g.e("s_sleep 1")
    g.e(f"s_branch {lab}")
    g.lab(done)

def post_flag(g, soff, vz, vt):
    g.e(f"""
    v_mov_b32 v{vz}, 0
    v_mov_b32 v{vt}, s{s_tag}
    s_mov_b64 exec, 1
    buffer_store_dword v{vt}, v{vz}, s[{S_WS}:{S_WS+3}], s{soff} offen sc1
    s_mov_b64 exec, -1
    """)

def phi_pairs(g, regs, tmp, s_l2e, s_eps, outs):
    n = len(regs)
    for i in range(0, n, 2):
        a, b = regs[i], regs[i+1]
        ta, tb = tmp, tmp + 2
        g.e(f"v_pk_mul_f32 v[{ta}:{ta+1}], v[{a}:{a+1}], s[{s_l2e}:{s_l2e+1}]")
        g.e(f"v_pk_mul_f32 v[{tb}:{tb+1}], v[{b}:{b+1}], s[{s_l2e}:{s_l2e+1}]")
        g.e(f"v_exp_f32_e64 v{ta}, v{ta} clamp")
        g.e(f"v_exp_f32_e64 v{ta+1}, v{ta+1} clamp")
        g.e(f"v_exp_f32_e64 v{tb}, v{tb} clamp")
        g.e(f"v_exp_f32_e64 v{tb+1}, v{tb+1} clamp")
        g.e(f"v_max_f32 v{a}, 0, v{a}")
        g.e(f"v_max_f32 v{a+1}, 0, v{a+1}")
        g.e(f"v_max_f32 v{b}, 0, v{b}")
        g.e(f"v_max_f32 v{b+1}, 0, v{b+1}")
        g.e(f"v_pk_add_f32 v[{a}:{a+1}], v[{a}:{a+1}], v[{ta}:{ta+1}]")
        g.e(f"v_pk_add_f32 v[{b}:{b+1}], v[{b}:{b+1}], v[{tb}:{tb+1}]")
        g.e(f"v_pk_add_f32 v[{a}:{a+1}], v[{a}:{a+1}], s[{s_eps}:{s_eps+1}]")
        g.e(f"v_pk_add_f32 v[{b}:{b+1}], v[{b}:{b+1}], s[{s_eps}:{s_eps+1}]")
        g.e(f"v_cvt_pk_bf16_f32 v{outs[i]}, v{a}, v{a+1}")
        g.e(f"v_cvt_pk_bf16_f32 v{outs[i+1]}, v{b}, v{b+1}")

def gen_entry(g):
    g.e(f"s_cmp_ge_u32 s2, 256")
    g.e(f"s_cbranch_scc1 L_end")
    init_stamps(g)
    stamp(g, 0)
    for b in (S_X, S_W, S_WS, S_K, S_V, S_H, S_WO, S_Q, S_SK, S_D, S_OUT): srd_load(g, b, SRD_INFO[b][0])
    g.e(f"""
    v_lshrrev_b32 v1, 6, v0
    s_and_b32 s{t0}, s2, 7
    s_lshr_b32 s{t1}, s2, 3
    v_readfirstlane_b32 s{s_wave}, v1
    s_and_b32 s{s_rb}, s{t0}, 1
    s_lshl_b32 s{s_rb}, s{s_rb}, 3
    s_lshr_b32 s{t2}, s{t0}, 1
    s_xor_b32 s{t2}, s{t2}, {int(opt('hgx', 0))}
    s_lshl_b32 s{s_hp}, s{t2}, 2
    s_and_b32 s{t2}, s{t1}, 7
    s_or_b32 s{s_rb}, s{s_rb}, s{t2}
    s_lshr_b32 s{t2}, s{t1}, 3
    s_xor_b32 s{t2}, s{t2}, {int(opt('hpx', 0))}
    s_or_b32 s{s_hp}, s{s_hp}, s{t2}
    v_and_b32 v{vL}, 63, v0
    s_lshl_b32 s{s_rb2}, s{t0}, 1
    s_and_b32 s{t2}, s{t1}, 1
    s_or_b32 s{s_rb2}, s{s_rb2}, s{t2}
    s_lshr_b32 s{s_cb2}, s2, 4
    """)
    for b in (S_X, S_W, S_WS): srd_const(g, b, SRD_INFO[b][1])
    g.e(f"s_cmp_lt_u32 s{s_wave}, 4")
    g.e(f"s_cbranch_scc1 L_compute")

def wo_dma_setup(g, vW, T):
    g.e(f"""
    v_lshrrev_b32 v{T}, 3, v{vL}
    v_lshlrev_b32 v{T}, 11, v{T}
    v_lshrrev_b32 v{T+1}, 4, v{vL}
    v_and_b32 v{T+1}, 1, v{T+1}
    v_lshlrev_b32 v{T+1}, 2, v{T+1}
    v_and_b32 v{T+2}, 7, v{vL}
    v_xor_b32 v{T+1}, v{T+1}, v{T+2}
    v_lshl_add_u32 v{T}, v{T+1}, 4, v{T}
    s_lshl_b32 s{t0}, s{s_cb2}, 7
    v_add_u32 v{vW}, s{t0}, v{T}
    """)
    for m in range(1, 4):
        g.e(f"v_add_u32 v{vW+m}, {m*(8*2048 - 1024)}, v{vW}")
def wo_dma(g, vW, s_row0, nblk, name):
    lab = g.newlabel(name)
    g.e(f"""
    s_lshl_b32 s{t0}, s{s_row0}, 7
    s_lshl_b32 s{t1}, s{s_row0}, 11
    s_mov_b32 s{t2}, {nblk}
    """)
    g.lab(lab)
    g.e(f"s_mov_b32 m0, s{t0}")
    g.e(f"s_add_u32 s{t0}, s{t0}, 4096")
    for m in range(4):
        g.e(f"buffer_load_dwordx4 v{vW+m}, s[{S_WO}:{S_WO+3}], s{t1} offen offset:{m*1024}{ntf('wo')} lds")
    g.e(f"s_add_u32 s{t1}, s{t1}, {32*2048}")
    g.e(f"s_sub_u32 s{t2}, s{t2}, 1")
    g.e(f"s_cmp_lg_u32 s{t2}, 0")
    g.e(f"s_cbranch_scc1 {lab}")

def gen_hyb(g):
    g.lab("L_hyb")
    l = vL
    s_hw = 69
    vAo = [2, 3, 4, 5]; vBo = [[6 + 2*sec + i for i in range(2)] for sec in range(3)]
    T = 24
    g.e(f"""
    s_sub_u32 s{s_hw}, s{s_wave}, 4
    v_lshrrev_b32 v{T}, 3, v{l}
    s_lshl_b32 s{t0}, s{s_rb}, 7
    s_lshl_b32 s{t1}, s{s_hw}, 5
    s_add_u32 s{t0}, s{t0}, s{t1}
    v_add_u32 v{T+1}, s{t0}, v{T}
    v_lshlrev_b32 v{T+1}, 11, v{T+1}
    v_lshrrev_b32 v{T+2}, 4, v{l}
    v_and_b32 v{T+3}, 7, v{l}
    v_xor_b32 v{T+4}, v{T+2}, v{T+3}
    v_xor_b32 v{T+5}, 4, v{T+4}
    v_lshl_add_u32 v{T+4}, v{T+4}, 4, v{T+1}
    v_lshl_add_u32 v{T+5}, v{T+5}, 4, v{T+1}
    """)
    for i in range(4):
        g.e(f"v_add_u32 v{vAo[i]}, {i*8*2048 - 1024*i}, v{T + 4 + (i&1)}" if i else f"v_mov_b32 v{vAo[0]}, v{T+4}")
    g.e(f"""
    s_lshl_b32 s{t0}, s{s_hw}, 4
    v_add_u32 v{T+1}, s{t0}, v{T}
    s_movk_i32 s{t1}, 6144
    v_mul_lo_u32 v{T+1}, v{T+1}, s{t1}
    v_and_b32 v{T+2}, 1, v{T+2}
    v_lshlrev_b32 v{T+2}, 2, v{T+2}
    v_xor_b32 v{T+2}, v{T+2}, v{T+3}
    v_lshl_add_u32 v{T+1}, v{T+2}, 4, v{T+1}
    s_xor_b32 s{t0}, s{s_hp}, {int(opt('wx', 0))}
    s_lshl_b32 s{t0}, s{t0}, 7
    v_add_u32 v{T+1}, s{t0}, v{T+1}
    """)
    for sec in range(3):
        for i in range(2):
            g.e(f"v_add_u32 v{vBo[sec][i]}, {i*(8*6144 - 1024) + sec*2048}, v{T+1}")
    s_SA, s_SB, s_OA, s_OB, s_cnt, s_wrap = 64, 65, 66, 67, 68, 70
    STG = int(opt("stg", 1))
    g.e(f"""
    s_lshl_b32 s{s_SA}, s{s_hw}, 12
    s_lshl_b32 s{s_SB}, s{s_hw}, 11
    s_add_u32 s{s_SB}, s{s_SB}, {LB}
    s_mov_b32 s{s_cnt}, 0
    s_add_u32 s{s_wrap}, s{s_SA}, {3*16384}
    """)
    if STG == 0:
        g.e(f"s_mov_b32 s{s_OA}, 0")
        g.e(f"s_mov_b32 s{s_OB}, 0")
    elif STG >= 3:
        A_, B_, C_ = int(opt("sA", "0xECA86420"), 0), int(opt("sB", "0xC840"), 0), int(opt("sC", "0"), 0)
        g.e(f"""
        s_lshr_b32 s{t0}, s2, 3
        s_and_b32 s{t0}, s{t0}, 7
        s_lshl_b32 s{t0}, s{t0}, 2
        s_lshr_b32 s{t0}, {A_}, s{t0}
        s_lshr_b32 s{t1}, s2, 6
        s_lshl_b32 s{t1}, s{t1}, 2
        s_lshr_b32 s{t1}, {B_}, s{t1}
        s_add_u32 s{t0}, s{t0}, s{t1}
        s_and_b32 s{t1}, s2, 7
        s_lshl_b32 s{t1}, s{t1}, 2
        s_lshr_b32 s{t1}, {C_}, s{t1}
        s_add_u32 s{t0}, s{t0}, s{t1}
        s_and_b32 s{t0}, s{t0}, 15
        s_lshl_b32 s{s_OA}, s{t0}, 7
        s_mul_i32 s{s_OB}, s{t0}, {64*6144}
        """)
    else:
        g.e(f"""
        s_and_b32 s{t0}, s2, 7
        s_lshr_b32 s{t1}, s{t0}, 1
        s_lshl_b32 s{t1}, s{t1}, 2
        s_and_b32 s{t0}, s{t0}, 1
        s_lshl_b32 s{t0}, s{t0}, 3
        s_add_u32 s{t0}, s{t0}, s{t1}
        """)
        if STG == 2:
            g.e(f"s_lshr_b32 s{t1}, s2, 3")
            g.e(f"s_and_b32 s{t1}, s{t1}, 1")
            g.e(f"s_lshl_b32 s{t1}, s{t1}, 1")
            g.e(f"s_add_u32 s{t0}, s{t0}, s{t1}")
        g.e(f"""
        s_and_b32 s{t0}, s{t0}, 15
        s_lshl_b32 s{s_OA}, s{t0}, 7
        s_mul_i32 s{s_OB}, s{t0}, {64*6144}
        """)
    g.e(f"""
    s_waitcnt lgkmcnt(0)
    s_load_dword s{s_tag}, s[{S_WS}:{S_WS+1}], {WS_EPOCH}
    """)
    def issue():
        if "nodma" in opt("abl", "") and getattr(issue, "n", 0) >= 2:
            return
        issue.n = getattr(issue, "n", 0) + 1
        g.e(f"s_mov_b32 m0, s{s_SA}")
        g.e(f"s_add_u32 s{s_SA}, s{s_SA}, 16384")
        for i in range(4):
            g.e(f"buffer_load_dwordx4 v{vAo[i]}, s[{S_X}:{S_X+3}], s{s_OA} offen offset:{1024*i}{ntf('x')} lds")
        for sec in range(3):
            g.e(f"s_add_u32 m0, s{s_SB}, {sec*8192}")
            if sec == 0: g.e(f"s_add_u32 s{s_OA}, s{s_OA}, 128")
            else: g.e("s_nop 0")
            for i in range(2):
                g.e(f"buffer_load_dwordx4 v{vBo[sec][i]}, s[{S_W}:{S_W+3}], s{s_OB} offen offset:{1024*i}{ntf('w')} lds")
        g.e(f"""
        s_add_u32 s{s_OB}, s{s_OB}, {64*6144}
        s_add_u32 s{s_SB}, s{s_SB}, 24576
        s_cmp_eq_u32 s{s_SA}, s{s_wrap}
        s_cselect_b32 s{t0}, {3*16384}, 0
        s_cselect_b32 s{t1}, {3*24576}, 0
        s_sub_u32 s{s_SA}, s{s_SA}, s{t0}
        s_sub_u32 s{s_SB}, s{s_SB}, s{t1}
        """)
        if STG:
            g.e(f"s_cmp_eq_u32 s{s_OA}, 2048")
            g.e(f"s_cselect_b32 s{s_OA}, 0, s{s_OA}")
            g.e(f"s_cselect_b32 s{s_OB}, 0, s{s_OB}")
    NB = 10
    issue()
    stamp(g, 1)
    issue()
    for b in (S_K, S_V, S_SK, S_H, S_D, S_WO, S_Q, S_OUT): srd_const(g, b, SRD_INFO[b][1])
    wo_dma_setup(g, vWO, 240)
    vKb, vSt, vSK = 12, 15, 36
    vNeg = [37, 38, 39]
    KR = 40
    VR = 64
    WR = 80
    T = 24
    g.e(f"""
    v_and_b32 v{T}, 15, v{l}
    v_lshlrev_b32 v{T}, 3, v{T}
    s_lshl_b32 s{t0}, s{s_hp}, 7
    v_add_u32 v{T}, s{t0}, v{T}
    v_lshrrev_b32 v{T+1}, 4, v{l}
    v_lshlrev_b32 v{T+1}, 3, v{T+1}
    s_lshl_b32 s{t0}, s{s_rb}, 7
    s_lshl_b32 s{t1}, s{s_hw}, 5
    s_add_u32 s{t0}, s{t0}, s{t1}
    v_add_u32 v{T+1}, s{t0}, v{T+1}
    v_lshl_add_u32 v{vKb}, v{T+1}, 11, v{T}
    v_mov_b32 v{T+2}, 0x80000000
    v_cmp_eq_u32 vcc, 0, v{T+1}
    v_lshlrev_b32 v{vSK}, 2, v{T}
    v_lshlrev_b32 v{vSt}, 11, v{T}
    v_lshlrev_b32 v{T+3}, 1, v{T+1}
    v_sub_u32 v{T+3}, 4080, v{T+3}
    v_add_u32 v{vSt}, v{vSt}, v{T+3}
    v_lshlrev_b32 v13, 4, v{l}
    v_add_u32 v14, 2, v13
    v_mov_b32 v176, 0
    v_mov_b32 v177, 0
    v_mov_b32 v178, 0
    v_mov_b32 v179, 0
    """)
    for i in range(3):
        g.e(f"v_subrev_u32 v{vNeg[i]}, {(3-i)*2048}, v{vKb}")
    for i in range(3):
        g.e(f"v_cndmask_b32 v{vNeg[i]}, v{vNeg[i]}, v{T+2}, vcc")
    s_ch = 71
    for m in range(1, 4):
        g.e(f"s_mov_b32 s{71+m}, {m*4096}")
    def soff(row): return "0" if row < 2 else f"s{71 + row//2}"
    g.e(f"""
    s_lshl_b32 s{s_ch}, s{s_hp}, 6
    s_lshl_b32 s{t0}, s{s_rb}, 2
    s_add_u32 s{s_ch}, s{s_ch}, s{t0}
    s_add_u32 s{s_ch}, s{s_ch}, s{s_hw}
    s_setprio 1
    s_waitcnt vmcnt({NB}) lgkmcnt(0)
    s_add_u32 s{s_tag}, s{s_tag}, 1
    """)
    stamp(g, 2)
    g.e("s_barrier")
    KF, WF, XO, VF, OUT = 112, 134, 142, 158, 160
    T = 16
    def kv_loads():
        for i in range(3):
            g.e(f"buffer_load_dwordx2 v[{KR+2*i}:{KR+2*i+1}], v{vNeg[i]}, s[{S_K}:{S_K+3}], 0 offen{ntf('kv')}")
        for r in range(8):
            g.e(f"buffer_load_dwordx2 v[{KR+6+2*r}:{KR+6+2*r+1}], v{vKb}, s[{S_K}:{S_K+3}], {soff(r)} offen offset:{(r&1)*2048}{ntf('kv')}")
        for r in range(8):
            g.e(f"buffer_load_dwordx2 v[{VR+2*r}:{VR+2*r+1}], v{vKb}, s[{S_V}:{S_V+3}], {soff(r)} offen offset:{(r&1)*2048}{ntf('kv')}")
        for i in range(2):
            g.e(f"buffer_load_dwordx4 v[{WR+4*i}:{WR+4*i+3}], v{vSK}, s[{S_SK}:{S_SK+3}], 0 offen offset:{16*i}")
        return 21
    def h_dma():
        g.e(f"s_lshl_b32 s{t0}, s{s_ch}, 12")
        g.e(f"s_mul_i32 s{t1}, s{s_hw}, {H_STRIDE}")
        g.e(f"s_add_u32 m0, s{t1}, {LH + 32}")
        g.e("s_nop 0")
        for m in range(4):
            g.e(f"buffer_load_dwordx4 v13, s[{S_H}:{S_H+3}], s{t0} offen offset:{m*1024}{ntf('h')} lds")
        g.e(f"s_add_u32 m0, s{t1}, {LH + 4160 + 32}")
        g.e("s_nop 0")
        for m in range(4):
            g.e(f"buffer_load_dwordx4 v14, s[{S_H}:{S_H+3}], s{t0} offen offset:{m*1024}{ntf('h')} lds")
        g.e(f"s_lshl_b32 s{t0}, s{s_ch}, 1")
        g.e(f"v_mov_b32 v35, 0")
        g.e(f"buffer_load_ushort v35, v35, s[{S_D}:{S_D+3}], s{t0} offen")
        return 9
    def unpack(dst, src):
        g.e(f"v_lshlrev_b32 v{dst}, 16, v{src}")
        g.e(f"v_and_b32 v{dst+1}, 0xffff0000, v{src}")
    def piece(p, half):
        ob = OUT + 8*p
        if half == 0:
            for c in range(2):
                w = WR + 2*(2*p + c)
                g.e(f"v_lshlrev_b32 v{WF+0+c}, 16, v{w}")
                g.e(f"v_and_b32 v{WF+2+c}, 0xffff0000, v{w}")
                g.e(f"v_lshlrev_b32 v{WF+4+c}, 16, v{w+1}")
                g.e(f"v_and_b32 v{WF+6+c}, 0xffff0000, v{w+1}")
            for r in range(11): unpack(KF + 2*r, KR + 2*r + p)
        for s_ in (range(0, 2) if half == 0 else range(2, 8)):
            o = XO + 2*s_
            for j in range(4):
                k = KF + 2*(s_ + 3 - j); w = WF + 2*j
                if j == 0: g.e(f"v_pk_mul_f32 v[{o}:{o+1}], v[{k}:{k+1}], v[{w}:{w+1}]")
                else: g.e(f"v_pk_fma_f32 v[{o}:{o+1}], v[{k}:{k+1}], v[{w}:{w+1}], v[{o}:{o+1}]")
            unpack(VF, VR + 2*s_ + p)
            g.e(f"v_pk_mul_f32 v[{o}:{o+1}], v[{o}:{o+1}], v[{VF}:{VF+1}]")
        if half == 1:
            for c in range(2):
                for m in range(4):
                    g.e(f"v_cvt_pk_bf16_f32 v{ob+4*c+m}, v{XO+2*(7-2*m)+c}, v{XO+2*(6-2*m)+c}")
    def xr_stores():
        for p in range(2):
            ob = OUT + 8*p
            for c in range(2):
                g.e(f"s_mov_b32 s{t0}, {WS_XR + (2*p + c)*4096}")
                g.e(f"buffer_store_dwordx4 v[{ob+4*c}:{ob+4*c+3}], v{vSt}, s[{S_WS}:{S_WS+3}], s{t0} offen sc1")
        return 4
    def f1_flag():
        g.e(f"""
        s_lshl_b32 s{t0}, s{s_hp}, 8
        s_lshl_b32 s{t1}, s{s_rb}, 4
        s_add_u32 s{t0}, s{t0}, s{t1}
        s_lshl_b32 s{t1}, s{s_hw}, 2
        s_add_u32 s{t0}, s{t0}, s{t1}
        s_add_u32 s{t0}, s{t0}, {WS_F1}
        """)
        post_flag(g, t0, T, T+1)
        return 1
    def h_fix():
        g.e(f"""
        s_mul_i32 s{t1}, s{s_hw}, {H_STRIDE}
        s_add_u32 s{t1}, s{t1}, {LH}
        v_mov_b32 v{T}, s{t1}
        ds_read_u16 v{T+1}, v{T} offset:32
        v_lshlrev_b32 v35, 16, v35
        s_waitcnt lgkmcnt(0)
        v_lshlrev_b32 v{T+1}, 16, v{T+1}
        v_add_f32 v{T+1}, v{T+1}, v35
        v_cvt_pk_bf16_f32 v{T+1}, v{T+1}, v{T+1}
        v_and_b32 v{T+2}, 0xffff0000, v{T+1}
        s_mov_b64 exec, 1
        ds_write_b128 v{T}, v[176:179]
        ds_write_b128 v{T}, v[176:179] offset:16
        ds_write_b16 v{T}, v{T+1} offset:32
        ds_write_b128 v{T}, v[176:179] offset:4160
        ds_write_b64 v{T}, v[176:177] offset:4176
        ds_write_b32 v{T}, v176 offset:4184
        ds_write_b32 v{T}, v{T+2} offset:4188
        s_mov_b64 exec, -1
        s_waitcnt lgkmcnt(0)
        """)
        return 0
    def lflag_init():
        g.e(f"""
        s_not_b32 s{t0}, s{s_tag}
        v_mov_b32 v{T+2}, s{t0}
        s_lshl_b32 s{t0}, s{s_hw}, 2
        s_add_u32 s{t0}, s{t0}, {LFLAG}
        v_mov_b32 v{T+3}, s{t0}
        s_mov_b64 exec, 1
        ds_write_b32 v{T+3}, v{T+2}
        s_mov_b64 exec, -1
        s_waitcnt lgkmcnt(0)
        """)
        return 0
    KL = int(opt("kvit", 4)); XS = int(opt("xsit", 11)); HD = int(opt("hit", 13)); V0 = int(opt("vit", KL + 3))
    abl = opt("abl", "")
    side = {}
    val = {}
    def add(t, f): side.setdefault(t, []).append(f)
    add(0, lflag_init)
    if "noaux" not in abl:
        add(KL, kv_loads); add(HD, h_dma); add(XS, xr_stores)
        for i in range(4): val[V0 + i] = (i // 2, i % 2)
        assert V0 >= KL + 3 and XS >= V0 + 4 and XS <= 12
    cnt_of = {kv_loads: 21, h_dma: 9, lflag_init: 0, xr_stores: 4}
    def ecount(t): return sum(cnt_of[f] for f in side.get(t, []))
    assert max(side) <= 13
    special = [t for t in range(14) if t in side or ecount(t - 1) or t in val]
    PRE = opt("pre", "1") == "1"
    g.lab("L_hloop")
    if PRE and val:
        g.e(f"s_cmp_lt_u32 s{s_hw}, 2")
        g.e(f"s_cbranch_scc1 L_hissue")
        for t in val:
            g.e(f"s_cmp_eq_u32 s{s_cnt}, {t}")
            g.e(f"s_cbranch_scc1 L_hval{t}")
    g.lab("L_hissue")
    issue()
    if opt("bar"): stamp(g, 32, s_cnt)
    for t in special:
        g.e(f"s_cmp_eq_u32 s{s_cnt}, {t}")
        g.e(f"s_cbranch_scc1 L_hside{t}")
    g.e(f"s_waitcnt vmcnt({NB})")
    g.lab("L_htail")
    if opt("bar"): stamp(g, 16, s_cnt)
    g.e(f"s_add_u32 s{s_cnt}, s{s_cnt}, 1")
    g.e(f"s_cmp_lg_u32 s{s_cnt}, 14")
    g.e("s_barrier")
    g.e("s_cbranch_scc1 L_hloop")
    g.e(f"s_waitcnt vmcnt({ecount(13)})")
    if "noaux" not in abl: f1_flag()
    g.e("s_barrier")
    g.e("s_barrier")
    stamp(g, 3)
    T = 16
    g.e(f"""
    v_lshlrev_b32 v{T}, 2, v{l}
    s_lshl_b32 s{t1}, s{s_hp}, 8
    s_add_u32 s{t1}, s{t1}, {WS_F1}
    """)
    poll(g, T, T+1, t1, "pf1")
    stamp(g, 6)
    XR_ = 40
    g.e(f"s_lshl_b32 s{t0}, s{s_ch}, 12")
    g.e(f"s_add_u32 s{t0}, s{t0}, {WS_XR}")
    for m in range(4):
        d = XR_ + 4*m
        g.e(f"buffer_load_dwordx4 v[{d}:{d+3}], v13, s[{S_WS}:{S_WS+3}], s{t0} offen offset:{m*1024} sc1")
    h_fix()
    g.e(f"s_lshl_b32 s{t3}, s{s_hw}, 7")
    wo_dma(g, vWO, t3, 4, "wo01")
    g.e("s_barrier")
    g.e(f"""
    s_mul_i32 s{t1}, s{s_hw}, {X_STRIDE}
    s_add_u32 s{t1}, s{t1}, {LX}
    v_add_u32 v{T}, s{t1}, v13
    v_cmp_gt_u32 vcc, 30, v{l}
    s_and_saveexec_b64 s[{t4}:{t4+1}], vcc
    ds_write_b128 v{T}, v[176:179] offset:4096
    s_mov_b64 exec, s[{t4}:{t4+1}]
    s_waitcnt vmcnt(16)
    """)
    for m in range(4):
        d = XR_ + 4*m
        g.e(f"ds_write_b128 v{T}, v[{d}:{d+3}] offset:{m*1024}")
    g.e("s_waitcnt lgkmcnt(0)")
    stamp(g, 7)
    g.e("s_barrier")
    g.e("s_branch L_helper")
    for t in special:
        g.lab(f"L_hside{t}")
        for f in side.get(t, []): f()
        if t in val:
            if PRE:
                g.e(f"s_cmp_ge_u32 s{s_hw}, 2")
                g.e(f"s_cbranch_scc1 L_hwait{t}")
            g.lab(f"L_hval{t}")
            piece(*val[t])
            if PRE:
                g.e(f"s_cmp_ge_u32 s{s_hw}, 2")
                g.e(f"s_cbranch_scc1 L_hissue")
            g.lab(f"L_hwait{t}")
        n = ecount(t - 1) + NB + ecount(t)
        g.e(f"s_waitcnt vmcnt({min(n, 63)})")
        g.e("s_branch L_htail")

def gen_compute(g):
    g.lab("L_compute")
    ACCQ = [0, 16]; ACCK = [32, 48]; ACCV = [64, 80]
    P = [96, 116]
    vA = [136, 137, 138, 139]; vB = 140
    T = 150
    l = vL
    abl = opt("abl", "")
    g.e(f"""
    s_waitcnt lgkmcnt(0)
    s_load_dword s{s_tag}, s[{S_WS}:{S_WS+1}], {WS_EPOCH}
    """)
    if opt("kvpf", "0") == "1":
        srd_const(g, S_K, NB_SD); srd_const(g, S_V, NB_SD)
        g.e(f"""
        s_lshl_b32 s{t0}, s{s_rb}, 18
        s_lshl_b32 s{t1}, s{s_hp}, 7
        s_add_u32 s{t0}, s{t0}, s{t1}
        s_and_b32 s{t1}, s{s_wave}, 1
        s_lshl_b32 s{t1}, s{t1}, 17
        s_add_u32 s{t0}, s{t0}, s{t1}
        v_lshlrev_b32 v{T}, 11, v{l}
        s_cmp_lt_u32 s{s_wave}, 2
        s_cbranch_scc0 L_pfv
        buffer_load_dword v{vJ}, v{T}, s[{S_K}:{S_K+3}], s{t0} offen
        s_branch L_pfdone
        """)
        g.lab("L_pfv")
        g.e(f"buffer_load_dword v{vJ}, v{T}, s[{S_V}:{S_V+3}], s{t0} offen")
    g.lab("L_pfdone")
    for b in (S_WO, S_Q, S_OUT): srd_const(g, b, SRD_INFO[b][1])
    g.e(f"""
    s_lshr_b32 s{s_wm}, s{s_wave}, 1
    s_and_b32 s{s_wn}, s{s_wave}, 1
    v_and_b32 v{T}, 31, v{l}
    s_lshl_b32 s{t0}, s{s_wm}, 6
    v_add_u32 v{T}, s{t0}, v{T}
    v_lshlrev_b32 v{T}, 7, v{T}
    v_lshrrev_b32 v{T+1}, 1, v{l}
    v_and_b32 v{T+1}, 7, v{T+1}
    v_lshrrev_b32 v{T+2}, 5, v{l}
    v_xor_b32 v{T+1}, v{T+1}, v{T+2}
    """)
    for j in range(4):
        g.e(f"v_xor_b32 v{T+3}, {2*j}, v{T+1}")
        g.e(f"v_lshl_add_u32 v{vA[j]}, v{T+3}, 4, v{T}")
    g.e(f"""
    v_lshrrev_b32 v{T}, 5, v{l}
    v_lshlrev_b32 v{T}, 3, v{T}
    v_and_b32 v{T+1}, 15, v{l}
    v_lshrrev_b32 v{T+1}, 2, v{T+1}
    v_add_u32 v{T}, v{T}, v{T+1}
    v_lshlrev_b32 v{T}, 7, v{T}
    v_lshrrev_b32 v{T+1}, 4, v{l}
    v_and_b32 v{T+1}, 1, v{T+1}
    v_lshlrev_b32 v{T+1}, 1, v{T+1}
    v_and_b32 v{T+2}, 3, v{l}
    v_lshrrev_b32 v{T+2}, 1, v{T+2}
    v_add_u32 v{T+1}, v{T+1}, v{T+2}
    s_lshl_b32 s{t0}, s{s_wn}, 2
    v_add_u32 v{T+1}, s{t0}, v{T+1}
    v_lshrrev_b32 v{T+2}, 3, v{l}
    v_and_b32 v{T+2}, 1, v{T+2}
    v_lshlrev_b32 v{T+2}, 2, v{T+2}
    v_xor_b32 v{T+1}, v{T+1}, v{T+2}
    v_lshl_add_u32 v{T}, v{T+1}, 4, v{T}
    v_and_b32 v{T+1}, 1, v{l}
    v_lshl_add_u32 v{T}, v{T+1}, 3, v{T}
    v_add_u32 v{vB}, {LB}, v{T}
    """)
    for r in range(96):
        g.e(f"v_mov_b32 v{r}, 0")
    g.e(f"""
    s_mov_b32 s64, 16384
    s_mov_b32 s65, -32768
    s_mov_b32 s66, 24576
    s_mov_b32 s67, -49152
    s_mov_b32 s68, 0
    s_mov_b32 s69, 0
    s_waitcnt lgkmcnt(0)
    s_add_u32 s{s_tag}, s{s_tag}, 1
    s_setprio 3
    """)
    s_slot, s_it = 68, 69
    def reads(setb, j):
        A0, A1, Bq, Bk, Bv = setb, setb+4, setb+8, setb+12, setb+16
        def tr(dst, sec, q):
            return f"ds_read_b64_tr_b16 v[{dst+2*q}:{dst+2*q+1}], v{vB} offset:{sec*8192 + j*2048 + q*512}"
        return [
            (f"ds_read_b128 v[{A0}:{A0+3}], v{vA[j]} offset:0", f"A0_{setb}"),
            (tr(Bq, 0, 0), f"Bqa_{setb}"),
            (tr(Bq, 0, 1), f"Bq_{setb}"),
            (f"ds_read_b128 v[{A1}:{A1+3}], v{vA[j]} offset:4096", f"A1_{setb}"),
            (tr(Bk, 1, 0), f"Bka_{setb}"),
            (tr(Bk, 1, 1), f"Bk_{setb}"),
            (tr(Bv, 2, 0), f"Bva_{setb}"),
            (tr(Bv, 2, 1), f"Bv_{setb}"),
        ]
    def mfmas(setb):
        A0, A1, Bq, Bk, Bv = setb, setb+4, setb+8, setb+12, setb+16
        def m(acc, a, b): return f"v_mfma_f32_32x32x16_bf16 v[{acc}:{acc+15}], v[{a}:{a+3}], v[{b}:{b+3}], v[{acc}:{acc+15}]"
        return [
            (m(ACCQ[0], Bq, A0), [f"A0_{setb}", f"Bq_{setb}"]),
            (m(ACCQ[1], Bq, A1), [f"A1_{setb}"]),
            (m(ACCK[0], A0, Bk), [f"Bk_{setb}"]),
            (m(ACCK[1], A1, Bk), []),
            (m(ACCV[0], A0, Bv), [f"Bv_{setb}"]),
            (m(ACCV[1], A1, Bv), []),
        ]
    stamp(g, 1)
    g.e("s_barrier")
    stamp(g, 2)
    stampc(g, 13)
    g.lg_reset()
    for asm, tag in reads(P[0], 0): g.lg(asm, tag)
    g.lab("L_g1loop")
    g.lg_reset([t for a, t in reads(P[0], 0)])
    for j in range(4):
        cur, nxt = P[j & 1], P[(j + 1) & 1]
        M = mfmas(cur)
        if j < 3:
            R = reads(nxt, j + 1)
            sched = [2, 2, 2, 2, 0, 0]
            ri = 0
            for mi, (asm, needs) in enumerate(M):
                if needs: g.lg_need(*needs)
                g.e(asm)
                for _ in range(sched[mi]):
                    g.lg(*R[ri]); ri += 1
        else:
            R = reads(nxt, 0)
            for mi in range(2):
                asm, needs = M[mi]
                if needs: g.lg_need(*needs)
                g.e(asm)
            g.e(f"""
            s_add_u32 s{t0}, s{s_slot}, 1
            s_cmp_eq_u32 s{s_slot}, 2
            s_cselect_b32 s{s_slot}, 0, s{t0}
            s_cselect_b32 s{t0}, s65, s64
            s_cselect_b32 s{t1}, s67, s66
            """)
            for jj in range(4): g.e(f"v_add_u32 v{vA[jj]}, s{t0}, v{vA[jj]}")
            g.e(f"v_add_u32 v{vB}, s{t1}, v{vB}")
            g.lg_all()
            if opt("bar"): stamp(g, 16, s_it)
            g.e("s_barrier")
            if opt("bar"): stamp(g, 32, s_it)
            ri = 0
            for mi in range(2, 6):
                asm, needs = M[mi]
                if needs: g.lg_need(*needs)
                g.e(asm)
                for _ in range(2):
                    g.lg(*R[ri]); ri += 1
    g.e(f"s_add_u32 s{s_it}, s{s_it}, 1")
    g.e(f"s_cmp_lg_u32 s{s_it}, 16")
    g.e(f"s_cbranch_scc1 L_g1loop")
    g.e("s_waitcnt lgkmcnt(0)")
    stamp(g, 3)
    stampc(g, 14)
    PK, VF, ONES, PQ, TMP, TA = 96, 112, 128, 132, 148, 152
    s_l2e, s_eps = 64, 66
    g.e(f"""
    s_mov_b32 s{s_l2e}, {LOG2E}
    s_mov_b32 s{s_l2e+1}, {LOG2E}
    s_mov_b32 s{s_eps}, {EPS}
    s_mov_b32 s{s_eps+1}, {EPS}
    v_mov_b32 v{ONES}, 0x3f803f80
    v_mov_b32 v{ONES+1}, 0x3f803f80
    v_mov_b32 v{ONES+2}, 0x3f803f80
    v_mov_b32 v{ONES+3}, 0x3f803f80
    v_lshlrev_b32 v{TA}, 4, v{l}
    s_mul_i32 s{t0}, s{s_wn}, 4224
    s_add_u32 s{t0}, s{t0}, {LRED}
    v_add_u32 v{TA+1}, s{t0}, v{TA}
    v_lshrrev_b32 v{TA+2}, 5, v{l}
    v_lshlrev_b32 v{TA+2}, 5, v{TA+2}
    v_and_b32 v{TA+3}, 31, v{l}
    s_nop 3
    """)
    regs = [ACCK[mt] + r for mt in range(2) for r in range(0, 16, 2)]
    outs = [PK + mt*8 + r//2 for mt in range(2) for r in range(0, 16, 2)]
    phi_pairs(g, regs, TMP, s_l2e, s_eps, outs)
    for mt in range(2):
        for r in range(0, 16, 2):
            g.e(f"v_cvt_pk_bf16_f32 v{VF + mt*8 + r//2}, v{ACCV[mt]+r}, v{ACCV[mt]+r+1}")
    KV, Z = 64, 80
    g.e("s_nop 1")
    first = True
    for mt in range(2):
        for q2 in range(2):
            a = PK + mt*8 + q2*4; b = VF + mt*8 + q2*4
            c = "0" if first else f"v[{KV}:{KV+15}]"
            g.e(f"v_mfma_f32_32x32x16_bf16 v[{KV}:{KV+15}], v[{a}:{a+3}], v[{b}:{b+3}], {c}")
            c = "0" if first else f"v[{Z}:{Z+15}]"
            g.e(f"v_mfma_f32_32x32x16_bf16 v[{Z}:{Z+15}], v[{a}:{a+3}], v[{ONES}:{ONES+3}], {c}")
            first = False
    g.e(f"""
    s_add_u32 s{t1}, s{t0}, 4096
    v_add_u32 v{TA+4}, s{t1}, v{TA+2}
    v_cmp_eq_u32 vcc, 0, v{TA+3}
    s_mov_b64 s[{t4}:{t4+1}], vcc
    s_cmp_eq_u32 s{s_wm}, 0
    s_cbranch_scc1 L_red0
    s_nop 7
    s_nop 3
    """)
    for q in range(4):
        g.e(f"ds_write_b128 v{TA+1}, v[{KV+4*q}:{KV+4*q+3}] offset:{q*1024}")
    g.e(f"s_mov_b64 exec, s[{t4}:{t4+1}]")
    for q in range(4):
        g.e(f"ds_write_b128 v{TA+4}, v[{Z+4*q}:{Z+4*q+3}] offset:{(q>>1)*64 + (q&1)*16}")
    g.e("s_mov_b64 exec, -1")
    g.e("s_waitcnt lgkmcnt(0)")
    g.e("s_barrier")
    g.e("s_branch L_phiq")
    g.lab("L_red0")
    g.e(f"""
    s_lshl_b32 s{t2}, s{s_hp}, 4
    s_add_u32 s{t2}, s{t2}, s{s_rb}
    s_mul_i32 s{t2}, s{t2}, {KVP_STRIDE}
    s_add_u32 s{t2}, s{t2}, {WS_KVP}
    s_lshl_b32 s{t3}, s{s_wn}, 12
    s_add_u32 s{t3}, s{t3}, s{t2}
    s_lshl_b32 s{t1}, s{s_wn}, 7
    s_add_u32 s{t2}, s{t2}, s{t1}
    s_add_u32 s{t2}, s{t2}, 8192
    """)
    g.e("s_barrier")
    for q in range(4):
        g.e(f"ds_read_b128 v[{0+32+4*q}:{0+32+4*q+3}], v{TA+1} offset:{q*1024}")
    for q in range(4):
        g.e(f"ds_read_b128 v[{48+4*q}:{48+4*q+3}], v{TA+4} offset:{(q>>1)*64 + (q&1)*16}")
    g.e("s_waitcnt lgkmcnt(4)")
    for r in range(0, 16, 2):
        g.e(f"v_pk_add_f32 v[{KV+r}:{KV+r+1}], v[{KV+r}:{KV+r+1}], v[{32+r}:{32+r+1}]")
    g.e("s_waitcnt lgkmcnt(0)")
    for q in range(4):
        g.e(f"buffer_store_dwordx4 v[{KV+4*q}:{KV+4*q+3}], v{TA}, s[{S_WS}:{S_WS+3}], s{t3} offen offset:{q*1024} sc1")
    for r in range(0, 16, 2):
        g.e(f"v_pk_add_f32 v[{Z+r}:{Z+r+1}], v[{Z+r}:{Z+r+1}], v[{48+r}:{48+r+1}]")
    g.e(f"s_mov_b64 exec, s[{t4}:{t4+1}]")
    for q in range(4):
        g.e(f"buffer_store_dwordx4 v[{Z+4*q}:{Z+4*q+3}], v{TA+2}, s[{S_WS}:{S_WS+3}], s{t2} offen offset:{(q>>1)*64 + (q&1)*16} sc1")
    g.e("s_mov_b64 exec, -1")
    g.lab("L_phiq")
    stamp(g, 4)
    regs = [ACCQ[mt] + r for mt in range(2) for r in range(0, 16, 2)]
    outs = [PQ + mt*8 + r//2 for mt in range(2) for r in range(0, 16, 2)]
    phi_pairs(g, regs, TMP, s_l2e, s_eps, outs)
    g.e(f"""
    s_lshl_b32 s{t0}, s{s_wave}, 12
    s_add_u32 s{t0}, s{t0}, {LPQ}
    v_add_u32 v{TA+1}, s{t0}, v{TA}
    """)
    for i in range(4):
        g.e(f"ds_write_b128 v{TA+1}, v[{PQ+4*i}:{PQ+4*i+3}] offset:{i*1024}")
    g.e(f"""
    s_cmp_lg_u32 s{s_wm}, 0
    s_cbranch_scc1 L_nof2
    s_lshl_b32 s{t0}, s{s_hp}, 7
    s_lshl_b32 s{t1}, s{s_rb}, 3
    s_add_u32 s{t0}, s{t0}, s{t1}
    s_lshl_b32 s{t1}, s{s_wn}, 2
    s_add_u32 s{t0}, s{t0}, s{t1}
    s_add_u32 s{t0}, s{t0}, {WS_F2}
    s_waitcnt vmcnt(0)
    """)
    post_flag(g, t0, TA+5, TA+6)
    g.lab("L_nof2")
    ACC = 0; S = [32, 96]; cA = list(range(160, 168)); cB = 168; T = 170
    g.e(f"""
    v_and_b32 v{T+5}, 15, v{l}
    v_lshrrev_b32 v{T+6}, 4, v{l}
    v_add_u32 v{T+7}, 1, v{T+5}
    v_and_b32 v{T+7}, -2, v{T+7}
    v_lshlrev_b32 v{T+7}, 1, v{T+7}
    v_lshl_add_u32 v{T+7}, v{T+6}, 4, v{T+7}
    v_and_b32 v{T+8}, 1, v{T+5}
    v_xor_b32 v{T+8}, 1, v{T+8}
    v_mul_u32_u24 v{T+8}, 4160, v{T+8}
    v_add_u32 v{T+7}, v{T+7}, v{T+8}
    s_mul_i32 s{t0}, s{s_wave}, {H_STRIDE}
    s_add_u32 s{t0}, s{t0}, {LH + 448}
    v_add_u32 v{cA[0]}, s{t0}, v{T+7}
    """)
    for a in range(1, 8):
        g.e(f"v_add_u32 v{cA[a]}, {512*a}, v{cA[0]}")
    g.e(f"""
    v_lshlrev_b32 v{cB}, 4, v{T+6}
    v_lshlrev_b32 v{T+7}, 5, v{T+5}
    v_sub_u32 v{cB}, v{cB}, v{T+7}
    s_mul_i32 s{t0}, s{s_wave}, {X_STRIDE}
    s_add_u32 s{t0}, s{t0}, {LX + 4512 - 3584}
    v_add_u32 v{cB}, s{t0}, v{cB}
    """)
    for r in range(32): g.e(f"v_mov_b32 v{ACC+r}, 0")
    if opt("wopf", "1") == "1":
        g.e(f"""
        s_lshl_b32 s{t0}, s{s_wave}, 18
        s_add_u32 s{t0}, s{t0}, {512*2048}
        s_lshl_b32 s{t1}, s{s_cb2}, 7
        s_add_u32 s{t0}, s{t0}, s{t1}
        v_lshlrev_b32 v{T+9}, 11, v{l}
        buffer_load_dword v{vJ}, v{T+9}, s[{S_WO}:{S_WO+3}], s{t0} offen
        s_add_u32 s{t0}, s{t0}, {64*2048}
        buffer_load_dword v{vJ}, v{T+9}, s[{S_WO}:{S_WO+3}], s{t0} offen
        s_lshl_b32 s{t0}, s{s_rb}, 18
        s_lshl_b32 s{t1}, s{s_hp}, 7
        s_add_u32 s{t0}, s{t0}, s{t1}
        s_and_b32 s{t1}, s{s_wave}, 1
        s_lshl_b32 s{t1}, s{t1}, 17
        s_add_u32 s{t0}, s{t0}, s{t1}
        s_cmp_lt_u32 s{s_wave}, 2
        s_cbranch_scc0 L_noqpf
        buffer_load_dword v{vJ}, v{T+9}, s[{S_Q}:{S_Q+3}], s{t0} offen
        """)
        g.lab("L_noqpf")
    g.e("s_waitcnt lgkmcnt(0)")
    stamp(g, 5)
    g.e("s_barrier")
    stamp(g, 6)
    g.e("s_setprio 1")
    def creads(sb):
        R = []
        for x in range(8):
            d = sb + 4*x
            R.append(f"ds_read2_b32 v[{d}:{d+1}], v{cA[x]} offset0:0 offset1:1")
            R.append(f"ds_read2_b32 v[{d+2}:{d+3}], v{cA[x]} offset0:2 offset1:3")
            d = sb + 32 + 4*x
            R.append(f"ds_read_b128 v[{d}:{d+3}], v{cB} offset:{512*(7-x)}")
        return R
    def adv():
        for a in range(8): g.e(f"v_subrev_u32 v{cA[a]}, 64, v{cA[a]}")
        g.e(f"v_subrev_u32 v{cB}, 64, v{cB}")
    def cm(sb):
        pairs = [(a, w) for a in range(8) for w in range(8) if a + w <= 7]
        pairs.sort(key=lambda p: (max(p), p[0]))
        M = []
        for a, w in pairs:
            A = sb + 4*a; B = sb + 32 + 4*w; D = ACC + 4*(a + w)
            M.append(f"v_mfma_f32_16x16x32_bf16 v[{D}:{D+3}], v[{A}:{A+3}], v[{B}:{B+3}], v[{D}:{D+3}]")
        return M
    R = creads(S[0])
    for i, asm in enumerate(R):
        g.e(asm)
        if i == 11: g.e("s_waitcnt lgkmcnt(4)")
        if i == 19: g.e("s_waitcnt lgkmcnt(4)")
    adv()
    g.e(f"s_mov_b32 s{s_it}, 4")
    g.lab("L_cloop")
    for half in range(2):
        cur, nxt = S[half], S[1-half]
        g.e("s_waitcnt lgkmcnt(0)")
        M = cm(cur); R = creads(nxt)
        ri = 0
        for mi, asm in enumerate(M):
            g.e(asm)
            if mi < 32 and ri < 24 and (mi % 4 != 3):
                g.e(R[ri]); ri += 1
            if mi == 33: adv()
        assert ri == 24
    g.e(f"s_sub_u32 s{s_it}, s{s_it}, 1")
    g.e(f"s_cmp_lg_u32 s{s_it}, 0")
    g.e(f"s_cbranch_scc1 L_cloop")
    g.e("s_waitcnt lgkmcnt(0)")
    g.e("s_nop 7")
    stamp(g, 7)
    g.e(f"""
    v_and_b32 v{T+5}, 15, v{l}
    v_lshrrev_b32 v{T+6}, 4, v{l}
    v_lshlrev_b32 v{T+5}, 5, v{T+5}
    v_and_b32 v{T+7}, 1, v{T+6}
    v_lshl_add_u32 v{T+5}, v{T+7}, 9, v{T+5}
    v_lshrrev_b32 v{T+6}, 1, v{T+6}
    v_lshl_add_u32 v{T+5}, v{T+6}, 4, v{T+5}
    s_lshl_b32 s{t0}, s{s_hp}, 6
    s_lshl_b32 s{t1}, s{s_rb}, 2
    s_add_u32 s{t0}, s{t0}, s{t1}
    s_add_u32 s{t0}, s{t0}, s{s_wave}
    s_lshl_b32 s{t0}, s{t0}, 12
    s_add_u32 s{t0}, s{t0}, {WS_YT}
    """)
    for cb in range(8):
        d = 32 + 2*cb
        g.e(f"v_cvt_pk_bf16_f32 v{d}, v{ACC+4*cb}, v{ACC+4*cb+1}")
        g.e(f"v_cvt_pk_bf16_f32 v{d+1}, v{ACC+4*cb+2}, v{ACC+4*cb+3}")
    g.e("s_nop 1")
    for cp in range(4):
        d = 32 + 4*cp
        g.e(f"v_permlane16_swap_b32 v{d}, v{d+2}")
        g.e(f"v_permlane16_swap_b32 v{d+1}, v{d+3}")
    g.e("s_nop 1")
    for cp in range(4):
        d = 32 + 4*cp
        g.e(f"buffer_store_dwordx4 v[{d}:{d+3}], v{T+5}, s[{S_WS}:{S_WS+3}], s{t0} offen offset:{1024*cp} sc1")
    ACC2 = [0, 16]; AR = 64; PFD = 32
    BF = [32, 40]
    vAo = 200; vBn = [201, 202]; T = 204
    g.e(f"""
    v_and_b32 v{vAo}, 31, v{l}
    v_lshlrev_b32 v{T}, 2, v{vAo}
    v_lshlrev_b32 v{vAo}, 4, v{vAo}
    v_lshrrev_b32 v{T+1}, 5, v{l}
    v_lshl_add_u32 v{vAo}, v{T+1}, 11, v{vAo}
    s_lshl_b32 s{t1}, s{s_rb2}, 1
    s_lshr_b32 s{t2}, s{s_wave}, 1
    s_add_u32 s{t1}, s{t1}, s{t2}
    s_lshl_b32 s{t1}, s{t1}, 7
    s_add_u32 s{t1}, s{t1}, {WS_F3}
    """)
    poll(g, T, T+1, t1, "pf3")
    stamp(g, 8)
    g.e(f"""
    s_lshl_b32 s{t0}, s{s_hp}, 8
    s_lshl_b32 s{t1}, s{s_rb}, 4
    s_add_u32 s{t0}, s{t0}, s{t1}
    s_lshl_b32 s{t1}, s{s_wave}, 2
    s_add_u32 s{t0}, s{t0}, s{t1}
    s_add_u32 s{t0}, s{t0}, {WS_F4}
    """)
    post_flag(g, t0, T+2, T+3)
    s_ab = 64
    g.e(f"""
    s_lshl_b32 s{s_ab}, s{s_rb2}, 18
    s_lshl_b32 s{t1}, s{s_wave}, 9
    s_add_u32 s{s_ab}, s{s_ab}, s{t1}
    s_add_u32 s{s_ab}, s{s_ab}, {WS_O}
    """)
    for t in range(PFD):
        d = AR + 4*t
        g.e(f"s_add_u32 s{t1}, s{s_ab}, {t*4096}")
        g.e(f"buffer_load_dwordx4 v[{d}:{d+3}], v{vAo}, s[{S_WS}:{S_WS+3}], s{t1} offen sc1")
    g.e(f"""
    v_lshrrev_b32 v{T}, 5, v{l}
    v_lshlrev_b32 v{T}, 2, v{T}
    v_and_b32 v{T+1}, 15, v{l}
    v_lshrrev_b32 v{T+1}, 2, v{T+1}
    v_add_u32 v{T}, v{T}, v{T+1}
    v_lshlrev_b32 v{T}, 7, v{T}
    v_lshrrev_b32 v{T+1}, 4, v{l}
    v_and_b32 v{T+1}, 1, v{T+1}
    v_lshlrev_b32 v{T+1}, 1, v{T+1}
    v_and_b32 v{T+2}, 3, v{l}
    v_lshrrev_b32 v{T+2}, 1, v{T+2}
    v_add_u32 v{T+1}, v{T+1}, v{T+2}
    v_lshrrev_b32 v{T+2}, 3, v{l}
    v_and_b32 v{T+2}, 1, v{T+2}
    v_lshlrev_b32 v{T+2}, 2, v{T+2}
    v_xor_b32 v{T+1}, v{T+1}, v{T+2}
    v_and_b32 v{T+3}, 1, v{l}
    v_lshl_add_u32 v{T}, v{T+3}, 3, v{T}
    v_lshl_add_u32 v{vBn[0]}, v{T+1}, 4, v{T}
    v_xor_b32 v{T+1}, 4, v{T+1}
    v_lshl_add_u32 v{vBn[1]}, v{T+1}, 4, v{T}
    """)
    for r in range(32): g.e(f"v_mov_b32 v{r}, 0")
    g.e("s_barrier")
    stamp(g, 9)
    g.e("s_setprio 3")
    def breads(setb, t16):
        R = []
        for nt in range(2):
            for q in range(2):
                d = setb + 4*nt + 2*q
                R.append(f"ds_read_b64_tr_b16 v[{d}:{d+1}], v{vBn[nt]} offset:{2048*t16 + 1024*q}")
        return R
    for x in breads(BF[0], 0): g.e(x)
    g.e(f"s_add_u32 s{s_ab}, s{s_ab}, {PFD*4096}")
    g.e(f"s_mov_b32 s{s_it}, 2")
    g.lab("L_gloop")
    for t in range(32):
        cur, nxt = BF[t & 1], BF[(t + 1) & 1]
        A = AR + 4*t
        g.e(f"s_waitcnt vmcnt({PFD-1}) lgkmcnt(0)")
        if t == 31:
            g.e(f"v_add_u32 v{vBn[0]}, 65536, v{vBn[0]}")
            g.e(f"v_add_u32 v{vBn[1]}, 65536, v{vBn[1]}")
            g.e(f"s_cmp_lg_u32 s{s_it}, 2")
            g.e(f"s_cbranch_scc1 L_nox4")
            g.e("s_barrier")
            g.lab("L_nox4")
        R = breads(nxt, (t + 1) & 31)
        g.e(f"v_mfma_f32_32x32x16_bf16 v[{ACC2[0]}:{ACC2[0]+15}], v[{cur}:{cur+3}], v[{A}:{A+3}], v[{ACC2[0]}:{ACC2[0]+15}]")
        g.e(R[0]); g.e(R[1]); g.e(R[2]); g.e(R[3])
        g.e(f"v_mfma_f32_32x32x16_bf16 v[{ACC2[1]}:{ACC2[1]+15}], v[{cur+4}:{cur+7}], v[{A}:{A+3}], v[{ACC2[1]}:{ACC2[1]+15}]")
        g.e(f"s_add_u32 s{t1}, s{s_ab}, {t*4096}")
        g.e(f"buffer_load_dwordx4 v[{A}:{A+3}], v{vAo}, s[{S_WS}:{S_WS+3}], s{t1} offen sc1")
    g.e(f"s_mov_b32 s{s_ab}, 0x40000000")
    g.e(f"s_sub_u32 s{s_it}, s{s_it}, 1")
    g.e(f"s_cmp_lg_u32 s{s_it}, 0")
    g.e(f"s_cbranch_scc1 L_gloop")
    g.e("s_waitcnt vmcnt(0) lgkmcnt(0)")
    g.e("s_nop 7")
    g.e("s_nop 3")
    stamp(g, 10)
    O = 32
    for nt in range(2):
        for r in range(0, 16, 2):
            g.e(f"v_cvt_pk_bf16_f32 v{O + nt*8 + r//2}, v{ACC2[nt]+r}, v{ACC2[nt]+r+1}")
    g.e("s_nop 1")
    for nt in range(2):
        for p in range(2):
            x = O + nt*8 + 4*p
            g.e(f"v_permlane32_swap_b32 v{x}, v{x+2}")
            g.e(f"v_permlane32_swap_b32 v{x+1}, v{x+3}")
    g.e(f"""
    v_and_b32 v{T}, 31, v{l}
    s_lshl_b32 s{t0}, s{s_rb2}, 7
    s_lshl_b32 s{t1}, s{s_wave}, 5
    s_add_u32 s{t0}, s{t0}, s{t1}
    v_add_u32 v{T}, s{t0}, v{T}
    v_lshlrev_b32 v{T}, 12, v{T}
    v_lshrrev_b32 v{T+1}, 5, v{l}
    v_lshl_add_u32 v{T}, v{T+1}, 4, v{T}
    s_lshl_b32 s{t0}, s{s_cb2}, 7
    s_add_u32 s{t0}, s{t0}, 2048
    """)
    for nt_ in range(2):
        for p in range(2):
            x = O + nt_*8 + 4*p
            g.e(f"buffer_store_dwordx4 v[{x}:{x+3}], v{T}, s[{S_OUT}:{S_OUT+3}], s{t0} offen offset:{nt_*64 + p*32}{ntf('out')}")
    g.e(f"""
    s_or_b32 s{t0}, s2, s{s_wave}
    s_cmp_lg_u32 s{t0}, 0
    s_cbranch_scc1 L_noep
    s_mov_b32 s{t0}, {WS_EPOCH}
    """)
    post_flag(g, t0, T+2, T+3)
    g.lab("L_noep")
    g.e("s_waitcnt vmcnt(0)")
    flush_stamps(g)
    g.e("s_endpgm")

def gen_helper(g):
    g.lab("L_helper")
    l = vL
    s_hw = 69
    T = 2
    g.e(f"""
    s_setprio 3
    s_sub_u32 s{s_hw}, s{s_wave}, 4
    s_lshr_b32 s{s_wm}, s{s_hw}, 1
    s_and_b32 s{s_wn}, s{s_hw}, 1
    v_and_b32 v{T}, 31, v{l}
    v_lshlrev_b32 v{T}, 2, v{T}
    s_lshl_b32 s{t1}, s{s_hp}, 7
    s_add_u32 s{t1}, s{t1}, {WS_F2}
    v_lshlrev_b32 v{T+2}, 4, v{l}
    v_lshlrev_b32 v{T+3}, 2, v{l}
    v_mov_b32 v{T+4}, 0x80000000
    v_cmp_gt_u32 vcc, 16, v{l}
    s_lshl_b32 s{t2}, s{s_hp}, 4
    s_mul_i32 s{t2}, s{t2}, {KVP_STRIDE}
    s_add_u32 s{t2}, s{t2}, {WS_KVP}
    v_cndmask_b32 v{T+3}, v{T+4}, v{T+3}, vcc
    s_lshl_b32 s{t3}, s{s_hw}, 11
    s_add_u32 s{t3}, s{t3}, s{t2}
    s_lshl_b32 s{t4}, s{s_hw}, 6
    s_add_u32 s{t4}, s{t4}, s{t2}
    s_add_u32 s{t4}, s{t4}, 8192
    """)
    stamp(g, 8)
    poll(g, T, T+1, t1, "pf2")
    stamp(g, 9)
    PB = 32; ZB = 160
    for r in range(16):
        d = PB + 8*r
        g.e(f"buffer_load_dwordx4 v[{d}:{d+3}], v{T+2}, s[{S_WS}:{S_WS+3}], s{t3} offen sc1")
        g.e(f"buffer_load_dwordx4 v[{d+4}:{d+7}], v{T+2}, s[{S_WS}:{S_WS+3}], s{t3} offen offset:1024 sc1")
        g.e(f"buffer_load_dword v{ZB+r}, v{T+3}, s[{S_WS}:{S_WS+3}], s{t4} offen sc1")
        if r < 15:
            g.e(f"s_add_u32 s{t3}, s{t3}, {KVP_STRIDE}")
            g.e(f"s_add_u32 s{t4}, s{t4}, {KVP_STRIDE}")
    PQ = 200
    g.e(f"""
    s_lshl_b32 s{t0}, s{s_hw}, 12
    s_add_u32 s{t0}, s{t0}, {LPQ}
    v_add_u32 v{T+5}, s{t0}, v{T+2}
    """)
    for i in range(4):
        g.e(f"ds_read_b128 v[{PQ+4*i}:{PQ+4*i+3}], v{T+5} offset:{i*1024}")
    for r in range(1, 16):
        g.e(f"s_waitcnt vmcnt({3*(15-r)})")
        d = PB + 8*r
        for u in range(0, 8, 2):
            g.e(f"v_pk_add_f32 v[{PB+u}:{PB+u+1}], v[{PB+u}:{PB+u+1}], v[{d+u}:{d+u+1}]")
        g.e(f"v_add_f32 v{ZB}, v{ZB}, v{ZB+r}")
    KX = 180
    for u in range(0, 8, 2):
        g.e(f"v_cvt_pk_bf16_f32 v{KX+u//2}, v{PB+u}, v{PB+u+1}")
    g.e(f"v_cvt_pk_bf16_f32 v{ZB}, v{ZB}, v{ZB}")
    g.e(f"""
    s_lshl_b32 s{t0}, s{s_hw}, 10
    s_add_u32 s{t0}, s{t0}, {LKVX}
    v_add_u32 v{T+5}, s{t0}, v{T+2}
    ds_write_b128 v{T+5}, v[{KX}:{KX+3}]
    s_lshl_b32 s{t0}, s{s_hw}, 5
    s_add_u32 s{t0}, s{t0}, {LZX}
    v_lshlrev_b32 v{T+6}, 1, v{l}
    v_add_u32 v{T+6}, s{t0}, v{T+6}
    s_mov_b64 exec, 0xffff
    ds_write_b16 v{T+6}, v{ZB}
    s_mov_b64 exec, 1
    s_lshl_b32 s{t0}, s{s_hw}, 2
    s_add_u32 s{t0}, s{t0}, {LFLAG}
    v_mov_b32 v{T+6}, s{t0}
    v_mov_b32 v{T+7}, s{s_tag}
    s_waitcnt lgkmcnt(0)
    ds_write_b32 v{T+6}, v{T+7}
    s_mov_b64 exec, -1
    v_mov_b32 v{T+6}, {LFLAG}
    v_and_b32 v{T+7}, 3, v{l}
    v_lshl_add_u32 v{T+6}, v{T+7}, 2, v{T+6}
    s_mov_b32 s{t7}, {MAXSPIN*8}
    """)
    g.lab("L_hsync")
    g.e(f"""
    ds_read_b32 v{T+7}, v{T+6}
    s_waitcnt lgkmcnt(0)
    v_cmp_ne_u32 vcc, s{s_tag}, v{T+7}
    s_cbranch_vccz L_hsyncd
    s_sub_u32 s{t7}, s{t7}, 1
    s_cbranch_scc0 L_hsync
    """)
    g.lab("L_hsyncd")
    stamp(g, 10)
    KF = 184; ZF = 192
    g.e(f"""
    s_lshl_b32 s{t0}, s{s_wn}, 11
    s_add_u32 s{t0}, s{t0}, {LKVX}
    v_add_u32 v{T+5}, s{t0}, v{T+2}
    ds_read_b128 v[{KF}:{KF+3}], v{T+5}
    ds_read_b128 v[{KF+4}:{KF+7}], v{T+5} offset:1024
    s_lshl_b32 s{t0}, s{s_wn}, 6
    s_add_u32 s{t0}, s{t0}, {LZX}
    v_lshrrev_b32 v{T+6}, 5, v{l}
    v_lshlrev_b32 v{T+6}, 4, v{T+6}
    v_add_u32 v{T+6}, s{t0}, v{T+6}
    ds_read_b128 v[{ZF}:{ZF+3}], v{T+6}
    ds_read_b128 v[{ZF+4}:{ZF+7}], v{T+6} offset:32
    s_waitcnt lgkmcnt(0)
    """)
    NUM = [48, 64]; DEN = [80, 96]
    for mt in range(2):
        for q2 in range(2):
            a = KF + 4*q2; z = ZF + 4*q2; b = PQ + mt*8 + q2*4
            c = "0" if q2 == 0 else f"v[{NUM[mt]}:{NUM[mt]+15}]"
            g.e(f"v_mfma_f32_32x32x16_bf16 v[{NUM[mt]}:{NUM[mt]+15}], v[{a}:{a+3}], v[{b}:{b+3}], {c}")
            c = "0" if q2 == 0 else f"v[{DEN[mt]}:{DEN[mt]+15}]"
            g.e(f"v_mfma_f32_32x32x16_bf16 v[{DEN[mt]}:{DEN[mt]+15}], v[{z}:{z+3}], v[{b}:{b+3}], {c}")
    g.e(f"""
    s_lshl_b32 s{t2}, s{s_rb}, 18
    s_lshl_b32 s{t0}, s{s_hp}, 1
    s_add_u32 s{t0}, s{t0}, s{s_wn}
    s_lshl_b32 s{t0}, s{t0}, 13
    s_add_u32 s{t2}, s{t2}, s{t0}
    s_lshl_b32 s{t0}, s{s_wm}, 10
    s_add_u32 s{t2}, s{t2}, s{t0}
    s_add_u32 s{t2}, s{t2}, {WS_O}
    v_and_b32 v{T+5}, 31, v{l}
    v_lshlrev_b32 v{T+5}, 4, v{T+5}
    v_lshrrev_b32 v{T+6}, 5, v{l}
    v_lshl_add_u32 v{T+5}, v{T+6}, 11, v{T+5}
    s_mov_b32 s{t3}, {EPS}
    s_nop 7
    """)
    for mt in range(2):
        g.e(f"v_add_f32 v{DEN[mt]}, s{t3}, v{DEN[mt]}")
    for mt in range(2):
        g.e(f"v_rcp_f32 v{DEN[mt]}, v{DEN[mt]}")
    g.e("s_nop 1")
    OUT = 112
    for mt in range(2):
        for r in range(0, 16, 2):
            g.e(f"v_mul_f32 v{NUM[mt]+r}, v{NUM[mt]+r}, v{DEN[mt]}")
            g.e(f"v_mul_f32 v{NUM[mt]+r+1}, v{NUM[mt]+r+1}, v{DEN[mt]}")
            g.e(f"v_cvt_pk_bf16_f32 v{OUT + mt*8 + r//2}, v{NUM[mt]+r}, v{NUM[mt]+r+1}")
        for q2 in range(2):
            d = OUT + mt*8 + q2*4
            g.e(f"s_add_u32 s{t0}, s{t2}, {q2*4096 + mt*512}")
            g.e(f"buffer_store_dwordx4 v[{d}:{d+3}], v{T+5}, s[{S_WS}:{S_WS+3}], s{t0} offen sc1")
    g.e(f"""
    s_lshl_b32 s{t0}, s{s_rb}, 1
    s_add_u32 s{t0}, s{t0}, s{s_wm}
    s_lshl_b32 s{t0}, s{t0}, 7
    s_lshl_b32 s{t1}, s{s_hp}, 3
    s_add_u32 s{t0}, s{t0}, s{t1}
    s_lshl_b32 s{t1}, s{s_wn}, 2
    s_add_u32 s{t0}, s{t0}, s{t1}
    s_add_u32 s{t0}, s{t0}, {WS_F3}
    s_waitcnt vmcnt(0)
    """)
    post_flag(g, t0, T+6, T+7)
    stamp(g, 11)
    g.e("s_barrier")
    g.e(f"s_lshl_b32 s{t3}, s{s_hw}, 7")
    g.e(f"s_add_u32 s{t3}, s{t3}, 512")
    wo_dma(g, vWO, t3, 4, "wo23")
    Y = 32; Q = 64; F = 96; OUT = 112
    g.e(f"""
    v_and_b32 v{T}, 7, v{l}
    v_lshrrev_b32 v{T+1}, 3, v{l}
    s_lshl_b32 s{t0}, s{s_hw}, 3
    v_add_u32 v{T+1}, s{t0}, v{T+1}
    v_lshlrev_b32 v{T+1}, 2, v{T+1}
    s_lshl_b32 s{t0}, s{s_rb}, 7
    v_add_u32 v{T+1}, s{t0}, v{T+1}
    v_lshlrev_b32 v{T+2}, 3, v{T}
    s_lshl_b32 s{t0}, s{s_hp}, 6
    v_add_u32 v{T+2}, s{t0}, v{T+2}
    v_lshlrev_b32 v{T+3}, 12, v{T+2}
    v_lshl_add_u32 v{T+3}, v{T+1}, 1, v{T+3}
    v_lshlrev_b32 v{T+4}, 11, v{T+1}
    v_lshl_add_u32 v{T+4}, v{T+2}, 1, v{T+4}
    v_lshlrev_b32 v{T+5}, 12, v{T+1}
    v_lshl_add_u32 v{T+5}, v{T+2}, 1, v{T+5}
    s_mov_b32 s{t1}, 4096
    """)
    for i in range(4):
        so = "0" if i < 2 else f"s{t1}"
        g.e(f"buffer_load_dwordx4 v[{Q+4*i}:{Q+4*i+3}], v{T+4}, s[{S_Q}:{S_Q+3}], {so} offen offset:{(i&1)*2048}{ntf('q')}")
    g.e("s_waitcnt vmcnt(4)")
    g.e("s_barrier")
    stamp(g, 12)
    g.e(f"""
    v_lshlrev_b32 v{T}, 2, v{l}
    s_lshl_b32 s{t1}, s{s_hp}, 8
    s_add_u32 s{t1}, s{t1}, {WS_F4}
    s_setprio 0
    """)
    poll(g, T, T+6, t1, "pf4")
    stamp(g, 13)
    for j in range(8):
        g.e(f"s_mov_b32 s{t0}, {WS_YT + j*4096}")
        g.e(f"buffer_load_dwordx2 v[{Y+2*j}:{Y+2*j+1}], v{T+3}, s[{S_WS}:{S_WS+3}], s{t0} offen sc1")
    g.e("s_waitcnt vmcnt(0)")
    for i in range(4):
        for m in range(4):
            a, b, c, d = F + 4*(m & 1), F+1 + 4*(m & 1), F+2 + 4*(m & 1), F+3 + 4*(m & 1)
            qd = Q + 4*i + m
            y0 = Y + 2*(2*m) + i//2; y1 = Y + 2*(2*m+1) + i//2
            g.e(f"v_lshlrev_b32 v{a}, 16, v{qd}")
            g.e(f"v_and_b32 v{b}, 0xffff0000, v{qd}")
            if i % 2 == 0:
                g.e(f"v_lshlrev_b32 v{c}, 16, v{y0}")
                g.e(f"v_lshlrev_b32 v{d}, 16, v{y1}")
            else:
                g.e(f"v_and_b32 v{c}, 0xffff0000, v{y0}")
                g.e(f"v_and_b32 v{d}, 0xffff0000, v{y1}")
            g.e(f"v_pk_mul_f32 v[{a}:{b}], v[{a}:{b}], v[{c}:{d}]")
            g.e(f"v_cvt_pk_bf16_f32 v{OUT+4*i+m}, v{a}, v{b}")
        g.e(f"s_mov_b32 s{t0}, {i*4096}")
        g.e(f"buffer_store_dwordx4 v[{OUT+4*i}:{OUT+4*i+3}], v{T+5}, s[{S_OUT}:{S_OUT+3}], s{t0} offen{ntf('out')}")
    g.e("s_waitcnt vmcnt(0)")
    flush_stamps(g)
    g.lab("L_end")
    g.e("s_endpgm")

HDR = open("concat_heads__ssm_conv_h3__linear_attn_block__prompt.s.ref").read().split("; Override")[0]
def full():
    g = G()
    g.L.append(khead(NAME))
    gen_entry(g)
    gen_hyb(g)
    gen_compute(g)
    gen_helper(g)
    s = HDR
    s += f"; @launch grid=(256,1,1) block=(512,1,1) lds={LDS_TOTAL}\n"
    s += '.amdgcn_target "amdgcn-amd-amdhsa--gfx950"\n.text\n'
    s += g.text() + kdesc(NAME, 256)
    return s
if __name__ == "__main__":
    if "--prof" in sys.argv:
        PROF = True; sys.argv.remove("--prof")
    for a in list(sys.argv):
        if a.startswith("--opt="):
            for kv in a[6:].split(","):
                k, v = kv.split("="); OPT[k] = v
            sys.argv.remove(a)
    for a in list(sys.argv):
        if a.startswith("--nt="):
            NT = set(a[5:].split(",")); sys.argv.remove(a)
    out = sys.argv[1] if len(sys.argv) > 1 else "v5.s"
    open(out, "w").write(full())
    print("wrote", out)
```

```python
import sys
from dsl import *
NAME = "concat_heads__ssm_conv_h3__linear_attn_block__prompt_kernel"
WS_EPOCH = 0x0
WS_F1 = 0x1000
WS_F2 = 0x2000
WS_F3 = 0x3000
WS_F4 = 0x4000
WS_XR = 0x10000
WS_YT = 0x410000
WS_O  = 0x810000
WS_KVP = 0xC10000
KVP_STRIDE = 8448
WS_SIZE = 0x1000000
LA, LB = 0, 49152
LH = 122880; H_STRIDE = 8320
LX = 73728; X_STRIDE = 4576
LPQ = 92160
LRED = 108544
LKVX = 156160
LZX = 160256
LFLAG = 160512
LDS_TOTAL = 163840
LOG2E = 0x3fb8aa3b
EPS   = 0x358637bd
NB_SD = 2048*1024*2
MAXSPIN = int(__import__("os").environ.get("MAXSPIN", 20000))

PROF = False
OPT = {}
NT = set(["kv", "h"])
def ntf(k): return ' nt' if k in NT else ''
PROF_OFF = 0x8000000
def opt(k, d=None): return OPT.get(k, d)

S_X, S_W, S_WS, S_K, S_V, S_SK, S_H, S_D, S_WO, S_OUT, S_Q = 4, 8, 12, 16, 20, 24, 28, 32, 36, 40, 44
s_rb, s_hp, s_wave, s_tag, s_wm, s_wn, s_rb2, s_cb2 = 48, 49, 50, 51, 52, 53, 54, 55
t0, t1, t2, t3, t4, t5, t6, t7 = 56, 57, 58, 59, 60, 61, 62, 63
S_PF = 92
vL = 250
vJ = 251
vWO = 244

vST = 249
def stamp(g, k, sreg=None):
    if not PROF: return
    g.e(f"s_memrealtime s[88:89]")
    if sreg is not None: g.e(f"s_add_u32 m0, s{sreg}, {k}")
    g.e("s_waitcnt lgkmcnt(0)")
    g.e(f"v_writelane_b32 v{vST}, s88, {k if sreg is None else 'm0'}")
def stampc(g, k):
    if not PROF: return
    g.e(f"s_memtime s[88:89]")
    g.e("s_waitcnt lgkmcnt(0)")
    g.e(f"v_writelane_b32 v{vST}, s88, {k}")
def init_stamps(g):
    if not PROF: return
    g.e(f"v_mov_b32 v{vST}, 0")
def flush_stamps(g):
    if not PROF: return
    stamp(g, 15)
    g.e(f"""
    s_load_dwordx2 s[64:65], s[0:1], 88
    s_mov_b32 s66, 0x10000000
    s_mov_b32 s67, 0x20000
    s_lshl_b32 s68, s2, 3
    s_add_u32 s68, s68, s{s_wave}
    s_lshl_b32 s68, s68, 8
    s_add_u32 s68, s68, {PROF_OFF}
    v_lshlrev_b32 v2, 2, v{vL}
    s_waitcnt lgkmcnt(0)
    buffer_store_dword v{vST}, v2, s[64:67], s68 offen
    s_waitcnt vmcnt(0)
    """)

def srd_load(g, base, koff):
    g.e(f"s_load_dwordx2 s[{base}:{base+1}], s[0:1], {koff}")
def srd_const(g, base, nbytes):
    g.e(f"s_mov_b32 s{base+2}, {nbytes}")
    g.e(f"s_mov_b32 s{base+3}, 0x20000")
SRD_INFO = {S_X: (48, NB_SD), S_W: (56, 1024*3072*2), S_WS: (88, WS_SIZE), S_K: (8, NB_SD), S_V: (16, NB_SD),
            S_SK: (24, 1024*4*2), S_H: (32, NB_SD), S_D: (40, 2048), S_WO: (64, 1024*1024*2),
            S_OUT: (72, 2048*2048*2), S_Q: (0, NB_SD)}
def srds(g, lst):
    for b in lst: srd_load(g, b, SRD_INFO[b][0])
    for b in lst: srd_const(g, b, SRD_INFO[b][1])

def poll(g, vaddr, vtmp, soff, name):
    lab = g.newlabel(name); done = g.newlabel(name + "d")
    g.e(f"s_mov_b32 s{t7}, {MAXSPIN}")
    g.lab(lab)
    g.e(f"buffer_load_dword v{vtmp}, v{vaddr}, s[{S_WS}:{S_WS+3}], s{soff} offen sc1")
    g.e("s_waitcnt vmcnt(0)")
    g.e(f"v_cmp_ne_u32 vcc, s{s_tag}, v{vtmp}")
    g.e(f"s_cbranch_vccz {done}")
    g.e(f"s_sub_u32 s{t7}, s{t7}, 1")
    g.e(f"s_cbranch_scc1 {done}")
    g.e("s_sleep 1")
    g.e(f"s_branch {lab}")
    g.lab(done)

def post_flag(g, soff, vz, vt):
    g.e(f"""
    v_mov_b32 v{vz}, 0
    v_mov_b32 v{vt}, s{s_tag}
    s_mov_b64 exec, 1
    buffer_store_dword v{vt}, v{vz}, s[{S_WS}:{S_WS+3}], s{soff} offen sc1
    s_mov_b64 exec, -1
    """)

def phi_pairs(g, regs, tmp, s_l2e, s_eps, outs):
    n = len(regs)
    for i in range(0, n, 2):
        a, b = regs[i], regs[i+1]
        ta, tb = tmp, tmp + 2
        g.e(f"v_pk_mul_f32 v[{ta}:{ta+1}], v[{a}:{a+1}], s[{s_l2e}:{s_l2e+1}]")
        g.e(f"v_pk_mul_f32 v[{tb}:{tb+1}], v[{b}:{b+1}], s[{s_l2e}:{s_l2e+1}]")
        g.e(f"v_exp_f32_e64 v{ta}, v{ta} clamp")
        g.e(f"v_exp_f32_e64 v{ta+1}, v{ta+1} clamp")
        g.e(f"v_exp_f32_e64 v{tb}, v{tb} clamp")
        g.e(f"v_exp_f32_e64 v{tb+1}, v{tb+1} clamp")
        g.e(f"v_max_f32 v{a}, 0, v{a}")
        g.e(f"v_max_f32 v{a+1}, 0, v{a+1}")
        g.e(f"v_max_f32 v{b}, 0, v{b}")
        g.e(f"v_max_f32 v{b+1}, 0, v{b+1}")
        g.e(f"v_pk_add_f32 v[{a}:{a+1}], v[{a}:{a+1}], v[{ta}:{ta+1}]")
        g.e(f"v_pk_add_f32 v[{b}:{b+1}], v[{b}:{b+1}], v[{tb}:{tb+1}]")
        g.e(f"v_pk_add_f32 v[{a}:{a+1}], v[{a}:{a+1}], s[{s_eps}:{s_eps+1}]")
        g.e(f"v_pk_add_f32 v[{b}:{b+1}], v[{b}:{b+1}], s[{s_eps}:{s_eps+1}]")
        g.e(f"v_cvt_pk_bf16_f32 v{outs[i]}, v{a}, v{a+1}")
        g.e(f"v_cvt_pk_bf16_f32 v{outs[i+1]}, v{b}, v{b+1}")

def gen_entry(g):
    g.e(f"s_cmp_ge_u32 s2, 256")
    g.e(f"s_cbranch_scc1 L_end")
    init_stamps(g)
    stamp(g, 0)
    for b in (S_X, S_W, S_WS, S_K, S_V, S_H, S_WO, S_Q, S_SK, S_D, S_OUT): srd_load(g, b, SRD_INFO[b][0])
    g.e(f"""
    v_lshrrev_b32 v1, 6, v0
    s_and_b32 s{t0}, s2, 7
    s_lshr_b32 s{t1}, s2, 3
    v_readfirstlane_b32 s{s_wave}, v1
    s_and_b32 s{s_rb}, s{t0}, 1
    s_lshl_b32 s{s_rb}, s{s_rb}, 3
    s_lshr_b32 s{t2}, s{t0}, 1
    s_xor_b32 s{t2}, s{t2}, {int(opt('hgx', 0))}
    s_lshl_b32 s{s_hp}, s{t2}, 2
    s_and_b32 s{t2}, s{t1}, 7
    s_or_b32 s{s_rb}, s{s_rb}, s{t2}
    s_lshr_b32 s{t2}, s{t1}, 3
    s_xor_b32 s{t2}, s{t2}, {int(opt('hpx', 0))}
    s_or_b32 s{s_hp}, s{s_hp}, s{t2}
    v_and_b32 v{vL}, 63, v0
    s_lshl_b32 s{s_rb2}, s{t0}, 1
    s_and_b32 s{t2}, s{t1}, 1
    s_or_b32 s{s_rb2}, s{s_rb2}, s{t2}
    s_lshr_b32 s{s_cb2}, s2, 4
    """)
    for b in (S_X, S_W, S_WS): srd_const(g, b, SRD_INFO[b][1])
    g.e(f"s_cmp_lt_u32 s{s_wave}, 4")
    g.e(f"s_cbranch_scc1 L_compute")

def wo_dma_setup(g, vW, T):
    g.e(f"""
    v_lshrrev_b32 v{T}, 3, v{vL}
    v_lshlrev_b32 v{T}, 11, v{T}
    v_lshrrev_b32 v{T+1}, 4, v{vL}
    v_and_b32 v{T+1}, 1, v{T+1}
    v_lshlrev_b32 v{T+1}, 2, v{T+1}
    v_and_b32 v{T+2}, 7, v{vL}
    v_xor_b32 v{T+1}, v{T+1}, v{T+2}
    v_lshl_add_u32 v{T}, v{T+1}, 4, v{T}
    s_lshl_b32 s{t0}, s{s_cb2}, 7
    v_add_u32 v{vW}, s{t0}, v{T}
    """)
    for m in range(1, 4):
        g.e(f"v_add_u32 v{vW+m}, {m*(8*2048 - 1024)}, v{vW}")
def wo_dma(g, vW, s_row0, nblk, name):
    lab = g.newlabel(name)
    g.e(f"""
    s_lshl_b32 s{t0}, s{s_row0}, 7
    s_lshl_b32 s{t1}, s{s_row0}, 11
    s_mov_b32 s{t2}, {nblk}
    """)
    g.lab(lab)
    g.e(f"s_mov_b32 m0, s{t0}")
    g.e(f"s_add_u32 s{t0}, s{t0}, 4096")
    for m in range(4):
        g.e(f"buffer_load_dwordx4 v{vW+m}, s[{S_WO}:{S_WO+3}], s{t1} offen offset:{m*1024}{ntf('wo')} lds")
    g.e(f"s_add_u32 s{t1}, s{t1}, {32*2048}")
    g.e(f"s_sub_u32 s{t2}, s{t2}, 1")
    g.e(f"s_cmp_lg_u32 s{t2}, 0")
    g.e(f"s_cbranch_scc1 {lab}")

def gen_hyb(g):
    g.lab("L_hyb")
    l = vL
    s_hw = 69
    vAo = [2, 3, 4, 5]; vBo = [[6 + 2*sec + i for i in range(2)] for sec in range(3)]
    T = 24
    g.e(f"""
    s_sub_u32 s{s_hw}, s{s_wave}, 4
    v_lshrrev_b32 v{T}, 3, v{l}
    s_lshl_b32 s{t0}, s{s_rb}, 7
    s_lshl_b32 s{t1}, s{s_hw}, 5
    s_add_u32 s{t0}, s{t0}, s{t1}
    v_add_u32 v{T+1}, s{t0}, v{T}
    v_lshlrev_b32 v{T+1}, 11, v{T+1}
    v_lshrrev_b32 v{T+2}, 4, v{l}
    v_and_b32 v{T+3}, 7, v{l}
    v_xor_b32 v{T+4}, v{T+2}, v{T+3}
    v_xor_b32 v{T+5}, 4, v{T+4}
    v_lshl_add_u32 v{T+4}, v{T+4}, 4, v{T+1}
    v_lshl_add_u32 v{T+5}, v{T+5}, 4, v{T+1}
    """)
    for i in range(4):
        g.e(f"v_add_u32 v{vAo[i]}, {i*8*2048 - 1024*i}, v{T + 4 + (i&1)}" if i else f"v_mov_b32 v{vAo[0]}, v{T+4}")
    g.e(f"""
    s_lshl_b32 s{t0}, s{s_hw}, 4
    v_add_u32 v{T+1}, s{t0}, v{T}
    s_movk_i32 s{t1}, 6144
    v_mul_lo_u32 v{T+1}, v{T+1}, s{t1}
    v_and_b32 v{T+2}, 1, v{T+2}
    v_lshlrev_b32 v{T+2}, 2, v{T+2}
    v_xor_b32 v{T+2}, v{T+2}, v{T+3}
    v_lshl_add_u32 v{T+1}, v{T+2}, 4, v{T+1}
    s_xor_b32 s{t0}, s{s_hp}, {int(opt('wx', 0))}
    s_lshl_b32 s{t0}, s{t0}, 7
    v_add_u32 v{T+1}, s{t0}, v{T+1}
    """)
    for sec in range(3):
        for i in range(2):
            g.e(f"v_add_u32 v{vBo[sec][i]}, {i*(8*6144 - 1024) + sec*2048}, v{T+1}")
    s_SA, s_SB, s_OA, s_OB, s_cnt, s_wrap = 64, 65, 66, 67, 68, 70
    STG = int(opt("stg", 1))
    g.e(f"""
    s_lshl_b32 s{s_SA}, s{s_hw}, 12
    s_lshl_b32 s{s_SB}, s{s_hw}, 11
    s_add_u32 s{s_SB}, s{s_SB}, {LB}
    s_mov_b32 s{s_cnt}, 0
    s_add_u32 s{s_wrap}, s{s_SA}, {3*16384}
    """)
    if STG == 0:
        g.e(f"s_mov_b32 s{s_OA}, 0")
        g.e(f"s_mov_b32 s{s_OB}, 0")
    elif STG >= 3:
        A_, B_, C_ = int(opt("sA", "0xECA86420"), 0), int(opt("sB", "0xC840"), 0), int(opt("sC", "0"), 0)
        g.e(f"""
        s_lshr_b32 s{t0}, s2, 3
        s_and_b32 s{t0}, s{t0}, 7
        s_lshl_b32 s{t0}, s{t0}, 2
        s_lshr_b32 s{t0}, {A_}, s{t0}
        s_lshr_b32 s{t1}, s2, 6
        s_lshl_b32 s{t1}, s{t1}, 2
        s_lshr_b32 s{t1}, {B_}, s{t1}
        s_add_u32 s{t0}, s{t0}, s{t1}
        s_and_b32 s{t1}, s2, 7
        s_lshl_b32 s{t1}, s{t1}, 2
        s_lshr_b32 s{t1}, {C_}, s{t1}
        s_add_u32 s{t0}, s{t0}, s{t1}
        s_and_b32 s{t0}, s{t0}, 15
        s_lshl_b32 s{s_OA}, s{t0}, 7
        s_mul_i32 s{s_OB}, s{t0}, {64*6144}
        """)
    else:
        g.e(f"""
        s_and_b32 s{t0}, s2, 7
        s_lshr_b32 s{t1}, s{t0}, 1
        s_lshl_b32 s{t1}, s{t1}, 2
        s_and_b32 s{t0}, s{t0}, 1
        s_lshl_b32 s{t0}, s{t0}, 3
        s_add_u32 s{t0}, s{t0}, s{t1}
        """)
        if STG == 2:
            g.e(f"s_lshr_b32 s{t1}, s2, 3")
            g.e(f"s_and_b32 s{t1}, s{t1}, 1")
            g.e(f"s_lshl_b32 s{t1}, s{t1}, 1")
            g.e(f"s_add_u32 s{t0}, s{t0}, s{t1}")
        g.e(f"""
        s_and_b32 s{t0}, s{t0}, 15
        s_lshl_b32 s{s_OA}, s{t0}, 7
        s_mul_i32 s{s_OB}, s{t0}, {64*6144}
        """)
    g.e(f"""
    s_waitcnt lgkmcnt(0)
    s_load_dword s{s_tag}, s[{S_WS}:{S_WS+1}], {WS_EPOCH}
    """)
    def issue():
        if "nodma" in opt("abl", "") and getattr(issue, "n", 0) >= 2:
            return
        issue.n = getattr(issue, "n", 0) + 1
        g.e(f"s_mov_b32 m0, s{s_SA}")
        g.e(f"s_add_u32 s{s_SA}, s{s_SA}, 16384")
        for i in range(4):
            g.e(f"buffer_load_dwordx4 v{vAo[i]}, s[{S_X}:{S_X+3}], s{s_OA} offen offset:{1024*i}{ntf('x')} lds")
        for sec in range(3):
            g.e(f"s_add_u32 m0, s{s_SB}, {sec*8192}")
            if sec == 0: g.e(f"s_add_u32 s{s_OA}, s{s_OA}, 128")
            else: g.e("s_nop 0")
            for i in range(2):
                g.e(f"buffer_load_dwordx4 v{vBo[sec][i]}, s[{S_W}:{S_W+3}], s{s_OB} offen offset:{1024*i}{ntf('w')} lds")
        g.e(f"""
        s_add_u32 s{s_OB}, s{s_OB}, {64*6144}
        s_add_u32 s{s_SB}, s{s_SB}, 24576
        s_cmp_eq_u32 s{s_SA}, s{s_wrap}
        s_cselect_b32 s{t0}, {3*16384}, 0
        s_cselect_b32 s{t1}, {3*24576}, 0
        s_sub_u32 s{s_SA}, s{s_SA}, s{t0}
        s_sub_u32 s{s_SB}, s{s_SB}, s{t1}
        """)
        if STG:
            g.e(f"s_cmp_eq_u32 s{s_OA}, 2048")
            g.e(f"s_cselect_b32 s{s_OA}, 0, s{s_OA}")
            g.e(f"s_cselect_b32 s{s_OB}, 0, s{s_OB}")
    NB = 10
    issue()
    stamp(g, 1)
    issue()
    for b in (S_K, S_V, S_SK, S_H, S_D, S_WO, S_Q, S_OUT): srd_const(g, b, SRD_INFO[b][1])
    wo_dma_setup(g, vWO, 240)
    vKb, vSt, vSK = 12, 15, 36
    vNeg = [37, 38, 39]
    KR = 40
    VR = 64
    WR = 80
    T = 24
    g.e(f"""
    v_and_b32 v{T}, 15, v{l}
    v_lshlrev_b32 v{T}, 3, v{T}
    s_lshl_b32 s{t0}, s{s_hp}, 7
    v_add_u32 v{T}, s{t0}, v{T}
    v_lshrrev_b32 v{T+1}, 4, v{l}
    v_lshlrev_b32 v{T+1}, 3, v{T+1}
    s_lshl_b32 s{t0}, s{s_rb}, 7
    s_lshl_b32 s{t1}, s{s_hw}, 5
    s_add_u32 s{t0}, s{t0}, s{t1}
    v_add_u32 v{T+1}, s{t0}, v{T+1}
    v_lshl_add_u32 v{vKb}, v{T+1}, 11, v{T}
    v_mov_b32 v{T+2}, 0x80000000
    v_cmp_eq_u32 vcc, 0, v{T+1}
    v_lshlrev_b32 v{vSK}, 2, v{T}
    v_lshlrev_b32 v{vSt}, 11, v{T}
    v_lshlrev_b32 v{T+3}, 1, v{T+1}
    v_sub_u32 v{T+3}, 4080, v{T+3}
    v_add_u32 v{vSt}, v{vSt}, v{T+3}
    v_lshlrev_b32 v13, 4, v{l}
    v_add_u32 v14, 2, v13
    v_mov_b32 v176, 0
    v_mov_b32 v177, 0
    v_mov_b32 v178, 0
    v_mov_b32 v179, 0
    """)
    for i in range(3):
        g.e(f"v_subrev_u32 v{vNeg[i]}, {(3-i)*2048}, v{vKb}")
    for i in range(3):
        g.e(f"v_cndmask_b32 v{vNeg[i]}, v{vNeg[i]}, v{T+2}, vcc")
    s_ch = 71
    for m in range(1, 4):
        g.e(f"s_mov_b32 s{71+m}, {m*4096}")
    def soff(row): return "0" if row < 2 else f"s{71 + row//2}"
    g.e(f"""
    s_lshl_b32 s{s_ch}, s{s_hp}, 6
    s_lshl_b32 s{t0}, s{s_rb}, 2
    s_add_u32 s{s_ch}, s{s_ch}, s{t0}
    s_add_u32 s{s_ch}, s{s_ch}, s{s_hw}
    s_setprio 1
    s_waitcnt vmcnt({NB}) lgkmcnt(0)
    s_add_u32 s{s_tag}, s{s_tag}, 1
    """)
    stamp(g, 2)
    g.e("s_barrier")
    KF, WF, XO, VF, OUT = 112, 134, 142, 158, 160
    T = 16
    def kv_loads():
        for i in range(3):
            g.e(f"buffer_load_dwordx2 v[{KR+2*i}:{KR+2*i+1}], v{vNeg[i]}, s[{S_K}:{S_K+3}], 0 offen{ntf('kv')}")
        for r in range(8):
            g.e(f"buffer_load_dwordx2 v[{KR+6+2*r}:{KR+6+2*r+1}], v{vKb}, s[{S_K}:{S_K+3}], {soff(r)} offen offset:{(r&1)*2048}{ntf('kv')}")
        for r in range(8):
            g.e(f"buffer_load_dwordx2 v[{VR+2*r}:{VR+2*r+1}], v{vKb}, s[{S_V}:{S_V+3}], {soff(r)} offen offset:{(r&1)*2048}{ntf('kv')}")
        for i in range(2):
            g.e(f"buffer_load_dwordx4 v[{WR+4*i}:{WR+4*i+3}], v{vSK}, s[{S_SK}:{S_SK+3}], 0 offen offset:{16*i}")
        return 21
    def h_dma():
        g.e(f"s_lshl_b32 s{t0}, s{s_ch}, 12")
        g.e(f"s_mul_i32 s{t1}, s{s_hw}, {H_STRIDE}")
        g.e(f"s_add_u32 m0, s{t1}, {LH + 32}")
        g.e("s_nop 0")
        for m in range(4):
            g.e(f"buffer_load_dwordx4 v13, s[{S_H}:{S_H+3}], s{t0} offen offset:{m*1024}{ntf('h')} lds")
        g.e(f"s_add_u32 m0, s{t1}, {LH + 4160 + 32}")
        g.e("s_nop 0")
        for m in range(4):
            g.e(f"buffer_load_dwordx4 v14, s[{S_H}:{S_H+3}], s{t0} offen offset:{m*1024}{ntf('h')} lds")
        g.e(f"s_lshl_b32 s{t0}, s{s_ch}, 1")
        g.e(f"v_mov_b32 v35, 0")
        g.e(f"buffer_load_ushort v35, v35, s[{S_D}:{S_D+3}], s{t0} offen")
        return 9
    def unpack(dst, src):
        g.e(f"v_lshlrev_b32 v{dst}, 16, v{src}")
        g.e(f"v_and_b32 v{dst+1}, 0xffff0000, v{src}")
    def piece(p, half):
        ob = OUT + 8*p
        if half == 0:
            for c in range(2):
                w = WR + 2*(2*p + c)
                g.e(f"v_lshlrev_b32 v{WF+0+c}, 16, v{w}")
                g.e(f"v_and_b32 v{WF+2+c}, 0xffff0000, v{w}")
                g.e(f"v_lshlrev_b32 v{WF+4+c}, 16, v{w+1}")
                g.e(f"v_and_b32 v{WF+6+c}, 0xffff0000, v{w+1}")
            for r in range(11): unpack(KF + 2*r, KR + 2*r + p)
        for s_ in (range(0, 2) if half == 0 else range(2, 8)):
            o = XO + 2*s_
            for j in range(4):
                k = KF + 2*(s_ + 3 - j); w = WF + 2*j
                if j == 0: g.e(f"v_pk_mul_f32 v[{o}:{o+1}], v[{k}:{k+1}], v[{w}:{w+1}]")
                else: g.e(f"v_pk_fma_f32 v[{o}:{o+1}], v[{k}:{k+1}], v[{w}:{w+1}], v[{o}:{o+1}]")
            unpack(VF, VR + 2*s_ + p)
            g.e(f"v_pk_mul_f32 v[{o}:{o+1}], v[{o}:{o+1}], v[{VF}:{VF+1}]")
        if half == 1:
            for c in range(2):
                for m in range(4):
                    g.e(f"v_cvt_pk_bf16_f32 v{ob+4*c+m}, v{XO+2*(7-2*m)+c}, v{XO+2*(6-2*m)+c}")
    def xr_stores():
        for p in range(2):
            ob = OUT + 8*p
            for c in range(2):
                g.e(f"s_mov_b32 s{t0}, {WS_XR + (2*p + c)*4096}")
                g.e(f"buffer_store_dwordx4 v[{ob+4*c}:{ob+4*c+3}], v{vSt}, s[{S_WS}:{S_WS+3}], s{t0} offen sc1")
        return 4
    def f1_flag():
        g.e(f"""
        s_lshl_b32 s{t0}, s{s_hp}, 8
        s_lshl_b32 s{t1}, s{s_rb}, 4
        s_add_u32 s{t0}, s{t0}, s{t1}
        s_lshl_b32 s{t1}, s{s_hw}, 2
        s_add_u32 s{t0}, s{t0}, s{t1}
        s_add_u32 s{t0}, s{t0}, {WS_F1}
        """)
        post_flag(g, t0, T, T+1)
        return 1
    def h_fix():
        g.e(f"""
        s_mul_i32 s{t1}, s{s_hw}, {H_STRIDE}
        s_add_u32 s{t1}, s{t1}, {LH}
        v_mov_b32 v{T}, s{t1}
        ds_read_u16 v{T+1}, v{T} offset:32
        v_lshlrev_b32 v35, 16, v35
        s_waitcnt lgkmcnt(0)
        v_lshlrev_b32 v{T+1}, 16, v{T+1}
        v_add_f32 v{T+1}, v{T+1}, v35
        v_cvt_pk_bf16_f32 v{T+1}, v{T+1}, v{T+1}
        v_and_b32 v{T+2}, 0xffff0000, v{T+1}
        s_mov_b64 exec, 1
        ds_write_b128 v{T}, v[176:179]
        ds_write_b128 v{T}, v[176:179] offset:16
        ds_write_b16 v{T}, v{T+1} offset:32
        ds_write_b128 v{T}, v[176:179] offset:4160
        ds_write_b64 v{T}, v[176:177] offset:4176
        ds_write_b32 v{T}, v176 offset:4184
        ds_write_b32 v{T}, v{T+2} offset:4188
        s_mov_b64 exec, -1
        s_waitcnt lgkmcnt(0)
        """)
        return 0
    def lflag_init():
        g.e(f"""
        s_not_b32 s{t0}, s{s_tag}
        v_mov_b32 v{T+2}, s{t0}
        s_lshl_b32 s{t0}, s{s_hw}, 2
        s_add_u32 s{t0}, s{t0}, {LFLAG}
        v_mov_b32 v{T+3}, s{t0}
        s_mov_b64 exec, 1
        ds_write_b32 v{T+3}, v{T+2}
        ds_write_b32 v{T+3}, v{T+2} offset:32
        s_mov_b64 exec, -1
        s_waitcnt lgkmcnt(0)
        """)
        return 0
    def wo_touch():
        g.e(f"""
        s_lshr_b32 s{t0}, s2, 3
        s_lshl_b32 s{t0}, s{t0}, 2
        s_add_u32 s{t0}, s{t0}, s{s_hw}
        s_lshl_b32 s{t0}, s{t0}, 14
        v_lshrrev_b32 v{T}, 4, v{l}
        v_lshlrev_b32 v{T}, 11, v{T}
        v_and_b32 v{T+1}, 15, v{l}
        v_lshl_add_u32 v{T}, v{T+1}, 7, v{T}
        buffer_load_dword v{vJ}, v{T}, s[{S_WO}:{S_WO+3}], s{t0} offen
        s_add_u32 s{t0}, s{t0}, 8192
        buffer_load_dword v{vJ}, v{T}, s[{S_WO}:{S_WO+3}], s{t0} offen
        """)
        return 2
    def mk_wo_piece(u):
        def f():
            g.e(f"""
            s_lshr_b32 s{t0}, s2, 3
            s_lshl_b32 s{t0}, s{t0}, 5
            s_add_u32 s{t0}, s{t0}, s{s_hw}
            s_add_u32 s{t0}, s{t0}, {4*u}
            s_lshl_b32 s{t0}, s{t0}, 11
            v_lshlrev_b32 v{T}, 7, v{l}
            s_mov_b64 exec, 0xffff
            buffer_load_dword v{vJ}, v{T}, s[{S_WO}:{S_WO+3}], s{t0} offen
            s_mov_b64 exec, -1
            """)
            return 1
        return f
    def wo_touch3():
        g.e(f"""
        s_lshr_b32 s{t0}, s2, 3
        s_lshl_b32 s{t0}, s{t0}, 2
        s_add_u32 s{t0}, s{t0}, s{s_hw}
        s_lshl_b32 s{t0}, s{t0}, 14
        s_add_u32 s{t0}, s{t0}, 384
        v_and_b32 v{T}, 7, v{l}
        v_lshlrev_b32 v{T}, 11, v{T}
        v_lshrrev_b32 v{T+1}, 3, v{l}
        v_lshl_add_u32 v{T}, v{T+1}, 10, v{T}
        s_mov_b64 exec, 0xffff
        buffer_load_dword v{vJ}, v{T}, s[{S_WO}:{S_WO+3}], s{t0} offen
        s_mov_b64 exec, -1
        """)
        return 1
    KL = int(opt("kvit", 4)); XS = int(opt("xsit", 11)); HD = int(opt("hit", 13)); V0 = int(opt("vit", KL + 3))
    abl = opt("abl", "")
    side = {}
    val = {}
    def add(t, f): side.setdefault(t, []).append(f)
    extra_cnt = {}
    add(0, lflag_init)
    if "noaux" not in abl:
        add(KL, kv_loads); add(HD, h_dma); add(XS, xr_stores)
        w_ = opt("wot", "x")
        if w_.startswith("s"):
            for u in range(8):
                f_ = mk_wo_piece(u); extra_cnt[f_] = 1; add(int(w_[1:]) + u, f_)
        elif w_.startswith("c"):
            add(int(w_[1:]), wo_touch3); extra_cnt[wo_touch3] = 1
        elif w_ not in ("0", "x"): add(int(w_), wo_touch)
        for i in range(4): val[V0 + i] = (i // 2, i % 2)
        assert V0 >= KL + 3 and XS >= V0 + 4 and XS <= 12
    cnt_of = {kv_loads: 21, h_dma: 9, lflag_init: 0, xr_stores: 4, wo_touch: 2}
    cnt_of.update(extra_cnt)
    def ecount(t): return sum(cnt_of[f] for f in side.get(t, []))
    assert max(side) <= 13
    special = [t for t in range(14) if t in side or ecount(t - 1) or t in val]
    PRE = opt("pre", "1") == "1"
    g.lab("L_hloop")
    if PRE and val:
        g.e(f"s_cmp_lt_u32 s{s_hw}, 2")
        g.e(f"s_cbranch_scc1 L_hissue")
        for t in val:
            g.e(f"s_cmp_eq_u32 s{s_cnt}, {t}")
            g.e(f"s_cbranch_scc1 L_hval{t}")
    g.lab("L_hissue")
    issue()
    if opt("bar"): stamp(g, 32, s_cnt)
    for t in special:
        g.e(f"s_cmp_eq_u32 s{s_cnt}, {t}")
        g.e(f"s_cbranch_scc1 L_hside{t}")
    g.e(f"s_waitcnt vmcnt({NB})")
    g.lab("L_htail")
    if opt("bar"): stamp(g, 16, s_cnt)
    g.e(f"s_add_u32 s{s_cnt}, s{s_cnt}, 1")
    g.e(f"s_cmp_lg_u32 s{s_cnt}, 14")
    g.e("s_barrier")
    g.e("s_cbranch_scc1 L_hloop")
    g.e(f"s_waitcnt vmcnt({ecount(13)})")
    if "noaux" not in abl: f1_flag()
    g.e("s_barrier")
    g.e("s_barrier")
    stamp(g, 3)
    T = 16
    g.e(f"""
    v_lshlrev_b32 v{T}, 2, v{l}
    s_lshl_b32 s{t1}, s{s_hp}, 8
    s_add_u32 s{t1}, s{t1}, {WS_F1}
    """)
    poll(g, T, T+1, t1, "pf1")
    stamp(g, 6)
    XR_ = 40
    g.e(f"s_lshl_b32 s{t0}, s{s_ch}, 12")
    g.e(f"s_add_u32 s{t0}, s{t0}, {WS_XR}")
    for m in range(4):
        d = XR_ + 4*m
        g.e(f"buffer_load_dwordx4 v[{d}:{d+3}], v13, s[{S_WS}:{S_WS+3}], s{t0} offen offset:{m*1024} sc1")
    nwt = 0
    if opt("wot", "x") == "x": nwt = wo_touch()
    h_fix()
    g.e(f"""
    s_mul_i32 s{t1}, s{s_hw}, {X_STRIDE}
    s_add_u32 s{t1}, s{t1}, {LX}
    v_add_u32 v{T}, s{t1}, v13
    v_cmp_gt_u32 vcc, 30, v{l}
    s_and_saveexec_b64 s[{t4}:{t4+1}], vcc
    ds_write_b128 v{T}, v[176:179] offset:4096
    s_mov_b64 exec, s[{t4}:{t4+1}]
    s_waitcnt vmcnt({nwt})
    """)
    for m in range(4):
        d = XR_ + 4*m
        g.e(f"ds_write_b128 v{T}, v[{d}:{d+3}] offset:{m*1024}")
    g.e("s_waitcnt lgkmcnt(0)")
    stamp(g, 7)
    g.e("s_barrier")
    g.e("s_branch L_helper")
    for t in special:
        g.lab(f"L_hside{t}")
        for f in side.get(t, []): f()
        if t in val:
            if PRE:
                g.e(f"s_cmp_ge_u32 s{s_hw}, 2")
                g.e(f"s_cbranch_scc1 L_hwait{t}")
            g.lab(f"L_hval{t}")
            piece(*val[t])
            if PRE:
                g.e(f"s_cmp_ge_u32 s{s_hw}, 2")
                g.e(f"s_cbranch_scc1 L_hissue")
            g.lab(f"L_hwait{t}")
        n = ecount(t - 1) + NB + ecount(t)
        g.e(f"s_waitcnt vmcnt({min(n, 63)})")
        g.e("s_branch L_htail")

def gen_compute(g):
    g.lab("L_compute")
    ACCQ = [0, 16]; ACCK = [32, 48]; ACCV = [64, 80]
    P = [96, 116]
    vA = [136, 137, 138, 139]; vB = 140
    T = 150
    l = vL
    abl = opt("abl", "")
    g.e(f"""
    s_waitcnt lgkmcnt(0)
    s_load_dword s{s_tag}, s[{S_WS}:{S_WS+1}], {WS_EPOCH}
    """)
    if opt("kvpf", "0") == "1":
        srd_const(g, S_K, NB_SD); srd_const(g, S_V, NB_SD)
        g.e(f"""
        s_lshl_b32 s{t0}, s{s_rb}, 18
        s_lshl_b32 s{t1}, s{s_hp}, 7
        s_add_u32 s{t0}, s{t0}, s{t1}
        s_and_b32 s{t1}, s{s_wave}, 1
        s_lshl_b32 s{t1}, s{t1}, 17
        s_add_u32 s{t0}, s{t0}, s{t1}
        v_lshlrev_b32 v{T}, 11, v{l}
        s_cmp_lt_u32 s{s_wave}, 2
        s_cbranch_scc0 L_pfv
        buffer_load_dword v{vJ}, v{T}, s[{S_K}:{S_K+3}], s{t0} offen
        s_branch L_pfdone
        """)
        g.lab("L_pfv")
        g.e(f"buffer_load_dword v{vJ}, v{T}, s[{S_V}:{S_V+3}], s{t0} offen")
    g.lab("L_pfdone")
    c3 = opt("c3", "wxk")
    C3AT = int(opt("c3at", 0))
    vC3, sC3, sC3m = 146, 70, 71
    if c3 != "0":
        srd_const(g, S_K, NB_SD); srd_const(g, S_V, NB_SD)
        g.e(f"""
        s_and_b32 s{t0}, s2, 7
        s_lshr_b32 s{t1}, s2, 3
        s_lshl_b32 s{t1}, s{t1}, 5
        v_and_b32 v{T}, 31, v{l}
        v_add_u32 v{T}, s{t1}, v{T}
        v_lshrrev_b32 v{T+1}, 5, v{l}
        s_lshr_b32 s{t2}, s{t0}, 1
        s_lshl_b32 s{t2}, s{t2}, 2
        s_add_u32 s{t2}, s{t2}, 3
        s_lshl_b32 s{t2}, s{t2}, 7
        s_and_b32 s{t3}, s{t0}, 1
        s_lshl_b32 s{t3}, s{t3}, 21
        s_mov_b32 s{sC3m}, 0
        s_mov_b32 s{sC3}, 0
        v_mov_b32 v{vC3}, 0
        """)
        g.e(f"s_cmp_eq_u32 s{s_wave}, 2")
        g.e(f"s_cbranch_scc1 L_c3x")
        g.e(f"s_bitcmp1_b32 s2, 1")
        g.e(f"s_cbranch_scc1 L_c3done")
        g.e(f"s_cmp_eq_u32 s{s_wave}, 3")
        g.e(f"s_cbranch_scc1 L_c3k")
        if "w" in c3:
            g.e(f"""
            s_movk_i32 s{t4}, 6144
            v_mul_lo_u32 v{vC3}, v{T}, s{t4}
            v_lshl_add_u32 v{vC3}, v{T+1}, 11, v{vC3}
            s_lshl_b32 s{t4}, s{s_wave}, 12
            s_add_u32 s{sC3}, s{t2}, s{t4}
            s_add_u32 s{sC3m}, s{s_wave}, 1
            """)
        g.e("s_branch L_c3done")
        g.lab("L_c3x")
        if "x" in c3:
            g.e(f"""
            v_lshlrev_b32 v{vC3}, 11, v{T}
            v_lshl_add_u32 v{vC3}, v{T+1}, 10, v{vC3}
            s_add_u32 s{sC3}, s{t3}, 384
            s_mov_b32 s{sC3m}, 3
            """)
        g.e("s_branch L_c3done")
        g.lab("L_c3k")
        if "k" in c3:
            g.e(f"""
            v_lshlrev_b32 v{vC3}, 11, v{T}
            s_add_u32 s{sC3}, s{t3}, s{t2}
            s_mov_b32 s{sC3m}, 4
            """)
        g.lab("L_c3done")
    def c3_touch():
        if c3 == "0": return
        u = g.newlabel("c3")
        g.e(f"""
        s_cmp_eq_u32 s{sC3m}, 0
        s_cbranch_scc1 {u}e
        s_cmp_eq_u32 s{sC3m}, 3
        s_cbranch_scc1 {u}x
        s_cmp_eq_u32 s{sC3m}, 4
        s_cbranch_scc1 {u}k
        s_cmp_eq_u32 s{sC3m}, 1
        s_cbranch_scc1 {u}w
        s_mov_b32 exec_hi, 0
        {u}w:
        buffer_load_dword v{vJ}, v{vC3}, s[{S_W}:{S_W+3}], s{sC3} offen
        s_mov_b64 exec, -1
        s_branch {u}e
        {u}x:
        buffer_load_dword v{vJ}, v{vC3}, s[{S_X}:{S_X+3}], s{sC3} offen
        s_branch {u}e
        {u}k:
        s_mov_b32 exec_hi, 0
        buffer_load_dword v{vJ}, v{vC3}, s[{S_K}:{S_K+3}], s{sC3} offen
        s_not_b64 exec, exec
        buffer_load_dword v{vJ}, v{vC3}, s[{S_V}:{S_V+3}], s{sC3} offen
        s_mov_b64 exec, -1
        {u}e:
        s_mov_b32 s{sC3m}, 0
        """)
    if C3AT < 0: c3_touch()
    for b in (S_WO, S_Q, S_OUT): srd_const(g, b, SRD_INFO[b][1])
    g.e(f"""
    s_lshr_b32 s{s_wm}, s{s_wave}, 1
    s_and_b32 s{s_wn}, s{s_wave}, 1
    v_and_b32 v{T}, 31, v{l}
    s_lshl_b32 s{t0}, s{s_wm}, 6
    v_add_u32 v{T}, s{t0}, v{T}
    v_lshlrev_b32 v{T}, 7, v{T}
    v_lshrrev_b32 v{T+1}, 1, v{l}
    v_and_b32 v{T+1}, 7, v{T+1}
    v_lshrrev_b32 v{T+2}, 5, v{l}
    v_xor_b32 v{T+1}, v{T+1}, v{T+2}
    """)
    for j in range(4):
        g.e(f"v_xor_b32 v{T+3}, {2*j}, v{T+1}")
        g.e(f"v_lshl_add_u32 v{vA[j]}, v{T+3}, 4, v{T}")
    g.e(f"""
    v_lshrrev_b32 v{T}, 5, v{l}
    v_lshlrev_b32 v{T}, 3, v{T}
    v_and_b32 v{T+1}, 15, v{l}
    v_lshrrev_b32 v{T+1}, 2, v{T+1}
    v_add_u32 v{T}, v{T}, v{T+1}
    v_lshlrev_b32 v{T}, 7, v{T}
    v_lshrrev_b32 v{T+1}, 4, v{l}
    v_and_b32 v{T+1}, 1, v{T+1}
    v_lshlrev_b32 v{T+1}, 1, v{T+1}
    v_and_b32 v{T+2}, 3, v{l}
    v_lshrrev_b32 v{T+2}, 1, v{T+2}
    v_add_u32 v{T+1}, v{T+1}, v{T+2}
    s_lshl_b32 s{t0}, s{s_wn}, 2
    v_add_u32 v{T+1}, s{t0}, v{T+1}
    v_lshrrev_b32 v{T+2}, 3, v{l}
    v_and_b32 v{T+2}, 1, v{T+2}
    v_lshlrev_b32 v{T+2}, 2, v{T+2}
    v_xor_b32 v{T+1}, v{T+1}, v{T+2}
    v_lshl_add_u32 v{T}, v{T+1}, 4, v{T}
    v_and_b32 v{T+1}, 1, v{l}
    v_lshl_add_u32 v{T}, v{T+1}, 3, v{T}
    v_add_u32 v{vB}, {LB}, v{T}
    """)
    for r in range(96):
        g.e(f"v_mov_b32 v{r}, 0")
    g.e(f"""
    s_mov_b32 s64, 16384
    s_mov_b32 s65, -32768
    s_mov_b32 s66, 24576
    s_mov_b32 s67, -49152
    s_mov_b32 s68, 0
    s_mov_b32 s69, 0
    s_waitcnt lgkmcnt(0)
    s_add_u32 s{s_tag}, s{s_tag}, 1
    s_setprio 3
    s_not_b32 s{t0}, s{s_tag}
    v_mov_b32 v{T}, s{t0}
    s_lshl_b32 s{t0}, s{s_wn}, 2
    s_add_u32 s{t0}, s{t0}, {LFLAG + 16}
    v_mov_b32 v{T+1}, s{t0}
    ds_write_b32 v{T+1}, v{T}
    s_waitcnt lgkmcnt(0)
    """)
    s_slot, s_it = 68, 69
    def reads(setb, j):
        A0, A1, Bq, Bk, Bv = setb, setb+4, setb+8, setb+12, setb+16
        def tr(dst, sec, q):
            return f"ds_read_b64_tr_b16 v[{dst+2*q}:{dst+2*q+1}], v{vB} offset:{sec*8192 + j*2048 + q*512}"
        return [
            (f"ds_read_b128 v[{A0}:{A0+3}], v{vA[j]} offset:0", f"A0_{setb}"),
            (tr(Bq, 0, 0), f"Bqa_{setb}"),
            (tr(Bq, 0, 1), f"Bq_{setb}"),
            (f"ds_read_b128 v[{A1}:{A1+3}], v{vA[j]} offset:4096", f"A1_{setb}"),
            (tr(Bk, 1, 0), f"Bka_{setb}"),
            (tr(Bk, 1, 1), f"Bk_{setb}"),
            (tr(Bv, 2, 0), f"Bva_{setb}"),
            (tr(Bv, 2, 1), f"Bv_{setb}"),
        ]
    def mfmas(setb):
        A0, A1, Bq, Bk, Bv = setb, setb+4, setb+8, setb+12, setb+16
        def m(acc, a, b): return f"v_mfma_f32_32x32x16_bf16 v[{acc}:{acc+15}], v[{a}:{a+3}], v[{b}:{b+3}], v[{acc}:{acc+15}]"
        return [
            (m(ACCQ[0], Bq, A0), [f"A0_{setb}", f"Bq_{setb}"]),
            (m(ACCQ[1], Bq, A1), [f"A1_{setb}"]),
            (m(ACCK[0], A0, Bk), [f"Bk_{setb}"]),
            (m(ACCK[1], A1, Bk), []),
            (m(ACCV[0], A0, Bv), [f"Bv_{setb}"]),
            (m(ACCV[1], A1, Bv), []),
        ]
    stamp(g, 1)
    g.e("s_barrier")
    stamp(g, 2)
    stampc(g, 13)
    if C3AT == 0: c3_touch()
    g.lg_reset()
    for asm, tag in reads(P[0], 0): g.lg(asm, tag)
    g.lab("L_g1loop")
    g.lg_reset([t for a, t in reads(P[0], 0)])
    for j in range(4):
        cur, nxt = P[j & 1], P[(j + 1) & 1]
        M = mfmas(cur)
        if j < 3:
            R = reads(nxt, j + 1)
            sched = [2, 2, 2, 2, 0, 0]
            ri = 0
            for mi, (asm, needs) in enumerate(M):
                if needs: g.lg_need(*needs)
                g.e(asm)
                for _ in range(sched[mi]):
                    g.lg(*R[ri]); ri += 1
        else:
            R = reads(nxt, 0)
            for mi in range(2):
                asm, needs = M[mi]
                if needs: g.lg_need(*needs)
                g.e(asm)
            g.e(f"""
            s_add_u32 s{t0}, s{s_slot}, 1
            s_cmp_eq_u32 s{s_slot}, 2
            s_cselect_b32 s{s_slot}, 0, s{t0}
            s_cselect_b32 s{t0}, s65, s64
            s_cselect_b32 s{t1}, s67, s66
            """)
            for jj in range(4): g.e(f"v_add_u32 v{vA[jj]}, s{t0}, v{vA[jj]}")
            g.e(f"v_add_u32 v{vB}, s{t1}, v{vB}")
            g.lg_all()
            if opt("bar"): stamp(g, 16, s_it)
            g.e("s_barrier")
            if opt("bar"): stamp(g, 32, s_it)
            if C3AT > 0:
                g.e(f"s_cmp_lg_u32 s{s_it}, {C3AT-1}")
                g.e(f"s_cbranch_scc1 L_c3skip")
                c3_touch()
                g.lab("L_c3skip")
            ri = 0
            for mi in range(2, 6):
                asm, needs = M[mi]
                if needs: g.lg_need(*needs)
                g.e(asm)
                for _ in range(2):
                    g.lg(*R[ri]); ri += 1
    g.e(f"s_add_u32 s{s_it}, s{s_it}, 1")
    g.e(f"s_cmp_lg_u32 s{s_it}, 16")
    g.e(f"s_cbranch_scc1 L_g1loop")
    g.e("s_waitcnt lgkmcnt(0)")
    stamp(g, 3)
    stampc(g, 14)
    PK, VF, ONES, PQ, TMP, TA = 96, 112, 128, 132, 148, 152
    s_l2e, s_eps = 64, 66
    g.e(f"""
    s_mov_b32 s{s_l2e}, {LOG2E}
    s_mov_b32 s{s_l2e+1}, {LOG2E}
    s_mov_b32 s{s_eps}, {EPS}
    s_mov_b32 s{s_eps+1}, {EPS}
    v_mov_b32 v{ONES}, 0x3f803f80
    v_mov_b32 v{ONES+1}, 0x3f803f80
    v_mov_b32 v{ONES+2}, 0x3f803f80
    v_mov_b32 v{ONES+3}, 0x3f803f80
    v_lshlrev_b32 v{TA}, 4, v{l}
    s_mul_i32 s{t0}, s{s_wn}, 4224
    s_add_u32 s{t0}, s{t0}, {LRED}
    v_add_u32 v{TA+1}, s{t0}, v{TA}
    v_lshrrev_b32 v{TA+2}, 5, v{l}
    v_lshlrev_b32 v{TA+2}, 5, v{TA+2}
    v_and_b32 v{TA+3}, 31, v{l}
    s_nop 3
    """)
    regs = [ACCK[mt] + r for mt in range(2) for r in range(0, 16, 2)]
    outs = [PK + mt*8 + r//2 for mt in range(2) for r in range(0, 16, 2)]
    phi_pairs(g, regs, TMP, s_l2e, s_eps, outs)
    for mt in range(2):
        for r in range(0, 16, 2):
            g.e(f"v_cvt_pk_bf16_f32 v{VF + mt*8 + r//2}, v{ACCV[mt]+r}, v{ACCV[mt]+r+1}")
    KV, Z = 64, 80
    stamp(g, 11)
    g.e("s_nop 1")
    first = True
    for mt in range(2):
        for q2 in range(2):
            a = PK + mt*8 + q2*4; b = VF + mt*8 + q2*4
            c = "0" if first else f"v[{KV}:{KV+15}]"
            g.e(f"v_mfma_f32_32x32x16_bf16 v[{KV}:{KV+15}], v[{a}:{a+3}], v[{b}:{b+3}], {c}")
            c = "0" if first else f"v[{Z}:{Z+15}]"
            g.e(f"v_mfma_f32_32x32x16_bf16 v[{Z}:{Z+15}], v[{a}:{a+3}], v[{ONES}:{ONES+3}], {c}")
            first = False
    g.e(f"""
    s_add_u32 s{t1}, s{t0}, 4096
    v_add_u32 v{TA+4}, s{t1}, v{TA+2}
    v_cmp_eq_u32 vcc, 0, v{TA+3}
    s_mov_b64 s[{t4}:{t4+1}], vcc
    s_nop 7
    s_nop 3
    """)
    stamp(g, 12)
    g.e(f"""
    s_cmp_eq_u32 s{s_wm}, 0
    s_cbranch_scc1 L_red0
    """)
    for q in range(4):
        g.e(f"ds_write_b128 v{TA+1}, v[{KV+4*q}:{KV+4*q+3}] offset:{q*1024}")
    g.e(f"s_mov_b64 exec, s[{t4}:{t4+1}]")
    for q in range(4):
        g.e(f"ds_write_b128 v{TA+4}, v[{Z+4*q}:{Z+4*q+3}] offset:{(q>>1)*64 + (q&1)*16}")
    g.e("s_mov_b64 exec, -1")
    g.e(f"""
    s_lshl_b32 s{t2}, s{s_wn}, 2
    s_add_u32 s{t2}, s{t2}, {LFLAG + 16}
    v_mov_b32 v{TA+5}, s{t2}
    v_mov_b32 v{TA+6}, s{s_tag}
    s_waitcnt lgkmcnt(0)
    ds_write_b32 v{TA+5}, v{TA+6}
    """)
    g.e("s_branch L_phiq")
    g.lab("L_red0")
    g.e(f"""
    s_lshl_b32 s{t2}, s{s_hp}, 4
    s_add_u32 s{t2}, s{t2}, s{s_rb}
    s_mul_i32 s{t2}, s{t2}, {KVP_STRIDE}
    s_add_u32 s{t2}, s{t2}, {WS_KVP}
    s_lshl_b32 s{t3}, s{s_wn}, 12
    s_add_u32 s{t3}, s{t3}, s{t2}
    s_lshl_b32 s{t1}, s{s_wn}, 7
    s_add_u32 s{t2}, s{t2}, s{t1}
    s_add_u32 s{t2}, s{t2}, 8192
    """)
    g.e(f"""
    s_lshl_b32 s{t1}, s{s_wn}, 2
    s_add_u32 s{t1}, s{t1}, {LFLAG + 16}
    v_mov_b32 v{TA+5}, s{t1}
    s_mov_b32 s{t7}, {MAXSPIN*8}
    """)
    g.lab("L_x1")
    g.e(f"""
    ds_read_b32 v{TA+6}, v{TA+5}
    s_waitcnt lgkmcnt(0)
    v_cmp_ne_u32 vcc, s{s_tag}, v{TA+6}
    s_cbranch_vccz L_x1d
    s_sub_u32 s{t7}, s{t7}, 1
    s_cbranch_scc0 L_x1
    """)
    g.lab("L_x1d")
    for q in range(4):
        g.e(f"ds_read_b128 v[{0+32+4*q}:{0+32+4*q+3}], v{TA+1} offset:{q*1024}")
    for q in range(4):
        g.e(f"ds_read_b128 v[{48+4*q}:{48+4*q+3}], v{TA+4} offset:{(q>>1)*64 + (q&1)*16}")
    g.e("s_waitcnt lgkmcnt(4)")
    for r in range(0, 16, 2):
        g.e(f"v_pk_add_f32 v[{KV+r}:{KV+r+1}], v[{KV+r}:{KV+r+1}], v[{32+r}:{32+r+1}]")
    g.e("s_waitcnt lgkmcnt(0)")
    for q in range(4):
        g.e(f"buffer_store_dwordx4 v[{KV+4*q}:{KV+4*q+3}], v{TA}, s[{S_WS}:{S_WS+3}], s{t3} offen offset:{q*1024} sc1")
    for r in range(0, 16, 2):
        g.e(f"v_pk_add_f32 v[{Z+r}:{Z+r+1}], v[{Z+r}:{Z+r+1}], v[{48+r}:{48+r+1}]")
    g.e(f"s_mov_b64 exec, s[{t4}:{t4+1}]")
    for q in range(4):
        g.e(f"buffer_store_dwordx4 v[{Z+4*q}:{Z+4*q+3}], v{TA+2}, s[{S_WS}:{S_WS+3}], s{t2} offen offset:{(q>>1)*64 + (q&1)*16} sc1")
    g.e("s_mov_b64 exec, -1")
    g.lab("L_phiq")
    stamp(g, 4)
    regs = [ACCQ[mt] + r for mt in range(2) for r in range(0, 16, 2)]
    outs = [PQ + mt*8 + r//2 for mt in range(2) for r in range(0, 16, 2)]
    phi_pairs(g, regs, TMP, s_l2e, s_eps, outs)
    g.e(f"""
    s_lshl_b32 s{t0}, s{s_wave}, 12
    s_add_u32 s{t0}, s{t0}, {LPQ}
    v_add_u32 v{TA+1}, s{t0}, v{TA}
    """)
    for i in range(4):
        g.e(f"ds_write_b128 v{TA+1}, v[{PQ+4*i}:{PQ+4*i+3}] offset:{i*1024}")
    g.e(f"""
    s_cmp_lg_u32 s{s_wm}, 0
    s_cbranch_scc1 L_nof2
    s_lshl_b32 s{t0}, s{s_hp}, 7
    s_lshl_b32 s{t1}, s{s_rb}, 3
    s_add_u32 s{t0}, s{t0}, s{t1}
    s_lshl_b32 s{t1}, s{s_wn}, 2
    s_add_u32 s{t0}, s{t0}, s{t1}
    s_add_u32 s{t0}, s{t0}, {WS_F2}
    s_waitcnt vmcnt(0)
    """)
    post_flag(g, t0, TA+5, TA+6)
    g.lab("L_nof2")
    ACC = 0; S = [32, 96]; cA = list(range(160, 168)); cB = 168; T = 170
    g.e(f"""
    v_and_b32 v{T+5}, 15, v{l}
    v_lshrrev_b32 v{T+6}, 4, v{l}
    v_add_u32 v{T+7}, 1, v{T+5}
    v_and_b32 v{T+7}, -2, v{T+7}
    v_lshlrev_b32 v{T+7}, 1, v{T+7}
    v_lshl_add_u32 v{T+7}, v{T+6}, 4, v{T+7}
    v_and_b32 v{T+8}, 1, v{T+5}
    v_xor_b32 v{T+8}, 1, v{T+8}
    v_mul_u32_u24 v{T+8}, 4160, v{T+8}
    v_add_u32 v{T+7}, v{T+7}, v{T+8}
    s_mul_i32 s{t0}, s{s_wave}, {H_STRIDE}
    s_add_u32 s{t0}, s{t0}, {LH + 448}
    v_add_u32 v{cA[0]}, s{t0}, v{T+7}
    """)
    for a in range(1, 8):
        g.e(f"v_add_u32 v{cA[a]}, {512*a}, v{cA[0]}")
    g.e(f"""
    v_lshlrev_b32 v{cB}, 4, v{T+6}
    v_lshlrev_b32 v{T+7}, 5, v{T+5}
    v_sub_u32 v{cB}, v{cB}, v{T+7}
    s_mul_i32 s{t0}, s{s_wave}, {X_STRIDE}
    s_add_u32 s{t0}, s{t0}, {LX + 4512 - 3584}
    v_add_u32 v{cB}, s{t0}, v{cB}
    """)
    for r in range(32): g.e(f"v_mov_b32 v{ACC+r}, 0")
    if opt("wopf", "1") == "1":
        g.e(f"""
        v_lshlrev_b32 v{T+9}, 11, v{l}
        s_lshl_b32 s{t0}, s{s_rb}, 18
        s_lshl_b32 s{t1}, s{s_hp}, 7
        s_add_u32 s{t0}, s{t0}, s{t1}
        s_and_b32 s{t1}, s{s_wave}, 1
        s_lshl_b32 s{t1}, s{t1}, 17
        s_add_u32 s{t0}, s{t0}, s{t1}
        s_cmp_lt_u32 s{s_wave}, 2
        s_cbranch_scc0 L_noqpf
        buffer_load_dword v{vJ}, v{T+9}, s[{S_Q}:{S_Q+3}], s{t0} offen
        """)
        g.lab("L_noqpf")
    g.e("s_waitcnt lgkmcnt(0)")
    stamp(g, 5)
    g.e("s_barrier")
    stamp(g, 6)
    g.e("s_setprio 1")
    def creads(sb):
        R = []
        for x in range(8):
            d = sb + 4*x
            R.append(f"ds_read2_b32 v[{d}:{d+1}], v{cA[x]} offset0:0 offset1:1")
            R.append(f"ds_read2_b32 v[{d+2}:{d+3}], v{cA[x]} offset0:2 offset1:3")
            d = sb + 32 + 4*x
            R.append(f"ds_read_b128 v[{d}:{d+3}], v{cB} offset:{512*(7-x)}")
        return R
    def adv():
        for a in range(8): g.e(f"v_subrev_u32 v{cA[a]}, 64, v{cA[a]}")
        g.e(f"v_subrev_u32 v{cB}, 64, v{cB}")
    def cm(sb):
        pairs = [(a, w) for a in range(8) for w in range(8) if a + w <= 7]
        pairs.sort(key=lambda p: (max(p), p[0]))
        M = []
        for a, w in pairs:
            A = sb + 4*a; B = sb + 32 + 4*w; D = ACC + 4*(a + w)
            M.append(f"v_mfma_f32_16x16x32_bf16 v[{D}:{D+3}], v[{A}:{A+3}], v[{B}:{B+3}], v[{D}:{D+3}]")
        return M
    R = creads(S[0])
    for i, asm in enumerate(R):
        g.e(asm)
        if i == 11: g.e("s_waitcnt lgkmcnt(4)")
        if i == 19: g.e("s_waitcnt lgkmcnt(4)")
    adv()
    g.e(f"s_mov_b32 s{s_it}, 4")
    g.lab("L_cloop")
    for half in range(2):
        cur, nxt = S[half], S[1-half]
        g.e("s_waitcnt lgkmcnt(0)")
        M = cm(cur); R = creads(nxt)
        ri = 0
        for mi, asm in enumerate(M):
            g.e(asm)
            if mi < 32 and ri < 24 and (mi % 4 != 3):
                g.e(R[ri]); ri += 1
            if mi == 33: adv()
        assert ri == 24
    g.e(f"s_sub_u32 s{s_it}, s{s_it}, 1")
    g.e(f"s_cmp_lg_u32 s{s_it}, 0")
    g.e(f"s_cbranch_scc1 L_cloop")
    g.e("s_waitcnt lgkmcnt(0)")
    g.e("s_nop 7")
    stamp(g, 7)
    g.e(f"""
    v_and_b32 v{T+5}, 15, v{l}
    v_lshrrev_b32 v{T+6}, 4, v{l}
    v_lshlrev_b32 v{T+5}, 5, v{T+5}
    v_and_b32 v{T+7}, 1, v{T+6}
    v_lshl_add_u32 v{T+5}, v{T+7}, 9, v{T+5}
    v_lshrrev_b32 v{T+6}, 1, v{T+6}
    v_lshl_add_u32 v{T+5}, v{T+6}, 4, v{T+5}
    s_lshl_b32 s{t0}, s{s_hp}, 6
    s_lshl_b32 s{t1}, s{s_rb}, 2
    s_add_u32 s{t0}, s{t0}, s{t1}
    s_add_u32 s{t0}, s{t0}, s{s_wave}
    s_lshl_b32 s{t0}, s{t0}, 12
    s_add_u32 s{t0}, s{t0}, {WS_YT}
    """)
    for cb in range(8):
        d = 32 + 2*cb
        g.e(f"v_cvt_pk_bf16_f32 v{d}, v{ACC+4*cb}, v{ACC+4*cb+1}")
        g.e(f"v_cvt_pk_bf16_f32 v{d+1}, v{ACC+4*cb+2}, v{ACC+4*cb+3}")
    g.e("s_nop 1")
    for cp in range(4):
        d = 32 + 4*cp
        g.e(f"v_permlane16_swap_b32 v{d}, v{d+2}")
        g.e(f"v_permlane16_swap_b32 v{d+1}, v{d+3}")
    g.e("s_nop 1")
    for cp in range(4):
        d = 32 + 4*cp
        g.e(f"buffer_store_dwordx4 v[{d}:{d+3}], v{T+5}, s[{S_WS}:{S_WS+3}], s{t0} offen offset:{1024*cp} sc1")
    ACC2 = [0, 16]; AR = 64; RING = int(opt("g2ring", 32)); PRE2 = int(opt("g2pre", 14))
    BF = [32, 40, 48, 56]
    vAo = [200, 201, 202, 203]; vBn = [204, 205]; T = 208
    s_ab, s_r, s_g = 64, 65, 66
    g.e(f"""
    v_and_b32 v{vAo[0]}, 31, v{l}
    v_lshlrev_b32 v{T}, 2, v{vAo[0]}
    v_lshlrev_b32 v{vAo[0]}, 4, v{vAo[0]}
    v_lshrrev_b32 v{T+1}, 5, v{l}
    v_lshl_add_u32 v{vAo[0]}, v{T+1}, 11, v{vAo[0]}
    v_add_u32 v{vAo[1]}, 4096, v{vAo[0]}
    v_add_u32 v{vAo[2]}, 8192, v{vAo[0]}
    v_add_u32 v{vAo[3]}, 12288, v{vAo[0]}
    s_lshl_b32 s{s_ab}, s{s_rb2}, 18
    s_lshl_b32 s{t1}, s{s_wave}, 9
    s_add_u32 s{s_ab}, s{s_ab}, s{t1}
    s_add_u32 s{s_ab}, s{s_ab}, {WS_O}
    s_lshl_b32 s{s_r}, s{s_cb2}, 2
    """)
    if opt("g2rot", "1") != "1": g.e(f"s_mov_b32 s{s_r}, 0")
    TB = T + 4
    g.e(f"""
    v_lshrrev_b32 v{TB}, 5, v{l}
    v_lshlrev_b32 v{TB}, 2, v{TB}
    v_and_b32 v{TB+1}, 15, v{l}
    v_lshrrev_b32 v{TB+1}, 2, v{TB+1}
    v_add_u32 v{TB}, v{TB}, v{TB+1}
    v_lshlrev_b32 v{TB}, 7, v{TB}
    v_lshrrev_b32 v{TB+1}, 4, v{l}
    v_and_b32 v{TB+1}, 1, v{TB+1}
    v_lshlrev_b32 v{TB+1}, 1, v{TB+1}
    v_and_b32 v{TB+2}, 3, v{l}
    v_lshrrev_b32 v{TB+2}, 1, v{TB+2}
    v_add_u32 v{TB+1}, v{TB+1}, v{TB+2}
    v_lshrrev_b32 v{TB+2}, 3, v{l}
    v_and_b32 v{TB+2}, 1, v{TB+2}
    v_lshlrev_b32 v{TB+2}, 2, v{TB+2}
    v_xor_b32 v{TB+1}, v{TB+1}, v{TB+2}
    v_and_b32 v{TB+3}, 1, v{l}
    v_lshl_add_u32 v{TB}, v{TB+3}, 3, v{TB}
    s_lshl_b32 s{t0}, s{s_r}, 11
    v_add_u32 v{TB}, s{t0}, v{TB}
    v_lshl_add_u32 v{vBn[0]}, v{TB+1}, 4, v{TB}
    v_xor_b32 v{TB+1}, 4, v{TB+1}
    v_lshl_add_u32 v{vBn[1]}, v{TB+1}, 4, v{TB}
    s_lshl_b32 s{t0}, s{s_hp}, 8
    s_lshl_b32 s{t1}, s{s_rb}, 4
    s_add_u32 s{t0}, s{t0}, s{t1}
    s_lshl_b32 s{t1}, s{s_wave}, 2
    s_add_u32 s{t0}, s{t0}, s{t1}
    s_add_u32 s{t0}, s{t0}, {WS_F4}
    s_waitcnt vmcnt(0)
    """)
    post_flag(g, t0, T+2, T+3)
    g.e("s_barrier")
    stamp(g, 9)
    g.e(f"""
    s_lshl_b32 s{t1}, s{s_rb2}, 1
    s_lshr_b32 s{t2}, s{s_wave}, 1
    s_add_u32 s{t1}, s{t1}, s{t2}
    s_lshl_b32 s{t1}, s{t1}, 7
    s_add_u32 s{t1}, s{t1}, {WS_F3}
    """)
    g.e(f"""
    v_and_b32 v{T+2}, 3, v{l}
    v_lshlrev_b32 v{T+2}, 2, v{T+2}
    v_add_u32 v{T+2}, {LFLAG + 32}, v{T+2}
    s_mov_b32 s{t7}, {MAXSPIN*8}
    """)
    g.lab("L_w23")
    g.e(f"""
    ds_read_b32 v{T+3}, v{T+2}
    s_waitcnt lgkmcnt(0)
    v_cmp_ne_u32 vcc, s{s_tag}, v{T+3}
    s_cbranch_vccz L_w23d
    s_sub_u32 s{t7}, s{t7}, 1
    s_cbranch_scc0 L_w23
    """)
    g.lab("L_w23d")
    def breads(setb, t16):
        R = []
        for nt in range(2):
            for q in range(2):
                d = setb + 4*nt + 2*q
                R.append(f"ds_read_b64_tr_b16 v[{d}:{d+1}], v{vBn[nt]} offset:{2048*t16 + 1024*q}")
        return R
    BD = int(opt("g2bd", 2))
    assert PRE2 < RING and BD <= 3
    for u in range(BD):
        for x in breads(BF[u], u): g.e(x)
    poll(g, T, T+1, t1, "pf3")
    stamp(g, 8)
    def aload(n):
        if n % 4 == 0:
            g.e(f"s_add_u32 s{s_g}, s{s_r}, {n}")
            g.e(f"s_and_b32 s{s_g}, s{s_g}, 63")
            g.e(f"s_lshl_b32 s{s_g}, s{s_g}, 12")
            g.e(f"s_add_u32 s{s_g}, s{s_g}, s{s_ab}")
        d = AR + 4*(n % RING)
        g.e(f"buffer_load_dwordx4 v[{d}:{d+3}], v{vAo[n % 4]}, s[{S_WS}:{S_WS+3}], s{s_g} offen sc1")
    for n in range(PRE2): aload(n)
    g.e("s_setprio 3")
    for t in range(64):
        cur = BF[t % 4]
        A = AR + 4*(t % RING)
        issued = min(64, PRE2 + t)
        rd_out = min(64, t + BD) - (t + 1)
        g.e(f"s_waitcnt vmcnt({issued - (t + 1)}) lgkmcnt({4*rd_out})")
        tn = t + BD
        if tn < 64 and tn % 4 == 0:
            g.e(f"s_cmp_eq_u32 s{s_r}, {64 - tn}")
            g.e(f"s_cselect_b32 s{t0}, 0xfffe0000, 0")
            if tn == 32: g.e(f"s_add_u32 s{t0}, s{t0}, 0x10000")
            g.e(f"v_add_u32 v{vBn[0]}, s{t0}, v{vBn[0]}")
            g.e(f"v_add_u32 v{vBn[1]}, s{t0}, v{vBn[1]}")
        R = breads(BF[tn % 4], tn & 31) if tn < 64 else ["", "", "", ""]
        c0 = "0" if t == 0 else f"v[{ACC2[0]}:{ACC2[0]+15}]"
        c1 = "0" if t == 0 else f"v[{ACC2[1]}:{ACC2[1]+15}]"
        g.e(f"v_mfma_f32_32x32x16_bf16 v[{ACC2[0]}:{ACC2[0]+15}], v[{cur}:{cur+3}], v[{A}:{A+3}], {c0}")
        g.e(R[0]); g.e(R[1])
        if PRE2 + t < 64: aload(PRE2 + t)
        g.e(f"v_mfma_f32_32x32x16_bf16 v[{ACC2[1]}:{ACC2[1]+15}], v[{cur+4}:{cur+7}], v[{A}:{A+3}], {c1}")
        g.e(R[2]); g.e(R[3])
    g.e("s_waitcnt vmcnt(0) lgkmcnt(0)")
    g.e("s_nop 7")
    g.e("s_nop 3")
    stamp(g, 10)
    O = 32
    for nt in range(2):
        for r in range(0, 16, 2):
            g.e(f"v_cvt_pk_bf16_f32 v{O + nt*8 + r//2}, v{ACC2[nt]+r}, v{ACC2[nt]+r+1}")
    g.e("s_nop 1")
    for nt in range(2):
        for p in range(2):
            x = O + nt*8 + 4*p
            g.e(f"v_permlane32_swap_b32 v{x}, v{x+2}")
            g.e(f"v_permlane32_swap_b32 v{x+1}, v{x+3}")
    g.e(f"""
    v_and_b32 v{T}, 31, v{l}
    s_lshl_b32 s{t0}, s{s_rb2}, 7
    s_lshl_b32 s{t1}, s{s_wave}, 5
    s_add_u32 s{t0}, s{t0}, s{t1}
    v_add_u32 v{T}, s{t0}, v{T}
    v_lshlrev_b32 v{T}, 12, v{T}
    v_lshrrev_b32 v{T+1}, 5, v{l}
    v_lshl_add_u32 v{T}, v{T+1}, 4, v{T}
    s_lshl_b32 s{t0}, s{s_cb2}, 7
    s_add_u32 s{t0}, s{t0}, 2048
    """)
    for nt_ in range(2):
        for p in range(2):
            x = O + nt_*8 + 4*p
            g.e(f"buffer_store_dwordx4 v[{x}:{x+3}], v{T}, s[{S_OUT}:{S_OUT+3}], s{t0} offen offset:{nt_*64 + p*32}{ntf('out')}")
    g.e(f"""
    s_or_b32 s{t0}, s2, s{s_wave}
    s_cmp_lg_u32 s{t0}, 0
    s_cbranch_scc1 L_noep
    s_mov_b32 s{t0}, {WS_EPOCH}
    """)
    post_flag(g, t0, T+2, T+3)
    g.lab("L_noep")
    g.e("s_waitcnt vmcnt(0)")
    flush_stamps(g)
    g.e("s_endpgm")

def gen_helper(g):
    g.lab("L_helper")
    l = vL
    s_hw = 69
    T = 2
    g.e(f"""
    s_setprio 3
    s_sub_u32 s{s_hw}, s{s_wave}, 4
    s_lshr_b32 s{s_wm}, s{s_hw}, 1
    s_and_b32 s{s_wn}, s{s_hw}, 1
    v_and_b32 v{T}, 31, v{l}
    v_lshlrev_b32 v{T}, 2, v{T}
    s_lshl_b32 s{t1}, s{s_hp}, 7
    s_add_u32 s{t1}, s{t1}, {WS_F2}
    v_lshlrev_b32 v{T+2}, 4, v{l}
    v_lshlrev_b32 v{T+3}, 2, v{l}
    v_mov_b32 v{T+4}, 0x80000000
    v_cmp_gt_u32 vcc, 16, v{l}
    s_lshl_b32 s{t2}, s{s_hp}, 4
    s_mul_i32 s{t2}, s{t2}, {KVP_STRIDE}
    s_add_u32 s{t2}, s{t2}, {WS_KVP}
    v_cndmask_b32 v{T+3}, v{T+4}, v{T+3}, vcc
    s_lshl_b32 s{t3}, s{s_hw}, 11
    s_add_u32 s{t3}, s{t3}, s{t2}
    s_lshl_b32 s{t4}, s{s_hw}, 6
    s_add_u32 s{t4}, s{t4}, s{t2}
    s_add_u32 s{t4}, s{t4}, 8192
    """)
    stamp(g, 8)
    poll(g, T, T+1, t1, "pf2")
    stamp(g, 9)
    PB = 32; ZB = 160
    PROT = opt("prot", "1") == "1"
    s_pi, s_po = 64, 65
    if PROT:
        g.e(f"""
        s_and_b32 s{s_pi}, s{s_rb}, 7
        s_lshl_b32 s{s_pi}, s{s_pi}, 1
        """)
    else:
        g.e(f"s_mov_b32 s{s_pi}, 0")
    for r in range(16):
        d = PB + 8*r
        g.e(f"s_mul_i32 s{s_po}, s{s_pi}, {KVP_STRIDE}")
        g.e(f"s_add_u32 s{t0}, s{t3}, s{s_po}")
        g.e(f"s_add_u32 s{t1}, s{t4}, s{s_po}")
        g.e(f"buffer_load_dwordx4 v[{d}:{d+3}], v{T+2}, s[{S_WS}:{S_WS+3}], s{t0} offen sc1")
        g.e(f"buffer_load_dwordx4 v[{d+4}:{d+7}], v{T+2}, s[{S_WS}:{S_WS+3}], s{t0} offen offset:1024 sc1")
        g.e(f"buffer_load_dword v{ZB+r}, v{T+3}, s[{S_WS}:{S_WS+3}], s{t1} offen sc1")
        if r < 15:
            g.e(f"s_add_u32 s{s_pi}, s{s_pi}, 1")
            g.e(f"s_and_b32 s{s_pi}, s{s_pi}, 15")
    PQ = 200
    g.e(f"""
    s_lshl_b32 s{t0}, s{s_hw}, 12
    s_add_u32 s{t0}, s{t0}, {LPQ}
    v_add_u32 v{T+5}, s{t0}, v{T+2}
    """)
    for i in range(4):
        g.e(f"ds_read_b128 v[{PQ+4*i}:{PQ+4*i+3}], v{T+5} offset:{i*1024}")
    for r in range(1, 16):
        g.e(f"s_waitcnt vmcnt({3*(15-r)})")
        d = PB + 8*r
        for u in range(0, 8, 2):
            g.e(f"v_pk_add_f32 v[{PB+u}:{PB+u+1}], v[{PB+u}:{PB+u+1}], v[{d+u}:{d+u+1}]")
        g.e(f"v_add_f32 v{ZB}, v{ZB}, v{ZB+r}")
    KX = 180
    for u in range(0, 8, 2):
        g.e(f"v_cvt_pk_bf16_f32 v{KX+u//2}, v{PB+u}, v{PB+u+1}")
    g.e(f"v_cvt_pk_bf16_f32 v{ZB}, v{ZB}, v{ZB}")
    g.e(f"""
    s_lshl_b32 s{t0}, s{s_hw}, 10
    s_add_u32 s{t0}, s{t0}, {LKVX}
    v_add_u32 v{T+5}, s{t0}, v{T+2}
    ds_write_b128 v{T+5}, v[{KX}:{KX+3}]
    s_lshl_b32 s{t0}, s{s_hw}, 5
    s_add_u32 s{t0}, s{t0}, {LZX}
    v_lshlrev_b32 v{T+6}, 1, v{l}
    v_add_u32 v{T+6}, s{t0}, v{T+6}
    s_mov_b64 exec, 0xffff
    ds_write_b16 v{T+6}, v{ZB}
    s_mov_b64 exec, 1
    s_lshl_b32 s{t0}, s{s_hw}, 2
    s_add_u32 s{t0}, s{t0}, {LFLAG}
    v_mov_b32 v{T+6}, s{t0}
    v_mov_b32 v{T+7}, s{s_tag}
    s_waitcnt lgkmcnt(0)
    ds_write_b32 v{T+6}, v{T+7}
    s_mov_b64 exec, -1
    v_mov_b32 v{T+6}, {LFLAG}
    v_and_b32 v{T+7}, 3, v{l}
    v_lshl_add_u32 v{T+6}, v{T+7}, 2, v{T+6}
    s_mov_b32 s{t7}, {MAXSPIN*8}
    """)
    g.lab("L_hsync")
    g.e(f"""
    ds_read_b32 v{T+7}, v{T+6}
    s_waitcnt lgkmcnt(0)
    v_cmp_ne_u32 vcc, s{s_tag}, v{T+7}
    s_cbranch_vccz L_hsyncd
    s_sub_u32 s{t7}, s{t7}, 1
    s_cbranch_scc0 L_hsync
    """)
    g.lab("L_hsyncd")
    stamp(g, 10)
    KF = 184; ZF = 192
    g.e(f"""
    s_lshl_b32 s{t0}, s{s_wn}, 11
    s_add_u32 s{t0}, s{t0}, {LKVX}
    v_add_u32 v{T+5}, s{t0}, v{T+2}
    ds_read_b128 v[{KF}:{KF+3}], v{T+5}
    ds_read_b128 v[{KF+4}:{KF+7}], v{T+5} offset:1024
    s_lshl_b32 s{t0}, s{s_wn}, 6
    s_add_u32 s{t0}, s{t0}, {LZX}
    v_lshrrev_b32 v{T+6}, 5, v{l}
    v_lshlrev_b32 v{T+6}, 4, v{T+6}
    v_add_u32 v{T+6}, s{t0}, v{T+6}
    ds_read_b128 v[{ZF}:{ZF+3}], v{T+6}
    ds_read_b128 v[{ZF+4}:{ZF+7}], v{T+6} offset:32
    s_waitcnt lgkmcnt(0)
    """)
    NUM = [48, 64]; DEN = [80, 96]
    for mt in range(2):
        for q2 in range(2):
            a = KF + 4*q2; z = ZF + 4*q2; b = PQ + mt*8 + q2*4
            c = "0" if q2 == 0 else f"v[{NUM[mt]}:{NUM[mt]+15}]"
            g.e(f"v_mfma_f32_32x32x16_bf16 v[{NUM[mt]}:{NUM[mt]+15}], v[{a}:{a+3}], v[{b}:{b+3}], {c}")
            c = "0" if q2 == 0 else f"v[{DEN[mt]}:{DEN[mt]+15}]"
            g.e(f"v_mfma_f32_32x32x16_bf16 v[{DEN[mt]}:{DEN[mt]+15}], v[{z}:{z+3}], v[{b}:{b+3}], {c}")
    g.e(f"""
    s_lshl_b32 s{t2}, s{s_rb}, 18
    s_lshl_b32 s{t0}, s{s_hp}, 1
    s_add_u32 s{t0}, s{t0}, s{s_wn}
    s_lshl_b32 s{t0}, s{t0}, 13
    s_add_u32 s{t2}, s{t2}, s{t0}
    s_lshl_b32 s{t0}, s{s_wm}, 10
    s_add_u32 s{t2}, s{t2}, s{t0}
    s_add_u32 s{t2}, s{t2}, {WS_O}
    v_and_b32 v{T+5}, 31, v{l}
    v_lshlrev_b32 v{T+5}, 4, v{T+5}
    v_lshrrev_b32 v{T+6}, 5, v{l}
    v_lshl_add_u32 v{T+5}, v{T+6}, 11, v{T+5}
    s_mov_b32 s{t3}, {EPS}
    s_nop 7
    """)
    for mt in range(2):
        g.e(f"v_add_f32 v{DEN[mt]}, s{t3}, v{DEN[mt]}")
    for mt in range(2):
        g.e(f"v_rcp_f32 v{DEN[mt]}, v{DEN[mt]}")
    g.e("s_nop 1")
    OUT = 112
    for mt in range(2):
        for r in range(0, 16, 2):
            g.e(f"v_mul_f32 v{NUM[mt]+r}, v{NUM[mt]+r}, v{DEN[mt]}")
            g.e(f"v_mul_f32 v{NUM[mt]+r+1}, v{NUM[mt]+r+1}, v{DEN[mt]}")
            g.e(f"v_cvt_pk_bf16_f32 v{OUT + mt*8 + r//2}, v{NUM[mt]+r}, v{NUM[mt]+r+1}")
        for q2 in range(2):
            d = OUT + mt*8 + q2*4
            g.e(f"s_add_u32 s{t0}, s{t2}, {q2*4096 + mt*512}")
            g.e(f"buffer_store_dwordx4 v[{d}:{d+3}], v{T+5}, s[{S_WS}:{S_WS+3}], s{t0} offen sc1")
    g.e(f"""
    s_lshl_b32 s{t0}, s{s_rb}, 1
    s_add_u32 s{t0}, s{t0}, s{s_wm}
    s_lshl_b32 s{t0}, s{t0}, 7
    s_lshl_b32 s{t1}, s{s_hp}, 3
    s_add_u32 s{t0}, s{t0}, s{t1}
    s_lshl_b32 s{t1}, s{s_wn}, 2
    s_add_u32 s{t0}, s{t0}, s{t1}
    s_add_u32 s{t4}, s{t0}, {WS_F3}
    s_lshl_b32 s{t3}, s{s_hw}, 7
    """)
    if opt("wo01", "post") == "mid":
        wo_dma(g, vWO, t3, 4, "wo01")
        g.e("s_waitcnt vmcnt(16)")
        post_flag(g, t4, T+6, T+7)
        stamp(g, 11)
        g.e("s_waitcnt vmcnt(1)")
    else:
        g.e("s_waitcnt vmcnt(0)")
        post_flag(g, t4, T+6, T+7)
        stamp(g, 11)
        wo_dma(g, vWO, t3, 4, "wo01")
    g.e("s_barrier")
    g.e(f"s_lshl_b32 s{t3}, s{s_hw}, 7")
    g.e(f"s_add_u32 s{t3}, s{t3}, 512")
    wo_dma(g, vWO, t3, 4, "wo23")
    Y = 32; Q = 64; F = 96; OUT = 112
    g.e(f"""
    v_and_b32 v{T}, 7, v{l}
    v_lshrrev_b32 v{T+1}, 3, v{l}
    s_lshl_b32 s{t0}, s{s_hw}, 3
    v_add_u32 v{T+1}, s{t0}, v{T+1}
    v_lshlrev_b32 v{T+1}, 2, v{T+1}
    s_lshl_b32 s{t0}, s{s_rb}, 7
    v_add_u32 v{T+1}, s{t0}, v{T+1}
    v_lshlrev_b32 v{T+2}, 3, v{T}
    s_lshl_b32 s{t0}, s{s_hp}, 6
    v_add_u32 v{T+2}, s{t0}, v{T+2}
    v_lshlrev_b32 v{T+3}, 12, v{T+2}
    v_lshl_add_u32 v{T+3}, v{T+1}, 1, v{T+3}
    v_lshlrev_b32 v{T+4}, 11, v{T+1}
    v_lshl_add_u32 v{T+4}, v{T+2}, 1, v{T+4}
    v_lshlrev_b32 v{T+5}, 12, v{T+1}
    v_lshl_add_u32 v{T+5}, v{T+2}, 1, v{T+5}
    s_mov_b32 s{t1}, 4096
    """)
    for i in range(4):
        so = "0" if i < 2 else f"s{t1}"
        g.e(f"buffer_load_dwordx4 v[{Q+4*i}:{Q+4*i+3}], v{T+4}, s[{S_Q}:{S_Q+3}], {so} offen offset:{(i&1)*2048}{ntf('q')}")
    g.e(f"""
    s_lshl_b32 s{t0}, s{s_hw}, 2
    s_add_u32 s{t0}, s{t0}, {LFLAG + 32}
    v_mov_b32 v{T+6}, s{t0}
    v_mov_b32 v{T+7}, s{s_tag}
    s_waitcnt vmcnt(4)
    ds_write_b32 v{T+6}, v{T+7}
    """)
    stamp(g, 12)
    g.e(f"""
    v_lshlrev_b32 v{T}, 2, v{l}
    s_lshl_b32 s{t1}, s{s_hp}, 8
    s_add_u32 s{t1}, s{t1}, {WS_F4}
    s_setprio 0
    """)
    poll(g, T, T+6, t1, "pf4")
    stamp(g, 13)
    for j in range(8):
        g.e(f"s_mov_b32 s{t0}, {WS_YT + j*4096}")
        g.e(f"buffer_load_dwordx2 v[{Y+2*j}:{Y+2*j+1}], v{T+3}, s[{S_WS}:{S_WS+3}], s{t0} offen sc1")
    g.e("s_waitcnt vmcnt(0)")
    for i in range(4):
        for m in range(4):
            a, b, c, d = F + 4*(m & 1), F+1 + 4*(m & 1), F+2 + 4*(m & 1), F+3 + 4*(m & 1)
            qd = Q + 4*i + m
            y0 = Y + 2*(2*m) + i//2; y1 = Y + 2*(2*m+1) + i//2
            g.e(f"v_lshlrev_b32 v{a}, 16, v{qd}")
            g.e(f"v_and_b32 v{b}, 0xffff0000, v{qd}")
            if i % 2 == 0:
                g.e(f"v_lshlrev_b32 v{c}, 16, v{y0}")
                g.e(f"v_lshlrev_b32 v{d}, 16, v{y1}")
            else:
                g.e(f"v_and_b32 v{c}, 0xffff0000, v{y0}")
                g.e(f"v_and_b32 v{d}, 0xffff0000, v{y1}")
            g.e(f"v_pk_mul_f32 v[{a}:{b}], v[{a}:{b}], v[{c}:{d}]")
            g.e(f"v_cvt_pk_bf16_f32 v{OUT+4*i+m}, v{a}, v{b}")
        g.e(f"s_mov_b32 s{t0}, {i*4096}")
        g.e(f"buffer_store_dwordx4 v[{OUT+4*i}:{OUT+4*i+3}], v{T+5}, s[{S_OUT}:{S_OUT+3}], s{t0} offen{ntf('out')}")
    g.e("s_waitcnt vmcnt(0)")
    flush_stamps(g)
    g.lab("L_end")
    g.e("s_endpgm")

HDR = open("concat_heads__ssm_conv_h3__linear_attn_block__prompt.s.ref").read().split("; Override")[0]
def full():
    g = G()
    g.L.append(khead(NAME))
    gen_entry(g)
    gen_hyb(g)
    gen_compute(g)
    gen_helper(g)
    s = HDR
    s += f"; @launch grid=(256,1,1) block=(512,1,1) lds={LDS_TOTAL}\n"
    s += '.amdgcn_target "amdgcn-amd-amdhsa--gfx950"\n.text\n'
    s += g.text() + kdesc(NAME, 256)
    return s
if __name__ == "__main__":
    if "--prof" in sys.argv:
        PROF = True; sys.argv.remove("--prof")
    for a in list(sys.argv):
        if a.startswith("--opt="):
            for kv in a[6:].split(","):
                k, v = kv.split("="); OPT[k] = v
            sys.argv.remove(a)
    for a in list(sys.argv):
        if a.startswith("--nt="):
            NT = set(a[5:].split(",")); sys.argv.remove(a)
    out = sys.argv[1] if len(sys.argv) > 1 else "v7.s"
    open(out, "w").write(full())
    print("wrote", out)
```

```python
import sys
from dsl import *
NAME = "concat_heads__ssm_conv_h3__linear_attn_block__prompt_kernel"
WS_EPOCH = 0x0
WS_F1 = 0x1000
WS_F2 = 0x2000
WS_F3 = 0x3000
WS_F4 = 0x4000
WS_XR = 0x10000
WS_YT = 0x410000
WS_O  = 0x810000
WS_KVP = 0xC10000
KVP_STRIDE = 4352
WS_SIZE = 0x1000000
LA, LB = 0, 49152
LH = 122880; H_STRIDE = 8320
LX = 73728; X_STRIDE = 4576
LPQ = 92160
LRED = 108544
LKVX = 156160
LZX = 160256
LFLAG = 160512
F_HS, F_X1, F_HF, F_PF, F_CF, F_WF, F_QF, F_W1 = 0, 16, 32, 48, 64, 80, 96, 112
LDS_TOTAL = 163840
LOG2E = 0x3fb8aa3b
EPS   = 0x358637bd
NB_SD = 2048*1024*2
MAXSPIN = int(__import__("os").environ.get("MAXSPIN", 20000))

PROF = False
OPT = {}
NT = set(["kv", "h"])
def lsc(k): return '' if k in opt('pl', '').split('+') else ' sc1'
def ntf(k): return ' nt' if k in NT else ''
PROF_OFF = 0x8000000
def opt(k, d=None): return OPT.get(k, d)

S_X, S_W, S_WS, S_K, S_V, S_SK, S_H, S_D, S_WO, S_OUT, S_Q = 4, 8, 12, 16, 20, 24, 28, 32, 36, 40, 44
s_rb, s_hp, s_wave, s_tag, s_wm, s_wn, s_rb2, s_cb2 = 48, 49, 50, 51, 52, 53, 54, 55
t0, t1, t2, t3, t4, t5, t6, t7 = 56, 57, 58, 59, 60, 61, 62, 63
S_PF = 92
vL = 250
vJ = 251
vWO = 244

vST = 249
def stamp(g, k, sreg=None):
    if not PROF: return
    g.e(f"s_memrealtime s[88:89]")
    if sreg is not None: g.e(f"s_add_u32 m0, s{sreg}, {k}")
    g.e("s_waitcnt lgkmcnt(0)")
    g.e(f"v_writelane_b32 v{vST}, s88, {k if sreg is None else 'm0'}")
def stampc(g, k):
    if not PROF: return
    g.e(f"s_memtime s[88:89]")
    g.e("s_waitcnt lgkmcnt(0)")
    g.e(f"v_writelane_b32 v{vST}, s88, {k}")
def init_stamps(g):
    if not PROF: return
    g.e(f"v_mov_b32 v{vST}, 0")
def flush_stamps(g):
    if not PROF: return
    stamp(g, 15)
    g.e(f"""
    s_load_dwordx2 s[64:65], s[0:1], 88
    s_mov_b32 s66, 0x10000000
    s_mov_b32 s67, 0x20000
    s_lshl_b32 s68, s2, 3
    s_add_u32 s68, s68, s{s_wave}
    s_lshl_b32 s68, s68, 8
    s_add_u32 s68, s68, {PROF_OFF}
    v_lshlrev_b32 v2, 2, v{vL}
    s_waitcnt lgkmcnt(0)
    buffer_store_dword v{vST}, v2, s[64:67], s68 offen
    s_waitcnt vmcnt(0)
    """)

def srd_load(g, base, koff):
    g.e(f"s_load_dwordx2 s[{base}:{base+1}], s[0:1], {koff}")
def srd_const(g, base, nbytes):
    g.e(f"s_mov_b32 s{base+2}, {nbytes}")
    g.e(f"s_mov_b32 s{base+3}, 0x20000")
SRD_INFO = {S_X: (48, NB_SD), S_W: (56, 1024*3072*2), S_WS: (88, WS_SIZE), S_K: (8, NB_SD), S_V: (16, NB_SD),
            S_SK: (24, 1024*4*2), S_H: (32, NB_SD), S_D: (40, 2048), S_WO: (64, 1024*1024*2),
            S_OUT: (72, 2048*2048*2), S_Q: (0, NB_SD)}
def srds(g, lst):
    for b in lst: srd_load(g, b, SRD_INFO[b][0])
    for b in lst: srd_const(g, b, SRD_INFO[b][1])

def poll(g, vaddr, vtmp, soff, name):
    lab = g.newlabel(name); done = g.newlabel(name + "d")
    NP = int(opt("np_" + name, opt("np", 1)))
    g.e(f"s_mov_b32 s{t7}, {MAXSPIN}")
    if NP > 1:
        R = [252 + i for i in range(NP)]
        ld = lambda r: g.e(f"buffer_load_dword v{r}, v{vaddr}, s[{S_WS}:{S_WS+3}], s{soff} offen sc1")
        for i in range(NP - 1):
            ld(R[i])
            g.e(f"s_sleep {int(opt('npsl', 4))}")
        g.lab(lab)
        for i in range(NP):
            ld(R[(i + NP - 1) % NP])
            g.e(f"s_waitcnt vmcnt({NP-1})")
            g.e(f"v_cmp_ne_u32 vcc, s{s_tag}, v{R[i]}")
            g.e(f"s_cbranch_vccz {done}")
        g.e(f"s_sub_u32 s{t7}, s{t7}, 1")
        g.e(f"s_cbranch_scc0 {lab}")
        g.lab(done)
        return NP - 1
    g.lab(lab)
    g.e(f"buffer_load_dword v{vtmp}, v{vaddr}, s[{S_WS}:{S_WS+3}], s{soff} offen sc1")
    g.e("s_waitcnt vmcnt(0)")
    g.e(f"v_cmp_ne_u32 vcc, s{s_tag}, v{vtmp}")
    g.e(f"s_cbranch_vccz {done}")
    g.e(f"s_sub_u32 s{t7}, s{t7}, 1")
    g.e(f"s_cbranch_scc1 {done}")
    g.e("s_sleep 1")
    g.e(f"s_branch {lab}")
    g.lab(done)
    return 0

def post_flag(g, soff, vz, vt):
    g.e(f"""
    v_mov_b32 v{vz}, 0
    v_mov_b32 v{vt}, s{s_tag}
    s_mov_b64 exec, 1
    buffer_store_dword v{vt}, v{vz}, s[{S_WS}:{S_WS+3}], s{soff} offen sc1
    s_mov_b64 exec, -1
    """)

def lds_set(g, off, sidx, va, vt):
    g.e(f"""
    s_lshl_b32 s{t6}, s{sidx}, 2
    s_add_u32 s{t6}, s{t6}, {LFLAG + off}
    v_mov_b32 v{va}, s{t6}
    v_mov_b32 v{vt}, s{s_tag}
    ds_write_b32 v{va}, v{vt}
    """)
def lds_spin(g, off, nmask, va, vt, name, sidx=None):
    lab = g.newlabel(name); done = g.newlabel(name + "d")
    if sidx is None:
        g.e(f"v_and_b32 v{va}, {nmask}, v{vL}")
        g.e(f"v_lshlrev_b32 v{va}, 2, v{va}")
        g.e(f"v_add_u32 v{va}, {LFLAG + off}, v{va}")
    else:
        g.e(f"s_lshl_b32 s{t6}, s{sidx}, 2")
        g.e(f"s_add_u32 s{t6}, s{t6}, {LFLAG + off}")
        g.e(f"v_mov_b32 v{va}, s{t6}")
    g.e(f"s_mov_b32 s{t7}, {MAXSPIN*8}")
    g.lab(lab)
    g.e(f"""
    ds_read_b32 v{vt}, v{va}
    s_waitcnt lgkmcnt(0)
    v_cmp_ne_u32 vcc, s{s_tag}, v{vt}
    s_cbranch_vccz {done}
    s_sub_u32 s{t7}, s{t7}, 1
    s_cbranch_scc0 {lab}
    """)
    g.lab(done)

def phi_pairs(g, regs, tmp, s_l2e, s_eps, outs):
    n = len(regs)
    for i in range(0, n, 2):
        a, b = regs[i], regs[i+1]
        ta, tb = tmp, tmp + 2
        g.e(f"v_pk_mul_f32 v[{ta}:{ta+1}], v[{a}:{a+1}], s[{s_l2e}:{s_l2e+1}]")
        g.e(f"v_pk_mul_f32 v[{tb}:{tb+1}], v[{b}:{b+1}], s[{s_l2e}:{s_l2e+1}]")
        g.e(f"v_exp_f32_e64 v{ta}, v{ta} clamp")
        g.e(f"v_exp_f32_e64 v{ta+1}, v{ta+1} clamp")
        g.e(f"v_exp_f32_e64 v{tb}, v{tb} clamp")
        g.e(f"v_exp_f32_e64 v{tb+1}, v{tb+1} clamp")
        g.e(f"v_max_f32 v{a}, 0, v{a}")
        g.e(f"v_max_f32 v{a+1}, 0, v{a+1}")
        g.e(f"v_max_f32 v{b}, 0, v{b}")
        g.e(f"v_max_f32 v{b+1}, 0, v{b+1}")
        g.e(f"v_pk_add_f32 v[{a}:{a+1}], v[{a}:{a+1}], v[{ta}:{ta+1}]")
        g.e(f"v_pk_add_f32 v[{b}:{b+1}], v[{b}:{b+1}], v[{tb}:{tb+1}]")
        g.e(f"v_pk_add_f32 v[{a}:{a+1}], v[{a}:{a+1}], s[{s_eps}:{s_eps+1}]")
        g.e(f"v_pk_add_f32 v[{b}:{b+1}], v[{b}:{b+1}], s[{s_eps}:{s_eps+1}]")
        g.e(f"v_cvt_pk_bf16_f32 v{outs[i]}, v{a}, v{a+1}")
        g.e(f"v_cvt_pk_bf16_f32 v{outs[i+1]}, v{b}, v{b+1}")

def gen_entry(g):
    g.e(f"s_cmp_ge_u32 s2, 256")
    g.e(f"s_cbranch_scc1 L_end")
    init_stamps(g)
    stamp(g, 0)
    for b in (S_X, S_W, S_WS, S_K, S_V, S_H, S_WO, S_Q, S_SK, S_D, S_OUT): srd_load(g, b, SRD_INFO[b][0])
    g.e(f"""
    v_lshrrev_b32 v1, 6, v0
    s_and_b32 s{t0}, s2, 7
    s_lshr_b32 s{t1}, s2, 3
    v_readfirstlane_b32 s{s_wave}, v1
    s_and_b32 s{s_rb}, s{t0}, 1
    s_lshl_b32 s{s_rb}, s{s_rb}, 3
    s_lshr_b32 s{t2}, s{t0}, 1
    s_xor_b32 s{t2}, s{t2}, {int(opt('hgx', 0))}
    s_lshl_b32 s{s_hp}, s{t2}, 2
    s_and_b32 s{t2}, s{t1}, 7
    s_or_b32 s{s_rb}, s{s_rb}, s{t2}
    s_lshr_b32 s{t2}, s{t1}, 3
    s_xor_b32 s{t2}, s{t2}, {int(opt('hpx', 0))}
    s_or_b32 s{s_hp}, s{s_hp}, s{t2}
    v_and_b32 v{vL}, 63, v0
    s_lshl_b32 s{s_rb2}, s{t0}, 1
    s_and_b32 s{t2}, s{t1}, 1
    s_or_b32 s{s_rb2}, s{s_rb2}, s{t2}
    s_lshr_b32 s{s_cb2}, s2, 4
    """)
    for b in (S_X, S_W, S_WS): srd_const(g, b, SRD_INFO[b][1])
    g.e(f"s_cmp_lt_u32 s{s_wave}, 4")
    g.e(f"s_cbranch_scc1 L_compute")

def wo_dma_setup(g, vW, T):
    g.e(f"""
    v_lshrrev_b32 v{T}, 3, v{vL}
    v_lshlrev_b32 v{T}, 11, v{T}
    v_lshrrev_b32 v{T+1}, 4, v{vL}
    v_and_b32 v{T+1}, 1, v{T+1}
    v_lshlrev_b32 v{T+1}, 2, v{T+1}
    v_and_b32 v{T+2}, 7, v{vL}
    v_xor_b32 v{T+1}, v{T+1}, v{T+2}
    v_lshl_add_u32 v{T}, v{T+1}, 4, v{T}
    s_lshl_b32 s{t0}, s{s_cb2}, 7
    v_add_u32 v{vW}, s{t0}, v{T}
    """)
    for m in range(1, 4):
        g.e(f"v_add_u32 v{vW+m}, {m*(8*2048 - 1024)}, v{vW}")
def wo_dma(g, vW, s_row0, nblk, name):
    lab = g.newlabel(name)
    g.e(f"""
    s_lshl_b32 s{t0}, s{s_row0}, 7
    s_lshl_b32 s{t1}, s{s_row0}, 11
    s_mov_b32 s{t2}, {nblk}
    """)
    g.lab(lab)
    g.e(f"s_mov_b32 m0, s{t0}")
    g.e(f"s_add_u32 s{t0}, s{t0}, 4096")
    for m in range(4):
        g.e(f"buffer_load_dwordx4 v{vW+m}, s[{S_WO}:{S_WO+3}], s{t1} offen offset:{m*1024}{ntf('wo')} lds")
    g.e(f"s_add_u32 s{t1}, s{t1}, {32*2048}")
    g.e(f"s_sub_u32 s{t2}, s{t2}, 1")
    g.e(f"s_cmp_lg_u32 s{t2}, 0")
    g.e(f"s_cbranch_scc1 {lab}")

def gen_hyb(g):
    g.lab("L_hyb")
    l = vL
    s_hw = 69
    vAo = [2, 3, 4, 5]; vBo = [[6 + 2*sec + i for i in range(2)] for sec in range(3)]
    T = 24
    g.e(f"""
    s_sub_u32 s{s_hw}, s{s_wave}, 4
    v_lshrrev_b32 v{T}, 3, v{l}
    s_lshl_b32 s{t0}, s{s_rb}, 7
    s_lshl_b32 s{t1}, s{s_hw}, 5
    s_add_u32 s{t0}, s{t0}, s{t1}
    v_add_u32 v{T+1}, s{t0}, v{T}
    v_lshlrev_b32 v{T+1}, 11, v{T+1}
    v_lshrrev_b32 v{T+2}, 4, v{l}
    v_and_b32 v{T+3}, 7, v{l}
    v_xor_b32 v{T+4}, v{T+2}, v{T+3}
    v_xor_b32 v{T+5}, 4, v{T+4}
    v_lshl_add_u32 v{T+4}, v{T+4}, 4, v{T+1}
    v_lshl_add_u32 v{T+5}, v{T+5}, 4, v{T+1}
    """)
    for i in range(4):
        g.e(f"v_add_u32 v{vAo[i]}, {i*8*2048 - 1024*i}, v{T + 4 + (i&1)}" if i else f"v_mov_b32 v{vAo[0]}, v{T+4}")
    g.e(f"""
    s_lshl_b32 s{t0}, s{s_hw}, 4
    v_add_u32 v{T+1}, s{t0}, v{T}
    s_movk_i32 s{t1}, 6144
    v_mul_lo_u32 v{T+1}, v{T+1}, s{t1}
    v_and_b32 v{T+2}, 1, v{T+2}
    v_lshlrev_b32 v{T+2}, 2, v{T+2}
    v_xor_b32 v{T+2}, v{T+2}, v{T+3}
    v_lshl_add_u32 v{T+1}, v{T+2}, 4, v{T+1}
    s_xor_b32 s{t0}, s{s_hp}, {int(opt('wx', 0))}
    s_lshl_b32 s{t0}, s{t0}, 7
    v_add_u32 v{T+1}, s{t0}, v{T+1}
    """)
    for sec in range(3):
        for i in range(2):
            g.e(f"v_add_u32 v{vBo[sec][i]}, {i*(8*6144 - 1024) + sec*2048}, v{T+1}")
    s_SA, s_SB, s_OA, s_OB, s_cnt, s_wrap = 64, 65, 66, 67, 68, 70
    STG = int(opt("stg", 1))
    g.e(f"""
    s_lshl_b32 s{s_SA}, s{s_hw}, 12
    s_lshl_b32 s{s_SB}, s{s_hw}, 11
    s_add_u32 s{s_SB}, s{s_SB}, {LB}
    s_mov_b32 s{s_cnt}, 0
    s_add_u32 s{s_wrap}, s{s_SA}, {3*16384}
    """)
    if STG == 0:
        g.e(f"s_mov_b32 s{s_OA}, 0")
        g.e(f"s_mov_b32 s{s_OB}, 0")
    elif STG >= 3:
        A_, B_, C_ = int(opt("sA", "0xECA86420"), 0), int(opt("sB", "0xC840"), 0), int(opt("sC", "0"), 0)
        g.e(f"""
        s_lshr_b32 s{t0}, s2, 3
        s_and_b32 s{t0}, s{t0}, 7
        s_lshl_b32 s{t0}, s{t0}, 2
        s_lshr_b32 s{t0}, {A_}, s{t0}
        s_lshr_b32 s{t1}, s2, 6
        s_lshl_b32 s{t1}, s{t1}, 2
        s_lshr_b32 s{t1}, {B_}, s{t1}
        s_add_u32 s{t0}, s{t0}, s{t1}
        s_and_b32 s{t1}, s2, 7
        s_lshl_b32 s{t1}, s{t1}, 2
        s_lshr_b32 s{t1}, {C_}, s{t1}
        s_add_u32 s{t0}, s{t0}, s{t1}
        s_and_b32 s{t0}, s{t0}, 15
        s_lshl_b32 s{s_OA}, s{t0}, 7
        s_mul_i32 s{s_OB}, s{t0}, {64*6144}
        """)
    else:
        g.e(f"""
        s_and_b32 s{t0}, s2, 7
        s_lshr_b32 s{t1}, s{t0}, 1
        s_lshl_b32 s{t1}, s{t1}, 2
        s_and_b32 s{t0}, s{t0}, 1
        s_lshl_b32 s{t0}, s{t0}, 3
        s_add_u32 s{t0}, s{t0}, s{t1}
        """)
        if STG == 2:
            g.e(f"s_lshr_b32 s{t1}, s2, 3")
            g.e(f"s_and_b32 s{t1}, s{t1}, 1")
            g.e(f"s_lshl_b32 s{t1}, s{t1}, 1")
            g.e(f"s_add_u32 s{t0}, s{t0}, s{t1}")
        g.e(f"""
        s_and_b32 s{t0}, s{t0}, 15
        s_lshl_b32 s{s_OA}, s{t0}, 7
        s_mul_i32 s{s_OB}, s{t0}, {64*6144}
        """)
    g.e(f"""
    s_waitcnt lgkmcnt(0)
    s_load_dword s{s_tag}, s[{S_WS}:{S_WS+1}], {WS_EPOCH}
    """)
    def issue():
        if "nodma" in opt("abl", "") and getattr(issue, "n", 0) >= 2:
            return
        issue.n = getattr(issue, "n", 0) + 1
        g.e(f"s_mov_b32 m0, s{s_SA}")
        g.e(f"s_add_u32 s{s_SA}, s{s_SA}, 16384")
        for i in range(4):
            g.e(f"buffer_load_dwordx4 v{vAo[i]}, s[{S_X}:{S_X+3}], s{s_OA} offen offset:{1024*i}{ntf('x')} lds")
        for sec in range(3):
            g.e(f"s_add_u32 m0, s{s_SB}, {sec*8192}")
            if sec == 0: g.e(f"s_add_u32 s{s_OA}, s{s_OA}, 128")
            else: g.e("s_nop 0")
            for i in range(2):
                g.e(f"buffer_load_dwordx4 v{vBo[sec][i]}, s[{S_W}:{S_W+3}], s{s_OB} offen offset:{1024*i}{ntf('w')} lds")
        g.e(f"""
        s_add_u32 s{s_OB}, s{s_OB}, {64*6144}
        s_add_u32 s{s_SB}, s{s_SB}, 24576
        s_cmp_eq_u32 s{s_SA}, s{s_wrap}
        s_cselect_b32 s{t0}, {3*16384}, 0
        s_cselect_b32 s{t1}, {3*24576}, 0
        s_sub_u32 s{s_SA}, s{s_SA}, s{t0}
        s_sub_u32 s{s_SB}, s{s_SB}, s{t1}
        """)
        if STG:
            g.e(f"s_cmp_eq_u32 s{s_OA}, 2048")
            g.e(f"s_cselect_b32 s{s_OA}, 0, s{s_OA}")
            g.e(f"s_cselect_b32 s{s_OB}, 0, s{s_OB}")
    NB = 10
    issue()
    stamp(g, 1)
    issue()
    for b in (S_K, S_V, S_SK, S_H, S_D, S_WO, S_Q, S_OUT): srd_const(g, b, SRD_INFO[b][1])
    wo_dma_setup(g, vWO, 240)
    vKb, vSt, vSK = 12, 15, 36
    vNeg = [37, 38, 39]
    KR = 40
    VR = 64
    WR = 80
    T = 24
    g.e(f"""
    v_and_b32 v{T}, 15, v{l}
    v_lshlrev_b32 v{T}, 3, v{T}
    s_lshl_b32 s{t0}, s{s_hp}, 7
    v_add_u32 v{T}, s{t0}, v{T}
    v_lshrrev_b32 v{T+1}, 4, v{l}
    v_lshlrev_b32 v{T+1}, 3, v{T+1}
    s_lshl_b32 s{t0}, s{s_rb}, 7
    s_lshl_b32 s{t1}, s{s_hw}, 5
    s_add_u32 s{t0}, s{t0}, s{t1}
    v_add_u32 v{T+1}, s{t0}, v{T+1}
    v_lshl_add_u32 v{vKb}, v{T+1}, 11, v{T}
    v_mov_b32 v{T+2}, 0x80000000
    v_cmp_eq_u32 vcc, 0, v{T+1}
    v_lshlrev_b32 v{vSK}, 2, v{T}
    v_lshlrev_b32 v{vSt}, 11, v{T}
    v_lshlrev_b32 v{T+3}, 1, v{T+1}
    v_sub_u32 v{T+3}, 4080, v{T+3}
    v_add_u32 v{vSt}, v{vSt}, v{T+3}
    v_lshlrev_b32 v13, 4, v{l}
    v_add_u32 v14, 2, v13
    v_mov_b32 v176, 0
    v_mov_b32 v177, 0
    v_mov_b32 v178, 0
    v_mov_b32 v179, 0
    """)
    for i in range(3):
        g.e(f"v_subrev_u32 v{vNeg[i]}, {(3-i)*2048}, v{vKb}")
    for i in range(3):
        g.e(f"v_cndmask_b32 v{vNeg[i]}, v{vNeg[i]}, v{T+2}, vcc")
    s_ch = 71
    for m in range(1, 4):
        g.e(f"s_mov_b32 s{71+m}, {m*4096}")
    def soff(row): return "0" if row < 2 else f"s{71 + row//2}"
    g.e(f"""
    s_lshl_b32 s{s_ch}, s{s_hp}, 6
    s_lshl_b32 s{t0}, s{s_rb}, 2
    s_add_u32 s{s_ch}, s{s_ch}, s{t0}
    s_add_u32 s{s_ch}, s{s_ch}, s{s_hw}
    s_setprio 1
    s_waitcnt lgkmcnt(0)
    s_add_u32 s{s_tag}, s{s_tag}, 1
    s_not_b32 s{t0}, s{s_tag}
    v_mov_b32 v{T+2}, s{t0}
    v_lshlrev_b32 v{T+3}, 2, v{l}
    v_add_u32 v{T+3}, {LFLAG}, v{T+3}
    s_mov_b32 exec_hi, 0
    ds_write_b32 v{T+3}, v{T+2}
    s_mov_b64 exec, -1
    s_waitcnt vmcnt({NB}) lgkmcnt(0)
    """)
    stamp(g, 2)
    g.e("s_barrier")
    KF, WF, XO, VF, OUT = 112, 134, 142, 158, 160
    T = 16
    def kv_list():
        L = []
        for i in range(2):
            L.append(f"buffer_load_dwordx4 v[{WR+4*i}:{WR+4*i+3}], v{vSK}, s[{S_SK}:{S_SK+3}], 0 offen offset:{16*i}")
        for i in range(3):
            L.append(f"buffer_load_dwordx2 v[{KR+2*i}:{KR+2*i+1}], v{vNeg[i]}, s[{S_K}:{S_K+3}], 0 offen{ntf('kv')}")
        for r in range(8):
            L.append(f"buffer_load_dwordx2 v[{KR+6+2*r}:{KR+6+2*r+1}], v{vKb}, s[{S_K}:{S_K+3}], {soff(r)} offen offset:{(r&1)*2048}{ntf('kv')}")
        for r in range(8):
            L.append(f"buffer_load_dwordx2 v[{VR+2*r}:{VR+2*r+1}], v{vKb}, s[{S_V}:{S_V+3}], {soff(r)} offen offset:{(r&1)*2048}{ntf('kv')}")
        return L
    def mk_kv(part):
        def f():
            for x in part: g.e(x)
            return len(part)
        return f
    def h_dma():
        g.e(f"s_lshl_b32 s{t0}, s{s_ch}, 12")
        g.e(f"s_mul_i32 s{t1}, s{s_hw}, {H_STRIDE}")
        g.e(f"s_add_u32 m0, s{t1}, {LH + 32}")
        g.e("s_nop 0")
        for m in range(4):
            g.e(f"buffer_load_dwordx4 v13, s[{S_H}:{S_H+3}], s{t0} offen offset:{m*1024}{ntf('h')} lds")
        g.e(f"s_add_u32 m0, s{t1}, {LH + 4160 + 32}")
        g.e("s_nop 0")
        for m in range(4):
            g.e(f"buffer_load_dwordx4 v14, s[{S_H}:{S_H+3}], s{t0} offen offset:{m*1024}{ntf('h')} lds")
        g.e(f"s_lshl_b32 s{t0}, s{s_ch}, 1")
        g.e(f"v_mov_b32 v35, 0")
        g.e(f"buffer_load_ushort v35, v35, s[{S_D}:{S_D+3}], s{t0} offen")
        return 9
    def unpack(dst, src):
        g.e(f"v_lshlrev_b32 v{dst}, 16, v{src}")
        g.e(f"v_and_b32 v{dst+1}, 0xffff0000, v{src}")
    def piece(p, half):
        ob = OUT + 8*p
        if half == 0:
            for c in range(2):
                w = WR + 2*(2*p + c)
                g.e(f"v_lshlrev_b32 v{WF+0+c}, 16, v{w}")
                g.e(f"v_and_b32 v{WF+2+c}, 0xffff0000, v{w}")
                g.e(f"v_lshlrev_b32 v{WF+4+c}, 16, v{w+1}")
                g.e(f"v_and_b32 v{WF+6+c}, 0xffff0000, v{w+1}")
            for r in range(11): unpack(KF + 2*r, KR + 2*r + p)
        for s_ in (range(0, 2) if half == 0 else range(2, 8)):
            o = XO + 2*s_
            for j in range(4):
                k = KF + 2*(s_ + 3 - j); w = WF + 2*j
                if j == 0: g.e(f"v_pk_mul_f32 v[{o}:{o+1}], v[{k}:{k+1}], v[{w}:{w+1}]")
                else: g.e(f"v_pk_fma_f32 v[{o}:{o+1}], v[{k}:{k+1}], v[{w}:{w+1}], v[{o}:{o+1}]")
            unpack(VF, VR + 2*s_ + p)
            g.e(f"v_pk_mul_f32 v[{o}:{o+1}], v[{o}:{o+1}], v[{VF}:{VF+1}]")
        if half == 1:
            for c in range(2):
                for m in range(4):
                    g.e(f"v_cvt_pk_bf16_f32 v{ob+4*c+m}, v{XO+2*(7-2*m)+c}, v{XO+2*(6-2*m)+c}")
    def xr_stores():
        for p in range(2):
            ob = OUT + 8*p
            for c in range(2):
                g.e(f"s_mov_b32 s{t0}, {WS_XR + (2*p + c)*4096}")
                g.e(f"buffer_store_dwordx4 v[{ob+4*c}:{ob+4*c+3}], v{vSt}, s[{S_WS}:{S_WS+3}], s{t0} offen sc1")
        return 4
    def f1_flag():
        g.e(f"""
        s_lshl_b32 s{t0}, s{s_hp}, 8
        s_lshl_b32 s{t1}, s{s_rb}, 4
        s_add_u32 s{t0}, s{t0}, s{t1}
        s_lshl_b32 s{t1}, s{s_hw}, 2
        s_add_u32 s{t0}, s{t0}, s{t1}
        s_add_u32 s{t0}, s{t0}, {WS_F1}
        """)
        post_flag(g, t0, T, T+1)
        return 1
    def h_fix():
        g.e(f"""
        s_mul_i32 s{t1}, s{s_hw}, {H_STRIDE}
        s_add_u32 s{t1}, s{t1}, {LH}
        v_mov_b32 v{T}, s{t1}
        ds_read_u16 v{T+1}, v{T} offset:32
        v_lshlrev_b32 v35, 16, v35
        s_waitcnt lgkmcnt(0)
        v_lshlrev_b32 v{T+1}, 16, v{T+1}
        v_add_f32 v{T+1}, v{T+1}, v35
        v_cvt_pk_bf16_f32 v{T+1}, v{T+1}, v{T+1}
        v_and_b32 v{T+2}, 0xffff0000, v{T+1}
        s_mov_b64 exec, 1
        ds_write_b128 v{T}, v[176:179]
        ds_write_b128 v{T}, v[176:179] offset:16
        ds_write_b16 v{T}, v{T+1} offset:32
        ds_write_b128 v{T}, v[176:179] offset:4160
        ds_write_b64 v{T}, v[176:177] offset:4176
        ds_write_b32 v{T}, v176 offset:4184
        ds_write_b32 v{T}, v{T+2} offset:4188
        s_mov_b64 exec, -1
        s_waitcnt lgkmcnt(0)
        """)
        return 0
    def wo_touch():
        g.e(f"""
        s_lshr_b32 s{t0}, s2, 3
        s_lshl_b32 s{t0}, s{t0}, 2
        s_add_u32 s{t0}, s{t0}, s{s_hw}
        s_lshl_b32 s{t0}, s{t0}, 14
        v_lshrrev_b32 v{T}, 4, v{l}
        v_lshlrev_b32 v{T}, 11, v{T}
        v_and_b32 v{T+1}, 15, v{l}
        v_lshl_add_u32 v{T}, v{T+1}, 7, v{T}
        buffer_load_dword v{vJ}, v{T}, s[{S_WO}:{S_WO+3}], s{t0} offen
        s_add_u32 s{t0}, s{t0}, 8192
        buffer_load_dword v{vJ}, v{T}, s[{S_WO}:{S_WO+3}], s{t0} offen
        """)
        return 2
    def mk_wo_piece(u):
        def f():
            g.e(f"""
            s_lshr_b32 s{t0}, s2, 3
            s_lshl_b32 s{t0}, s{t0}, 5
            s_add_u32 s{t0}, s{t0}, s{s_hw}
            s_add_u32 s{t0}, s{t0}, {4*u}
            s_lshl_b32 s{t0}, s{t0}, 11
            v_lshlrev_b32 v{T}, 7, v{l}
            s_mov_b64 exec, 0xffff
            buffer_load_dword v{vJ}, v{T}, s[{S_WO}:{S_WO+3}], s{t0} offen
            s_mov_b64 exec, -1
            """)
            return 1
        return f
    def wo_touch3():
        g.e(f"""
        s_lshr_b32 s{t0}, s2, 3
        s_lshl_b32 s{t0}, s{t0}, 2
        s_add_u32 s{t0}, s{t0}, s{s_hw}
        s_lshl_b32 s{t0}, s{t0}, 14
        s_add_u32 s{t0}, s{t0}, 384
        v_and_b32 v{T}, 7, v{l}
        v_lshlrev_b32 v{T}, 11, v{T}
        v_lshrrev_b32 v{T+1}, 3, v{l}
        v_lshl_add_u32 v{T}, v{T+1}, 10, v{T}
        s_mov_b64 exec, 0xffff
        buffer_load_dword v{vJ}, v{T}, s[{S_WO}:{S_WO+3}], s{t0} offen
        s_mov_b64 exec, -1
        """)
        return 1
    def wo_touchm():
        g.e(f"""
        s_lshl_b32 s{t0}, s2, 2
        s_add_u32 s{t0}, s{t0}, s{s_hw}
        s_lshl_b32 s{t0}, s{t0}, 11
        v_lshlrev_b32 v{T}, 7, v{l}
        s_mov_b64 exec, 0xffff
        buffer_load_dword v{vJ}, v{T}, s[{S_WO}:{S_WO+3}], s{t0} offen
        s_mov_b64 exec, -1
        """)
        return 1
    KL = int(opt("kvit", 4)); XS = int(opt("xsit", 11)); HD = int(opt("hit", 13)); V0 = int(opt("vit", KL + int(opt("kvsp", 1)) + 2))
    abl = opt("abl", "")
    side = {}
    val = {}
    def add(t, f): side.setdefault(t, []).append(f)
    extra_cnt = {}
    if "noaux" not in abl:
        KSP = int(opt("kvsp", 1))
        Lk = kv_list(); per = -(-len(Lk) // KSP)
        for u in range(KSP):
            part = Lk[u*per:(u+1)*per]
            f_ = mk_kv(part); extra_cnt[f_] = len(part); add(KL + u, f_)
        if HD <= 13: add(HD, h_dma)
        add(XS, xr_stores)
        if opt("wom"):
            add(int(opt("wom")), wo_touchm); extra_cnt[wo_touchm] = 1
        w_ = opt("wot", "x")
        if w_.startswith("s"):
            for u in range(8):
                f_ = mk_wo_piece(u); extra_cnt[f_] = 1; add(int(w_[1:]) + u, f_)
        elif w_.startswith("c"):
            add(int(w_[1:]), wo_touch3); extra_cnt[wo_touch3] = 1
        elif w_ not in ("0", "x"): add(int(w_), wo_touch)
        for i in range(4): val[V0 + i] = (i // 2, i % 2)
        assert V0 >= KL + KSP + 2 and XS >= V0 + 4 and XS <= 12
    cnt_of = {h_dma: 9, xr_stores: 4, wo_touch: 2}
    cnt_of.update(extra_cnt)
    def ecount(t): return sum(cnt_of[f] for f in side.get(t, []))
    assert max(side) <= 13
    special = [t for t in range(14) if t in side or ecount(t - 1) or t in val]
    PRE = opt("pre", "1") == "1"
    g.lab("L_hloop")
    if PRE and val:
        g.e(f"s_cmp_lt_u32 s{s_hw}, 2")
        g.e(f"s_cbranch_scc1 L_hissue")
        for t in val:
            g.e(f"s_cmp_eq_u32 s{s_cnt}, {t}")
            g.e(f"s_cbranch_scc1 L_hval{t}")
    g.lab("L_hissue")
    issue()
    if opt("bar"): stamp(g, 32, s_cnt)
    for t in special:
        g.e(f"s_cmp_eq_u32 s{s_cnt}, {t}")
        g.e(f"s_cbranch_scc1 L_hside{t}")
    g.e(f"s_waitcnt vmcnt({NB})")
    g.lab("L_htail")
    if opt("bar"): stamp(g, 16, s_cnt)
    g.e(f"s_add_u32 s{s_cnt}, s{s_cnt}, 1")
    g.e(f"s_cmp_lg_u32 s{s_cnt}, 14")
    g.e("s_barrier")
    g.e("s_cbranch_scc1 L_hloop")
    g.e(f"s_waitcnt vmcnt({ecount(13)})")
    if "noaux" not in abl: f1_flag()
    if HD == 15 and "noaux" not in abl: h_dma()
    if HD == 14 and "noaux" not in abl: pass
    g.e("s_barrier")
    g.e("s_barrier")
    stamp(g, 3)
    if HD == 16 and "noaux" not in abl: h_dma()
    T = 16
    g.e(f"""
    v_lshlrev_b32 v{T}, 2, v{l}
    s_lshl_b32 s{t1}, s{s_hp}, 8
    s_add_u32 s{t1}, s{t1}, {WS_F1}
    """)
    poll(g, T, T+1, t1, "pf1")
    stamp(g, 6)
    XR_ = 40
    g.e(f"s_lshl_b32 s{t0}, s{s_ch}, 12")
    g.e(f"s_add_u32 s{t0}, s{t0}, {WS_XR}")
    for m in range(4):
        d = XR_ + 4*m
        g.e(f"buffer_load_dwordx4 v[{d}:{d+3}], v13, s[{S_WS}:{S_WS+3}], s{t0} offen offset:{m*1024}{lsc('x')}")
    nwt = 0
    if HD == 17: nwt += h_dma()
    if opt("wot", "x") == "x": nwt += wo_touch()
    if opt("wo01", "post") == "x1":
        g.e(f"s_lshl_b32 s{t5}, s{s_hw}, 7")
        wo_dma(g, vWO, t5, 2, "wo01a"); nwt += 8
    if HD != 17: h_fix()
    g.e(f"""
    s_mul_i32 s{t1}, s{s_hw}, {X_STRIDE}
    s_add_u32 s{t1}, s{t1}, {LX}
    v_add_u32 v{T}, s{t1}, v13
    v_cmp_gt_u32 vcc, 30, v{l}
    s_and_saveexec_b64 s[{t4}:{t4+1}], vcc
    ds_write_b128 v{T}, v[176:179] offset:4096
    s_mov_b64 exec, s[{t4}:{t4+1}]
    s_waitcnt vmcnt({nwt})
    """)
    for m in range(4):
        d = XR_ + 4*m
        g.e(f"ds_write_b128 v{T}, v[{d}:{d+3}] offset:{m*1024}")
    if HD == 17:
        g.e(f"s_waitcnt vmcnt({nwt - 9})")
        h_fix()
    g.e("s_waitcnt lgkmcnt(0)")
    stamp(g, 7)
    g.e("s_barrier")
    g.e("s_branch L_helper")
    for t in special:
        g.lab(f"L_hside{t}")
        for f in side.get(t, []): f()
        if t in val:
            if PRE:
                g.e(f"s_cmp_ge_u32 s{s_hw}, 2")
                g.e(f"s_cbranch_scc1 L_hwait{t}")
            g.lab(f"L_hval{t}")
            piece(*val[t])
            if PRE:
                g.e(f"s_cmp_ge_u32 s{s_hw}, 2")
                g.e(f"s_cbranch_scc1 L_hissue")
            g.lab(f"L_hwait{t}")
        n = ecount(t - 1) + NB + ecount(t)
        g.e(f"s_waitcnt vmcnt({min(n, 63)})")
        g.e("s_branch L_htail")

def gen_compute(g):
    g.lab("L_compute")
    ACCQ = [0, 16]; ACCK = [32, 48]; ACCV = [64, 80]
    P = [96, 116]
    vA = [136, 137, 138, 139]; vB = 140
    T = 150
    l = vL
    abl = opt("abl", "")
    g.e(f"""
    s_waitcnt lgkmcnt(0)
    s_load_dword s{s_tag}, s[{S_WS}:{S_WS+1}], {WS_EPOCH}
    """)
    if opt("kvpf", "0") == "1":
        srd_const(g, S_K, NB_SD); srd_const(g, S_V, NB_SD)
        g.e(f"""
        s_lshl_b32 s{t0}, s{s_rb}, 18
        s_lshl_b32 s{t1}, s{s_hp}, 7
        s_add_u32 s{t0}, s{t0}, s{t1}
        s_and_b32 s{t1}, s{s_wave}, 1
        s_lshl_b32 s{t1}, s{t1}, 17
        s_add_u32 s{t0}, s{t0}, s{t1}
        v_lshlrev_b32 v{T}, 11, v{l}
        s_cmp_lt_u32 s{s_wave}, 2
        s_cbranch_scc0 L_pfv
        buffer_load_dword v{vJ}, v{T}, s[{S_K}:{S_K+3}], s{t0} offen
        s_branch L_pfdone
        """)
        g.lab("L_pfv")
        g.e(f"buffer_load_dword v{vJ}, v{T}, s[{S_V}:{S_V+3}], s{t0} offen")
    g.lab("L_pfdone")
    c3 = opt("c3", "wxk")
    C3AT = int(opt("c3at", 0))
    vC3, sC3, sC3m = 146, 70, 71
    if c3 != "0":
        srd_const(g, S_K, NB_SD); srd_const(g, S_V, NB_SD)
        g.e(f"""
        s_and_b32 s{t0}, s2, 7
        s_lshr_b32 s{t1}, s2, 3
        s_lshl_b32 s{t1}, s{t1}, 5
        v_and_b32 v{T}, 31, v{l}
        v_add_u32 v{T}, s{t1}, v{T}
        v_lshrrev_b32 v{T+1}, 5, v{l}
        s_lshr_b32 s{t2}, s{t0}, 1
        s_lshl_b32 s{t2}, s{t2}, 2
        s_add_u32 s{t2}, s{t2}, 3
        s_lshl_b32 s{t2}, s{t2}, 7
        s_and_b32 s{t3}, s{t0}, 1
        s_lshl_b32 s{t3}, s{t3}, 21
        s_mov_b32 s{sC3m}, 0
        s_mov_b32 s{sC3}, 0
        v_mov_b32 v{vC3}, 0
        """)
        g.e(f"s_cmp_eq_u32 s{s_wave}, 2")
        g.e(f"s_cbranch_scc1 L_c3x")
        g.e(f"s_bitcmp1_b32 s2, 1")
        g.e(f"s_cbranch_scc1 L_c3done")
        g.e(f"s_cmp_eq_u32 s{s_wave}, 3")
        g.e(f"s_cbranch_scc1 L_c3k")
        if "w" in c3:
            g.e(f"""
            s_movk_i32 s{t4}, 6144
            v_mul_lo_u32 v{vC3}, v{T}, s{t4}
            v_lshl_add_u32 v{vC3}, v{T+1}, 11, v{vC3}
            s_lshl_b32 s{t4}, s{s_wave}, 12
            s_add_u32 s{sC3}, s{t2}, s{t4}
            s_add_u32 s{sC3m}, s{s_wave}, 1
            """)
        g.e("s_branch L_c3done")
        g.lab("L_c3x")
        if "x" in c3:
            g.e(f"""
            v_lshlrev_b32 v{vC3}, 11, v{T}
            v_lshl_add_u32 v{vC3}, v{T+1}, 10, v{vC3}
            s_add_u32 s{sC3}, s{t3}, 384
            s_mov_b32 s{sC3m}, 3
            """)
        g.e("s_branch L_c3done")
        g.lab("L_c3k")
        if "k" in c3:
            g.e(f"""
            v_lshlrev_b32 v{vC3}, 11, v{T}
            s_add_u32 s{sC3}, s{t3}, s{t2}
            s_mov_b32 s{sC3m}, 4
            """)
        g.lab("L_c3done")
    def c3_touch():
        if c3 == "0": return
        u = g.newlabel("c3")
        g.e(f"""
        s_cmp_eq_u32 s{sC3m}, 0
        s_cbranch_scc1 {u}e
        s_cmp_eq_u32 s{sC3m}, 3
        s_cbranch_scc1 {u}x
        s_cmp_eq_u32 s{sC3m}, 4
        s_cbranch_scc1 {u}k
        s_cmp_eq_u32 s{sC3m}, 1
        s_cbranch_scc1 {u}w
        s_mov_b32 exec_hi, 0
        {u}w:
        buffer_load_dword v{vJ}, v{vC3}, s[{S_W}:{S_W+3}], s{sC3} offen
        s_mov_b64 exec, -1
        s_branch {u}e
        {u}x:
        buffer_load_dword v{vJ}, v{vC3}, s[{S_X}:{S_X+3}], s{sC3} offen
        s_branch {u}e
        {u}k:
        s_mov_b32 exec_hi, 0
        buffer_load_dword v{vJ}, v{vC3}, s[{S_K}:{S_K+3}], s{sC3} offen
        s_not_b64 exec, exec
        buffer_load_dword v{vJ}, v{vC3}, s[{S_V}:{S_V+3}], s{sC3} offen
        s_mov_b64 exec, -1
        {u}e:
        s_mov_b32 s{sC3m}, 0
        """)
    if C3AT < 0: c3_touch()
    for b in (S_WO, S_Q, S_OUT): srd_const(g, b, SRD_INFO[b][1])
    g.e(f"""
    s_lshr_b32 s{s_wm}, s{s_wave}, 1
    s_and_b32 s{s_wn}, s{s_wave}, 1
    v_and_b32 v{T}, 31, v{l}
    s_lshl_b32 s{t0}, s{s_wm}, 6
    v_add_u32 v{T}, s{t0}, v{T}
    v_lshlrev_b32 v{T}, 7, v{T}
    v_lshrrev_b32 v{T+1}, 1, v{l}
    v_and_b32 v{T+1}, 7, v{T+1}
    v_lshrrev_b32 v{T+2}, 5, v{l}
    v_xor_b32 v{T+1}, v{T+1}, v{T+2}
    """)
    for j in range(4):
        g.e(f"v_xor_b32 v{T+3}, {2*j}, v{T+1}")
        g.e(f"v_lshl_add_u32 v{vA[j]}, v{T+3}, 4, v{T}")
    g.e(f"""
    v_lshrrev_b32 v{T}, 5, v{l}
    v_lshlrev_b32 v{T}, 3, v{T}
    v_and_b32 v{T+1}, 15, v{l}
    v_lshrrev_b32 v{T+1}, 2, v{T+1}
    v_add_u32 v{T}, v{T}, v{T+1}
    v_lshlrev_b32 v{T}, 7, v{T}
    v_lshrrev_b32 v{T+1}, 4, v{l}
    v_and_b32 v{T+1}, 1, v{T+1}
    v_lshlrev_b32 v{T+1}, 1, v{T+1}
    v_and_b32 v{T+2}, 3, v{l}
    v_lshrrev_b32 v{T+2}, 1, v{T+2}
    v_add_u32 v{T+1}, v{T+1}, v{T+2}
    s_lshl_b32 s{t0}, s{s_wn}, 2
    v_add_u32 v{T+1}, s{t0}, v{T+1}
    v_lshrrev_b32 v{T+2}, 3, v{l}
    v_and_b32 v{T+2}, 1, v{T+2}
    v_lshlrev_b32 v{T+2}, 2, v{T+2}
    v_xor_b32 v{T+1}, v{T+1}, v{T+2}
    v_lshl_add_u32 v{T}, v{T+1}, 4, v{T}
    v_and_b32 v{T+1}, 1, v{l}
    v_lshl_add_u32 v{T}, v{T+1}, 3, v{T}
    v_add_u32 v{vB}, {LB}, v{T}
    """)
    for r in range(96):
        g.e(f"v_mov_b32 v{r}, 0")
    g.e(f"""
    s_mov_b32 s64, 16384
    s_mov_b32 s65, -32768
    s_mov_b32 s66, 24576
    s_mov_b32 s67, -49152
    s_mov_b32 s68, 0
    s_mov_b32 s69, 0
    s_waitcnt lgkmcnt(0)
    s_add_u32 s{s_tag}, s{s_tag}, 1
    s_setprio 3
    """)
    s_slot, s_it = 68, 69
    def reads(setb, j):
        A0, A1, Bq, Bk, Bv = setb, setb+4, setb+8, setb+12, setb+16
        def tr(dst, sec, q):
            return f"ds_read_b64_tr_b16 v[{dst+2*q}:{dst+2*q+1}], v{vB} offset:{sec*8192 + j*2048 + q*512}"
        return [
            (f"ds_read_b128 v[{A0}:{A0+3}], v{vA[j]} offset:0", f"A0_{setb}"),
            (tr(Bq, 0, 0), f"Bqa_{setb}"),
            (tr(Bq, 0, 1), f"Bq_{setb}"),
            (f"ds_read_b128 v[{A1}:{A1+3}], v{vA[j]} offset:4096", f"A1_{setb}"),
            (tr(Bk, 1, 0), f"Bka_{setb}"),
            (tr(Bk, 1, 1), f"Bk_{setb}"),
            (tr(Bv, 2, 0), f"Bva_{setb}"),
            (tr(Bv, 2, 1), f"Bv_{setb}"),
        ]
    def mfmas(setb):
        A0, A1, Bq, Bk, Bv = setb, setb+4, setb+8, setb+12, setb+16
        def m(acc, a, b): return f"v_mfma_f32_32x32x16_bf16 v[{acc}:{acc+15}], v[{a}:{a+3}], v[{b}:{b+3}], v[{acc}:{acc+15}]"
        return [
            (m(ACCQ[0], Bq, A0), [f"A0_{setb}", f"Bq_{setb}"]),
            (m(ACCQ[1], Bq, A1), [f"A1_{setb}"]),
            (m(ACCK[0], A0, Bk), [f"Bk_{setb}"]),
            (m(ACCK[1], A1, Bk), []),
            (m(ACCV[0], A0, Bv), [f"Bv_{setb}"]),
            (m(ACCV[1], A1, Bv), []),
        ]
    stamp(g, 1)
    g.e("s_barrier")
    stamp(g, 2)
    stampc(g, 13)
    if C3AT == 0: c3_touch()
    g.lg_reset()
    for asm, tag in reads(P[0], 0): g.lg(asm, tag)
    g.lab("L_g1loop")
    g.lg_reset([t for a, t in reads(P[0], 0)])
    for j in range(4):
        cur, nxt = P[j & 1], P[(j + 1) & 1]
        M = mfmas(cur)
        if j < 3:
            R = reads(nxt, j + 1)
            sched = [2, 2, 2, 2, 0, 0]
            ri = 0
            for mi, (asm, needs) in enumerate(M):
                if needs: g.lg_need(*needs)
                g.e(asm)
                for _ in range(sched[mi]):
                    g.lg(*R[ri]); ri += 1
        else:
            R = reads(nxt, 0)
            for mi in range(2):
                asm, needs = M[mi]
                if needs: g.lg_need(*needs)
                g.e(asm)
            g.e(f"""
            s_add_u32 s{t0}, s{s_slot}, 1
            s_cmp_eq_u32 s{s_slot}, 2
            s_cselect_b32 s{s_slot}, 0, s{t0}
            s_cselect_b32 s{t0}, s65, s64
            s_cselect_b32 s{t1}, s67, s66
            """)
            for jj in range(4): g.e(f"v_add_u32 v{vA[jj]}, s{t0}, v{vA[jj]}")
            g.e(f"v_add_u32 v{vB}, s{t1}, v{vB}")
            g.lg_all()
            if opt("bar"): stamp(g, 16, s_it)
            g.e("s_barrier")
            if opt("bar"): stamp(g, 32, s_it)
            if C3AT > 0:
                g.e(f"s_cmp_lg_u32 s{s_it}, {C3AT-1}")
                g.e(f"s_cbranch_scc1 L_c3skip")
                c3_touch()
                g.lab("L_c3skip")
            ri = 0
            for mi in range(2, 6):
                asm, needs = M[mi]
                if needs: g.lg_need(*needs)
                g.e(asm)
                for _ in range(2):
                    g.lg(*R[ri]); ri += 1
    g.e(f"s_add_u32 s{s_it}, s{s_it}, 1")
    g.e(f"s_cmp_lg_u32 s{s_it}, 16")
    g.e(f"s_cbranch_scc1 L_g1loop")
    g.e("s_waitcnt lgkmcnt(0)")
    stamp(g, 3)
    stampc(g, 14)
    PK, VF, ONES, PQ, TMP, TA = 96, 112, 128, 132, 148, 152
    s_l2e, s_eps = 64, 66
    g.e(f"""
    s_mov_b32 s{s_l2e}, {LOG2E}
    s_mov_b32 s{s_l2e+1}, {LOG2E}
    s_mov_b32 s{s_eps}, {EPS}
    s_mov_b32 s{s_eps+1}, {EPS}
    v_mov_b32 v{ONES}, 0x3f803f80
    v_mov_b32 v{ONES+1}, 0x3f803f80
    v_mov_b32 v{ONES+2}, 0x3f803f80
    v_mov_b32 v{ONES+3}, 0x3f803f80
    v_lshlrev_b32 v{TA}, 4, v{l}
    s_mul_i32 s{t0}, s{s_wn}, 4224
    s_add_u32 s{t0}, s{t0}, {LRED}
    v_add_u32 v{TA+1}, s{t0}, v{TA}
    v_lshrrev_b32 v{TA+2}, 5, v{l}
    v_lshlrev_b32 v{TA+2}, 5, v{TA+2}
    v_and_b32 v{TA+3}, 31, v{l}
    s_nop 3
    """)
    regs = [ACCK[mt] + r for mt in range(2) for r in range(0, 16, 2)]
    outs = [PK + mt*8 + r//2 for mt in range(2) for r in range(0, 16, 2)]
    phi_pairs(g, regs, TMP, s_l2e, s_eps, outs)
    for mt in range(2):
        for r in range(0, 16, 2):
            g.e(f"v_cvt_pk_bf16_f32 v{VF + mt*8 + r//2}, v{ACCV[mt]+r}, v{ACCV[mt]+r+1}")
    KV, Z = 64, 80
    stamp(g, 11)
    g.e("s_nop 1")
    first = True
    for mt in range(2):
        for q2 in range(2):
            a = PK + mt*8 + q2*4; b = VF + mt*8 + q2*4
            c = "0" if first else f"v[{KV}:{KV+15}]"
            g.e(f"v_mfma_f32_32x32x16_bf16 v[{KV}:{KV+15}], v[{a}:{a+3}], v[{b}:{b+3}], {c}")
            c = "0" if first else f"v[{Z}:{Z+15}]"
            g.e(f"v_mfma_f32_32x32x16_bf16 v[{Z}:{Z+15}], v[{a}:{a+3}], v[{ONES}:{ONES+3}], {c}")
            first = False
    g.e(f"""
    s_add_u32 s{t1}, s{t0}, 4096
    v_add_u32 v{TA+4}, s{t1}, v{TA+2}
    v_cmp_eq_u32 vcc, 0, v{TA+3}
    s_mov_b64 s[{t4}:{t4+1}], vcc
    s_nop 7
    s_nop 3
    """)
    stamp(g, 12)
    g.e(f"""
    s_cmp_eq_u32 s{s_wm}, 0
    s_cbranch_scc1 L_red0
    """)
    for q in range(4):
        g.e(f"ds_write_b128 v{TA+1}, v[{KV+4*q}:{KV+4*q+3}] offset:{q*1024}")
    g.e(f"s_mov_b64 exec, s[{t4}:{t4+1}]")
    for q in range(4):
        g.e(f"ds_write_b128 v{TA+4}, v[{Z+4*q}:{Z+4*q+3}] offset:{(q>>1)*64 + (q&1)*16}")
    g.e("s_mov_b64 exec, -1")
    g.e(f"""
    s_lshl_b32 s{t2}, s{s_wn}, 2
    s_add_u32 s{t2}, s{t2}, {LFLAG + 16}
    v_mov_b32 v{TA+5}, s{t2}
    v_mov_b32 v{TA+6}, s{s_tag}
    s_waitcnt lgkmcnt(0)
    ds_write_b32 v{TA+5}, v{TA+6}
    """)
    g.e("s_branch L_phiq")
    g.lab("L_red0")
    g.e(f"""
    s_lshl_b32 s{t2}, s{s_hp}, 4
    s_add_u32 s{t2}, s{t2}, s{s_rb}
    s_mul_i32 s{t2}, s{t2}, {KVP_STRIDE}
    s_add_u32 s{t2}, s{t2}, {WS_KVP}
    s_lshl_b32 s{t3}, s{s_wn}, 11
    s_add_u32 s{t3}, s{t3}, s{t2}
    s_lshl_b32 s{t1}, s{s_wn}, 7
    s_add_u32 s{t2}, s{t2}, s{t1}
    s_add_u32 s{t2}, s{t2}, 4096
    """)
    g.e(f"""
    s_lshl_b32 s{t1}, s{s_wn}, 2
    s_add_u32 s{t1}, s{t1}, {LFLAG + 16}
    v_mov_b32 v{TA+5}, s{t1}
    s_mov_b32 s{t7}, {MAXSPIN*8}
    """)
    g.lab("L_x1")
    g.e(f"""
    ds_read_b32 v{TA+6}, v{TA+5}
    s_waitcnt lgkmcnt(0)
    v_cmp_ne_u32 vcc, s{s_tag}, v{TA+6}
    s_cbranch_vccz L_x1d
    s_sub_u32 s{t7}, s{t7}, 1
    s_cbranch_scc0 L_x1
    """)
    g.lab("L_x1d")
    for q in range(4):
        g.e(f"ds_read_b128 v[{0+32+4*q}:{0+32+4*q+3}], v{TA+1} offset:{q*1024}")
    for q in range(4):
        g.e(f"ds_read_b128 v[{48+4*q}:{48+4*q+3}], v{TA+4} offset:{(q>>1)*64 + (q&1)*16}")
    g.e("s_waitcnt lgkmcnt(4)")
    for r in range(0, 16, 2):
        g.e(f"v_pk_add_f32 v[{KV+r}:{KV+r+1}], v[{KV+r}:{KV+r+1}], v[{32+r}:{32+r+1}]")
    for r in range(0, 16, 2):
        g.e(f"v_cvt_pk_bf16_f32 v{32 + r//2}, v{KV+r}, v{KV+r+1}")
    g.e("s_waitcnt lgkmcnt(0)")
    for q in range(2):
        g.e(f"buffer_store_dwordx4 v[{32+4*q}:{32+4*q+3}], v{TA}, s[{S_WS}:{S_WS+3}], s{t3} offen offset:{q*1024} sc1")
    for r in range(0, 16, 2):
        g.e(f"v_pk_add_f32 v[{Z+r}:{Z+r+1}], v[{Z+r}:{Z+r+1}], v[{48+r}:{48+r+1}]")
    g.e(f"s_mov_b64 exec, s[{t4}:{t4+1}]")
    for q in range(4):
        g.e(f"buffer_store_dwordx4 v[{Z+4*q}:{Z+4*q+3}], v{TA+2}, s[{S_WS}:{S_WS+3}], s{t2} offen offset:{(q>>1)*64 + (q&1)*16} sc1")
    g.e("s_mov_b64 exec, -1")
    g.lab("L_phiq")
    stamp(g, 4)
    regs = [ACCQ[mt] + r for mt in range(2) for r in range(0, 16, 2)]
    outs = [PQ + mt*8 + r//2 for mt in range(2) for r in range(0, 16, 2)]
    phi_pairs(g, regs, TMP, s_l2e, s_eps, outs)
    g.e(f"""
    s_lshl_b32 s{t0}, s{s_wave}, 12
    s_add_u32 s{t0}, s{t0}, {LPQ}
    v_add_u32 v{TA+1}, s{t0}, v{TA}
    """)
    for i in range(4):
        g.e(f"ds_write_b128 v{TA+1}, v[{PQ+4*i}:{PQ+4*i+3}] offset:{i*1024}")
    g.e(f"""
    s_cmp_lg_u32 s{s_wm}, 0
    s_cbranch_scc1 L_nof2
    s_lshl_b32 s{t0}, s{s_hp}, 7
    s_lshl_b32 s{t1}, s{s_rb}, 3
    s_add_u32 s{t0}, s{t0}, s{t1}
    s_lshl_b32 s{t1}, s{s_wn}, 2
    s_add_u32 s{t0}, s{t0}, s{t1}
    s_add_u32 s{t0}, s{t0}, {WS_F2}
    s_waitcnt vmcnt(0)
    """)
    post_flag(g, t0, TA+5, TA+6)
    g.lab("L_nof2")
    ACC = 0; S = [32, 96]; cA = list(range(160, 168)); cB = 168; T = 170
    g.e(f"""
    v_and_b32 v{T+5}, 15, v{l}
    v_lshrrev_b32 v{T+6}, 4, v{l}
    v_add_u32 v{T+7}, 1, v{T+5}
    v_and_b32 v{T+7}, -2, v{T+7}
    v_lshlrev_b32 v{T+7}, 1, v{T+7}
    v_lshl_add_u32 v{T+7}, v{T+6}, 4, v{T+7}
    v_and_b32 v{T+8}, 1, v{T+5}
    v_xor_b32 v{T+8}, 1, v{T+8}
    v_mul_u32_u24 v{T+8}, 4160, v{T+8}
    v_add_u32 v{T+7}, v{T+7}, v{T+8}
    s_mul_i32 s{t0}, s{s_wave}, {H_STRIDE}
    s_add_u32 s{t0}, s{t0}, {LH + 448}
    v_add_u32 v{cA[0]}, s{t0}, v{T+7}
    """)
    for a in range(1, 8):
        g.e(f"v_add_u32 v{cA[a]}, {512*a}, v{cA[0]}")
    g.e(f"""
    v_lshlrev_b32 v{cB}, 4, v{T+6}
    v_lshlrev_b32 v{T+7}, 5, v{T+5}
    v_sub_u32 v{cB}, v{cB}, v{T+7}
    s_mul_i32 s{t0}, s{s_wave}, {X_STRIDE}
    s_add_u32 s{t0}, s{t0}, {LX + 4512 - 3584}
    v_add_u32 v{cB}, s{t0}, v{cB}
    """)
    for r in range(32): g.e(f"v_mov_b32 v{ACC+r}, 0")
    if opt("wopf", "1") == "1":
        g.e(f"""
        v_lshlrev_b32 v{T+9}, 11, v{l}
        s_lshl_b32 s{t0}, s{s_rb}, 18
        s_lshl_b32 s{t1}, s{s_hp}, 7
        s_add_u32 s{t0}, s{t0}, s{t1}
        s_and_b32 s{t1}, s{s_wave}, 1
        s_lshl_b32 s{t1}, s{t1}, 17
        s_add_u32 s{t0}, s{t0}, s{t1}
        s_cmp_lt_u32 s{s_wave}, 2
        s_cbranch_scc0 L_noqpf
        buffer_load_dword v{vJ}, v{T+9}, s[{S_Q}:{S_Q+3}], s{t0} offen
        """)
        g.lab("L_noqpf")
    wo_dma_setup(g, vWO, T+9)
    g.e("s_waitcnt lgkmcnt(0)")
    stamp(g, 5)
    g.e("s_barrier")
    stamp(g, 6)
    g.e("s_setprio 1")
    def creads(sb):
        R = []
        for x in range(8):
            d = sb + 4*x
            R.append(f"ds_read2_b32 v[{d}:{d+1}], v{cA[x]} offset0:0 offset1:1")
            R.append(f"ds_read2_b32 v[{d+2}:{d+3}], v{cA[x]} offset0:2 offset1:3")
            d = sb + 32 + 4*x
            R.append(f"ds_read_b128 v[{d}:{d+3}], v{cB} offset:{512*(7-x)}")
        return R
    def adv():
        for a in range(8): g.e(f"v_subrev_u32 v{cA[a]}, 64, v{cA[a]}")
        g.e(f"v_subrev_u32 v{cB}, 64, v{cB}")
    def cm(sb):
        pairs = [(a, w) for a in range(8) for w in range(8) if a + w <= 7]
        pairs.sort(key=lambda p: (max(p), p[0]))
        M = []
        for a, w in pairs:
            A = sb + 4*a; B = sb + 32 + 4*w; D = ACC + 4*(a + w)
            M.append(f"v_mfma_f32_16x16x32_bf16 v[{D}:{D+3}], v[{A}:{A+3}], v[{B}:{B+3}], v[{D}:{D+3}]")
        return M
    R = creads(S[0])
    for i, asm in enumerate(R):
        g.e(asm)
        if i == 11: g.e("s_waitcnt lgkmcnt(4)")
        if i == 19: g.e("s_waitcnt lgkmcnt(4)")
    adv()
    g.e(f"s_mov_b32 s{s_it}, 4")
    g.lab("L_cloop")
    for half in range(2):
        cur, nxt = S[half], S[1-half]
        g.e("s_waitcnt lgkmcnt(0)")
        M = cm(cur); R = creads(nxt)
        ri = 0
        for mi, asm in enumerate(M):
            g.e(asm)
            if mi < 32 and ri < 24 and (mi % 4 != 3):
                g.e(R[ri]); ri += 1
            if mi == 33: adv()
        assert ri == 24
    g.e(f"s_sub_u32 s{s_it}, s{s_it}, 1")
    g.e(f"s_cmp_lg_u32 s{s_it}, 0")
    g.e(f"s_cbranch_scc1 L_cloop")
    g.e("s_waitcnt lgkmcnt(0)")
    lds_set(g, F_CF, s_wave, T+5, T+6)
    g.e("s_nop 3")
    stamp(g, 7)
    g.e(f"""
    v_and_b32 v{T+5}, 15, v{l}
    v_lshrrev_b32 v{T+6}, 4, v{l}
    v_lshlrev_b32 v{T+5}, 5, v{T+5}
    v_and_b32 v{T+7}, 1, v{T+6}
    v_lshl_add_u32 v{T+5}, v{T+7}, 9, v{T+5}
    v_lshrrev_b32 v{T+6}, 1, v{T+6}
    v_lshl_add_u32 v{T+5}, v{T+6}, 4, v{T+5}
    s_lshl_b32 s{t0}, s{s_hp}, 6
    s_lshl_b32 s{t1}, s{s_rb}, 2
    s_add_u32 s{t0}, s{t0}, s{t1}
    s_add_u32 s{t0}, s{t0}, s{s_wave}
    s_lshl_b32 s{t0}, s{t0}, 12
    s_add_u32 s{t0}, s{t0}, {WS_YT}
    """)
    for cb in range(8):
        d = 32 + 2*cb
        g.e(f"v_cvt_pk_bf16_f32 v{d}, v{ACC+4*cb}, v{ACC+4*cb+1}")
        g.e(f"v_cvt_pk_bf16_f32 v{d+1}, v{ACC+4*cb+2}, v{ACC+4*cb+3}")
    g.e("s_nop 1")
    for cp in range(4):
        d = 32 + 4*cp
        g.e(f"v_permlane16_swap_b32 v{d}, v{d+2}")
        g.e(f"v_permlane16_swap_b32 v{d+1}, v{d+3}")
    g.e("s_nop 1")
    for cp in range(4):
        d = 32 + 4*cp
        g.e(f"buffer_store_dwordx4 v[{d}:{d+3}], v{T+5}, s[{S_WS}:{S_WS+3}], s{t0} offen offset:{1024*cp} sc1")
    ACC2 = [0, 16]; AR = 64; RING = int(opt("g2ring", 32)); PRE2 = int(opt("g2pre", 14))
    BF = [32, 40, 48, 56]
    vAo = [200, 201, 202, 203]; vBn = [204, 205]; T = 208
    s_ab, s_r, s_g = 64, 65, 66
    s_wl, s_wg = 67, 68
    g.e(f"""
    v_and_b32 v{vAo[0]}, 31, v{l}
    v_lshlrev_b32 v{T}, 2, v{vAo[0]}
    v_lshlrev_b32 v{vAo[0]}, 4, v{vAo[0]}
    v_lshrrev_b32 v{T+1}, 5, v{l}
    v_lshl_add_u32 v{vAo[0]}, v{T+1}, 11, v{vAo[0]}
    v_add_u32 v{vAo[1]}, 4096, v{vAo[0]}
    v_add_u32 v{vAo[2]}, 8192, v{vAo[0]}
    v_add_u32 v{vAo[3]}, 12288, v{vAo[0]}
    s_lshl_b32 s{s_ab}, s{s_rb2}, 18
    s_lshl_b32 s{t1}, s{s_wave}, 9
    s_add_u32 s{s_ab}, s{s_ab}, s{t1}
    s_add_u32 s{s_ab}, s{s_ab}, {WS_O}
    s_lshl_b32 s{s_r}, s{s_cb2}, 2
    """)
    if opt("g2rot", "0") != "1": g.e(f"s_mov_b32 s{s_r}, 0")
    TB = T + 4
    g.e(f"""
    v_lshrrev_b32 v{TB}, 5, v{l}
    v_lshlrev_b32 v{TB}, 2, v{TB}
    v_and_b32 v{TB+1}, 15, v{l}
    v_lshrrev_b32 v{TB+1}, 2, v{TB+1}
    v_add_u32 v{TB}, v{TB}, v{TB+1}
    v_lshlrev_b32 v{TB}, 7, v{TB}
    v_lshrrev_b32 v{TB+1}, 4, v{l}
    v_and_b32 v{TB+1}, 1, v{TB+1}
    v_lshlrev_b32 v{TB+1}, 1, v{TB+1}
    v_and_b32 v{TB+2}, 3, v{l}
    v_lshrrev_b32 v{TB+2}, 1, v{TB+2}
    v_add_u32 v{TB+1}, v{TB+1}, v{TB+2}
    v_lshrrev_b32 v{TB+2}, 3, v{l}
    v_and_b32 v{TB+2}, 1, v{TB+2}
    v_lshlrev_b32 v{TB+2}, 2, v{TB+2}
    v_xor_b32 v{TB+1}, v{TB+1}, v{TB+2}
    v_and_b32 v{TB+3}, 1, v{l}
    v_lshl_add_u32 v{TB}, v{TB+3}, 3, v{TB}
    s_lshl_b32 s{t0}, s{s_r}, 11
    v_add_u32 v{TB}, s{t0}, v{TB}
    v_lshl_add_u32 v{vBn[0]}, v{TB+1}, 4, v{TB}
    v_xor_b32 v{TB+1}, 4, v{TB+1}
    v_lshl_add_u32 v{vBn[1]}, v{TB+1}, 4, v{TB}
    s_lshl_b32 s{t0}, s{s_hp}, 8
    s_lshl_b32 s{t1}, s{s_rb}, 4
    s_add_u32 s{t0}, s{t0}, s{t1}
    s_lshl_b32 s{t1}, s{s_wave}, 2
    s_add_u32 s{t0}, s{t0}, s{t1}
    s_add_u32 s{t5}, s{t0}, {WS_F4}
    """)
    W23 = opt("wo23", "g2")
    if W23 == "pre":
        lds_spin(g, F_PF, 7, T+2, T+3, "cf")
        g.e(f"s_lshl_b32 s{t3}, s{s_wave}, 7")
        g.e(f"s_add_u32 s{t3}, s{t3}, 512")
        wo_dma(g, vWO, t3, 4, "wo23")
    g.e(f"s_waitcnt vmcnt({16 if W23 == 'pre' else 0})")
    post_flag(g, t5, T+2, T+3)
    if W23 != "pre":
        lds_spin(g, F_PF, 7, T+2, T+3, "cf")
        g.e(f"""
        s_lshl_b32 s{s_wl}, s{s_wave}, 14
        s_add_u32 s{s_wl}, s{s_wl}, 65536
        s_lshl_b32 s{s_wg}, s{s_wl}, 4
        """)
    stamp(g, 9)
    lds_spin(g, F_W1, 3, T+2, T+3, "w1")
    g.e(f"""
    s_lshl_b32 s{t1}, s{s_rb2}, 1
    s_lshr_b32 s{t2}, s{s_wave}, 1
    s_add_u32 s{t1}, s{t1}, s{t2}
    s_lshl_b32 s{t1}, s{t1}, 7
    s_add_u32 s{t1}, s{t1}, {WS_F3}
    """)
    def breads(setb, t16):
        R = []
        for nt in range(2):
            for q in range(2):
                d = setb + 4*nt + 2*q
                R.append(f"ds_read_b64_tr_b16 v[{d}:{d+1}], v{vBn[nt]} offset:{2048*t16 + 1024*q}")
        return R
    BD = int(opt("g2bd", 2))
    assert PRE2 < RING and BD <= 3
    for u in range(BD):
        for x in breads(BF[u], u): g.e(x)
    poll(g, T, T+1, t1, "pf3")
    stamp(g, 8)
    if W23 == "pre":
        g.e("s_waitcnt lgkmcnt(0)")
        lds_set(g, F_WF, s_wave, T+2, T+3)
    g.vm_reset()
    aidx = {}
    def aload(n):
        if n % 4 == 0:
            g.e(f"s_add_u32 s{s_g}, s{s_r}, {n}")
            g.e(f"s_and_b32 s{s_g}, s{s_g}, 63")
            g.e(f"s_lshl_b32 s{s_g}, s{s_g}, 12")
            g.e(f"s_add_u32 s{s_g}, s{s_g}, s{s_ab}")
        d = AR + 4*(n % RING)
        aidx[n] = g.vm(f"buffer_load_dwordx4 v[{d}:{d+3}], v{vAo[n % 4]}, s[{S_WS}:{S_WS+3}], s{s_g} offen{lsc('a')}")
    def wpiece(i):
        blk, m = i // 4, i % 4
        if m == 0:
            g.e(f"s_add_u32 m0, s{s_wl}, {blk*4096}")
            g.e(f"s_add_u32 s{t1}, s{s_wg}, {blk*32*2048}")
        return g.vm(f"buffer_load_dwordx4 v{vWO+m}, s[{S_WO}:{S_WO+3}], s{t1} offen offset:{m*1024}{ntf('wo')} lds")
    W0 = int(opt("w23at", 0)); WPS = int(opt("w23ps", 2))
    wsched = {}
    if W23 != "pre":
        for i in range(16): wsched.setdefault(W0 + i // WPS, []).append(i)
    wlast = None; wflag_done = (W23 == "pre")
    for n in range(PRE2): aload(n)
    g.e("s_setprio 3")
    for t in range(64):
        cur = BF[t % 4]
        A = AR + 4*(t % RING)
        rd_out = min(64, t + BD) - (t + 1)
        g.vm_wait(aidx[t])
        g.e(f"s_waitcnt lgkmcnt({4*rd_out})")
        if not wflag_done and wlast is not None and g.vmdone > wlast and max(wsched) < t:
            lds_set(g, F_WF, s_wave, T+2, T+3); wflag_done = True
            assert t < 32 - BD
        tn = t + BD
        if tn == 32:
            assert wflag_done
            lds_spin(g, F_WF, 3, T+2, T+3, "wf")
        if tn < 64 and tn % 4 == 0:
            g.e(f"s_cmp_eq_u32 s{s_r}, {64 - tn}")
            g.e(f"s_cselect_b32 s{t0}, 0xfffe0000, 0")
            if tn == 32: g.e(f"s_add_u32 s{t0}, s{t0}, 0x10000")
            g.e(f"v_add_u32 v{vBn[0]}, s{t0}, v{vBn[0]}")
            g.e(f"v_add_u32 v{vBn[1]}, s{t0}, v{vBn[1]}")
        R = breads(BF[tn % 4], tn & 31) if tn < 64 else ["", "", "", ""]
        c0 = "0" if t == 0 else f"v[{ACC2[0]}:{ACC2[0]+15}]"
        c1 = "0" if t == 0 else f"v[{ACC2[1]}:{ACC2[1]+15}]"
        g.e(f"v_mfma_f32_32x32x16_bf16 v[{ACC2[0]}:{ACC2[0]+15}], v[{cur}:{cur+3}], v[{A}:{A+3}], {c0}")
        g.e(R[0]); g.e(R[1])
        if PRE2 + t < 64: aload(PRE2 + t)
        g.e(f"v_mfma_f32_32x32x16_bf16 v[{ACC2[1]}:{ACC2[1]+15}], v[{cur+4}:{cur+7}], v[{A}:{A+3}], {c1}")
        g.e(R[2]); g.e(R[3])
        for i in wsched.get(t, []): wlast = wpiece(i)
    g.e("s_waitcnt vmcnt(0) lgkmcnt(0)")
    g.e("s_nop 7")
    g.e("s_nop 3")
    stamp(g, 10)
    O = 32
    for nt in range(2):
        for r in range(0, 16, 2):
            g.e(f"v_cvt_pk_bf16_f32 v{O + nt*8 + r//2}, v{ACC2[nt]+r}, v{ACC2[nt]+r+1}")
    g.e("s_nop 1")
    for nt in range(2):
        for p in range(2):
            x = O + nt*8 + 4*p
            g.e(f"v_permlane32_swap_b32 v{x}, v{x+2}")
            g.e(f"v_permlane32_swap_b32 v{x+1}, v{x+3}")
    g.e(f"""
    v_and_b32 v{T}, 31, v{l}
    s_lshl_b32 s{t0}, s{s_rb2}, 7
    s_lshl_b32 s{t1}, s{s_wave}, 5
    s_add_u32 s{t0}, s{t0}, s{t1}
    v_add_u32 v{T}, s{t0}, v{T}
    v_lshlrev_b32 v{T}, 12, v{T}
    v_lshrrev_b32 v{T+1}, 5, v{l}
    v_lshl_add_u32 v{T}, v{T+1}, 4, v{T}
    s_lshl_b32 s{t0}, s{s_cb2}, 7
    s_add_u32 s{t0}, s{t0}, 2048
    """)
    for nt_ in range(2):
        for p in range(2):
            x = O + nt_*8 + 4*p
            g.e(f"buffer_store_dwordx4 v[{x}:{x+3}], v{T}, s[{S_OUT}:{S_OUT+3}], s{t0} offen offset:{nt_*64 + p*32}{ntf('out')}")
    g.e(f"""
    s_or_b32 s{t0}, s2, s{s_wave}
    s_cmp_lg_u32 s{t0}, 0
    s_cbranch_scc1 L_noep
    s_mov_b32 s{t0}, {WS_EPOCH}
    """)
    post_flag(g, t0, T+2, T+3)
    g.lab("L_noep")
    g.e("s_waitcnt vmcnt(0)")
    flush_stamps(g)
    g.e("s_endpgm")

def gen_helper(g):
    g.lab("L_helper")
    l = vL
    s_hw = 69
    T = 2
    g.e(f"""
    s_setprio 3
    s_sub_u32 s{s_hw}, s{s_wave}, 4
    s_lshr_b32 s{s_wm}, s{s_hw}, 1
    s_and_b32 s{s_wn}, s{s_hw}, 1
    v_and_b32 v{T}, 31, v{l}
    v_lshlrev_b32 v{T}, 2, v{T}
    s_lshl_b32 s{t1}, s{s_hp}, 7
    s_add_u32 s{t1}, s{t1}, {WS_F2}
    v_lshlrev_b32 v{T+2}, 4, v{l}
    v_and_b32 v{T+3}, 15, v{l}
    v_lshlrev_b32 v{T+3}, 2, v{T+3}
    v_lshrrev_b32 v{T+4}, 4, v{l}
    v_mul_u32_u24 v{T+4}, {KVP_STRIDE}, v{T+4}
    v_add_u32 v{T+3}, v{T+3}, v{T+4}
    s_lshl_b32 s{t2}, s{s_hp}, 4
    s_mul_i32 s{t2}, s{t2}, {KVP_STRIDE}
    s_add_u32 s{t2}, s{t2}, {WS_KVP}
    s_lshl_b32 s{t3}, s{s_hw}, 10
    s_add_u32 s{t3}, s{t3}, s{t2}
    s_lshl_b32 s{t4}, s{s_hw}, 6
    s_add_u32 s{t4}, s{t4}, s{t2}
    s_add_u32 s{t4}, s{t4}, 4096
    """)
    WO1 = opt("wo01", "post")
    if WO1 in ("x2", "x1"):
        nb = 4 if WO1 == "x2" else 2
        g.e(f"s_lshl_b32 s{t5}, s{s_hw}, 7")
        if WO1 == "x1": g.e(f"s_add_u32 s{t5}, s{t5}, 64")
        wo_dma(g, vWO, t5, nb, "wo01")
        g.e(f"""
        s_lshl_b32 s{t1}, s{s_hp}, 7
        s_add_u32 s{t1}, s{t1}, {WS_F2}
        s_lshl_b32 s{t2}, s{s_hp}, 4
        s_mul_i32 s{t2}, s{t2}, {KVP_STRIDE}
        s_add_u32 s{t2}, s{t2}, {WS_KVP}
        """)
    stamp(g, 8)
    poll(g, T, T+1, t1, "pf2")
    stamp(g, 9)
    if WO1 in ("x2", "x1"): lds_set(g, F_W1, s_hw, T+5, T+6)
    PB = 32; ZB = 160
    PROT = opt("prot", "1") == "1"
    s_pi, s_po = 64, 65
    if PROT:
        g.e(f"""
        s_and_b32 s{s_pi}, s{s_rb}, 7
        s_lshl_b32 s{s_pi}, s{s_pi}, 1
        """)
    else:
        g.e(f"s_mov_b32 s{s_pi}, 0")
    for r in range(16):
        d = PB + 4*r
        g.e(f"s_mul_i32 s{s_po}, s{s_pi}, {KVP_STRIDE}")
        g.e(f"s_add_u32 s{t0}, s{t3}, s{s_po}")
        g.e(f"buffer_load_dwordx4 v[{d}:{d+3}], v{T+2}, s[{S_WS}:{S_WS+3}], s{t0} offen{lsc('p')}")
        if r == 0:
            for u in range(4):
                g.e(f"s_add_u32 s{t1}, s{t4}, {4*u*KVP_STRIDE}")
                g.e(f"buffer_load_dword v{ZB+u}, v{T+3}, s[{S_WS}:{S_WS+3}], s{t1} offen{lsc('p')}")
        if r < 15:
            g.e(f"s_add_u32 s{s_pi}, s{s_pi}, 1")
            g.e(f"s_and_b32 s{s_pi}, s{s_pi}, 15")
    PQ = 200
    g.e(f"""
    s_lshl_b32 s{t0}, s{s_hw}, 12
    s_add_u32 s{t0}, s{t0}, {LPQ}
    v_add_u32 v{T+5}, s{t0}, v{T+2}
    """)
    for i in range(4):
        g.e(f"ds_read_b128 v[{PQ+4*i}:{PQ+4*i+3}], v{T+5} offset:{i*1024}")
    g.e("s_waitcnt lgkmcnt(0)")
    lds_set(g, F_PF, s_hw, T+6, T+7)
    stamp(g, 48)
    SA, UT = 96, 104
    for r in range(16):
        g.e(f"s_waitcnt vmcnt({15-r if r else 19})")
        if r in (0, 8, 15): stamp(g, 49 + (r + 1)//8)
        d = PB + 4*r
        for u in range(4):
            o = SA + 2*u if r == 0 else UT + 2*((4*r + u) % 4)
            g.e(f"v_lshlrev_b32 v{o}, 16, v{d+u}")
            g.e(f"v_and_b32 v{o+1}, 0xffff0000, v{d+u}")
        if r > 0:
            for u in range(4):
                o = UT + 2*((4*r + u) % 4)
                g.e(f"v_pk_add_f32 v[{SA+2*u}:{SA+2*u+1}], v[{SA+2*u}:{SA+2*u+1}], v[{o}:{o+1}]")
        if r == 1:
            g.e(f"v_add_f32 v{ZB}, v{ZB}, v{ZB+1}")
            g.e(f"v_add_f32 v{ZB+2}, v{ZB+2}, v{ZB+3}")
            g.e(f"v_add_f32 v{ZB}, v{ZB}, v{ZB+2}")
            g.e(f"v_mov_b32 v{ZB+1}, v{ZB}")
            g.e("s_nop 1")
            g.e(f"v_permlane32_swap_b32 v{ZB}, v{ZB+1}")
            g.e("s_nop 1")
            g.e(f"v_add_f32 v{ZB}, v{ZB}, v{ZB+1}")
            g.e(f"v_mov_b32 v{ZB+1}, v{ZB}")
            g.e("s_nop 1")
            g.e(f"v_permlane16_swap_b32 v{ZB}, v{ZB+1}")
            g.e("s_nop 1")
            g.e(f"v_add_f32 v{ZB}, v{ZB}, v{ZB+1}")
    KX = 180
    for u in range(0, 8, 2):
        g.e(f"v_cvt_pk_bf16_f32 v{KX+u//2}, v{SA+u}, v{SA+u+1}")
    g.e(f"v_cvt_pk_bf16_f32 v{ZB}, v{ZB}, v{ZB}")
    g.e(f"""
    s_lshl_b32 s{t0}, s{s_hw}, 10
    s_add_u32 s{t0}, s{t0}, {LKVX}
    v_add_u32 v{T+5}, s{t0}, v{T+2}
    ds_write_b128 v{T+5}, v[{KX}:{KX+3}]
    s_lshl_b32 s{t0}, s{s_hw}, 5
    s_add_u32 s{t0}, s{t0}, {LZX}
    v_lshlrev_b32 v{T+6}, 1, v{l}
    v_add_u32 v{T+6}, s{t0}, v{T+6}
    s_mov_b64 exec, 0xffff
    ds_write_b16 v{T+6}, v{ZB}
    s_mov_b64 exec, 1
    s_lshl_b32 s{t0}, s{s_hw}, 2
    s_add_u32 s{t0}, s{t0}, {LFLAG}
    v_mov_b32 v{T+6}, s{t0}
    v_mov_b32 v{T+7}, s{s_tag}
    s_waitcnt lgkmcnt(0)
    ds_write_b32 v{T+6}, v{T+7}
    s_mov_b64 exec, -1
    v_mov_b32 v{T+6}, {LFLAG}
    v_and_b32 v{T+7}, 3, v{l}
    v_lshl_add_u32 v{T+6}, v{T+7}, 2, v{T+6}
    s_mov_b32 s{t7}, {MAXSPIN*8}
    """)
    g.lab("L_hsync")
    g.e(f"""
    ds_read_b32 v{T+7}, v{T+6}
    s_waitcnt lgkmcnt(0)
    v_cmp_ne_u32 vcc, s{s_tag}, v{T+7}
    s_cbranch_vccz L_hsyncd
    s_sub_u32 s{t7}, s{t7}, 1
    s_cbranch_scc0 L_hsync
    """)
    g.lab("L_hsyncd")
    stamp(g, 10)
    KF = 184; ZF = 192
    g.e(f"""
    s_lshl_b32 s{t0}, s{s_wn}, 11
    s_add_u32 s{t0}, s{t0}, {LKVX}
    v_add_u32 v{T+5}, s{t0}, v{T+2}
    ds_read_b128 v[{KF}:{KF+3}], v{T+5}
    ds_read_b128 v[{KF+4}:{KF+7}], v{T+5} offset:1024
    s_lshl_b32 s{t0}, s{s_wn}, 6
    s_add_u32 s{t0}, s{t0}, {LZX}
    v_lshrrev_b32 v{T+6}, 5, v{l}
    v_lshlrev_b32 v{T+6}, 4, v{T+6}
    v_add_u32 v{T+6}, s{t0}, v{T+6}
    ds_read_b128 v[{ZF}:{ZF+3}], v{T+6}
    ds_read_b128 v[{ZF+4}:{ZF+7}], v{T+6} offset:32
    s_waitcnt lgkmcnt(0)
    """)
    NUM = [48, 64]; DEN = [80, 96]
    for mt in range(2):
        for q2 in range(2):
            a = KF + 4*q2; z = ZF + 4*q2; b = PQ + mt*8 + q2*4
            c = "0" if q2 == 0 else f"v[{NUM[mt]}:{NUM[mt]+15}]"
            g.e(f"v_mfma_f32_32x32x16_bf16 v[{NUM[mt]}:{NUM[mt]+15}], v[{a}:{a+3}], v[{b}:{b+3}], {c}")
            c = "0" if q2 == 0 else f"v[{DEN[mt]}:{DEN[mt]+15}]"
            g.e(f"v_mfma_f32_32x32x16_bf16 v[{DEN[mt]}:{DEN[mt]+15}], v[{z}:{z+3}], v[{b}:{b+3}], {c}")
    g.e(f"""
    s_lshl_b32 s{t2}, s{s_rb}, 18
    s_lshl_b32 s{t0}, s{s_hp}, 1
    s_add_u32 s{t0}, s{t0}, s{s_wn}
    s_lshl_b32 s{t0}, s{t0}, 13
    s_add_u32 s{t2}, s{t2}, s{t0}
    s_lshl_b32 s{t0}, s{s_wm}, 10
    s_add_u32 s{t2}, s{t2}, s{t0}
    s_add_u32 s{t2}, s{t2}, {WS_O}
    v_and_b32 v{T+5}, 31, v{l}
    v_lshlrev_b32 v{T+5}, 4, v{T+5}
    v_lshrrev_b32 v{T+6}, 5, v{l}
    v_lshl_add_u32 v{T+5}, v{T+6}, 11, v{T+5}
    s_mov_b32 s{t3}, {EPS}
    s_nop 7
    """)
    for mt in range(2):
        g.e(f"v_add_f32 v{DEN[mt]}, s{t3}, v{DEN[mt]}")
    for mt in range(2):
        g.e(f"v_rcp_f32 v{DEN[mt]}, v{DEN[mt]}")
    g.e("s_nop 1")
    OUT = 112
    for mt in range(2):
        for r in range(0, 16, 2):
            g.e(f"v_mul_f32 v{NUM[mt]+r}, v{NUM[mt]+r}, v{DEN[mt]}")
            g.e(f"v_mul_f32 v{NUM[mt]+r+1}, v{NUM[mt]+r+1}, v{DEN[mt]}")
            g.e(f"v_cvt_pk_bf16_f32 v{OUT + mt*8 + r//2}, v{NUM[mt]+r}, v{NUM[mt]+r+1}")
        for q2 in range(2):
            d = OUT + mt*8 + q2*4
            g.e(f"s_add_u32 s{t0}, s{t2}, {q2*4096 + mt*512}")
            g.e(f"buffer_store_dwordx4 v[{d}:{d+3}], v{T+5}, s[{S_WS}:{S_WS+3}], s{t0} offen sc1")
    g.e(f"""
    s_lshl_b32 s{t0}, s{s_rb}, 1
    s_add_u32 s{t0}, s{t0}, s{s_wm}
    s_lshl_b32 s{t0}, s{t0}, 7
    s_lshl_b32 s{t1}, s{s_hp}, 3
    s_add_u32 s{t0}, s{t0}, s{t1}
    s_lshl_b32 s{t1}, s{s_wn}, 2
    s_add_u32 s{t0}, s{t0}, s{t1}
    s_add_u32 s{t4}, s{t0}, {WS_F3}
    s_lshl_b32 s{t3}, s{s_hw}, 7
    """)
    if WO1 in ("x2", "x1"):
        g.e("s_waitcnt vmcnt(0)")
        post_flag(g, t4, T+6, T+7)
        stamp(g, 11)
    elif opt("wo01", "post") == "mid":
        wo_dma(g, vWO, t3, 4, "wo01")
        g.e("s_waitcnt vmcnt(16)")
        post_flag(g, t4, T+6, T+7)
        stamp(g, 11)
        g.e("s_waitcnt vmcnt(1)")
    else:
        g.e("s_waitcnt vmcnt(0)")
        post_flag(g, t4, T+6, T+7)
        stamp(g, 11)
        wo_dma(g, vWO, t3, 4, "wo01")
    Y = 32; Q = 64; F = 96; OUT = 112
    g.e(f"""
    v_and_b32 v{T}, 7, v{l}
    v_lshrrev_b32 v{T+1}, 3, v{l}
    s_lshl_b32 s{t0}, s{s_hw}, 3
    v_add_u32 v{T+1}, s{t0}, v{T+1}
    v_lshlrev_b32 v{T+1}, 2, v{T+1}
    s_lshl_b32 s{t0}, s{s_rb}, 7
    v_add_u32 v{T+1}, s{t0}, v{T+1}
    v_lshlrev_b32 v{T+2}, 3, v{T}
    s_lshl_b32 s{t0}, s{s_hp}, 6
    v_add_u32 v{T+2}, s{t0}, v{T+2}
    v_lshlrev_b32 v{T+3}, 12, v{T+2}
    v_lshl_add_u32 v{T+3}, v{T+1}, 1, v{T+3}
    v_lshlrev_b32 v{T+4}, 11, v{T+1}
    v_lshl_add_u32 v{T+4}, v{T+2}, 1, v{T+4}
    v_lshlrev_b32 v{T+5}, 12, v{T+1}
    v_lshl_add_u32 v{T+5}, v{T+2}, 1, v{T+5}
    s_mov_b32 s{t1}, 4096
    """)
    for i in range(4):
        so = "0" if i < 2 else f"s{t1}"
        g.e(f"buffer_load_dwordx4 v[{Q+4*i}:{Q+4*i+3}], v{T+4}, s[{S_Q}:{S_Q+3}], {so} offen offset:{(i&1)*2048}{ntf('q')}")
    if WO1 not in ("x2", "x1"):
        g.e("s_waitcnt vmcnt(4)")
        lds_set(g, F_W1, s_hw, T+6, T+7)
    stamp(g, 12)
    g.e(f"""
    v_lshlrev_b32 v{T}, 2, v{l}
    s_lshl_b32 s{t1}, s{s_hp}, 8
    s_add_u32 s{t1}, s{t1}, {WS_F4}
    s_setprio 0
    """)
    poll(g, T, T+6, t1, "pf4")
    stamp(g, 13)
    for j in range(8):
        g.e(f"s_mov_b32 s{t0}, {WS_YT + j*4096}")
        g.e(f"buffer_load_dwordx2 v[{Y+2*j}:{Y+2*j+1}], v{T+3}, s[{S_WS}:{S_WS+3}], s{t0} offen{lsc('y')}")
    g.e("s_waitcnt vmcnt(0)")
    for i in range(4):
        for m in range(4):
            a, b, c, d = F + 4*(m & 1), F+1 + 4*(m & 1), F+2 + 4*(m & 1), F+3 + 4*(m & 1)
            qd = Q + 4*i + m
            y0 = Y + 2*(2*m) + i//2; y1 = Y + 2*(2*m+1) + i//2
            g.e(f"v_lshlrev_b32 v{a}, 16, v{qd}")
            g.e(f"v_and_b32 v{b}, 0xffff0000, v{qd}")
            if i % 2 == 0:
                g.e(f"v_lshlrev_b32 v{c}, 16, v{y0}")
                g.e(f"v_lshlrev_b32 v{d}, 16, v{y1}")
            else:
                g.e(f"v_and_b32 v{c}, 0xffff0000, v{y0}")
                g.e(f"v_and_b32 v{d}, 0xffff0000, v{y1}")
            g.e(f"v_pk_mul_f32 v[{a}:{b}], v[{a}:{b}], v[{c}:{d}]")
            g.e(f"v_cvt_pk_bf16_f32 v{OUT+4*i+m}, v{a}, v{b}")
        g.e(f"s_mov_b32 s{t0}, {i*4096}")
        g.e(f"buffer_store_dwordx4 v[{OUT+4*i}:{OUT+4*i+3}], v{T+5}, s[{S_OUT}:{S_OUT+3}], s{t0} offen{ntf('out')}")
    g.e("s_waitcnt vmcnt(0)")
    flush_stamps(g)
    g.lab("L_end")
    g.e("s_endpgm")

HDR = open("concat_heads__ssm_conv_h3__linear_attn_block__prompt.s.ref").read().split("; Override")[0]
def full():
    g = G()
    g.L.append(khead(NAME))
    gen_entry(g)
    gen_hyb(g)
    gen_compute(g)
    gen_helper(g)
    s = HDR
    s += f"; @launch grid=(256,1,1) block=(512,1,1) lds={LDS_TOTAL}\n"
    s += '.amdgcn_target "amdgcn-amd-amdhsa--gfx950"\n.text\n'
    s += g.text() + kdesc(NAME, 256)
    return s
if __name__ == "__main__":
    if "--prof" in sys.argv:
        PROF = True; sys.argv.remove("--prof")
    for a in list(sys.argv):
        if a.startswith("--opt="):
            for kv in a[6:].split(","):
                k, v = kv.split("="); OPT[k] = v
            sys.argv.remove(a)
    for a in list(sys.argv):
        if a.startswith("--nt="):
            NT = set(a[5:].split(",")); sys.argv.remove(a)
    out = sys.argv[1] if len(sys.argv) > 1 else "v7.s"
    open(out, "w").write(full())
    print("wrote", out)
```

```python
import sys
from dsl import *
NAME = "concat_heads__ssm_conv_h3__linear_attn_block__prompt_kernel"
WS_EPOCH = 0x0
WS_F1 = 0x1000
WS_F2 = 0x2000
WS_F3 = 0x3000
WS_F4 = 0x4000
WS_XR = 0x10000
WS_YT = 0x410000
WS_O  = 0x810000
WS_KVP = 0xC10000
KVP_STRIDE = 4352
WS_SIZE = 0x1000000
LA, LB = 0, 49152
LH = 122880; H_STRIDE = 8320
LX = 73728; X_STRIDE = 4576
LPQ = 92160
LRED = 108544
LKVX = 156160
LZX = 160256
LFLAG = 160512
F_HS, F_X1, F_HF, F_PF, F_CF, F_WF, F_QF, F_W1 = 0, 16, 32, 48, 64, 80, 96, 112
LDS_TOTAL = 163840
LOG2E = 0x3fb8aa3b
EPS   = 0x358637bd
NB_SD = 2048*1024*2
MAXSPIN = int(__import__("os").environ.get("MAXSPIN", 20000))

PROF = False
OPT = {}
NT = set(["kv", "h"])
def lsc(k): return '' if k in opt('pl', '').split('+') else ' sc1'
def ntf(k): return ' nt' if k in NT else ''
PROF_OFF = 0x8000000
def opt(k, d=None): return OPT.get(k, d)

S_X, S_W, S_WS, S_K, S_V, S_SK, S_H, S_D, S_WO, S_OUT, S_Q = 4, 8, 12, 16, 20, 24, 28, 32, 36, 40, 44
s_rb, s_hp, s_wave, s_tag, s_wm, s_wn, s_rb2, s_cb2 = 48, 49, 50, 51, 52, 53, 54, 55
t0, t1, t2, t3, t4, t5, t6, t7 = 56, 57, 58, 59, 60, 61, 62, 63
S_PF = 92
vL = 250
vJ = 251
vWO = 244

vST = 249
def stamp(g, k, sreg=None):
    if not PROF: return
    g.e(f"s_memrealtime s[88:89]")
    if sreg is not None: g.e(f"s_add_u32 m0, s{sreg}, {k}")
    g.e("s_waitcnt lgkmcnt(0)")
    g.e(f"v_writelane_b32 v{vST}, s88, {k if sreg is None else 'm0'}")
def stampc(g, k):
    if not PROF: return
    g.e(f"s_memtime s[88:89]")
    g.e("s_waitcnt lgkmcnt(0)")
    g.e(f"v_writelane_b32 v{vST}, s88, {k}")
def init_stamps(g):
    if not PROF: return
    g.e(f"v_mov_b32 v{vST}, 0")
def flush_stamps(g, cls):
    if not PROF: return
    stamp(g, 15)
    g.e(f"""
    s_load_dwordx2 s[64:65], s[0:1], 88
    s_mov_b32 s66, 0x10000000
    s_mov_b32 s67, 0x20000
    s_lshl_b32 s68, s2, 3
    s_add_u32 s68, s68, s{s_wave}
    s_lshl_b32 s68, s68, 8
    s_add_u32 s68, s68, {PROF_OFF}
    v_lshlrev_b32 v2, 2, v{vL}
    s_waitcnt lgkmcnt(0)
    buffer_store_dword v{vST}, v2, s[64:67], s68 offen
    s_waitcnt vmcnt(0)
    """)
    if opt("amp"):
        a, b, mult, cl_, wg = opt("amp").split(".")
        if cl_ == cls:
            lab = g.newlabel("amp"); done = g.newlabel("ampd")
            g.e(f"""
            s_cmp_lg_u32 s2, {wg}
            s_cbranch_scc1 {done}
            v_readlane_b32 s64, v{vST}, {a}
            v_readlane_b32 s65, v{vST}, {b}
            v_readlane_b32 s66, v{vST}, 15
            s_nop 1
            s_sub_u32 s64, s65, s64
            s_mul_i32 s64, s64, {mult}
            s_min_u32 s64, s64, 30000
            """)
            g.lab(lab)
            g.e(f"""
            s_memrealtime s[88:89]
            s_waitcnt lgkmcnt(0)
            s_sub_u32 s65, s88, s66
            s_cmp_lt_u32 s65, s64
            s_cbranch_scc1 {lab}
            """)
            g.lab(done)

def srd_load(g, base, koff):
    g.e(f"s_load_dwordx2 s[{base}:{base+1}], s[0:1], {koff}")
def srd_const(g, base, nbytes):
    g.e(f"s_mov_b32 s{base+2}, {nbytes}")
    g.e(f"s_mov_b32 s{base+3}, 0x20000")
SRD_INFO = {S_X: (48, NB_SD), S_W: (56, 1024*3072*2), S_WS: (88, WS_SIZE), S_K: (8, NB_SD), S_V: (16, NB_SD),
            S_SK: (24, 1024*4*2), S_H: (32, NB_SD), S_D: (40, 2048), S_WO: (64, 1024*1024*2),
            S_OUT: (72, 2048*2048*2), S_Q: (0, NB_SD)}
def srds(g, lst):
    for b in lst: srd_load(g, b, SRD_INFO[b][0])
    for b in lst: srd_const(g, b, SRD_INFO[b][1])

def poll(g, vaddr, vtmp, soff, name):
    lab = g.newlabel(name); done = g.newlabel(name + "d")
    NP = int(opt("np_" + name, opt("np", 1)))
    g.e(f"s_mov_b32 s{t7}, {MAXSPIN}")
    if NP > 1:
        R = [252 + i for i in range(NP)]
        ld = lambda r: g.e(f"buffer_load_dword v{r}, v{vaddr}, s[{S_WS}:{S_WS+3}], s{soff} offen sc1")
        for i in range(NP - 1):
            ld(R[i])
            g.e(f"s_sleep {int(opt('npsl', 4))}")
        g.lab(lab)
        for i in range(NP):
            ld(R[(i + NP - 1) % NP])
            g.e(f"s_waitcnt vmcnt({NP-1})")
            g.e(f"v_cmp_ne_u32 vcc, s{s_tag}, v{R[i]}")
            g.e(f"s_cbranch_vccz {done}")
        g.e(f"s_sub_u32 s{t7}, s{t7}, 1")
        g.e(f"s_cbranch_scc0 {lab}")
        g.lab(done)
        return NP - 1
    g.lab(lab)
    g.e(f"buffer_load_dword v{vtmp}, v{vaddr}, s[{S_WS}:{S_WS+3}], s{soff} offen sc1")
    g.e("s_waitcnt vmcnt(0)")
    g.e(f"v_cmp_ne_u32 vcc, s{s_tag}, v{vtmp}")
    g.e(f"s_cbranch_vccz {done}")
    g.e(f"s_sub_u32 s{t7}, s{t7}, 1")
    g.e(f"s_cbranch_scc1 {done}")
    g.e("s_sleep 1")
    g.e(f"s_branch {lab}")
    g.lab(done)
    return 0

def post_flag(g, soff, vz, vt):
    g.e(f"""
    v_mov_b32 v{vz}, 0
    v_mov_b32 v{vt}, s{s_tag}
    s_mov_b64 exec, 1
    buffer_store_dword v{vt}, v{vz}, s[{S_WS}:{S_WS+3}], s{soff} offen sc1
    s_mov_b64 exec, -1
    """)

def lds_set(g, off, sidx, va, vt):
    g.e(f"""
    s_lshl_b32 s{t6}, s{sidx}, 2
    s_add_u32 s{t6}, s{t6}, {LFLAG + off}
    v_mov_b32 v{va}, s{t6}
    v_mov_b32 v{vt}, s{s_tag}
    ds_write_b32 v{va}, v{vt}
    """)
def lds_spin(g, off, nmask, va, vt, name, sidx=None):
    lab = g.newlabel(name); done = g.newlabel(name + "d")
    if sidx is None:
        g.e(f"v_and_b32 v{va}, {nmask}, v{vL}")
        g.e(f"v_lshlrev_b32 v{va}, 2, v{va}")
        g.e(f"v_add_u32 v{va}, {LFLAG + off}, v{va}")
    else:
        g.e(f"s_lshl_b32 s{t6}, s{sidx}, 2")
        g.e(f"s_add_u32 s{t6}, s{t6}, {LFLAG + off}")
        g.e(f"v_mov_b32 v{va}, s{t6}")
    g.e(f"s_mov_b32 s{t7}, {MAXSPIN*8}")
    g.lab(lab)
    g.e(f"""
    ds_read_b32 v{vt}, v{va}
    s_waitcnt lgkmcnt(0)
    v_cmp_ne_u32 vcc, s{s_tag}, v{vt}
    s_cbranch_vccz {done}
    s_sub_u32 s{t7}, s{t7}, 1
    s_cbranch_scc0 {lab}
    """)
    g.lab(done)

def phi_pairs(g, regs, tmp, s_l2e, s_eps, outs):
    n = len(regs)
    for i in range(0, n, 2):
        a, b = regs[i], regs[i+1]
        ta, tb = tmp, tmp + 2
        g.e(f"v_pk_mul_f32 v[{ta}:{ta+1}], v[{a}:{a+1}], s[{s_l2e}:{s_l2e+1}]")
        g.e(f"v_pk_mul_f32 v[{tb}:{tb+1}], v[{b}:{b+1}], s[{s_l2e}:{s_l2e+1}]")
        g.e(f"v_exp_f32_e64 v{ta}, v{ta} clamp")
        g.e(f"v_exp_f32_e64 v{ta+1}, v{ta+1} clamp")
        g.e(f"v_exp_f32_e64 v{tb}, v{tb} clamp")
        g.e(f"v_exp_f32_e64 v{tb+1}, v{tb+1} clamp")
        g.e(f"v_max_f32 v{a}, 0, v{a}")
        g.e(f"v_max_f32 v{a+1}, 0, v{a+1}")
        g.e(f"v_max_f32 v{b}, 0, v{b}")
        g.e(f"v_max_f32 v{b+1}, 0, v{b+1}")
        g.e(f"v_pk_add_f32 v[{a}:{a+1}], v[{a}:{a+1}], v[{ta}:{ta+1}]")
        g.e(f"v_pk_add_f32 v[{b}:{b+1}], v[{b}:{b+1}], v[{tb}:{tb+1}]")
        g.e(f"v_pk_add_f32 v[{a}:{a+1}], v[{a}:{a+1}], s[{s_eps}:{s_eps+1}]")
        g.e(f"v_pk_add_f32 v[{b}:{b+1}], v[{b}:{b+1}], s[{s_eps}:{s_eps+1}]")
        g.e(f"v_cvt_pk_bf16_f32 v{outs[i]}, v{a}, v{a+1}")
        g.e(f"v_cvt_pk_bf16_f32 v{outs[i+1]}, v{b}, v{b+1}")

def gen_entry(g):
    g.e(f"s_cmp_ge_u32 s2, 256")
    g.e(f"s_cbranch_scc1 L_end")
    init_stamps(g)
    stamp(g, 0)
    for b in (S_X, S_W, S_WS, S_K, S_V, S_H, S_WO, S_Q, S_SK, S_D, S_OUT): srd_load(g, b, SRD_INFO[b][0])
    g.e(f"""
    v_lshrrev_b32 v1, 6, v0
    s_and_b32 s{t0}, s2, 7
    s_lshr_b32 s{t1}, s2, 3
    v_readfirstlane_b32 s{s_wave}, v1
    s_and_b32 s{s_rb}, s{t0}, 1
    s_lshl_b32 s{s_rb}, s{s_rb}, 3
    s_lshr_b32 s{t2}, s{t0}, 1
    s_xor_b32 s{t2}, s{t2}, {int(opt('hgx', 0))}
    s_lshl_b32 s{s_hp}, s{t2}, 2
    s_and_b32 s{t2}, s{t1}, 7
    s_or_b32 s{s_rb}, s{s_rb}, s{t2}
    s_lshr_b32 s{t2}, s{t1}, 3
    s_xor_b32 s{t2}, s{t2}, {int(opt('hpx', 0))}
    s_or_b32 s{s_hp}, s{s_hp}, s{t2}
    v_and_b32 v{vL}, 63, v0
    s_lshl_b32 s{s_rb2}, s{t0}, 1
    s_and_b32 s{t2}, s{t1}, 1
    s_or_b32 s{s_rb2}, s{s_rb2}, s{t2}
    s_lshr_b32 s{s_cb2}, s2, 4
    """)
    for b in (S_X, S_W, S_WS): srd_const(g, b, SRD_INFO[b][1])
    g.e(f"s_cmp_lt_u32 s{s_wave}, 4")
    g.e(f"s_cbranch_scc1 L_compute")

def wo_dma_setup(g, vW, T):
    g.e(f"""
    v_lshrrev_b32 v{T}, 3, v{vL}
    v_lshlrev_b32 v{T}, 11, v{T}
    v_lshrrev_b32 v{T+1}, 4, v{vL}
    v_and_b32 v{T+1}, 1, v{T+1}
    v_lshlrev_b32 v{T+1}, 2, v{T+1}
    v_and_b32 v{T+2}, 7, v{vL}
    v_xor_b32 v{T+1}, v{T+1}, v{T+2}
    v_lshl_add_u32 v{T}, v{T+1}, 4, v{T}
    s_lshl_b32 s{t0}, s{s_cb2}, 7
    v_add_u32 v{vW}, s{t0}, v{T}
    """)
    for m in range(1, 4):
        g.e(f"v_add_u32 v{vW+m}, {m*(8*2048 - 1024)}, v{vW}")
def wo_dma(g, vW, s_row0, nblk, name):
    lab = g.newlabel(name)
    g.e(f"""
    s_lshl_b32 s{t0}, s{s_row0}, 7
    s_lshl_b32 s{t1}, s{s_row0}, 11
    s_mov_b32 s{t2}, {nblk}
    """)
    g.lab(lab)
    g.e(f"s_mov_b32 m0, s{t0}")
    g.e(f"s_add_u32 s{t0}, s{t0}, 4096")
    for m in range(4):
        g.e(f"buffer_load_dwordx4 v{vW+m}, s[{S_WO}:{S_WO+3}], s{t1} offen offset:{m*1024}{ntf('wo')} lds")
    g.e(f"s_add_u32 s{t1}, s{t1}, {32*2048}")
    g.e(f"s_sub_u32 s{t2}, s{t2}, 1")
    g.e(f"s_cmp_lg_u32 s{t2}, 0")
    g.e(f"s_cbranch_scc1 {lab}")

def gen_hyb(g):
    g.lab("L_hyb")
    l = vL
    s_hw = 69
    vAo = [2, 3, 4, 5]; vBo = [[6 + 2*sec + i for i in range(2)] for sec in range(3)]
    T = 24
    g.e(f"""
    s_sub_u32 s{s_hw}, s{s_wave}, 4
    v_lshrrev_b32 v{T}, 3, v{l}
    s_lshl_b32 s{t0}, s{s_rb}, 7
    s_lshl_b32 s{t1}, s{s_hw}, 5
    s_add_u32 s{t0}, s{t0}, s{t1}
    v_add_u32 v{T+1}, s{t0}, v{T}
    v_lshlrev_b32 v{T+1}, 11, v{T+1}
    v_lshrrev_b32 v{T+2}, 4, v{l}
    v_and_b32 v{T+3}, 7, v{l}
    v_xor_b32 v{T+4}, v{T+2}, v{T+3}
    v_xor_b32 v{T+5}, 4, v{T+4}
    v_lshl_add_u32 v{T+4}, v{T+4}, 4, v{T+1}
    v_lshl_add_u32 v{T+5}, v{T+5}, 4, v{T+1}
    """)
    for i in range(4):
        g.e(f"v_add_u32 v{vAo[i]}, {i*8*2048 - 1024*i}, v{T + 4 + (i&1)}" if i else f"v_mov_b32 v{vAo[0]}, v{T+4}")
    g.e(f"""
    s_lshl_b32 s{t0}, s{s_hw}, 4
    v_add_u32 v{T+1}, s{t0}, v{T}
    s_movk_i32 s{t1}, 6144
    v_mul_lo_u32 v{T+1}, v{T+1}, s{t1}
    v_and_b32 v{T+2}, 1, v{T+2}
    v_lshlrev_b32 v{T+2}, 2, v{T+2}
    v_xor_b32 v{T+2}, v{T+2}, v{T+3}
    v_lshl_add_u32 v{T+1}, v{T+2}, 4, v{T+1}
    s_xor_b32 s{t0}, s{s_hp}, {int(opt('wx', 0))}
    s_lshl_b32 s{t0}, s{t0}, 7
    v_add_u32 v{T+1}, s{t0}, v{T+1}
    """)
    for sec in range(3):
        for i in range(2):
            g.e(f"v_add_u32 v{vBo[sec][i]}, {i*(8*6144 - 1024) + sec*2048}, v{T+1}")
    s_SA, s_SB, s_OA, s_OB, s_cnt, s_wrap = 64, 65, 66, 67, 68, 70
    STG = int(opt("stg", 1))
    g.e(f"""
    s_lshl_b32 s{s_SA}, s{s_hw}, 12
    s_lshl_b32 s{s_SB}, s{s_hw}, 11
    s_add_u32 s{s_SB}, s{s_SB}, {LB}
    s_mov_b32 s{s_cnt}, 0
    s_add_u32 s{s_wrap}, s{s_SA}, {3*16384}
    """)
    if STG == 0:
        g.e(f"s_mov_b32 s{s_OA}, 0")
        g.e(f"s_mov_b32 s{s_OB}, 0")
    elif STG >= 3:
        A_, B_, C_ = int(opt("sA", "0xECA86420"), 0), int(opt("sB", "0xC840"), 0), int(opt("sC", "0"), 0)
        g.e(f"""
        s_lshr_b32 s{t0}, s2, 3
        s_and_b32 s{t0}, s{t0}, 7
        s_lshl_b32 s{t0}, s{t0}, 2
        s_lshr_b32 s{t0}, {A_}, s{t0}
        s_lshr_b32 s{t1}, s2, 6
        s_lshl_b32 s{t1}, s{t1}, 2
        s_lshr_b32 s{t1}, {B_}, s{t1}
        s_add_u32 s{t0}, s{t0}, s{t1}
        s_and_b32 s{t1}, s2, 7
        s_lshl_b32 s{t1}, s{t1}, 2
        s_lshr_b32 s{t1}, {C_}, s{t1}
        s_add_u32 s{t0}, s{t0}, s{t1}
        s_and_b32 s{t0}, s{t0}, 15
        s_lshl_b32 s{s_OA}, s{t0}, 7
        s_mul_i32 s{s_OB}, s{t0}, {64*6144}
        """)
    else:
        g.e(f"""
        s_and_b32 s{t0}, s2, 7
        s_lshr_b32 s{t1}, s{t0}, 1
        s_lshl_b32 s{t1}, s{t1}, 2
        s_and_b32 s{t0}, s{t0}, 1
        s_lshl_b32 s{t0}, s{t0}, 3
        s_add_u32 s{t0}, s{t0}, s{t1}
        """)
        if STG == 2:
            g.e(f"s_lshr_b32 s{t1}, s2, 3")
            g.e(f"s_and_b32 s{t1}, s{t1}, 1")
            g.e(f"s_lshl_b32 s{t1}, s{t1}, 1")
            g.e(f"s_add_u32 s{t0}, s{t0}, s{t1}")
        g.e(f"""
        s_and_b32 s{t0}, s{t0}, 15
        s_lshl_b32 s{s_OA}, s{t0}, 7
        s_mul_i32 s{s_OB}, s{t0}, {64*6144}
        """)
    g.e(f"""
    s_waitcnt lgkmcnt(0)
    s_load_dword s{s_tag}, s[{S_WS}:{S_WS+1}], {WS_EPOCH}
    """)
    def issue():
        if "nodma" in opt("abl", "") and getattr(issue, "n", 0) >= 2:
            return
        issue.n = getattr(issue, "n", 0) + 1
        g.e(f"s_mov_b32 m0, s{s_SA}")
        g.e(f"s_add_u32 s{s_SA}, s{s_SA}, 16384")
        for i in range(4):
            g.e(f"buffer_load_dwordx4 v{vAo[i]}, s[{S_X}:{S_X+3}], s{s_OA} offen offset:{1024*i}{ntf('x')} lds")
        for sec in range(3):
            g.e(f"s_add_u32 m0, s{s_SB}, {sec*8192}")
            if sec == 0: g.e(f"s_add_u32 s{s_OA}, s{s_OA}, 128")
            else: g.e("s_nop 0")
            for i in range(2):
                g.e(f"buffer_load_dwordx4 v{vBo[sec][i]}, s[{S_W}:{S_W+3}], s{s_OB} offen offset:{1024*i}{ntf('w')} lds")
        g.e(f"""
        s_add_u32 s{s_OB}, s{s_OB}, {64*6144}
        s_add_u32 s{s_SB}, s{s_SB}, 24576
        s_cmp_eq_u32 s{s_SA}, s{s_wrap}
        s_cselect_b32 s{t0}, {3*16384}, 0
        s_cselect_b32 s{t1}, {3*24576}, 0
        s_sub_u32 s{s_SA}, s{s_SA}, s{t0}
        s_sub_u32 s{s_SB}, s{s_SB}, s{t1}
        """)
        if STG:
            g.e(f"s_cmp_eq_u32 s{s_OA}, 2048")
            g.e(f"s_cselect_b32 s{s_OA}, 0, s{s_OA}")
            g.e(f"s_cselect_b32 s{s_OB}, 0, s{s_OB}")
    NB = 10
    issue()
    stamp(g, 1)
    issue()
    for b in (S_K, S_V, S_SK, S_H, S_D, S_WO, S_Q, S_OUT): srd_const(g, b, SRD_INFO[b][1])
    wo_dma_setup(g, vWO, 240)
    vKb, vSt, vSK = 12, 15, 36
    vNeg = [37, 38, 39]
    KR = 40
    VR = 64
    WR = 80
    T = 24
    g.e(f"""
    v_and_b32 v{T}, 15, v{l}
    v_lshlrev_b32 v{T}, 3, v{T}
    s_lshl_b32 s{t0}, s{s_hp}, 7
    v_add_u32 v{T}, s{t0}, v{T}
    v_lshrrev_b32 v{T+1}, 4, v{l}
    v_lshlrev_b32 v{T+1}, 3, v{T+1}
    s_lshl_b32 s{t0}, s{s_rb}, 7
    s_lshl_b32 s{t1}, s{s_hw}, 5
    s_add_u32 s{t0}, s{t0}, s{t1}
    v_add_u32 v{T+1}, s{t0}, v{T+1}
    v_lshl_add_u32 v{vKb}, v{T+1}, 11, v{T}
    v_mov_b32 v{T+2}, 0x80000000
    v_cmp_eq_u32 vcc, 0, v{T+1}
    v_lshlrev_b32 v{vSK}, 2, v{T}
    v_lshlrev_b32 v{vSt}, 11, v{T}
    v_lshlrev_b32 v{T+3}, 1, v{T+1}
    v_sub_u32 v{T+3}, 4080, v{T+3}
    v_add_u32 v{vSt}, v{vSt}, v{T+3}
    v_lshlrev_b32 v13, 4, v{l}
    v_add_u32 v14, 2, v13
    v_mov_b32 v176, 0
    v_mov_b32 v177, 0
    v_mov_b32 v178, 0
    v_mov_b32 v179, 0
    """)
    for i in range(3):
        g.e(f"v_subrev_u32 v{vNeg[i]}, {(3-i)*2048}, v{vKb}")
    for i in range(3):
        g.e(f"v_cndmask_b32 v{vNeg[i]}, v{vNeg[i]}, v{T+2}, vcc")
    s_ch = 71
    for m in range(1, 4):
        g.e(f"s_mov_b32 s{71+m}, {m*4096}")
    def soff(row): return "0" if row < 2 else f"s{71 + row//2}"
    g.e(f"""
    s_lshl_b32 s{s_ch}, s{s_hp}, 6
    s_lshl_b32 s{t0}, s{s_rb}, 2
    s_add_u32 s{s_ch}, s{s_ch}, s{t0}
    s_add_u32 s{s_ch}, s{s_ch}, s{s_hw}
    s_setprio 1
    s_waitcnt lgkmcnt(0)
    s_add_u32 s{s_tag}, s{s_tag}, 1
    s_not_b32 s{t0}, s{s_tag}
    v_mov_b32 v{T+2}, s{t0}
    v_lshlrev_b32 v{T+3}, 2, v{l}
    v_add_u32 v{T+3}, {LFLAG}, v{T+3}
    s_mov_b32 exec_hi, 0
    ds_write_b32 v{T+3}, v{T+2}
    s_mov_b64 exec, -1
    s_waitcnt vmcnt({NB}) lgkmcnt(0)
    """)
    stamp(g, 2)
    g.e("s_barrier")
    KF, WF, XO, VF, OUT = 112, 134, 142, 158, 160
    T = 16
    def kv_list():
        L = []
        for i in range(2):
            L.append(f"buffer_load_dwordx4 v[{WR+4*i}:{WR+4*i+3}], v{vSK}, s[{S_SK}:{S_SK+3}], 0 offen offset:{16*i}")
        for i in range(3):
            L.append(f"buffer_load_dwordx2 v[{KR+2*i}:{KR+2*i+1}], v{vNeg[i]}, s[{S_K}:{S_K+3}], 0 offen{ntf('kv')}")
        for r in range(8):
            L.append(f"buffer_load_dwordx2 v[{KR+6+2*r}:{KR+6+2*r+1}], v{vKb}, s[{S_K}:{S_K+3}], {soff(r)} offen offset:{(r&1)*2048}{ntf('kv')}")
        for r in range(8):
            L.append(f"buffer_load_dwordx2 v[{VR+2*r}:{VR+2*r+1}], v{vKb}, s[{S_V}:{S_V+3}], {soff(r)} offen offset:{(r&1)*2048}{ntf('kv')}")
        return L
    def mk_kv(part):
        def f():
            for x in part: g.e(x)
            return len(part)
        return f
    def h_dma():
        g.e(f"s_lshl_b32 s{t0}, s{s_ch}, 12")
        g.e(f"s_mul_i32 s{t1}, s{s_hw}, {H_STRIDE}")
        g.e(f"s_add_u32 m0, s{t1}, {LH + 32}")
        g.e("s_nop 0")
        for m in range(4):
            g.e(f"buffer_load_dwordx4 v13, s[{S_H}:{S_H+3}], s{t0} offen offset:{m*1024}{ntf('h')} lds")
        g.e(f"s_add_u32 m0, s{t1}, {LH + 4160 + 32}")
        g.e("s_nop 0")
        for m in range(4):
            g.e(f"buffer_load_dwordx4 v14, s[{S_H}:{S_H+3}], s{t0} offen offset:{m*1024}{ntf('h')} lds")
        g.e(f"s_lshl_b32 s{t0}, s{s_ch}, 1")
        g.e(f"v_mov_b32 v35, 0")
        g.e(f"buffer_load_ushort v35, v35, s[{S_D}:{S_D+3}], s{t0} offen")
        return 9
    def unpack(dst, src):
        g.e(f"v_lshlrev_b32 v{dst}, 16, v{src}")
        g.e(f"v_and_b32 v{dst+1}, 0xffff0000, v{src}")
    def piece(p, half):
        ob = OUT + 8*p
        if half == 0:
            for c in range(2):
                w = WR + 2*(2*p + c)
                g.e(f"v_lshlrev_b32 v{WF+0+c}, 16, v{w}")
                g.e(f"v_and_b32 v{WF+2+c}, 0xffff0000, v{w}")
                g.e(f"v_lshlrev_b32 v{WF+4+c}, 16, v{w+1}")
                g.e(f"v_and_b32 v{WF+6+c}, 0xffff0000, v{w+1}")
            for r in range(11): unpack(KF + 2*r, KR + 2*r + p)
        for s_ in (range(0, 2) if half == 0 else range(2, 8)):
            o = XO + 2*s_
            for j in range(4):
                k = KF + 2*(s_ + 3 - j); w = WF + 2*j
                if j == 0: g.e(f"v_pk_mul_f32 v[{o}:{o+1}], v[{k}:{k+1}], v[{w}:{w+1}]")
                else: g.e(f"v_pk_fma_f32 v[{o}:{o+1}], v[{k}:{k+1}], v[{w}:{w+1}], v[{o}:{o+1}]")
            unpack(VF, VR + 2*s_ + p)
            g.e(f"v_pk_mul_f32 v[{o}:{o+1}], v[{o}:{o+1}], v[{VF}:{VF+1}]")
        if half == 1:
            for c in range(2):
                for m in range(4):
                    g.e(f"v_cvt_pk_bf16_f32 v{ob+4*c+m}, v{XO+2*(7-2*m)+c}, v{XO+2*(6-2*m)+c}")
    def xr_stores():
        for p in range(2):
            ob = OUT + 8*p
            for c in range(2):
                g.e(f"s_mov_b32 s{t0}, {WS_XR + (2*p + c)*4096}")
                g.e(f"buffer_store_dwordx4 v[{ob+4*c}:{ob+4*c+3}], v{vSt}, s[{S_WS}:{S_WS+3}], s{t0} offen sc1")
        return 4
    def f1_flag():
        g.e(f"""
        s_lshl_b32 s{t0}, s{s_hp}, 8
        s_lshl_b32 s{t1}, s{s_rb}, 4
        s_add_u32 s{t0}, s{t0}, s{t1}
        s_lshl_b32 s{t1}, s{s_hw}, 2
        s_add_u32 s{t0}, s{t0}, s{t1}
        s_add_u32 s{t0}, s{t0}, {WS_F1}
        """)
        post_flag(g, t0, T, T+1)
        return 1
    def h_fix():
        g.e(f"""
        s_mul_i32 s{t1}, s{s_hw}, {H_STRIDE}
        s_add_u32 s{t1}, s{t1}, {LH}
        v_mov_b32 v{T}, s{t1}
        ds_read_u16 v{T+1}, v{T} offset:32
        v_lshlrev_b32 v35, 16, v35
        s_waitcnt lgkmcnt(0)
        v_lshlrev_b32 v{T+1}, 16, v{T+1}
        v_add_f32 v{T+1}, v{T+1}, v35
        v_cvt_pk_bf16_f32 v{T+1}, v{T+1}, v{T+1}
        v_and_b32 v{T+2}, 0xffff0000, v{T+1}
        s_mov_b64 exec, 1
        ds_write_b128 v{T}, v[176:179]
        ds_write_b128 v{T}, v[176:179] offset:16
        ds_write_b16 v{T}, v{T+1} offset:32
        ds_write_b128 v{T}, v[176:179] offset:4160
        ds_write_b64 v{T}, v[176:177] offset:4176
        ds_write_b32 v{T}, v176 offset:4184
        ds_write_b32 v{T}, v{T+2} offset:4188
        s_mov_b64 exec, -1
        s_waitcnt lgkmcnt(0)
        """)
        return 0
    def wo_touch():
        g.e(f"""
        s_lshr_b32 s{t0}, s2, 3
        s_lshl_b32 s{t0}, s{t0}, 2
        s_add_u32 s{t0}, s{t0}, s{s_hw}
        s_lshl_b32 s{t0}, s{t0}, 14
        v_lshrrev_b32 v{T}, 4, v{l}
        v_lshlrev_b32 v{T}, 11, v{T}
        v_and_b32 v{T+1}, 15, v{l}
        v_lshl_add_u32 v{T}, v{T+1}, 7, v{T}
        buffer_load_dword v{vJ}, v{T}, s[{S_WO}:{S_WO+3}], s{t0} offen
        s_add_u32 s{t0}, s{t0}, 8192
        buffer_load_dword v{vJ}, v{T}, s[{S_WO}:{S_WO+3}], s{t0} offen
        """)
        return 2
    def mk_wo_piece(u):
        def f():
            g.e(f"""
            s_lshr_b32 s{t0}, s2, 3
            s_lshl_b32 s{t0}, s{t0}, 5
            s_add_u32 s{t0}, s{t0}, s{s_hw}
            s_add_u32 s{t0}, s{t0}, {4*u}
            s_lshl_b32 s{t0}, s{t0}, 11
            v_lshlrev_b32 v{T}, 7, v{l}
            s_mov_b64 exec, 0xffff
            buffer_load_dword v{vJ}, v{T}, s[{S_WO}:{S_WO+3}], s{t0} offen
            s_mov_b64 exec, -1
            """)
            return 1
        return f
    def wo_touch3():
        g.e(f"""
        s_lshr_b32 s{t0}, s2, 3
        s_lshl_b32 s{t0}, s{t0}, 2
        s_add_u32 s{t0}, s{t0}, s{s_hw}
        s_lshl_b32 s{t0}, s{t0}, 14
        s_add_u32 s{t0}, s{t0}, 384
        v_and_b32 v{T}, 7, v{l}
        v_lshlrev_b32 v{T}, 11, v{T}
        v_lshrrev_b32 v{T+1}, 3, v{l}
        v_lshl_add_u32 v{T}, v{T+1}, 10, v{T}
        s_mov_b64 exec, 0xffff
        buffer_load_dword v{vJ}, v{T}, s[{S_WO}:{S_WO+3}], s{t0} offen
        s_mov_b64 exec, -1
        """)
        return 1
    def wo_touchm():
        g.e(f"""
        s_lshl_b32 s{t0}, s2, 2
        s_add_u32 s{t0}, s{t0}, s{s_hw}
        s_lshl_b32 s{t0}, s{t0}, 11
        v_lshlrev_b32 v{T}, 7, v{l}
        s_mov_b64 exec, 0xffff
        buffer_load_dword v{vJ}, v{T}, s[{S_WO}:{S_WO+3}], s{t0} offen
        s_mov_b64 exec, -1
        """)
        return 1
    KL = int(opt("kvit", 4)); XS = int(opt("xsit", 11)); HD = int(opt("hit", 13)); V0 = int(opt("vit", KL + int(opt("kvsp", 1)) + 2))
    abl = opt("abl", "")
    side = {}
    val = {}
    def add(t, f): side.setdefault(t, []).append(f)
    extra_cnt = {}
    if "noaux" not in abl:
        KSP = int(opt("kvsp", 1))
        Lk = kv_list(); per = -(-len(Lk) // KSP)
        for u in range(KSP):
            part = Lk[u*per:(u+1)*per]
            f_ = mk_kv(part); extra_cnt[f_] = len(part); add(KL + u, f_)
        if HD <= 13: add(HD, h_dma)
        add(XS, xr_stores)
        if opt("wom"):
            add(int(opt("wom")), wo_touchm); extra_cnt[wo_touchm] = 1
        w_ = opt("wot", "x")
        if w_.startswith("s"):
            for u in range(8):
                f_ = mk_wo_piece(u); extra_cnt[f_] = 1; add(int(w_[1:]) + u, f_)
        elif w_.startswith("c"):
            add(int(w_[1:]), wo_touch3); extra_cnt[wo_touch3] = 1
        elif w_ not in ("0", "x"): add(int(w_), wo_touch)
        for i in range(4): val[V0 + i] = (i // 2, i % 2)
        assert V0 >= KL + KSP + 2 and XS >= V0 + 4 and XS <= 12
    cnt_of = {h_dma: 9, xr_stores: 4, wo_touch: 2}
    cnt_of.update(extra_cnt)
    def ecount(t): return sum(cnt_of[f] for f in side.get(t, []))
    assert max(side) <= 13
    special = [t for t in range(14) if t in side or ecount(t - 1) or t in val]
    PRE = opt("pre", "1") == "1"
    g.lab("L_hloop")
    if PRE and val:
        g.e(f"s_cmp_lt_u32 s{s_hw}, 2")
        g.e(f"s_cbranch_scc1 L_hissue")
        for t in val:
            g.e(f"s_cmp_eq_u32 s{s_cnt}, {t}")
            g.e(f"s_cbranch_scc1 L_hval{t}")
    g.lab("L_hissue")
    issue()
    if opt("bar"): stamp(g, 32, s_cnt)
    for t in special:
        g.e(f"s_cmp_eq_u32 s{s_cnt}, {t}")
        g.e(f"s_cbranch_scc1 L_hside{t}")
    g.e(f"s_waitcnt vmcnt({NB})")
    g.lab("L_htail")
    if opt("bar"): stamp(g, 16, s_cnt)
    g.e(f"s_add_u32 s{s_cnt}, s{s_cnt}, 1")
    g.e(f"s_cmp_lg_u32 s{s_cnt}, 14")
    g.e("s_barrier")
    g.e("s_cbranch_scc1 L_hloop")
    g.e(f"s_waitcnt vmcnt({ecount(13)})")
    if "noaux" not in abl: f1_flag()
    if HD == 15 and "noaux" not in abl: h_dma()
    if HD == 14 and "noaux" not in abl: pass
    g.e("s_barrier")
    g.e("s_barrier")
    stamp(g, 3)
    if HD == 16 and "noaux" not in abl: h_dma()
    T = 16
    g.e(f"""
    v_lshlrev_b32 v{T}, 2, v{l}
    s_lshl_b32 s{t1}, s{s_hp}, 8
    s_add_u32 s{t1}, s{t1}, {WS_F1}
    """)
    poll(g, T, T+1, t1, "pf1")
    stamp(g, 6)
    XR_ = 40
    g.e(f"s_lshl_b32 s{t0}, s{s_ch}, 12")
    g.e(f"s_add_u32 s{t0}, s{t0}, {WS_XR}")
    for m in range(4):
        d = XR_ + 4*m
        g.e(f"buffer_load_dwordx4 v[{d}:{d+3}], v13, s[{S_WS}:{S_WS+3}], s{t0} offen offset:{m*1024}{lsc('x')}")
    nwt = 0
    if HD == 17: nwt += h_dma()
    if opt("wot", "x") == "x": nwt += wo_touch()
    if opt("wo01", "post") == "x1":
        g.e(f"s_lshl_b32 s{t5}, s{s_hw}, 7")
        wo_dma(g, vWO, t5, 2, "wo01a"); nwt += 8
    if HD != 17: h_fix()
    g.e(f"""
    s_mul_i32 s{t1}, s{s_hw}, {X_STRIDE}
    s_add_u32 s{t1}, s{t1}, {LX}
    v_add_u32 v{T}, s{t1}, v13
    v_cmp_gt_u32 vcc, 30, v{l}
    s_and_saveexec_b64 s[{t4}:{t4+1}], vcc
    ds_write_b128 v{T}, v[176:179] offset:4096
    s_mov_b64 exec, s[{t4}:{t4+1}]
    s_waitcnt vmcnt({nwt})
    """)
    for m in range(4):
        d = XR_ + 4*m
        g.e(f"ds_write_b128 v{T}, v[{d}:{d+3}] offset:{m*1024}")
    if HD == 17:
        g.e(f"s_waitcnt vmcnt({nwt - 9})")
        h_fix()
    g.e("s_waitcnt lgkmcnt(0)")
    stamp(g, 7)
    g.e("s_barrier")
    g.e("s_branch L_helper")
    for t in special:
        g.lab(f"L_hside{t}")
        for f in side.get(t, []): f()
        if t in val:
            if PRE:
                g.e(f"s_cmp_ge_u32 s{s_hw}, 2")
                g.e(f"s_cbranch_scc1 L_hwait{t}")
            g.lab(f"L_hval{t}")
            piece(*val[t])
            if PRE:
                g.e(f"s_cmp_ge_u32 s{s_hw}, 2")
                g.e(f"s_cbranch_scc1 L_hissue")
            g.lab(f"L_hwait{t}")
        n = ecount(t - 1) + NB + ecount(t)
        g.e(f"s_waitcnt vmcnt({min(n, 63)})")
        g.e("s_branch L_htail")

def gen_compute(g):
    g.lab("L_compute")
    ACCQ = [0, 16]; ACCK = [32, 48]; ACCV = [64, 80]
    P = [96, 116]
    vA = [136, 137, 138, 139]; vB = 140
    T = 150
    l = vL
    abl = opt("abl", "")
    g.e(f"""
    s_waitcnt lgkmcnt(0)
    s_load_dword s{s_tag}, s[{S_WS}:{S_WS+1}], {WS_EPOCH}
    """)
    if opt("kvpf", "0") == "1":
        srd_const(g, S_K, NB_SD); srd_const(g, S_V, NB_SD)
        g.e(f"""
        s_lshl_b32 s{t0}, s{s_rb}, 18
        s_lshl_b32 s{t1}, s{s_hp}, 7
        s_add_u32 s{t0}, s{t0}, s{t1}
        s_and_b32 s{t1}, s{s_wave}, 1
        s_lshl_b32 s{t1}, s{t1}, 17
        s_add_u32 s{t0}, s{t0}, s{t1}
        v_lshlrev_b32 v{T}, 11, v{l}
        s_cmp_lt_u32 s{s_wave}, 2
        s_cbranch_scc0 L_pfv
        buffer_load_dword v{vJ}, v{T}, s[{S_K}:{S_K+3}], s{t0} offen
        s_branch L_pfdone
        """)
        g.lab("L_pfv")
        g.e(f"buffer_load_dword v{vJ}, v{T}, s[{S_V}:{S_V+3}], s{t0} offen")
    g.lab("L_pfdone")
    c3 = opt("c3", "wxk")
    C3AT = int(opt("c3at", 0))
    vC3, sC3, sC3m = 146, 70, 71
    if c3 != "0":
        srd_const(g, S_K, NB_SD); srd_const(g, S_V, NB_SD)
        g.e(f"""
        s_and_b32 s{t0}, s2, 7
        s_lshr_b32 s{t1}, s2, 3
        s_lshl_b32 s{t1}, s{t1}, 5
        v_and_b32 v{T}, 31, v{l}
        v_add_u32 v{T}, s{t1}, v{T}
        v_lshrrev_b32 v{T+1}, 5, v{l}
        s_lshr_b32 s{t2}, s{t0}, 1
        s_lshl_b32 s{t2}, s{t2}, 2
        s_add_u32 s{t2}, s{t2}, 3
        s_lshl_b32 s{t2}, s{t2}, 7
        s_and_b32 s{t3}, s{t0}, 1
        s_lshl_b32 s{t3}, s{t3}, 21
        s_mov_b32 s{sC3m}, 0
        s_mov_b32 s{sC3}, 0
        v_mov_b32 v{vC3}, 0
        """)
        g.e(f"s_cmp_eq_u32 s{s_wave}, 2")
        g.e(f"s_cbranch_scc1 L_c3x")
        g.e(f"s_bitcmp1_b32 s2, 1")
        g.e(f"s_cbranch_scc1 L_c3done")
        g.e(f"s_cmp_eq_u32 s{s_wave}, 3")
        g.e(f"s_cbranch_scc1 L_c3k")
        if "w" in c3:
            g.e(f"""
            s_movk_i32 s{t4}, 6144
            v_mul_lo_u32 v{vC3}, v{T}, s{t4}
            v_lshl_add_u32 v{vC3}, v{T+1}, 11, v{vC3}
            s_lshl_b32 s{t4}, s{s_wave}, 12
            s_add_u32 s{sC3}, s{t2}, s{t4}
            s_add_u32 s{sC3m}, s{s_wave}, 1
            """)
        g.e("s_branch L_c3done")
        g.lab("L_c3x")
        if "x" in c3:
            g.e(f"""
            v_lshlrev_b32 v{vC3}, 11, v{T}
            v_lshl_add_u32 v{vC3}, v{T+1}, 10, v{vC3}
            s_add_u32 s{sC3}, s{t3}, 384
            s_mov_b32 s{sC3m}, 3
            """)
        g.e("s_branch L_c3done")
        g.lab("L_c3k")
        if "k" in c3:
            g.e(f"""
            v_lshlrev_b32 v{vC3}, 11, v{T}
            s_add_u32 s{sC3}, s{t3}, s{t2}
            s_mov_b32 s{sC3m}, 4
            """)
        g.lab("L_c3done")
    def c3_touch():
        if c3 == "0": return
        u = g.newlabel("c3")
        g.e(f"""
        s_cmp_eq_u32 s{sC3m}, 0
        s_cbranch_scc1 {u}e
        s_cmp_eq_u32 s{sC3m}, 3
        s_cbranch_scc1 {u}x
        s_cmp_eq_u32 s{sC3m}, 4
        s_cbranch_scc1 {u}k
        s_cmp_eq_u32 s{sC3m}, 1
        s_cbranch_scc1 {u}w
        s_mov_b32 exec_hi, 0
        {u}w:
        buffer_load_dword v{vJ}, v{vC3}, s[{S_W}:{S_W+3}], s{sC3} offen
        s_mov_b64 exec, -1
        s_branch {u}e
        {u}x:
        buffer_load_dword v{vJ}, v{vC3}, s[{S_X}:{S_X+3}], s{sC3} offen
        s_branch {u}e
        {u}k:
        s_mov_b32 exec_hi, 0
        buffer_load_dword v{vJ}, v{vC3}, s[{S_K}:{S_K+3}], s{sC3} offen
        s_not_b64 exec, exec
        buffer_load_dword v{vJ}, v{vC3}, s[{S_V}:{S_V+3}], s{sC3} offen
        s_mov_b64 exec, -1
        {u}e:
        s_mov_b32 s{sC3m}, 0
        """)
    if C3AT < 0: c3_touch()
    for b in (S_WO, S_Q, S_OUT): srd_const(g, b, SRD_INFO[b][1])
    g.e(f"""
    s_lshr_b32 s{s_wm}, s{s_wave}, 1
    s_and_b32 s{s_wn}, s{s_wave}, 1
    v_and_b32 v{T}, 31, v{l}
    s_lshl_b32 s{t0}, s{s_wm}, 6
    v_add_u32 v{T}, s{t0}, v{T}
    v_lshlrev_b32 v{T}, 7, v{T}
    v_lshrrev_b32 v{T+1}, 1, v{l}
    v_and_b32 v{T+1}, 7, v{T+1}
    v_lshrrev_b32 v{T+2}, 5, v{l}
    v_xor_b32 v{T+1}, v{T+1}, v{T+2}
    """)
    for j in range(4):
        g.e(f"v_xor_b32 v{T+3}, {2*j}, v{T+1}")
        g.e(f"v_lshl_add_u32 v{vA[j]}, v{T+3}, 4, v{T}")
    g.e(f"""
    v_lshrrev_b32 v{T}, 5, v{l}
    v_lshlrev_b32 v{T}, 3, v{T}
    v_and_b32 v{T+1}, 15, v{l}
    v_lshrrev_b32 v{T+1}, 2, v{T+1}
    v_add_u32 v{T}, v{T}, v{T+1}
    v_lshlrev_b32 v{T}, 7, v{T}
    v_lshrrev_b32 v{T+1}, 4, v{l}
    v_and_b32 v{T+1}, 1, v{T+1}
    v_lshlrev_b32 v{T+1}, 1, v{T+1}
    v_and_b32 v{T+2}, 3, v{l}
    v_lshrrev_b32 v{T+2}, 1, v{T+2}
    v_add_u32 v{T+1}, v{T+1}, v{T+2}
    s_lshl_b32 s{t0}, s{s_wn}, 2
    v_add_u32 v{T+1}, s{t0}, v{T+1}
    v_lshrrev_b32 v{T+2}, 3, v{l}
    v_and_b32 v{T+2}, 1, v{T+2}
    v_lshlrev_b32 v{T+2}, 2, v{T+2}
    v_xor_b32 v{T+1}, v{T+1}, v{T+2}
    v_lshl_add_u32 v{T}, v{T+1}, 4, v{T}
    v_and_b32 v{T+1}, 1, v{l}
    v_lshl_add_u32 v{T}, v{T+1}, 3, v{T}
    v_add_u32 v{vB}, {LB}, v{T}
    """)
    for r in range(96):
        g.e(f"v_mov_b32 v{r}, 0")
    g.e(f"""
    s_mov_b32 s64, 16384
    s_mov_b32 s65, -32768
    s_mov_b32 s66, 24576
    s_mov_b32 s67, -49152
    s_mov_b32 s68, 0
    s_mov_b32 s69, 0
    s_waitcnt lgkmcnt(0)
    s_add_u32 s{s_tag}, s{s_tag}, 1
    s_setprio 3
    """)
    s_slot, s_it = 68, 69
    def reads(setb, j):
        A0, A1, Bq, Bk, Bv = setb, setb+4, setb+8, setb+12, setb+16
        def tr(dst, sec, q):
            return f"ds_read_b64_tr_b16 v[{dst+2*q}:{dst+2*q+1}], v{vB} offset:{sec*8192 + j*2048 + q*512}"
        return [
            (f"ds_read_b128 v[{A0}:{A0+3}], v{vA[j]} offset:0", f"A0_{setb}"),
            (tr(Bq, 0, 0), f"Bqa_{setb}"),
            (tr(Bq, 0, 1), f"Bq_{setb}"),
            (f"ds_read_b128 v[{A1}:{A1+3}], v{vA[j]} offset:4096", f"A1_{setb}"),
            (tr(Bk, 1, 0), f"Bka_{setb}"),
            (tr(Bk, 1, 1), f"Bk_{setb}"),
            (tr(Bv, 2, 0), f"Bva_{setb}"),
            (tr(Bv, 2, 1), f"Bv_{setb}"),
        ]
    def mfmas(setb):
        A0, A1, Bq, Bk, Bv = setb, setb+4, setb+8, setb+12, setb+16
        def m(acc, a, b): return f"v_mfma_f32_32x32x16_bf16 v[{acc}:{acc+15}], v[{a}:{a+3}], v[{b}:{b+3}], v[{acc}:{acc+15}]"
        return [
            (m(ACCQ[0], Bq, A0), [f"A0_{setb}", f"Bq_{setb}"]),
            (m(ACCQ[1], Bq, A1), [f"A1_{setb}"]),
            (m(ACCK[0], A0, Bk), [f"Bk_{setb}"]),
            (m(ACCK[1], A1, Bk), []),
            (m(ACCV[0], A0, Bv), [f"Bv_{setb}"]),
            (m(ACCV[1], A1, Bv), []),
        ]
    stamp(g, 1)
    g.e("s_barrier")
    stamp(g, 2)
    stampc(g, 13)
    if C3AT == 0: c3_touch()
    g.lg_reset()
    for asm, tag in reads(P[0], 0): g.lg(asm, tag)
    g.lab("L_g1loop")
    g.lg_reset([t for a, t in reads(P[0], 0)])
    for j in range(4):
        cur, nxt = P[j & 1], P[(j + 1) & 1]
        M = mfmas(cur)
        if j < 3:
            R = reads(nxt, j + 1)
            sched = [2, 2, 2, 2, 0, 0]
            ri = 0
            for mi, (asm, needs) in enumerate(M):
                if needs: g.lg_need(*needs)
                g.e(asm)
                for _ in range(sched[mi]):
                    g.lg(*R[ri]); ri += 1
        else:
            R = reads(nxt, 0)
            for mi in range(2):
                asm, needs = M[mi]
                if needs: g.lg_need(*needs)
                g.e(asm)
            g.e(f"""
            s_add_u32 s{t0}, s{s_slot}, 1
            s_cmp_eq_u32 s{s_slot}, 2
            s_cselect_b32 s{s_slot}, 0, s{t0}
            s_cselect_b32 s{t0}, s65, s64
            s_cselect_b32 s{t1}, s67, s66
            """)
            for jj in range(4): g.e(f"v_add_u32 v{vA[jj]}, s{t0}, v{vA[jj]}")
            g.e(f"v_add_u32 v{vB}, s{t1}, v{vB}")
            g.lg_all()
            if opt("bar"): stamp(g, 16, s_it)
            g.e("s_barrier")
            if opt("bar"): stamp(g, 32, s_it)
            if C3AT > 0:
                g.e(f"s_cmp_lg_u32 s{s_it}, {C3AT-1}")
                g.e(f"s_cbranch_scc1 L_c3skip")
                c3_touch()
                g.lab("L_c3skip")
            ri = 0
            for mi in range(2, 6):
                asm, needs = M[mi]
                if needs: g.lg_need(*needs)
                g.e(asm)
                for _ in range(2):
                    g.lg(*R[ri]); ri += 1
    g.e(f"s_add_u32 s{s_it}, s{s_it}, 1")
    g.e(f"s_cmp_lg_u32 s{s_it}, 16")
    g.e(f"s_cbranch_scc1 L_g1loop")
    g.e("s_waitcnt lgkmcnt(0)")
    stamp(g, 3)
    stampc(g, 14)
    PK, VF, ONES, PQ, TMP, TA = 96, 112, 128, 132, 148, 152
    s_l2e, s_eps = 64, 66
    g.e(f"""
    s_mov_b32 s{s_l2e}, {LOG2E}
    s_mov_b32 s{s_l2e+1}, {LOG2E}
    s_mov_b32 s{s_eps}, {EPS}
    s_mov_b32 s{s_eps+1}, {EPS}
    v_mov_b32 v{ONES}, 0x3f803f80
    v_mov_b32 v{ONES+1}, 0x3f803f80
    v_mov_b32 v{ONES+2}, 0x3f803f80
    v_mov_b32 v{ONES+3}, 0x3f803f80
    v_lshlrev_b32 v{TA}, 4, v{l}
    s_mul_i32 s{t0}, s{s_wn}, 4224
    s_add_u32 s{t0}, s{t0}, {LRED}
    v_add_u32 v{TA+1}, s{t0}, v{TA}
    v_lshrrev_b32 v{TA+2}, 5, v{l}
    v_lshlrev_b32 v{TA+2}, 5, v{TA+2}
    v_and_b32 v{TA+3}, 31, v{l}
    s_nop 3
    """)
    regs = [ACCK[mt] + r for mt in range(2) for r in range(0, 16, 2)]
    outs = [PK + mt*8 + r//2 for mt in range(2) for r in range(0, 16, 2)]
    phi_pairs(g, regs, TMP, s_l2e, s_eps, outs)
    for mt in range(2):
        for r in range(0, 16, 2):
            g.e(f"v_cvt_pk_bf16_f32 v{VF + mt*8 + r//2}, v{ACCV[mt]+r}, v{ACCV[mt]+r+1}")
    KV, Z = 64, 80
    stamp(g, 11)
    g.e("s_nop 1")
    first = True
    for mt in range(2):
        for q2 in range(2):
            a = PK + mt*8 + q2*4; b = VF + mt*8 + q2*4
            c = "0" if first else f"v[{KV}:{KV+15}]"
            g.e(f"v_mfma_f32_32x32x16_bf16 v[{KV}:{KV+15}], v[{a}:{a+3}], v[{b}:{b+3}], {c}")
            c = "0" if first else f"v[{Z}:{Z+15}]"
            g.e(f"v_mfma_f32_32x32x16_bf16 v[{Z}:{Z+15}], v[{a}:{a+3}], v[{ONES}:{ONES+3}], {c}")
            first = False
    g.e(f"""
    s_add_u32 s{t1}, s{t0}, 4096
    v_add_u32 v{TA+4}, s{t1}, v{TA+2}
    v_cmp_eq_u32 vcc, 0, v{TA+3}
    s_mov_b64 s[{t4}:{t4+1}], vcc
    s_nop 7
    s_nop 3
    """)
    stamp(g, 12)
    g.e(f"""
    s_cmp_eq_u32 s{s_wm}, 0
    s_cbranch_scc1 L_red0
    """)
    for q in range(4):
        g.e(f"ds_write_b128 v{TA+1}, v[{KV+4*q}:{KV+4*q+3}] offset:{q*1024}")
    g.e(f"s_mov_b64 exec, s[{t4}:{t4+1}]")
    for q in range(4):
        g.e(f"ds_write_b128 v{TA+4}, v[{Z+4*q}:{Z+4*q+3}] offset:{(q>>1)*64 + (q&1)*16}")
    g.e("s_mov_b64 exec, -1")
    g.e(f"""
    s_lshl_b32 s{t2}, s{s_wn}, 2
    s_add_u32 s{t2}, s{t2}, {LFLAG + 16}
    v_mov_b32 v{TA+5}, s{t2}
    v_mov_b32 v{TA+6}, s{s_tag}
    s_waitcnt lgkmcnt(0)
    ds_write_b32 v{TA+5}, v{TA+6}
    """)
    g.e("s_branch L_phiq")
    g.lab("L_red0")
    g.e(f"""
    s_lshl_b32 s{t2}, s{s_hp}, 4
    s_add_u32 s{t2}, s{t2}, s{s_rb}
    s_mul_i32 s{t2}, s{t2}, {KVP_STRIDE}
    s_add_u32 s{t2}, s{t2}, {WS_KVP}
    s_lshl_b32 s{t3}, s{s_wn}, 11
    s_add_u32 s{t3}, s{t3}, s{t2}
    s_lshl_b32 s{t1}, s{s_wn}, 7
    s_add_u32 s{t2}, s{t2}, s{t1}
    s_add_u32 s{t2}, s{t2}, 4096
    """)
    g.e(f"""
    s_lshl_b32 s{t1}, s{s_wn}, 2
    s_add_u32 s{t1}, s{t1}, {LFLAG + 16}
    v_mov_b32 v{TA+5}, s{t1}
    s_mov_b32 s{t7}, {MAXSPIN*8}
    """)
    g.lab("L_x1")
    g.e(f"""
    ds_read_b32 v{TA+6}, v{TA+5}
    s_waitcnt lgkmcnt(0)
    v_cmp_ne_u32 vcc, s{s_tag}, v{TA+6}
    s_cbranch_vccz L_x1d
    s_sub_u32 s{t7}, s{t7}, 1
    s_cbranch_scc0 L_x1
    """)
    g.lab("L_x1d")
    for q in range(4):
        g.e(f"ds_read_b128 v[{0+32+4*q}:{0+32+4*q+3}], v{TA+1} offset:{q*1024}")
    for q in range(4):
        g.e(f"ds_read_b128 v[{48+4*q}:{48+4*q+3}], v{TA+4} offset:{(q>>1)*64 + (q&1)*16}")
    g.e("s_waitcnt lgkmcnt(4)")
    for r in range(0, 16, 2):
        g.e(f"v_pk_add_f32 v[{KV+r}:{KV+r+1}], v[{KV+r}:{KV+r+1}], v[{32+r}:{32+r+1}]")
    for r in range(0, 16, 2):
        g.e(f"v_cvt_pk_bf16_f32 v{32 + r//2}, v{KV+r}, v{KV+r+1}")
    g.e("s_waitcnt lgkmcnt(0)")
    for q in range(2):
        g.e(f"buffer_store_dwordx4 v[{32+4*q}:{32+4*q+3}], v{TA}, s[{S_WS}:{S_WS+3}], s{t3} offen offset:{q*1024} sc1")
    for r in range(0, 16, 2):
        g.e(f"v_pk_add_f32 v[{Z+r}:{Z+r+1}], v[{Z+r}:{Z+r+1}], v[{48+r}:{48+r+1}]")
    g.e(f"s_mov_b64 exec, s[{t4}:{t4+1}]")
    for q in range(4):
        g.e(f"buffer_store_dwordx4 v[{Z+4*q}:{Z+4*q+3}], v{TA+2}, s[{S_WS}:{S_WS+3}], s{t2} offen offset:{(q>>1)*64 + (q&1)*16} sc1")
    g.e("s_mov_b64 exec, -1")
    g.lab("L_phiq")
    stamp(g, 4)
    regs = [ACCQ[mt] + r for mt in range(2) for r in range(0, 16, 2)]
    outs = [PQ + mt*8 + r//2 for mt in range(2) for r in range(0, 16, 2)]
    phi_pairs(g, regs, TMP, s_l2e, s_eps, outs)
    g.e(f"""
    s_lshl_b32 s{t0}, s{s_wave}, 12
    s_add_u32 s{t0}, s{t0}, {LPQ}
    v_add_u32 v{TA+1}, s{t0}, v{TA}
    """)
    for i in range(4):
        g.e(f"ds_write_b128 v{TA+1}, v[{PQ+4*i}:{PQ+4*i+3}] offset:{i*1024}")
    g.e(f"""
    s_cmp_lg_u32 s{s_wm}, 0
    s_cbranch_scc1 L_nof2
    s_lshl_b32 s{t0}, s{s_hp}, 7
    s_lshl_b32 s{t1}, s{s_rb}, 3
    s_add_u32 s{t0}, s{t0}, s{t1}
    s_lshl_b32 s{t1}, s{s_wn}, 2
    s_add_u32 s{t0}, s{t0}, s{t1}
    s_add_u32 s{t0}, s{t0}, {WS_F2}
    s_waitcnt vmcnt(0)
    """)
    post_flag(g, t0, TA+5, TA+6)
    g.lab("L_nof2")
    ACC = 0; S = [32, 96]; cA = list(range(160, 168)); cB = 168; T = 170
    g.e(f"""
    v_and_b32 v{T+5}, 15, v{l}
    v_lshrrev_b32 v{T+6}, 4, v{l}
    v_add_u32 v{T+7}, 1, v{T+5}
    v_and_b32 v{T+7}, -2, v{T+7}
    v_lshlrev_b32 v{T+7}, 1, v{T+7}
    v_lshl_add_u32 v{T+7}, v{T+6}, 4, v{T+7}
    v_and_b32 v{T+8}, 1, v{T+5}
    v_xor_b32 v{T+8}, 1, v{T+8}
    v_mul_u32_u24 v{T+8}, 4160, v{T+8}
    v_add_u32 v{T+7}, v{T+7}, v{T+8}
    s_mul_i32 s{t0}, s{s_wave}, {H_STRIDE}
    s_add_u32 s{t0}, s{t0}, {LH + 448}
    v_add_u32 v{cA[0]}, s{t0}, v{T+7}
    """)
    for a in range(1, 8):
        g.e(f"v_add_u32 v{cA[a]}, {512*a}, v{cA[0]}")
    g.e(f"""
    v_lshlrev_b32 v{cB}, 4, v{T+6}
    v_lshlrev_b32 v{T+7}, 5, v{T+5}
    v_sub_u32 v{cB}, v{cB}, v{T+7}
    s_mul_i32 s{t0}, s{s_wave}, {X_STRIDE}
    s_add_u32 s{t0}, s{t0}, {LX + 4512 - 3584}
    v_add_u32 v{cB}, s{t0}, v{cB}
    """)
    for r in range(32): g.e(f"v_mov_b32 v{ACC+r}, 0")
    if opt("wopf", "1") == "1":
        g.e(f"""
        v_lshlrev_b32 v{T+9}, 11, v{l}
        s_lshl_b32 s{t0}, s{s_rb}, 18
        s_lshl_b32 s{t1}, s{s_hp}, 7
        s_add_u32 s{t0}, s{t0}, s{t1}
        s_and_b32 s{t1}, s{s_wave}, 1
        s_lshl_b32 s{t1}, s{t1}, 17
        s_add_u32 s{t0}, s{t0}, s{t1}
        s_cmp_lt_u32 s{s_wave}, 2
        s_cbranch_scc0 L_noqpf
        buffer_load_dword v{vJ}, v{T+9}, s[{S_Q}:{S_Q+3}], s{t0} offen
        """)
        g.lab("L_noqpf")
    wo_dma_setup(g, vWO, T+9)
    g.e("s_waitcnt lgkmcnt(0)")
    stamp(g, 5)
    g.e("s_barrier")
    stamp(g, 6)
    g.e("s_setprio 1")
    def creads(sb):
        R = []
        for x in range(8):
            d = sb + 4*x
            R.append(f"ds_read2_b32 v[{d}:{d+1}], v{cA[x]} offset0:0 offset1:1")
            R.append(f"ds_read2_b32 v[{d+2}:{d+3}], v{cA[x]} offset0:2 offset1:3")
            d = sb + 32 + 4*x
            R.append(f"ds_read_b128 v[{d}:{d+3}], v{cB} offset:{512*(7-x)}")
        return R
    def adv():
        for a in range(8): g.e(f"v_subrev_u32 v{cA[a]}, 64, v{cA[a]}")
        g.e(f"v_subrev_u32 v{cB}, 64, v{cB}")
    def cm(sb):
        pairs = [(a, w) for a in range(8) for w in range(8) if a + w <= 7]
        pairs.sort(key=lambda p: (max(p), p[0]))
        M = []
        for a, w in pairs:
            A = sb + 4*a; B = sb + 32 + 4*w; D = ACC + 4*(a + w)
            M.append(f"v_mfma_f32_16x16x32_bf16 v[{D}:{D+3}], v[{A}:{A+3}], v[{B}:{B+3}], v[{D}:{D+3}]")
        return M
    R = creads(S[0])
    for i, asm in enumerate(R):
        g.e(asm)
        if i == 11: g.e("s_waitcnt lgkmcnt(4)")
        if i == 19: g.e("s_waitcnt lgkmcnt(4)")
    adv()
    g.e(f"s_mov_b32 s{s_it}, 4")
    g.lab("L_cloop")
    for half in range(2):
        cur, nxt = S[half], S[1-half]
        g.e("s_waitcnt lgkmcnt(0)")
        M = cm(cur); R = creads(nxt)
        ri = 0
        for mi, asm in enumerate(M):
            g.e(asm)
            if mi < 32 and ri < 24 and (mi % 4 != 3):
                g.e(R[ri]); ri += 1
            if mi == 33: adv()
        assert ri == 24
    g.e(f"s_sub_u32 s{s_it}, s{s_it}, 1")
    g.e(f"s_cmp_lg_u32 s{s_it}, 0")
    g.e(f"s_cbranch_scc1 L_cloop")
    g.e("s_waitcnt lgkmcnt(0)")
    lds_set(g, F_CF, s_wave, T+5, T+6)
    g.e("s_nop 3")
    stamp(g, 7)
    g.e(f"""
    v_and_b32 v{T+5}, 15, v{l}
    v_lshrrev_b32 v{T+6}, 4, v{l}
    v_lshlrev_b32 v{T+5}, 5, v{T+5}
    v_and_b32 v{T+7}, 1, v{T+6}
    v_lshl_add_u32 v{T+5}, v{T+7}, 9, v{T+5}
    v_lshrrev_b32 v{T+6}, 1, v{T+6}
    v_lshl_add_u32 v{T+5}, v{T+6}, 4, v{T+5}
    s_lshl_b32 s{t0}, s{s_hp}, 6
    s_lshl_b32 s{t1}, s{s_rb}, 2
    s_add_u32 s{t0}, s{t0}, s{t1}
    s_add_u32 s{t0}, s{t0}, s{s_wave}
    s_lshl_b32 s{t0}, s{t0}, 12
    s_add_u32 s{t0}, s{t0}, {WS_YT}
    """)
    for cb in range(8):
        d = 32 + 2*cb
        g.e(f"v_cvt_pk_bf16_f32 v{d}, v{ACC+4*cb}, v{ACC+4*cb+1}")
        g.e(f"v_cvt_pk_bf16_f32 v{d+1}, v{ACC+4*cb+2}, v{ACC+4*cb+3}")
    g.e("s_nop 1")
    for cp in range(4):
        d = 32 + 4*cp
        g.e(f"v_permlane16_swap_b32 v{d}, v{d+2}")
        g.e(f"v_permlane16_swap_b32 v{d+1}, v{d+3}")
    g.e("s_nop 1")
    for cp in range(4):
        d = 32 + 4*cp
        g.e(f"buffer_store_dwordx4 v[{d}:{d+3}], v{T+5}, s[{S_WS}:{S_WS+3}], s{t0} offen offset:{1024*cp} sc1")
    ACC2 = [0, 16]; AR = 64; RING = int(opt("g2ring", 32)); PRE2 = int(opt("g2pre", 14))
    BF = [32, 40, 48, 56]
    vAo = [200, 201, 202, 203]; vBn = [204, 205]; T = 208
    s_ab, s_r, s_g = 64, 65, 66
    s_wl, s_wg = 67, 68
    g.e(f"""
    v_and_b32 v{vAo[0]}, 31, v{l}
    v_lshlrev_b32 v{T}, 2, v{vAo[0]}
    v_lshlrev_b32 v{vAo[0]}, 4, v{vAo[0]}
    v_lshrrev_b32 v{T+1}, 5, v{l}
    v_lshl_add_u32 v{vAo[0]}, v{T+1}, 11, v{vAo[0]}
    v_add_u32 v{vAo[1]}, 4096, v{vAo[0]}
    v_add_u32 v{vAo[2]}, 8192, v{vAo[0]}
    v_add_u32 v{vAo[3]}, 12288, v{vAo[0]}
    s_lshl_b32 s{s_ab}, s{s_rb2}, 18
    s_lshl_b32 s{t1}, s{s_wave}, 9
    s_add_u32 s{s_ab}, s{s_ab}, s{t1}
    s_add_u32 s{s_ab}, s{s_ab}, {WS_O}
    s_lshl_b32 s{s_r}, s{s_cb2}, 2
    """)
    if opt("g2rot", "0") != "1": g.e(f"s_mov_b32 s{s_r}, 0")
    TB = T + 4
    g.e(f"""
    v_lshrrev_b32 v{TB}, 5, v{l}
    v_lshlrev_b32 v{TB}, 2, v{TB}
    v_and_b32 v{TB+1}, 15, v{l}
    v_lshrrev_b32 v{TB+1}, 2, v{TB+1}
    v_add_u32 v{TB}, v{TB}, v{TB+1}
    v_lshlrev_b32 v{TB}, 7, v{TB}
    v_lshrrev_b32 v{TB+1}, 4, v{l}
    v_and_b32 v{TB+1}, 1, v{TB+1}
    v_lshlrev_b32 v{TB+1}, 1, v{TB+1}
    v_and_b32 v{TB+2}, 3, v{l}
    v_lshrrev_b32 v{TB+2}, 1, v{TB+2}
    v_add_u32 v{TB+1}, v{TB+1}, v{TB+2}
    v_lshrrev_b32 v{TB+2}, 3, v{l}
    v_and_b32 v{TB+2}, 1, v{TB+2}
    v_lshlrev_b32 v{TB+2}, 2, v{TB+2}
    v_xor_b32 v{TB+1}, v{TB+1}, v{TB+2}
    v_and_b32 v{TB+3}, 1, v{l}
    v_lshl_add_u32 v{TB}, v{TB+3}, 3, v{TB}
    s_lshl_b32 s{t0}, s{s_r}, 11
    v_add_u32 v{TB}, s{t0}, v{TB}
    v_lshl_add_u32 v{vBn[0]}, v{TB+1}, 4, v{TB}
    v_xor_b32 v{TB+1}, 4, v{TB+1}
    v_lshl_add_u32 v{vBn[1]}, v{TB+1}, 4, v{TB}
    s_lshl_b32 s{t0}, s{s_hp}, 8
    s_lshl_b32 s{t1}, s{s_rb}, 4
    s_add_u32 s{t0}, s{t0}, s{t1}
    s_lshl_b32 s{t1}, s{s_wave}, 2
    s_add_u32 s{t0}, s{t0}, s{t1}
    s_add_u32 s{t5}, s{t0}, {WS_F4}
    """)
    W23 = opt("wo23", "g2")
    if W23 == "pre":
        lds_spin(g, F_PF, 7, T+2, T+3, "cf")
        g.e(f"s_lshl_b32 s{t3}, s{s_wave}, 7")
        g.e(f"s_add_u32 s{t3}, s{t3}, 512")
        wo_dma(g, vWO, t3, 4, "wo23")
    g.e(f"s_waitcnt vmcnt({16 if W23 == 'pre' else 0})")
    post_flag(g, t5, T+2, T+3)
    if W23 != "pre":
        lds_spin(g, F_PF, 7, T+2, T+3, "cf")
        g.e(f"""
        s_lshl_b32 s{s_wl}, s{s_wave}, 14
        s_add_u32 s{s_wl}, s{s_wl}, 65536
        s_lshl_b32 s{s_wg}, s{s_wl}, 4
        """)
    stamp(g, 9)
    lds_spin(g, F_W1, 3, T+2, T+3, "w1")
    g.e(f"""
    s_lshl_b32 s{t1}, s{s_rb2}, 1
    s_lshr_b32 s{t2}, s{s_wave}, 1
    s_add_u32 s{t1}, s{t1}, s{t2}
    s_lshl_b32 s{t1}, s{t1}, 7
    s_add_u32 s{t1}, s{t1}, {WS_F3}
    """)
    def breads(setb, t16):
        R = []
        for nt in range(2):
            for q in range(2):
                d = setb + 4*nt + 2*q
                R.append(f"ds_read_b64_tr_b16 v[{d}:{d+1}], v{vBn[nt]} offset:{2048*t16 + 1024*q}")
        return R
    BD = int(opt("g2bd", 2))
    assert PRE2 < RING and BD <= 3
    for u in range(BD):
        for x in breads(BF[u], u): g.e(x)
    poll(g, T, T+1, t1, "pf3")
    stamp(g, 8)
    if W23 == "pre":
        g.e("s_waitcnt lgkmcnt(0)")
        lds_set(g, F_WF, s_wave, T+2, T+3)
    g.vm_reset()
    aidx = {}
    def aload(n):
        if n % 4 == 0:
            g.e(f"s_add_u32 s{s_g}, s{s_r}, {n}")
            g.e(f"s_and_b32 s{s_g}, s{s_g}, 63")
            g.e(f"s_lshl_b32 s{s_g}, s{s_g}, 12")
            g.e(f"s_add_u32 s{s_g}, s{s_g}, s{s_ab}")
        d = AR + 4*(n % RING)
        aidx[n] = g.vm(f"buffer_load_dwordx4 v[{d}:{d+3}], v{vAo[n % 4]}, s[{S_WS}:{S_WS+3}], s{s_g} offen{lsc('a')}")
    def wpiece(i):
        blk, m = i // 4, i % 4
        if m == 0:
            g.e(f"s_add_u32 m0, s{s_wl}, {blk*4096}")
            g.e(f"s_add_u32 s{t1}, s{s_wg}, {blk*32*2048}")
        return g.vm(f"buffer_load_dwordx4 v{vWO+m}, s[{S_WO}:{S_WO+3}], s{t1} offen offset:{m*1024}{ntf('wo')} lds")
    W0 = int(opt("w23at", 0)); WPS = int(opt("w23ps", 2))
    wsched = {}
    if W23 != "pre":
        for i in range(16): wsched.setdefault(W0 + i // WPS, []).append(i)
    wlast = None; wflag_done = (W23 == "pre")
    for n in range(PRE2): aload(n)
    g.e("s_setprio 3")
    for t in range(64):
        cur = BF[t % 4]
        A = AR + 4*(t % RING)
        rd_out = min(64, t + BD) - (t + 1)
        g.vm_wait(aidx[t])
        g.e(f"s_waitcnt lgkmcnt({4*rd_out})")
        if not wflag_done and wlast is not None and g.vmdone > wlast and max(wsched) < t:
            lds_set(g, F_WF, s_wave, T+2, T+3); wflag_done = True
            assert t < 32 - BD
        tn = t + BD
        if tn == 32:
            assert wflag_done
            lds_spin(g, F_WF, 3, T+2, T+3, "wf")
        if tn < 64 and tn % 4 == 0:
            g.e(f"s_cmp_eq_u32 s{s_r}, {64 - tn}")
            g.e(f"s_cselect_b32 s{t0}, 0xfffe0000, 0")
            if tn == 32: g.e(f"s_add_u32 s{t0}, s{t0}, 0x10000")
            g.e(f"v_add_u32 v{vBn[0]}, s{t0}, v{vBn[0]}")
            g.e(f"v_add_u32 v{vBn[1]}, s{t0}, v{vBn[1]}")
        R = breads(BF[tn % 4], tn & 31) if tn < 64 else ["", "", "", ""]
        c0 = "0" if t == 0 else f"v[{ACC2[0]}:{ACC2[0]+15}]"
        c1 = "0" if t == 0 else f"v[{ACC2[1]}:{ACC2[1]+15}]"
        g.e(f"v_mfma_f32_32x32x16_bf16 v[{ACC2[0]}:{ACC2[0]+15}], v[{cur}:{cur+3}], v[{A}:{A+3}], {c0}")
        g.e(R[0]); g.e(R[1])
        if PRE2 + t < 64: aload(PRE2 + t)
        g.e(f"v_mfma_f32_32x32x16_bf16 v[{ACC2[1]}:{ACC2[1]+15}], v[{cur+4}:{cur+7}], v[{A}:{A+3}], {c1}")
        g.e(R[2]); g.e(R[3])
        for i in wsched.get(t, []): wlast = wpiece(i)
    g.e("s_waitcnt vmcnt(0) lgkmcnt(0)")
    g.e("s_nop 7")
    g.e("s_nop 3")
    stamp(g, 10)
    O = 32
    for nt in range(2):
        for r in range(0, 16, 2):
            g.e(f"v_cvt_pk_bf16_f32 v{O + nt*8 + r//2}, v{ACC2[nt]+r}, v{ACC2[nt]+r+1}")
    g.e("s_nop 1")
    for nt in range(2):
        for p in range(2):
            x = O + nt*8 + 4*p
            g.e(f"v_permlane32_swap_b32 v{x}, v{x+2}")
            g.e(f"v_permlane32_swap_b32 v{x+1}, v{x+3}")
    g.e(f"""
    v_and_b32 v{T}, 31, v{l}
    s_lshl_b32 s{t0}, s{s_rb2}, 7
    s_lshl_b32 s{t1}, s{s_wave}, 5
    s_add_u32 s{t0}, s{t0}, s{t1}
    v_add_u32 v{T}, s{t0}, v{T}
    v_lshlrev_b32 v{T}, 12, v{T}
    v_lshrrev_b32 v{T+1}, 5, v{l}
    v_lshl_add_u32 v{T}, v{T+1}, 4, v{T}
    s_lshl_b32 s{t0}, s{s_cb2}, 7
    s_add_u32 s{t0}, s{t0}, 2048
    """)
    for nt_ in range(2):
        for p in range(2):
            x = O + nt_*8 + 4*p
            g.e(f"buffer_store_dwordx4 v[{x}:{x+3}], v{T}, s[{S_OUT}:{S_OUT+3}], s{t0} offen offset:{nt_*64 + p*32}{ntf('out')}")
    g.e(f"""
    s_or_b32 s{t0}, s2, s{s_wave}
    s_cmp_lg_u32 s{t0}, 0
    s_cbranch_scc1 L_noep
    s_mov_b32 s{t0}, {WS_EPOCH}
    """)
    post_flag(g, t0, T+2, T+3)
    g.lab("L_noep")
    g.e("s_waitcnt vmcnt(0)")
    flush_stamps(g, 'c')
    g.e("s_endpgm")

def gen_helper(g):
    g.lab("L_helper")
    l = vL
    s_hw = 69
    T = 2
    g.e(f"""
    s_setprio 3
    s_sub_u32 s{s_hw}, s{s_wave}, 4
    s_lshr_b32 s{s_wm}, s{s_hw}, 1
    s_and_b32 s{s_wn}, s{s_hw}, 1
    v_and_b32 v{T}, 31, v{l}
    v_lshlrev_b32 v{T}, 2, v{T}
    s_lshl_b32 s{t1}, s{s_hp}, 7
    s_add_u32 s{t1}, s{t1}, {WS_F2}
    v_lshlrev_b32 v{T+2}, 4, v{l}
    v_and_b32 v{T+3}, 15, v{l}
    v_lshlrev_b32 v{T+3}, 2, v{T+3}
    v_lshrrev_b32 v{T+4}, 4, v{l}
    v_mul_u32_u24 v{T+4}, {KVP_STRIDE}, v{T+4}
    v_add_u32 v{T+3}, v{T+3}, v{T+4}
    s_lshl_b32 s{t2}, s{s_hp}, 4
    s_mul_i32 s{t2}, s{t2}, {KVP_STRIDE}
    s_add_u32 s{t2}, s{t2}, {WS_KVP}
    s_lshl_b32 s{t3}, s{s_hw}, 10
    s_add_u32 s{t3}, s{t3}, s{t2}
    s_lshl_b32 s{t4}, s{s_hw}, 6
    s_add_u32 s{t4}, s{t4}, s{t2}
    s_add_u32 s{t4}, s{t4}, 4096
    """)
    WO1 = opt("wo01", "post")
    if WO1 in ("x2", "x1"):
        nb = 4 if WO1 == "x2" else 2
        g.e(f"s_lshl_b32 s{t5}, s{s_hw}, 7")
        if WO1 == "x1": g.e(f"s_add_u32 s{t5}, s{t5}, 64")
        wo_dma(g, vWO, t5, nb, "wo01")
        g.e(f"""
        s_lshl_b32 s{t1}, s{s_hp}, 7
        s_add_u32 s{t1}, s{t1}, {WS_F2}
        s_lshl_b32 s{t2}, s{s_hp}, 4
        s_mul_i32 s{t2}, s{t2}, {KVP_STRIDE}
        s_add_u32 s{t2}, s{t2}, {WS_KVP}
        """)
    stamp(g, 8)
    poll(g, T, T+1, t1, "pf2")
    stamp(g, 9)
    if WO1 in ("x2", "x1"): lds_set(g, F_W1, s_hw, T+5, T+6)
    PB = 32; ZB = 160
    PROT = opt("prot", "1") == "1"
    s_pi, s_po = 64, 65
    if PROT:
        g.e(f"""
        s_and_b32 s{s_pi}, s{s_rb}, 7
        s_lshl_b32 s{s_pi}, s{s_pi}, 1
        """)
    else:
        g.e(f"s_mov_b32 s{s_pi}, 0")
    for r in range(16):
        d = PB + 4*r
        g.e(f"s_mul_i32 s{s_po}, s{s_pi}, {KVP_STRIDE}")
        g.e(f"s_add_u32 s{t0}, s{t3}, s{s_po}")
        g.e(f"buffer_load_dwordx4 v[{d}:{d+3}], v{T+2}, s[{S_WS}:{S_WS+3}], s{t0} offen{lsc('p')}")
        if r == 0:
            for u in range(4):
                g.e(f"s_add_u32 s{t1}, s{t4}, {4*u*KVP_STRIDE}")
                g.e(f"buffer_load_dword v{ZB+u}, v{T+3}, s[{S_WS}:{S_WS+3}], s{t1} offen{lsc('p')}")
        if r < 15:
            g.e(f"s_add_u32 s{s_pi}, s{s_pi}, 1")
            g.e(f"s_and_b32 s{s_pi}, s{s_pi}, 15")
    PQ = 200
    g.e(f"""
    s_lshl_b32 s{t0}, s{s_hw}, 12
    s_add_u32 s{t0}, s{t0}, {LPQ}
    v_add_u32 v{T+5}, s{t0}, v{T+2}
    """)
    for i in range(4):
        g.e(f"ds_read_b128 v[{PQ+4*i}:{PQ+4*i+3}], v{T+5} offset:{i*1024}")
    g.e("s_waitcnt lgkmcnt(0)")
    lds_set(g, F_PF, s_hw, T+6, T+7)
    stamp(g, 48)
    SA, UT = 96, 104
    for r in range(16):
        g.e(f"s_waitcnt vmcnt({15-r if r else 19})")
        if r in (0, 8, 15): stamp(g, 49 + (r + 1)//8)
        d = PB + 4*r
        for u in range(4):
            o = SA + 2*u if r == 0 else UT + 2*((4*r + u) % 4)
            g.e(f"v_lshlrev_b32 v{o}, 16, v{d+u}")
            g.e(f"v_and_b32 v{o+1}, 0xffff0000, v{d+u}")
        if r > 0:
            for u in range(4):
                o = UT + 2*((4*r + u) % 4)
                g.e(f"v_pk_add_f32 v[{SA+2*u}:{SA+2*u+1}], v[{SA+2*u}:{SA+2*u+1}], v[{o}:{o+1}]")
        if r == 1:
            g.e(f"v_add_f32 v{ZB}, v{ZB}, v{ZB+1}")
            g.e(f"v_add_f32 v{ZB+2}, v{ZB+2}, v{ZB+3}")
            g.e(f"v_add_f32 v{ZB}, v{ZB}, v{ZB+2}")
            g.e(f"v_mov_b32 v{ZB+1}, v{ZB}")
            g.e("s_nop 1")
            g.e(f"v_permlane32_swap_b32 v{ZB}, v{ZB+1}")
            g.e("s_nop 1")
            g.e(f"v_add_f32 v{ZB}, v{ZB}, v{ZB+1}")
            g.e(f"v_mov_b32 v{ZB+1}, v{ZB}")
            g.e("s_nop 1")
            g.e(f"v_permlane16_swap_b32 v{ZB}, v{ZB+1}")
            g.e("s_nop 1")
            g.e(f"v_add_f32 v{ZB}, v{ZB}, v{ZB+1}")
    KX = 180
    for u in range(0, 8, 2):
        g.e(f"v_cvt_pk_bf16_f32 v{KX+u//2}, v{SA+u}, v{SA+u+1}")
    g.e(f"v_cvt_pk_bf16_f32 v{ZB}, v{ZB}, v{ZB}")
    g.e(f"""
    s_lshl_b32 s{t0}, s{s_hw}, 10
    s_add_u32 s{t0}, s{t0}, {LKVX}
    v_add_u32 v{T+5}, s{t0}, v{T+2}
    ds_write_b128 v{T+5}, v[{KX}:{KX+3}]
    s_lshl_b32 s{t0}, s{s_hw}, 5
    s_add_u32 s{t0}, s{t0}, {LZX}
    v_lshlrev_b32 v{T+6}, 1, v{l}
    v_add_u32 v{T+6}, s{t0}, v{T+6}
    s_mov_b64 exec, 0xffff
    ds_write_b16 v{T+6}, v{ZB}
    s_mov_b64 exec, 1
    s_lshl_b32 s{t0}, s{s_hw}, 2
    s_add_u32 s{t0}, s{t0}, {LFLAG}
    v_mov_b32 v{T+6}, s{t0}
    v_mov_b32 v{T+7}, s{s_tag}
    s_waitcnt lgkmcnt(0)
    ds_write_b32 v{T+6}, v{T+7}
    s_mov_b64 exec, -1
    v_mov_b32 v{T+6}, {LFLAG}
    v_and_b32 v{T+7}, 3, v{l}
    v_lshl_add_u32 v{T+6}, v{T+7}, 2, v{T+6}
    s_mov_b32 s{t7}, {MAXSPIN*8}
    """)
    g.lab("L_hsync")
    g.e(f"""
    ds_read_b32 v{T+7}, v{T+6}
    s_waitcnt lgkmcnt(0)
    v_cmp_ne_u32 vcc, s{s_tag}, v{T+7}
    s_cbranch_vccz L_hsyncd
    s_sub_u32 s{t7}, s{t7}, 1
    s_cbranch_scc0 L_hsync
    """)
    g.lab("L_hsyncd")
    stamp(g, 10)
    KF = 184; ZF = 192
    g.e(f"""
    s_lshl_b32 s{t0}, s{s_wn}, 11
    s_add_u32 s{t0}, s{t0}, {LKVX}
    v_add_u32 v{T+5}, s{t0}, v{T+2}
    ds_read_b128 v[{KF}:{KF+3}], v{T+5}
    ds_read_b128 v[{KF+4}:{KF+7}], v{T+5} offset:1024
    s_lshl_b32 s{t0}, s{s_wn}, 6
    s_add_u32 s{t0}, s{t0}, {LZX}
    v_lshrrev_b32 v{T+6}, 5, v{l}
    v_lshlrev_b32 v{T+6}, 4, v{T+6}
    v_add_u32 v{T+6}, s{t0}, v{T+6}
    ds_read_b128 v[{ZF}:{ZF+3}], v{T+6}
    ds_read_b128 v[{ZF+4}:{ZF+7}], v{T+6} offset:32
    s_waitcnt lgkmcnt(0)
    """)
    NUM = [48, 64]; DEN = [80, 96]
    for mt in range(2):
        for q2 in range(2):
            a = KF + 4*q2; z = ZF + 4*q2; b = PQ + mt*8 + q2*4
            c = "0" if q2 == 0 else f"v[{NUM[mt]}:{NUM[mt]+15}]"
            g.e(f"v_mfma_f32_32x32x16_bf16 v[{NUM[mt]}:{NUM[mt]+15}], v[{a}:{a+3}], v[{b}:{b+3}], {c}")
            c = "0" if q2 == 0 else f"v[{DEN[mt]}:{DEN[mt]+15}]"
            g.e(f"v_mfma_f32_32x32x16_bf16 v[{DEN[mt]}:{DEN[mt]+15}], v[{z}:{z+3}], v[{b}:{b+3}], {c}")
    g.e(f"""
    s_lshl_b32 s{t2}, s{s_rb}, 18
    s_lshl_b32 s{t0}, s{s_hp}, 1
    s_add_u32 s{t0}, s{t0}, s{s_wn}
    s_lshl_b32 s{t0}, s{t0}, 13
    s_add_u32 s{t2}, s{t2}, s{t0}
    s_lshl_b32 s{t0}, s{s_wm}, 10
    s_add_u32 s{t2}, s{t2}, s{t0}
    s_add_u32 s{t2}, s{t2}, {WS_O}
    v_and_b32 v{T+5}, 31, v{l}
    v_lshlrev_b32 v{T+5}, 4, v{T+5}
    v_lshrrev_b32 v{T+6}, 5, v{l}
    v_lshl_add_u32 v{T+5}, v{T+6}, 11, v{T+5}
    s_mov_b32 s{t3}, {EPS}
    s_nop 7
    """)
    for mt in range(2):
        g.e(f"v_add_f32 v{DEN[mt]}, s{t3}, v{DEN[mt]}")
    for mt in range(2):
        g.e(f"v_rcp_f32 v{DEN[mt]}, v{DEN[mt]}")
    g.e("s_nop 1")
    OUT = 112
    for mt in range(2):
        for r in range(0, 16, 2):
            g.e(f"v_mul_f32 v{NUM[mt]+r}, v{NUM[mt]+r}, v{DEN[mt]}")
            g.e(f"v_mul_f32 v{NUM[mt]+r+1}, v{NUM[mt]+r+1}, v{DEN[mt]}")
            g.e(f"v_cvt_pk_bf16_f32 v{OUT + mt*8 + r//2}, v{NUM[mt]+r}, v{NUM[mt]+r+1}")
        for q2 in range(2):
            d = OUT + mt*8 + q2*4
            g.e(f"s_add_u32 s{t0}, s{t2}, {q2*4096 + mt*512}")
            g.e(f"buffer_store_dwordx4 v[{d}:{d+3}], v{T+5}, s[{S_WS}:{S_WS+3}], s{t0} offen sc1")
    g.e(f"""
    s_lshl_b32 s{t0}, s{s_rb}, 1
    s_add_u32 s{t0}, s{t0}, s{s_wm}
    s_lshl_b32 s{t0}, s{t0}, 7
    s_lshl_b32 s{t1}, s{s_hp}, 3
    s_add_u32 s{t0}, s{t0}, s{t1}
    s_lshl_b32 s{t1}, s{s_wn}, 2
    s_add_u32 s{t0}, s{t0}, s{t1}
    s_add_u32 s{t4}, s{t0}, {WS_F3}
    s_lshl_b32 s{t3}, s{s_hw}, 7
    """)
    if WO1 in ("x2", "x1"):
        g.e("s_waitcnt vmcnt(0)")
        post_flag(g, t4, T+6, T+7)
        stamp(g, 11)
    elif opt("wo01", "post") == "mid":
        wo_dma(g, vWO, t3, 4, "wo01")
        g.e("s_waitcnt vmcnt(16)")
        post_flag(g, t4, T+6, T+7)
        stamp(g, 11)
        g.e("s_waitcnt vmcnt(1)")
    else:
        g.e("s_waitcnt vmcnt(0)")
        post_flag(g, t4, T+6, T+7)
        stamp(g, 11)
        wo_dma(g, vWO, t3, 4, "wo01")
    Y = 32; Q = 64; F = 96; OUT = 112
    g.e(f"""
    v_and_b32 v{T}, 7, v{l}
    v_lshrrev_b32 v{T+1}, 3, v{l}
    s_lshl_b32 s{t0}, s{s_hw}, 3
    v_add_u32 v{T+1}, s{t0}, v{T+1}
    v_lshlrev_b32 v{T+1}, 2, v{T+1}
    s_lshl_b32 s{t0}, s{s_rb}, 7
    v_add_u32 v{T+1}, s{t0}, v{T+1}
    v_lshlrev_b32 v{T+2}, 3, v{T}
    s_lshl_b32 s{t0}, s{s_hp}, 6
    v_add_u32 v{T+2}, s{t0}, v{T+2}
    v_lshlrev_b32 v{T+3}, 12, v{T+2}
    v_lshl_add_u32 v{T+3}, v{T+1}, 1, v{T+3}
    v_lshlrev_b32 v{T+4}, 11, v{T+1}
    v_lshl_add_u32 v{T+4}, v{T+2}, 1, v{T+4}
    v_lshlrev_b32 v{T+5}, 12, v{T+1}
    v_lshl_add_u32 v{T+5}, v{T+2}, 1, v{T+5}
    s_mov_b32 s{t1}, 4096
    """)
    for i in range(4):
        so = "0" if i < 2 else f"s{t1}"
        g.e(f"buffer_load_dwordx4 v[{Q+4*i}:{Q+4*i+3}], v{T+4}, s[{S_Q}:{S_Q+3}], {so} offen offset:{(i&1)*2048}{ntf('q')}")
    if WO1 not in ("x2", "x1"):
        g.e("s_waitcnt vmcnt(4)")
        lds_set(g, F_W1, s_hw, T+6, T+7)
    stamp(g, 12)
    g.e(f"""
    v_lshlrev_b32 v{T}, 2, v{l}
    s_lshl_b32 s{t1}, s{s_hp}, 8
    s_add_u32 s{t1}, s{t1}, {WS_F4}
    s_setprio 0
    """)
    poll(g, T, T+6, t1, "pf4")
    stamp(g, 13)
    for j in range(8):
        g.e(f"s_mov_b32 s{t0}, {WS_YT + j*4096}")
        g.e(f"buffer_load_dwordx2 v[{Y+2*j}:{Y+2*j+1}], v{T+3}, s[{S_WS}:{S_WS+3}], s{t0} offen{lsc('y')}")
    g.e("s_waitcnt vmcnt(0)")
    for i in range(4):
        for m in range(4):
            a, b, c, d = F + 4*(m & 1), F+1 + 4*(m & 1), F+2 + 4*(m & 1), F+3 + 4*(m & 1)
            qd = Q + 4*i + m
            y0 = Y + 2*(2*m) + i//2; y1 = Y + 2*(2*m+1) + i//2
            g.e(f"v_lshlrev_b32 v{a}, 16, v{qd}")
            g.e(f"v_and_b32 v{b}, 0xffff0000, v{qd}")
            if i % 2 == 0:
                g.e(f"v_lshlrev_b32 v{c}, 16, v{y0}")
                g.e(f"v_lshlrev_b32 v{d}, 16, v{y1}")
            else:
                g.e(f"v_and_b32 v{c}, 0xffff0000, v{y0}")
                g.e(f"v_and_b32 v{d}, 0xffff0000, v{y1}")
            g.e(f"v_pk_mul_f32 v[{a}:{b}], v[{a}:{b}], v[{c}:{d}]")
            g.e(f"v_cvt_pk_bf16_f32 v{OUT+4*i+m}, v{a}, v{b}")
        g.e(f"s_mov_b32 s{t0}, {i*4096}")
        g.e(f"buffer_store_dwordx4 v[{OUT+4*i}:{OUT+4*i+3}], v{T+5}, s[{S_OUT}:{S_OUT+3}], s{t0} offen{ntf('out')}")
    g.e("s_waitcnt vmcnt(0)")
    flush_stamps(g, 'h')
    g.lab("L_end")
    g.e("s_endpgm")

HDR = open("concat_heads__ssm_conv_h3__linear_attn_block__prompt.s.ref").read().split("; Override")[0]
def full():
    g = G()
    g.L.append(khead(NAME))
    gen_entry(g)
    gen_hyb(g)
    gen_compute(g)
    gen_helper(g)
    s = HDR
    s += f"; @launch grid=(256,1,1) block=(512,1,1) lds={LDS_TOTAL}\n"
    s += '.amdgcn_target "amdgcn-amd-amdhsa--gfx950"\n.text\n'
    s += g.text() + kdesc(NAME, 256)
    return s
if __name__ == "__main__":
    if "--prof" in sys.argv:
        PROF = True; sys.argv.remove("--prof")
    for a in list(sys.argv):
        if a.startswith("--opt="):
            for kv in a[6:].split(","):
                k, v = kv.split("="); OPT[k] = v
            sys.argv.remove(a)
    for a in list(sys.argv):
        if a.startswith("--nt="):
            NT = set(a[5:].split(",")); sys.argv.remove(a)
    out = sys.argv[1] if len(sys.argv) > 1 else "v7.s"
    open(out, "w").write(full())
    print("wrote", out)
```

```python
import sys
from dsl import *
NAME = "concat_heads__ssm_conv_h3__linear_attn_block__prompt_kernel"
WS_EPOCH = 0x0
WS_F1 = 0x1000
WS_F2 = 0x2000
WS_F3 = 0x3000
WS_F4 = 0x4000
WS_XR = 0x10000
WS_YT = 0x410000
WS_O  = 0x810000
WS_KVP = 0xC10000
KVP_STRIDE = 4352
WS_SIZE = 0x1000000
LA, LB = 0, 49152
LH = 122880; H_STRIDE = 8320
LX = 73728; X_STRIDE = 4576
LPQ = 92160
LRED = 108544
LKVX = 156160
LZX = 160256
LFLAG = 160512
F_HS, F_X1, F_HF, F_PF, F_CF, F_WF, F_QF, F_W1 = 0, 16, 32, 48, 64, 80, 96, 112
LDS_TOTAL = 163840
LOG2E = 0x3fb8aa3b
EPS   = 0x358637bd
NB_SD = 2048*1024*2
MAXSPIN = int(__import__("os").environ.get("MAXSPIN", 20000))

PROF = False
OPT = {}
NT = set(["kv", "h"])
def lsc(k): return '' if k in opt('pl', '').split('+') else ' sc1'
def ntf(k): return ' nt' if k in NT else ''
PROF_OFF = 0x8000000
def opt(k, d=None): return OPT.get(k, d)

def ostm(k):
    m = opt("ost" + k, opt("ost", ""))
    return {"": "", "nt": " nt", "sc1": " sc1", "sc01": " sc0 sc1", "sc1nt": " sc1 nt", "sc0": " sc0", "all": " sc0 sc1 nt"}[m]

S_X, S_W, S_WS, S_K, S_V, S_SK, S_H, S_D, S_WO, S_OUT, S_Q = 4, 8, 12, 16, 20, 24, 28, 32, 36, 40, 44
s_rb, s_hp, s_wave, s_tag, s_wm, s_wn, s_rb2, s_cb2 = 48, 49, 50, 51, 52, 53, 54, 55
t0, t1, t2, t3, t4, t5, t6, t7 = 56, 57, 58, 59, 60, 61, 62, 63
S_PF = 92
vL = 250
vJ = 251
vWO = 244

vST = 249
def stamp(g, k, sreg=None):
    if not PROF: return
    if opt("lite") and (k not in (0, 15) or sreg is not None): return
    g.e(f"s_memrealtime s[88:89]")
    if sreg is not None: g.e(f"s_add_u32 m0, s{sreg}, {k}")
    g.e("s_waitcnt lgkmcnt(0)")
    g.e(f"v_writelane_b32 v{vST}, s88, {k if sreg is None else 'm0'}")
def stampc(g, k):
    if not PROF or opt("lite"): return
    g.e(f"s_memtime s[88:89]")
    g.e("s_waitcnt lgkmcnt(0)")
    g.e(f"v_writelane_b32 v{vST}, s88, {k}")
def init_stamps(g):
    if not PROF: return
    g.e(f"v_mov_b32 v{vST}, 0")
def flush_stamps(g, cls):
    if not PROF: return
    stamp(g, 15)
    if not opt("lite"): g.e(f"""
    s_load_dwordx2 s[64:65], s[0:1], 88
    s_mov_b32 s66, 0x10000000
    s_mov_b32 s67, 0x20000
    s_lshl_b32 s68, s2, 3
    s_add_u32 s68, s68, s{s_wave}
    s_lshl_b32 s68, s68, 8
    s_add_u32 s68, s68, {PROF_OFF}
    v_lshlrev_b32 v2, 2, v{vL}
    s_waitcnt lgkmcnt(0)
    buffer_store_dword v{vST}, v2, s[64:67], s68 offen
    s_waitcnt vmcnt(0)
    """)
    if opt("amp"):
        a, b, mult, cl_, wg = opt("amp").split(".")
        if cl_ == cls:
            lab = g.newlabel("amp"); done = g.newlabel("ampd")
            g.e(f"""
            s_cmp_lg_u32 s2, {wg if wg != 'a' else 's2'}
            s_cbranch_scc1 {done}
            v_readlane_b32 s64, v{vST}, {a}
            v_readlane_b32 s65, v{vST}, {b}
            v_readlane_b32 s66, v{vST}, 15
            s_nop 1
            s_sub_u32 s64, s65, s64
            s_mul_i32 s64, s64, {mult}
            s_min_u32 s64, s64, 30000
            """)
            g.lab(lab)
            g.e(f"""
            s_memrealtime s[88:89]
            s_waitcnt lgkmcnt(0)
            s_sub_u32 s65, s88, s66
            s_cmp_lt_u32 s65, s64
            s_cbranch_scc1 {lab}
            """)
            g.lab(done)

def srd_load(g, base, koff):
    g.e(f"s_load_dwordx2 s[{base}:{base+1}], s[0:1], {koff}")
def srd_const(g, base, nbytes):
    g.e(f"s_mov_b32 s{base+2}, {nbytes}")
    g.e(f"s_mov_b32 s{base+3}, 0x20000")
SRD_INFO = {S_X: (48, NB_SD), S_W: (56, 1024*3072*2), S_WS: (88, WS_SIZE), S_K: (8, NB_SD), S_V: (16, NB_SD),
            S_SK: (24, 1024*4*2), S_H: (32, NB_SD), S_D: (40, 2048), S_WO: (64, 1024*1024*2),
            S_OUT: (72, 2048*2048*2), S_Q: (0, NB_SD)}
def srds(g, lst):
    for b in lst: srd_load(g, b, SRD_INFO[b][0])
    for b in lst: srd_const(g, b, SRD_INFO[b][1])

def poll(g, vaddr, vtmp, soff, name):
    lab = g.newlabel(name); done = g.newlabel(name + "d")
    NP = int(opt("np_" + name, opt("np", 1)))
    g.e(f"s_mov_b32 s{t7}, {MAXSPIN}")
    if NP > 1:
        R = [252 + i for i in range(NP)]
        ld = lambda r: g.e(f"buffer_load_dword v{r}, v{vaddr}, s[{S_WS}:{S_WS+3}], s{soff} offen sc1")
        for i in range(NP - 1):
            ld(R[i])
            g.e(f"s_sleep {int(opt('npsl', 4))}")
        g.lab(lab)
        for i in range(NP):
            ld(R[(i + NP - 1) % NP])
            g.e(f"s_waitcnt vmcnt({NP-1})")
            g.e(f"v_cmp_ne_u32 vcc, s{s_tag}, v{R[i]}")
            g.e(f"s_cbranch_vccz {done}")
        g.e(f"s_sub_u32 s{t7}, s{t7}, 1")
        g.e(f"s_cbranch_scc0 {lab}")
        g.lab(done)
        return NP - 1
    g.lab(lab)
    g.e(f"buffer_load_dword v{vtmp}, v{vaddr}, s[{S_WS}:{S_WS+3}], s{soff} offen sc1")
    g.e("s_waitcnt vmcnt(0)")
    g.e(f"v_cmp_ne_u32 vcc, s{s_tag}, v{vtmp}")
    g.e(f"s_cbranch_vccz {done}")
    g.e(f"s_sub_u32 s{t7}, s{t7}, 1")
    g.e(f"s_cbranch_scc1 {done}")
    g.e("s_sleep 1")
    g.e(f"s_branch {lab}")
    g.lab(done)
    return 0

def post_flag(g, soff, vz, vt):
    g.e(f"""
    v_mov_b32 v{vz}, 0
    v_mov_b32 v{vt}, s{s_tag}
    s_mov_b64 exec, 1
    buffer_store_dword v{vt}, v{vz}, s[{S_WS}:{S_WS+3}], s{soff} offen sc1
    s_mov_b64 exec, -1
    """)

def lds_set(g, off, sidx, va, vt):
    g.e(f"""
    s_lshl_b32 s{t6}, s{sidx}, 2
    s_add_u32 s{t6}, s{t6}, {LFLAG + off}
    v_mov_b32 v{va}, s{t6}
    v_mov_b32 v{vt}, s{s_tag}
    ds_write_b32 v{va}, v{vt}
    """)
def lds_spin(g, off, nmask, va, vt, name, sidx=None):
    lab = g.newlabel(name); done = g.newlabel(name + "d")
    if sidx is None:
        g.e(f"v_and_b32 v{va}, {nmask}, v{vL}")
        g.e(f"v_lshlrev_b32 v{va}, 2, v{va}")
        g.e(f"v_add_u32 v{va}, {LFLAG + off}, v{va}")
    else:
        g.e(f"s_lshl_b32 s{t6}, s{sidx}, 2")
        g.e(f"s_add_u32 s{t6}, s{t6}, {LFLAG + off}")
        g.e(f"v_mov_b32 v{va}, s{t6}")
    g.e(f"s_mov_b32 s{t7}, {MAXSPIN*8}")
    g.lab(lab)
    g.e(f"""
    ds_read_b32 v{vt}, v{va}
    s_waitcnt lgkmcnt(0)
    v_cmp_ne_u32 vcc, s{s_tag}, v{vt}
    s_cbranch_vccz {done}
    s_sub_u32 s{t7}, s{t7}, 1
    s_cbranch_scc0 {lab}
    """)
    g.lab(done)

def phi_pairs(g, regs, tmp, s_l2e, s_eps, outs):
    n = len(regs)
    for i in range(0, n, 2):
        a, b = regs[i], regs[i+1]
        ta, tb = tmp, tmp + 2
        g.e(f"v_pk_mul_f32 v[{ta}:{ta+1}], v[{a}:{a+1}], s[{s_l2e}:{s_l2e+1}]")
        g.e(f"v_pk_mul_f32 v[{tb}:{tb+1}], v[{b}:{b+1}], s[{s_l2e}:{s_l2e+1}]")
        g.e(f"v_exp_f32_e64 v{ta}, v{ta} clamp")
        g.e(f"v_exp_f32_e64 v{ta+1}, v{ta+1} clamp")
        g.e(f"v_exp_f32_e64 v{tb}, v{tb} clamp")
        g.e(f"v_exp_f32_e64 v{tb+1}, v{tb+1} clamp")
        g.e(f"v_max_f32 v{a}, 0, v{a}")
        g.e(f"v_max_f32 v{a+1}, 0, v{a+1}")
        g.e(f"v_max_f32 v{b}, 0, v{b}")
        g.e(f"v_max_f32 v{b+1}, 0, v{b+1}")
        g.e(f"v_pk_add_f32 v[{a}:{a+1}], v[{a}:{a+1}], v[{ta}:{ta+1}]")
        g.e(f"v_pk_add_f32 v[{b}:{b+1}], v[{b}:{b+1}], v[{tb}:{tb+1}]")
        g.e(f"v_pk_add_f32 v[{a}:{a+1}], v[{a}:{a+1}], s[{s_eps}:{s_eps+1}]")
        g.e(f"v_pk_add_f32 v[{b}:{b+1}], v[{b}:{b+1}], s[{s_eps}:{s_eps+1}]")
        g.e(f"v_cvt_pk_bf16_f32 v{outs[i]}, v{a}, v{a+1}")
        g.e(f"v_cvt_pk_bf16_f32 v{outs[i+1]}, v{b}, v{b+1}")

def gen_entry(g):
    g.e(f"s_cmp_ge_u32 s2, 256")
    g.e(f"s_cbranch_scc1 L_end")
    init_stamps(g)
    stamp(g, 0)
    for b in (S_X, S_W, S_WS, S_K, S_V, S_H, S_WO, S_Q, S_SK, S_D, S_OUT): srd_load(g, b, SRD_INFO[b][0])
    g.e(f"""
    v_lshrrev_b32 v1, 6, v0
    s_and_b32 s{t0}, s2, 7
    s_lshr_b32 s{t1}, s2, 3
    v_readfirstlane_b32 s{s_wave}, v1
    s_and_b32 s{s_rb}, s{t0}, 1
    s_lshl_b32 s{s_rb}, s{s_rb}, 3
    s_lshr_b32 s{t2}, s{t0}, 1
    s_xor_b32 s{t2}, s{t2}, {int(opt('hgx', 0))}
    s_lshl_b32 s{s_hp}, s{t2}, 2
    s_and_b32 s{t2}, s{t1}, 7
    s_or_b32 s{s_rb}, s{s_rb}, s{t2}
    s_lshr_b32 s{t2}, s{t1}, 3
    s_xor_b32 s{t2}, s{t2}, {int(opt('hpx', 0))}
    s_or_b32 s{s_hp}, s{s_hp}, s{t2}
    v_and_b32 v{vL}, 63, v0
    s_lshl_b32 s{s_rb2}, s{t0}, 1
    s_and_b32 s{t2}, s{t1}, 1
    s_or_b32 s{s_rb2}, s{s_rb2}, s{t2}
    s_lshr_b32 s{s_cb2}, s2, 4
    """)
    for b in (S_X, S_W, S_WS): srd_const(g, b, SRD_INFO[b][1])
    g.e(f"s_cmp_lt_u32 s{s_wave}, 4")
    g.e(f"s_cbranch_scc1 L_compute")

def wo_dma_setup(g, vW, T):
    g.e(f"""
    v_lshrrev_b32 v{T}, 3, v{vL}
    v_lshlrev_b32 v{T}, 11, v{T}
    v_lshrrev_b32 v{T+1}, 4, v{vL}
    v_and_b32 v{T+1}, 1, v{T+1}
    v_lshlrev_b32 v{T+1}, 2, v{T+1}
    v_and_b32 v{T+2}, 7, v{vL}
    v_xor_b32 v{T+1}, v{T+1}, v{T+2}
    v_lshl_add_u32 v{T}, v{T+1}, 4, v{T}
    s_lshl_b32 s{t0}, s{s_cb2}, 7
    v_add_u32 v{vW}, s{t0}, v{T}
    """)
    for m in range(1, 4):
        g.e(f"v_add_u32 v{vW+m}, {m*(8*2048 - 1024)}, v{vW}")
def wo_dma(g, vW, s_row0, nblk, name):
    lab = g.newlabel(name)
    g.e(f"""
    s_lshl_b32 s{t0}, s{s_row0}, 7
    s_lshl_b32 s{t1}, s{s_row0}, 11
    s_mov_b32 s{t2}, {nblk}
    """)
    g.lab(lab)
    g.e(f"s_mov_b32 m0, s{t0}")
    g.e(f"s_add_u32 s{t0}, s{t0}, 4096")
    for m in range(4):
        g.e(f"buffer_load_dwordx4 v{vW+m}, s[{S_WO}:{S_WO+3}], s{t1} offen offset:{m*1024}{ntf('wo')} lds")
    g.e(f"s_add_u32 s{t1}, s{t1}, {32*2048}")
    g.e(f"s_sub_u32 s{t2}, s{t2}, 1")
    g.e(f"s_cmp_lg_u32 s{t2}, 0")
    g.e(f"s_cbranch_scc1 {lab}")

def gen_hyb(g):
    g.lab("L_hyb")
    l = vL
    s_hw = 69
    vAo = [2, 3, 4, 5]; vBo = [[6 + 2*sec + i for i in range(2)] for sec in range(3)]
    T = 24
    g.e(f"""
    s_sub_u32 s{s_hw}, s{s_wave}, 4
    v_lshrrev_b32 v{T}, 3, v{l}
    s_lshl_b32 s{t0}, s{s_rb}, 7
    s_lshl_b32 s{t1}, s{s_hw}, 5
    s_add_u32 s{t0}, s{t0}, s{t1}
    v_add_u32 v{T+1}, s{t0}, v{T}
    v_lshlrev_b32 v{T+1}, 11, v{T+1}
    v_lshrrev_b32 v{T+2}, 4, v{l}
    v_and_b32 v{T+3}, 7, v{l}
    v_xor_b32 v{T+4}, v{T+2}, v{T+3}
    v_xor_b32 v{T+5}, 4, v{T+4}
    v_lshl_add_u32 v{T+4}, v{T+4}, 4, v{T+1}
    v_lshl_add_u32 v{T+5}, v{T+5}, 4, v{T+1}
    """)
    for i in range(4):
        g.e(f"v_add_u32 v{vAo[i]}, {i*8*2048 - 1024*i}, v{T + 4 + (i&1)}" if i else f"v_mov_b32 v{vAo[0]}, v{T+4}")
    g.e(f"""
    s_lshl_b32 s{t0}, s{s_hw}, 4
    v_add_u32 v{T+1}, s{t0}, v{T}
    s_movk_i32 s{t1}, 6144
    v_mul_lo_u32 v{T+1}, v{T+1}, s{t1}
    v_and_b32 v{T+2}, 1, v{T+2}
    v_lshlrev_b32 v{T+2}, 2, v{T+2}
    v_xor_b32 v{T+2}, v{T+2}, v{T+3}
    v_lshl_add_u32 v{T+1}, v{T+2}, 4, v{T+1}
    s_xor_b32 s{t0}, s{s_hp}, {int(opt('wx', 0))}
    s_lshl_b32 s{t0}, s{t0}, 7
    v_add_u32 v{T+1}, s{t0}, v{T+1}
    """)
    for sec in range(3):
        for i in range(2):
            g.e(f"v_add_u32 v{vBo[sec][i]}, {i*(8*6144 - 1024) + sec*2048}, v{T+1}")
    s_SA, s_SB, s_OA, s_OB, s_cnt, s_wrap = 64, 65, 66, 67, 68, 70
    STG = int(opt("stg", 1))
    g.e(f"""
    s_lshl_b32 s{s_SA}, s{s_hw}, 12
    s_lshl_b32 s{s_SB}, s{s_hw}, 11
    s_add_u32 s{s_SB}, s{s_SB}, {LB}
    s_mov_b32 s{s_cnt}, 0
    s_add_u32 s{s_wrap}, s{s_SA}, {3*16384}
    """)
    if STG == 0:
        g.e(f"s_mov_b32 s{s_OA}, 0")
        g.e(f"s_mov_b32 s{s_OB}, 0")
    elif STG >= 3:
        A_, B_, C_ = int(opt("sA", "0xECA86420"), 0), int(opt("sB", "0xC840"), 0), int(opt("sC", "0"), 0)
        g.e(f"""
        s_lshr_b32 s{t0}, s2, 3
        s_and_b32 s{t0}, s{t0}, 7
        s_lshl_b32 s{t0}, s{t0}, 2
        s_lshr_b32 s{t0}, {A_}, s{t0}
        s_lshr_b32 s{t1}, s2, 6
        s_lshl_b32 s{t1}, s{t1}, 2
        s_lshr_b32 s{t1}, {B_}, s{t1}
        s_add_u32 s{t0}, s{t0}, s{t1}
        s_and_b32 s{t1}, s2, 7
        s_lshl_b32 s{t1}, s{t1}, 2
        s_lshr_b32 s{t1}, {C_}, s{t1}
        s_add_u32 s{t0}, s{t0}, s{t1}
        s_and_b32 s{t0}, s{t0}, 15
        s_lshl_b32 s{s_OA}, s{t0}, 7
        s_mul_i32 s{s_OB}, s{t0}, {64*6144}
        """)
    else:
        g.e(f"""
        s_and_b32 s{t0}, s2, 7
        s_lshr_b32 s{t1}, s{t0}, 1
        s_lshl_b32 s{t1}, s{t1}, 2
        s_and_b32 s{t0}, s{t0}, 1
        s_lshl_b32 s{t0}, s{t0}, 3
        s_add_u32 s{t0}, s{t0}, s{t1}
        """)
        if STG == 2:
            g.e(f"s_lshr_b32 s{t1}, s2, 3")
            g.e(f"s_and_b32 s{t1}, s{t1}, 1")
            g.e(f"s_lshl_b32 s{t1}, s{t1}, 1")
            g.e(f"s_add_u32 s{t0}, s{t0}, s{t1}")
        g.e(f"""
        s_and_b32 s{t0}, s{t0}, 15
        s_lshl_b32 s{s_OA}, s{t0}, 7
        s_mul_i32 s{s_OB}, s{t0}, {64*6144}
        """)
    g.e(f"""
    s_waitcnt lgkmcnt(0)
    s_load_dword s{s_tag}, s[{S_WS}:{S_WS+1}], {WS_EPOCH}
    """)
    def issue():
        if "nodma" in opt("abl", "") and getattr(issue, "n", 0) >= 2:
            return
        issue.n = getattr(issue, "n", 0) + 1
        g.e(f"s_mov_b32 m0, s{s_SA}")
        g.e(f"s_add_u32 s{s_SA}, s{s_SA}, 16384")
        for i in range(4):
            g.e(f"buffer_load_dwordx4 v{vAo[i]}, s[{S_X}:{S_X+3}], s{s_OA} offen offset:{1024*i}{ntf('x')} lds")
        for sec in range(3):
            g.e(f"s_add_u32 m0, s{s_SB}, {sec*8192}")
            if sec == 0: g.e(f"s_add_u32 s{s_OA}, s{s_OA}, 128")
            else: g.e("s_nop 0")
            for i in range(2):
                g.e(f"buffer_load_dwordx4 v{vBo[sec][i]}, s[{S_W}:{S_W+3}], s{s_OB} offen offset:{1024*i}{ntf('w')} lds")
        g.e(f"""
        s_add_u32 s{s_OB}, s{s_OB}, {64*6144}
        s_add_u32 s{s_SB}, s{s_SB}, 24576
        s_cmp_eq_u32 s{s_SA}, s{s_wrap}
        s_cselect_b32 s{t0}, {3*16384}, 0
        s_cselect_b32 s{t1}, {3*24576}, 0
        s_sub_u32 s{s_SA}, s{s_SA}, s{t0}
        s_sub_u32 s{s_SB}, s{s_SB}, s{t1}
        """)
        if STG:
            g.e(f"s_cmp_eq_u32 s{s_OA}, 2048")
            g.e(f"s_cselect_b32 s{s_OA}, 0, s{s_OA}")
            g.e(f"s_cselect_b32 s{s_OB}, 0, s{s_OB}")
    NB = 10
    issue()
    stamp(g, 1)
    issue()
    for b in (S_K, S_V, S_SK, S_H, S_D, S_WO, S_Q, S_OUT): srd_const(g, b, SRD_INFO[b][1])
    wo_dma_setup(g, vWO, 240)
    vKb, vSt, vSK = 12, 15, 36
    vNeg = [37, 38, 39]
    KR = 40
    VR = 64
    WR = 80
    T = 24
    g.e(f"""
    v_and_b32 v{T}, 15, v{l}
    v_lshlrev_b32 v{T}, 3, v{T}
    s_lshl_b32 s{t0}, s{s_hp}, 7
    v_add_u32 v{T}, s{t0}, v{T}
    v_lshrrev_b32 v{T+1}, 4, v{l}
    v_lshlrev_b32 v{T+1}, 3, v{T+1}
    s_lshl_b32 s{t0}, s{s_rb}, 7
    s_lshl_b32 s{t1}, s{s_hw}, 5
    s_add_u32 s{t0}, s{t0}, s{t1}
    v_add_u32 v{T+1}, s{t0}, v{T+1}
    v_lshl_add_u32 v{vKb}, v{T+1}, 11, v{T}
    v_mov_b32 v{T+2}, 0x80000000
    v_cmp_eq_u32 vcc, 0, v{T+1}
    v_lshlrev_b32 v{vSK}, 2, v{T}
    v_lshlrev_b32 v{vSt}, 11, v{T}
    v_lshlrev_b32 v{T+3}, 1, v{T+1}
    v_sub_u32 v{T+3}, 4080, v{T+3}
    v_add_u32 v{vSt}, v{vSt}, v{T+3}
    v_lshlrev_b32 v13, 4, v{l}
    v_add_u32 v14, 2, v13
    v_mov_b32 v176, 0
    v_mov_b32 v177, 0
    v_mov_b32 v178, 0
    v_mov_b32 v179, 0
    """)
    for i in range(3):
        g.e(f"v_subrev_u32 v{vNeg[i]}, {(3-i)*2048}, v{vKb}")
    for i in range(3):
        g.e(f"v_cndmask_b32 v{vNeg[i]}, v{vNeg[i]}, v{T+2}, vcc")
    s_ch = 71
    for m in range(1, 4):
        g.e(f"s_mov_b32 s{71+m}, {m*4096}")
    def soff(row): return "0" if row < 2 else f"s{71 + row//2}"
    g.e(f"""
    s_lshl_b32 s{s_ch}, s{s_hp}, 6
    s_lshl_b32 s{t0}, s{s_rb}, 2
    s_add_u32 s{s_ch}, s{s_ch}, s{t0}
    s_add_u32 s{s_ch}, s{s_ch}, s{s_hw}
    s_setprio 1
    s_waitcnt lgkmcnt(0)
    s_add_u32 s{s_tag}, s{s_tag}, 1
    s_not_b32 s{t0}, s{s_tag}
    v_mov_b32 v{T+2}, s{t0}
    v_lshlrev_b32 v{T+3}, 2, v{l}
    v_add_u32 v{T+3}, {LFLAG}, v{T+3}
    s_mov_b32 exec_hi, 0
    ds_write_b32 v{T+3}, v{T+2}
    s_mov_b64 exec, -1
    s_waitcnt vmcnt({NB}) lgkmcnt(0)
    """)
    stamp(g, 2)
    g.e("s_barrier")
    KF, WF, XO, VF, OUT = 112, 134, 142, 158, 160
    T = 16
    def kv_list():
        L = []
        for i in range(2):
            L.append(f"buffer_load_dwordx4 v[{WR+4*i}:{WR+4*i+3}], v{vSK}, s[{S_SK}:{S_SK+3}], 0 offen offset:{16*i}")
        for i in range(3):
            L.append(f"buffer_load_dwordx2 v[{KR+2*i}:{KR+2*i+1}], v{vNeg[i]}, s[{S_K}:{S_K+3}], 0 offen{ntf('kv')}")
        for r in range(8):
            L.append(f"buffer_load_dwordx2 v[{KR+6+2*r}:{KR+6+2*r+1}], v{vKb}, s[{S_K}:{S_K+3}], {soff(r)} offen offset:{(r&1)*2048}{ntf('kv')}")
        for r in range(8):
            L.append(f"buffer_load_dwordx2 v[{VR+2*r}:{VR+2*r+1}], v{vKb}, s[{S_V}:{S_V+3}], {soff(r)} offen offset:{(r&1)*2048}{ntf('kv')}")
        return L
    def mk_kv(part):
        def f():
            for x in part: g.e(x)
            return len(part)
        return f
    def h_dma():
        g.e(f"s_lshl_b32 s{t0}, s{s_ch}, 12")
        g.e(f"s_mul_i32 s{t1}, s{s_hw}, {H_STRIDE}")
        g.e(f"s_add_u32 m0, s{t1}, {LH + 32}")
        g.e("s_nop 0")
        for m in range(4):
            g.e(f"buffer_load_dwordx4 v13, s[{S_H}:{S_H+3}], s{t0} offen offset:{m*1024}{ntf('h')} lds")
        g.e(f"s_add_u32 m0, s{t1}, {LH + 4160 + 32}")
        g.e("s_nop 0")
        for m in range(4):
            g.e(f"buffer_load_dwordx4 v14, s[{S_H}:{S_H+3}], s{t0} offen offset:{m*1024}{ntf('h')} lds")
        g.e(f"s_lshl_b32 s{t0}, s{s_ch}, 1")
        g.e(f"v_mov_b32 v35, 0")
        g.e(f"buffer_load_ushort v35, v35, s[{S_D}:{S_D+3}], s{t0} offen")
        return 9
    def unpack(dst, src):
        g.e(f"v_lshlrev_b32 v{dst}, 16, v{src}")
        g.e(f"v_and_b32 v{dst+1}, 0xffff0000, v{src}")
    def piece(p, half):
        ob = OUT + 8*p
        if half == 0:
            for c in range(2):
                w = WR + 2*(2*p + c)
                g.e(f"v_lshlrev_b32 v{WF+0+c}, 16, v{w}")
                g.e(f"v_and_b32 v{WF+2+c}, 0xffff0000, v{w}")
                g.e(f"v_lshlrev_b32 v{WF+4+c}, 16, v{w+1}")
                g.e(f"v_and_b32 v{WF+6+c}, 0xffff0000, v{w+1}")
            for r in range(11): unpack(KF + 2*r, KR + 2*r + p)
        for s_ in (range(0, 2) if half == 0 else range(2, 8)):
            o = XO + 2*s_
            for j in range(4):
                k = KF + 2*(s_ + 3 - j); w = WF + 2*j
                if j == 0: g.e(f"v_pk_mul_f32 v[{o}:{o+1}], v[{k}:{k+1}], v[{w}:{w+1}]")
                else: g.e(f"v_pk_fma_f32 v[{o}:{o+1}], v[{k}:{k+1}], v[{w}:{w+1}], v[{o}:{o+1}]")
            unpack(VF, VR + 2*s_ + p)
            g.e(f"v_pk_mul_f32 v[{o}:{o+1}], v[{o}:{o+1}], v[{VF}:{VF+1}]")
        if half == 1:
            for c in range(2):
                for m in range(4):
                    g.e(f"v_cvt_pk_bf16_f32 v{ob+4*c+m}, v{XO+2*(7-2*m)+c}, v{XO+2*(6-2*m)+c}")
    def xr_stores():
        for p in range(2):
            ob = OUT + 8*p
            for c in range(2):
                g.e(f"s_mov_b32 s{t0}, {WS_XR + (2*p + c)*4096}")
                g.e(f"buffer_store_dwordx4 v[{ob+4*c}:{ob+4*c+3}], v{vSt}, s[{S_WS}:{S_WS+3}], s{t0} offen sc1")
        return 4
    def f1_flag():
        g.e(f"""
        s_lshl_b32 s{t0}, s{s_hp}, 8
        s_lshl_b32 s{t1}, s{s_rb}, 4
        s_add_u32 s{t0}, s{t0}, s{t1}
        s_lshl_b32 s{t1}, s{s_hw}, 2
        s_add_u32 s{t0}, s{t0}, s{t1}
        s_add_u32 s{t0}, s{t0}, {WS_F1}
        """)
        post_flag(g, t0, T, T+1)
        return 1
    def h_fix():
        g.e(f"""
        s_mul_i32 s{t1}, s{s_hw}, {H_STRIDE}
        s_add_u32 s{t1}, s{t1}, {LH}
        v_mov_b32 v{T}, s{t1}
        ds_read_u16 v{T+1}, v{T} offset:32
        v_lshlrev_b32 v35, 16, v35
        s_waitcnt lgkmcnt(0)
        v_lshlrev_b32 v{T+1}, 16, v{T+1}
        v_add_f32 v{T+1}, v{T+1}, v35
        v_cvt_pk_bf16_f32 v{T+1}, v{T+1}, v{T+1}
        v_and_b32 v{T+2}, 0xffff0000, v{T+1}
        s_mov_b64 exec, 1
        ds_write_b128 v{T}, v[176:179]
        ds_write_b128 v{T}, v[176:179] offset:16
        ds_write_b16 v{T}, v{T+1} offset:32
        ds_write_b128 v{T}, v[176:179] offset:4160
        ds_write_b64 v{T}, v[176:177] offset:4176
        ds_write_b32 v{T}, v176 offset:4184
        ds_write_b32 v{T}, v{T+2} offset:4188
        s_mov_b64 exec, -1
        s_waitcnt lgkmcnt(0)
        """)
        return 0
    def wo_touch():
        g.e(f"""
        s_lshr_b32 s{t0}, s2, 3
        s_lshl_b32 s{t0}, s{t0}, 2
        s_add_u32 s{t0}, s{t0}, s{s_hw}
        s_lshl_b32 s{t0}, s{t0}, 14
        v_lshrrev_b32 v{T}, 4, v{l}
        v_lshlrev_b32 v{T}, 11, v{T}
        v_and_b32 v{T+1}, 15, v{l}
        v_lshl_add_u32 v{T}, v{T+1}, 7, v{T}
        buffer_load_dword v{vJ}, v{T}, s[{S_WO}:{S_WO+3}], s{t0} offen
        s_add_u32 s{t0}, s{t0}, 8192
        buffer_load_dword v{vJ}, v{T}, s[{S_WO}:{S_WO+3}], s{t0} offen
        """)
        return 2
    def mk_wo_piece(u):
        def f():
            g.e(f"""
            s_lshr_b32 s{t0}, s2, 3
            s_lshl_b32 s{t0}, s{t0}, 5
            s_add_u32 s{t0}, s{t0}, s{s_hw}
            s_add_u32 s{t0}, s{t0}, {4*u}
            s_lshl_b32 s{t0}, s{t0}, 11
            v_lshlrev_b32 v{T}, 7, v{l}
            s_mov_b64 exec, 0xffff
            buffer_load_dword v{vJ}, v{T}, s[{S_WO}:{S_WO+3}], s{t0} offen
            s_mov_b64 exec, -1
            """)
            return 1
        return f
    def wo_touch3():
        g.e(f"""
        s_lshr_b32 s{t0}, s2, 3
        s_lshl_b32 s{t0}, s{t0}, 2
        s_add_u32 s{t0}, s{t0}, s{s_hw}
        s_lshl_b32 s{t0}, s{t0}, 14
        s_add_u32 s{t0}, s{t0}, 384
        v_and_b32 v{T}, 7, v{l}
        v_lshlrev_b32 v{T}, 11, v{T}
        v_lshrrev_b32 v{T+1}, 3, v{l}
        v_lshl_add_u32 v{T}, v{T+1}, 10, v{T}
        s_mov_b64 exec, 0xffff
        buffer_load_dword v{vJ}, v{T}, s[{S_WO}:{S_WO+3}], s{t0} offen
        s_mov_b64 exec, -1
        """)
        return 1
    def wo_touchm():
        g.e(f"""
        s_lshl_b32 s{t0}, s2, 2
        s_add_u32 s{t0}, s{t0}, s{s_hw}
        s_lshl_b32 s{t0}, s{t0}, 11
        v_lshlrev_b32 v{T}, 7, v{l}
        s_mov_b64 exec, 0xffff
        buffer_load_dword v{vJ}, v{T}, s[{S_WO}:{S_WO+3}], s{t0} offen
        s_mov_b64 exec, -1
        """)
        return 1
    KL = int(opt("kvit", 4)); XS = int(opt("xsit", 11)); HD = int(opt("hit", 13)); V0 = int(opt("vit", KL + int(opt("kvsp", 1)) + 2))
    abl = opt("abl", "")
    side = {}
    val = {}
    def add(t, f): side.setdefault(t, []).append(f)
    extra_cnt = {}
    if "noaux" not in abl:
        KSP = int(opt("kvsp", 1))
        Lk = kv_list(); per = -(-len(Lk) // KSP)
        for u in range(KSP):
            part = Lk[u*per:(u+1)*per]
            f_ = mk_kv(part); extra_cnt[f_] = len(part); add(KL + u, f_)
        if HD <= 13: add(HD, h_dma)
        add(XS, xr_stores)
        if opt("wom"):
            add(int(opt("wom")), wo_touchm); extra_cnt[wo_touchm] = 1
        w_ = opt("wot", "x")
        if w_.startswith("s"):
            for u in range(8):
                f_ = mk_wo_piece(u); extra_cnt[f_] = 1; add(int(w_[1:]) + u, f_)
        elif w_.startswith("c"):
            add(int(w_[1:]), wo_touch3); extra_cnt[wo_touch3] = 1
        elif w_ not in ("0", "x"): add(int(w_), wo_touch)
        for i in range(4): val[V0 + i] = (i // 2, i % 2)
        assert V0 >= KL + KSP + 2 and XS >= V0 + 4 and XS <= 12
    cnt_of = {h_dma: 9, xr_stores: 4, wo_touch: 2}
    cnt_of.update(extra_cnt)
    def ecount(t): return sum(cnt_of[f] for f in side.get(t, []))
    assert max(side) <= 13
    special = [t for t in range(14) if t in side or ecount(t - 1) or t in val]
    PRE = opt("pre", "1") == "1"
    g.lab("L_hloop")
    if PRE and val:
        g.e(f"s_cmp_lt_u32 s{s_hw}, 2")
        g.e(f"s_cbranch_scc1 L_hissue")
        for t in val:
            g.e(f"s_cmp_eq_u32 s{s_cnt}, {t}")
            g.e(f"s_cbranch_scc1 L_hval{t}")
    g.lab("L_hissue")
    issue()
    if opt("bar"): stamp(g, 32, s_cnt)
    for t in special:
        g.e(f"s_cmp_eq_u32 s{s_cnt}, {t}")
        g.e(f"s_cbranch_scc1 L_hside{t}")
    g.e(f"s_waitcnt vmcnt({NB})")
    g.lab("L_htail")
    if opt("bar"): stamp(g, 16, s_cnt)
    g.e(f"s_add_u32 s{s_cnt}, s{s_cnt}, 1")
    g.e(f"s_cmp_lg_u32 s{s_cnt}, 14")
    g.e("s_barrier")
    g.e("s_cbranch_scc1 L_hloop")
    g.e(f"s_waitcnt vmcnt({ecount(13)})")
    if "noaux" not in abl: f1_flag()
    if HD == 15 and "noaux" not in abl: h_dma()
    if HD == 14 and "noaux" not in abl: pass
    g.e("s_barrier")
    g.e("s_barrier")
    stamp(g, 3)
    if HD == 16 and "noaux" not in abl: h_dma()
    T = 16
    g.e(f"""
    v_lshlrev_b32 v{T}, 2, v{l}
    s_lshl_b32 s{t1}, s{s_hp}, 8
    s_add_u32 s{t1}, s{t1}, {WS_F1}
    """)
    poll(g, T, T+1, t1, "pf1")
    stamp(g, 6)
    XR_ = 40
    g.e(f"s_lshl_b32 s{t0}, s{s_ch}, 12")
    g.e(f"s_add_u32 s{t0}, s{t0}, {WS_XR}")
    for m in range(4):
        d = XR_ + 4*m
        g.e(f"buffer_load_dwordx4 v[{d}:{d+3}], v13, s[{S_WS}:{S_WS+3}], s{t0} offen offset:{m*1024}{lsc('x')}")
    nwt = 0
    if HD == 17: nwt += h_dma()
    if opt("wot", "x") == "x": nwt += wo_touch()
    if opt("wo01", "post") == "x1":
        g.e(f"s_lshl_b32 s{t5}, s{s_hw}, 7")
        wo_dma(g, vWO, t5, 2, "wo01a"); nwt += 8
    if HD != 17: h_fix()
    g.e(f"""
    s_mul_i32 s{t1}, s{s_hw}, {X_STRIDE}
    s_add_u32 s{t1}, s{t1}, {LX}
    v_add_u32 v{T}, s{t1}, v13
    v_cmp_gt_u32 vcc, 30, v{l}
    s_and_saveexec_b64 s[{t4}:{t4+1}], vcc
    ds_write_b128 v{T}, v[176:179] offset:4096
    s_mov_b64 exec, s[{t4}:{t4+1}]
    s_waitcnt vmcnt({nwt})
    """)
    for m in range(4):
        d = XR_ + 4*m
        g.e(f"ds_write_b128 v{T}, v[{d}:{d+3}] offset:{m*1024}")
    if HD == 17:
        g.e(f"s_waitcnt vmcnt({nwt - 9})")
        h_fix()
    g.e("s_waitcnt lgkmcnt(0)")
    stamp(g, 7)
    g.e("s_barrier")
    g.e("s_branch L_helper")
    for t in special:
        g.lab(f"L_hside{t}")
        for f in side.get(t, []): f()
        if t in val:
            if PRE:
                g.e(f"s_cmp_ge_u32 s{s_hw}, 2")
                g.e(f"s_cbranch_scc1 L_hwait{t}")
            g.lab(f"L_hval{t}")
            piece(*val[t])
            if PRE:
                g.e(f"s_cmp_ge_u32 s{s_hw}, 2")
                g.e(f"s_cbranch_scc1 L_hissue")
            g.lab(f"L_hwait{t}")
        n = ecount(t - 1) + NB + ecount(t)
        g.e(f"s_waitcnt vmcnt({min(n, 63)})")
        g.e("s_branch L_htail")

def gen_compute(g):
    g.lab("L_compute")
    ACCQ = [0, 16]; ACCK = [32, 48]; ACCV = [64, 80]
    P = [96, 116]
    vA = [136, 137, 138, 139]; vB = 140
    T = 150
    l = vL
    abl = opt("abl", "")
    g.e(f"""
    s_waitcnt lgkmcnt(0)
    s_load_dword s{s_tag}, s[{S_WS}:{S_WS+1}], {WS_EPOCH}
    """)
    if opt("kvpf", "0") == "1":
        srd_const(g, S_K, NB_SD); srd_const(g, S_V, NB_SD)
        g.e(f"""
        s_lshl_b32 s{t0}, s{s_rb}, 18
        s_lshl_b32 s{t1}, s{s_hp}, 7
        s_add_u32 s{t0}, s{t0}, s{t1}
        s_and_b32 s{t1}, s{s_wave}, 1
        s_lshl_b32 s{t1}, s{t1}, 17
        s_add_u32 s{t0}, s{t0}, s{t1}
        v_lshlrev_b32 v{T}, 11, v{l}
        s_cmp_lt_u32 s{s_wave}, 2
        s_cbranch_scc0 L_pfv
        buffer_load_dword v{vJ}, v{T}, s[{S_K}:{S_K+3}], s{t0} offen
        s_branch L_pfdone
        """)
        g.lab("L_pfv")
        g.e(f"buffer_load_dword v{vJ}, v{T}, s[{S_V}:{S_V+3}], s{t0} offen")
    g.lab("L_pfdone")
    c3 = opt("c3", "wxk")
    C3AT = int(opt("c3at", 0))
    vC3, sC3, sC3m = 146, 70, 71
    if c3 != "0":
        srd_const(g, S_K, NB_SD); srd_const(g, S_V, NB_SD)
        g.e(f"""
        s_and_b32 s{t0}, s2, 7
        s_lshr_b32 s{t1}, s2, 3
        s_lshl_b32 s{t1}, s{t1}, 5
        v_and_b32 v{T}, 31, v{l}
        v_add_u32 v{T}, s{t1}, v{T}
        v_lshrrev_b32 v{T+1}, 5, v{l}
        s_lshr_b32 s{t2}, s{t0}, 1
        s_lshl_b32 s{t2}, s{t2}, 2
        s_add_u32 s{t2}, s{t2}, 3
        s_lshl_b32 s{t2}, s{t2}, 7
        s_and_b32 s{t3}, s{t0}, 1
        s_lshl_b32 s{t3}, s{t3}, 21
        s_mov_b32 s{sC3m}, 0
        s_mov_b32 s{sC3}, 0
        v_mov_b32 v{vC3}, 0
        """)
        g.e(f"s_cmp_eq_u32 s{s_wave}, 2")
        g.e(f"s_cbranch_scc1 L_c3x")
        g.e(f"s_bitcmp1_b32 s2, 1")
        g.e(f"s_cbranch_scc1 L_c3done")
        g.e(f"s_cmp_eq_u32 s{s_wave}, 3")
        g.e(f"s_cbranch_scc1 L_c3k")
        if "w" in c3:
            g.e(f"""
            s_movk_i32 s{t4}, 6144
            v_mul_lo_u32 v{vC3}, v{T}, s{t4}
            v_lshl_add_u32 v{vC3}, v{T+1}, 11, v{vC3}
            s_lshl_b32 s{t4}, s{s_wave}, 12
            s_add_u32 s{sC3}, s{t2}, s{t4}
            s_add_u32 s{sC3m}, s{s_wave}, 1
            """)
        g.e("s_branch L_c3done")
        g.lab("L_c3x")
        if "x" in c3:
            g.e(f"""
            v_lshlrev_b32 v{vC3}, 11, v{T}
            v_lshl_add_u32 v{vC3}, v{T+1}, 10, v{vC3}
            s_add_u32 s{sC3}, s{t3}, 384
            s_mov_b32 s{sC3m}, 3
            """)
        g.e("s_branch L_c3done")
        g.lab("L_c3k")
        if "k" in c3:
            g.e(f"""
            v_lshlrev_b32 v{vC3}, 11, v{T}
            s_add_u32 s{sC3}, s{t3}, s{t2}
            s_mov_b32 s{sC3m}, 4
            """)
        g.lab("L_c3done")
    def c3_touch():
        if c3 == "0": return
        u = g.newlabel("c3")
        g.e(f"""
        s_cmp_eq_u32 s{sC3m}, 0
        s_cbranch_scc1 {u}e
        s_cmp_eq_u32 s{sC3m}, 3
        s_cbranch_scc1 {u}x
        s_cmp_eq_u32 s{sC3m}, 4
        s_cbranch_scc1 {u}k
        s_cmp_eq_u32 s{sC3m}, 1
        s_cbranch_scc1 {u}w
        s_mov_b32 exec_hi, 0
        {u}w:
        buffer_load_dword v{vJ}, v{vC3}, s[{S_W}:{S_W+3}], s{sC3} offen
        s_mov_b64 exec, -1
        s_branch {u}e
        {u}x:
        buffer_load_dword v{vJ}, v{vC3}, s[{S_X}:{S_X+3}], s{sC3} offen
        s_branch {u}e
        {u}k:
        s_mov_b32 exec_hi, 0
        buffer_load_dword v{vJ}, v{vC3}, s[{S_K}:{S_K+3}], s{sC3} offen
        s_not_b64 exec, exec
        buffer_load_dword v{vJ}, v{vC3}, s[{S_V}:{S_V+3}], s{sC3} offen
        s_mov_b64 exec, -1
        {u}e:
        s_mov_b32 s{sC3m}, 0
        """)
    if C3AT < 0: c3_touch()
    for b in (S_WO, S_Q, S_OUT): srd_const(g, b, SRD_INFO[b][1])
    g.e(f"""
    s_lshr_b32 s{s_wm}, s{s_wave}, 1
    s_and_b32 s{s_wn}, s{s_wave}, 1
    v_and_b32 v{T}, 31, v{l}
    s_lshl_b32 s{t0}, s{s_wm}, 6
    v_add_u32 v{T}, s{t0}, v{T}
    v_lshlrev_b32 v{T}, 7, v{T}
    v_lshrrev_b32 v{T+1}, 1, v{l}
    v_and_b32 v{T+1}, 7, v{T+1}
    v_lshrrev_b32 v{T+2}, 5, v{l}
    v_xor_b32 v{T+1}, v{T+1}, v{T+2}
    """)
    for j in range(4):
        g.e(f"v_xor_b32 v{T+3}, {2*j}, v{T+1}")
        g.e(f"v_lshl_add_u32 v{vA[j]}, v{T+3}, 4, v{T}")
    g.e(f"""
    v_lshrrev_b32 v{T}, 5, v{l}
    v_lshlrev_b32 v{T}, 3, v{T}
    v_and_b32 v{T+1}, 15, v{l}
    v_lshrrev_b32 v{T+1}, 2, v{T+1}
    v_add_u32 v{T}, v{T}, v{T+1}
    v_lshlrev_b32 v{T}, 7, v{T}
    v_lshrrev_b32 v{T+1}, 4, v{l}
    v_and_b32 v{T+1}, 1, v{T+1}
    v_lshlrev_b32 v{T+1}, 1, v{T+1}
    v_and_b32 v{T+2}, 3, v{l}
    v_lshrrev_b32 v{T+2}, 1, v{T+2}
    v_add_u32 v{T+1}, v{T+1}, v{T+2}
    s_lshl_b32 s{t0}, s{s_wn}, 2
    v_add_u32 v{T+1}, s{t0}, v{T+1}
    v_lshrrev_b32 v{T+2}, 3, v{l}
    v_and_b32 v{T+2}, 1, v{T+2}
    v_lshlrev_b32 v{T+2}, 2, v{T+2}
    v_xor_b32 v{T+1}, v{T+1}, v{T+2}
    v_lshl_add_u32 v{T}, v{T+1}, 4, v{T}
    v_and_b32 v{T+1}, 1, v{l}
    v_lshl_add_u32 v{T}, v{T+1}, 3, v{T}
    v_add_u32 v{vB}, {LB}, v{T}
    """)
    for r in range(96):
        g.e(f"v_mov_b32 v{r}, 0")
    g.e(f"""
    s_mov_b32 s64, 16384
    s_mov_b32 s65, -32768
    s_mov_b32 s66, 24576
    s_mov_b32 s67, -49152
    s_mov_b32 s68, 0
    s_mov_b32 s69, 0
    s_waitcnt lgkmcnt(0)
    s_add_u32 s{s_tag}, s{s_tag}, 1
    s_setprio 3
    """)
    s_slot, s_it = 68, 69
    def reads(setb, j):
        A0, A1, Bq, Bk, Bv = setb, setb+4, setb+8, setb+12, setb+16
        def tr(dst, sec, q):
            return f"ds_read_b64_tr_b16 v[{dst+2*q}:{dst+2*q+1}], v{vB} offset:{sec*8192 + j*2048 + q*512}"
        return [
            (f"ds_read_b128 v[{A0}:{A0+3}], v{vA[j]} offset:0", f"A0_{setb}"),
            (tr(Bq, 0, 0), f"Bqa_{setb}"),
            (tr(Bq, 0, 1), f"Bq_{setb}"),
            (f"ds_read_b128 v[{A1}:{A1+3}], v{vA[j]} offset:4096", f"A1_{setb}"),
            (tr(Bk, 1, 0), f"Bka_{setb}"),
            (tr(Bk, 1, 1), f"Bk_{setb}"),
            (tr(Bv, 2, 0), f"Bva_{setb}"),
            (tr(Bv, 2, 1), f"Bv_{setb}"),
        ]
    def mfmas(setb):
        A0, A1, Bq, Bk, Bv = setb, setb+4, setb+8, setb+12, setb+16
        def m(acc, a, b): return f"v_mfma_f32_32x32x16_bf16 v[{acc}:{acc+15}], v[{a}:{a+3}], v[{b}:{b+3}], v[{acc}:{acc+15}]"
        return [
            (m(ACCQ[0], Bq, A0), [f"A0_{setb}", f"Bq_{setb}"]),
            (m(ACCQ[1], Bq, A1), [f"A1_{setb}"]),
            (m(ACCK[0], A0, Bk), [f"Bk_{setb}"]),
            (m(ACCK[1], A1, Bk), []),
            (m(ACCV[0], A0, Bv), [f"Bv_{setb}"]),
            (m(ACCV[1], A1, Bv), []),
        ]
    stamp(g, 1)
    g.e("s_barrier")
    stamp(g, 2)
    stampc(g, 13)
    if C3AT == 0: c3_touch()
    g.lg_reset()
    for asm, tag in reads(P[0], 0): g.lg(asm, tag)
    g.lab("L_g1loop")
    g.lg_reset([t for a, t in reads(P[0], 0)])
    for j in range(4):
        cur, nxt = P[j & 1], P[(j + 1) & 1]
        M = mfmas(cur)
        if j < 3:
            R = reads(nxt, j + 1)
            sched = [2, 2, 2, 2, 0, 0]
            ri = 0
            for mi, (asm, needs) in enumerate(M):
                if needs: g.lg_need(*needs)
                g.e(asm)
                for _ in range(sched[mi]):
                    g.lg(*R[ri]); ri += 1
        else:
            R = reads(nxt, 0)
            for mi in range(2):
                asm, needs = M[mi]
                if needs: g.lg_need(*needs)
                g.e(asm)
            g.e(f"""
            s_add_u32 s{t0}, s{s_slot}, 1
            s_cmp_eq_u32 s{s_slot}, 2
            s_cselect_b32 s{s_slot}, 0, s{t0}
            s_cselect_b32 s{t0}, s65, s64
            s_cselect_b32 s{t1}, s67, s66
            """)
            for jj in range(4): g.e(f"v_add_u32 v{vA[jj]}, s{t0}, v{vA[jj]}")
            g.e(f"v_add_u32 v{vB}, s{t1}, v{vB}")
            g.lg_all()
            if opt("bar"): stamp(g, 16, s_it)
            g.e("s_barrier")
            if opt("bar"): stamp(g, 32, s_it)
            if C3AT > 0:
                g.e(f"s_cmp_lg_u32 s{s_it}, {C3AT-1}")
                g.e(f"s_cbranch_scc1 L_c3skip")
                c3_touch()
                g.lab("L_c3skip")
            ri = 0
            for mi in range(2, 6):
                asm, needs = M[mi]
                if needs: g.lg_need(*needs)
                g.e(asm)
                for _ in range(2):
                    g.lg(*R[ri]); ri += 1
    g.e(f"s_add_u32 s{s_it}, s{s_it}, 1")
    g.e(f"s_cmp_lg_u32 s{s_it}, 16")
    g.e(f"s_cbranch_scc1 L_g1loop")
    g.e("s_waitcnt lgkmcnt(0)")
    stamp(g, 3)
    stampc(g, 14)
    PK, VF, ONES, PQ, TMP, TA = 96, 112, 128, 132, 148, 152
    s_l2e, s_eps = 64, 66
    g.e(f"""
    s_mov_b32 s{s_l2e}, {LOG2E}
    s_mov_b32 s{s_l2e+1}, {LOG2E}
    s_mov_b32 s{s_eps}, {EPS}
    s_mov_b32 s{s_eps+1}, {EPS}
    v_mov_b32 v{ONES}, 0x3f803f80
    v_mov_b32 v{ONES+1}, 0x3f803f80
    v_mov_b32 v{ONES+2}, 0x3f803f80
    v_mov_b32 v{ONES+3}, 0x3f803f80
    v_lshlrev_b32 v{TA}, 4, v{l}
    s_mul_i32 s{t0}, s{s_wn}, 4224
    s_add_u32 s{t0}, s{t0}, {LRED}
    v_add_u32 v{TA+1}, s{t0}, v{TA}
    v_lshrrev_b32 v{TA+2}, 5, v{l}
    v_lshlrev_b32 v{TA+2}, 5, v{TA+2}
    v_and_b32 v{TA+3}, 31, v{l}
    s_nop 3
    """)
    regs = [ACCK[mt] + r for mt in range(2) for r in range(0, 16, 2)]
    outs = [PK + mt*8 + r//2 for mt in range(2) for r in range(0, 16, 2)]
    phi_pairs(g, regs, TMP, s_l2e, s_eps, outs)
    for mt in range(2):
        for r in range(0, 16, 2):
            g.e(f"v_cvt_pk_bf16_f32 v{VF + mt*8 + r//2}, v{ACCV[mt]+r}, v{ACCV[mt]+r+1}")
    KV, Z = 64, 80
    stamp(g, 11)
    g.e("s_nop 1")
    first = True
    for mt in range(2):
        for q2 in range(2):
            a = PK + mt*8 + q2*4; b = VF + mt*8 + q2*4
            c = "0" if first else f"v[{KV}:{KV+15}]"
            g.e(f"v_mfma_f32_32x32x16_bf16 v[{KV}:{KV+15}], v[{a}:{a+3}], v[{b}:{b+3}], {c}")
            c = "0" if first else f"v[{Z}:{Z+15}]"
            g.e(f"v_mfma_f32_32x32x16_bf16 v[{Z}:{Z+15}], v[{a}:{a+3}], v[{ONES}:{ONES+3}], {c}")
            first = False
    g.e(f"""
    s_add_u32 s{t1}, s{t0}, 4096
    v_add_u32 v{TA+4}, s{t1}, v{TA+2}
    v_cmp_eq_u32 vcc, 0, v{TA+3}
    s_mov_b64 s[{t4}:{t4+1}], vcc
    s_nop 7
    s_nop 3
    """)
    stamp(g, 12)
    g.e(f"""
    s_cmp_eq_u32 s{s_wm}, 0
    s_cbranch_scc1 L_red0
    """)
    for q in range(4):
        g.e(f"ds_write_b128 v{TA+1}, v[{KV+4*q}:{KV+4*q+3}] offset:{q*1024}")
    g.e(f"s_mov_b64 exec, s[{t4}:{t4+1}]")
    for q in range(4):
        g.e(f"ds_write_b128 v{TA+4}, v[{Z+4*q}:{Z+4*q+3}] offset:{(q>>1)*64 + (q&1)*16}")
    g.e("s_mov_b64 exec, -1")
    g.e(f"""
    s_lshl_b32 s{t2}, s{s_wn}, 2
    s_add_u32 s{t2}, s{t2}, {LFLAG + 16}
    v_mov_b32 v{TA+5}, s{t2}
    v_mov_b32 v{TA+6}, s{s_tag}
    s_waitcnt lgkmcnt(0)
    ds_write_b32 v{TA+5}, v{TA+6}
    """)
    g.e("s_branch L_phiq")
    g.lab("L_red0")
    g.e(f"""
    s_lshl_b32 s{t2}, s{s_hp}, 4
    s_add_u32 s{t2}, s{t2}, s{s_rb}
    s_mul_i32 s{t2}, s{t2}, {KVP_STRIDE}
    s_add_u32 s{t2}, s{t2}, {WS_KVP}
    s_lshl_b32 s{t3}, s{s_wn}, 11
    s_add_u32 s{t3}, s{t3}, s{t2}
    s_lshl_b32 s{t1}, s{s_wn}, 7
    s_add_u32 s{t2}, s{t2}, s{t1}
    s_add_u32 s{t2}, s{t2}, 4096
    """)
    g.e(f"""
    s_lshl_b32 s{t1}, s{s_wn}, 2
    s_add_u32 s{t1}, s{t1}, {LFLAG + 16}
    v_mov_b32 v{TA+5}, s{t1}
    s_mov_b32 s{t7}, {MAXSPIN*8}
    """)
    g.lab("L_x1")
    g.e(f"""
    ds_read_b32 v{TA+6}, v{TA+5}
    s_waitcnt lgkmcnt(0)
    v_cmp_ne_u32 vcc, s{s_tag}, v{TA+6}
    s_cbranch_vccz L_x1d
    s_sub_u32 s{t7}, s{t7}, 1
    s_cbranch_scc0 L_x1
    """)
    g.lab("L_x1d")
    for q in range(4):
        g.e(f"ds_read_b128 v[{0+32+4*q}:{0+32+4*q+3}], v{TA+1} offset:{q*1024}")
    for q in range(4):
        g.e(f"ds_read_b128 v[{48+4*q}:{48+4*q+3}], v{TA+4} offset:{(q>>1)*64 + (q&1)*16}")
    g.e("s_waitcnt lgkmcnt(4)")
    for r in range(0, 16, 2):
        g.e(f"v_pk_add_f32 v[{KV+r}:{KV+r+1}], v[{KV+r}:{KV+r+1}], v[{32+r}:{32+r+1}]")
    for r in range(0, 16, 2):
        g.e(f"v_cvt_pk_bf16_f32 v{32 + r//2}, v{KV+r}, v{KV+r+1}")
    g.e("s_waitcnt lgkmcnt(0)")
    for q in range(2):
        g.e(f"buffer_store_dwordx4 v[{32+4*q}:{32+4*q+3}], v{TA}, s[{S_WS}:{S_WS+3}], s{t3} offen offset:{q*1024} sc1")
    for r in range(0, 16, 2):
        g.e(f"v_pk_add_f32 v[{Z+r}:{Z+r+1}], v[{Z+r}:{Z+r+1}], v[{48+r}:{48+r+1}]")
    g.e(f"s_mov_b64 exec, s[{t4}:{t4+1}]")
    for q in range(4):
        g.e(f"buffer_store_dwordx4 v[{Z+4*q}:{Z+4*q+3}], v{TA+2}, s[{S_WS}:{S_WS+3}], s{t2} offen offset:{(q>>1)*64 + (q&1)*16} sc1")
    g.e("s_mov_b64 exec, -1")
    g.lab("L_phiq")
    stamp(g, 4)
    regs = [ACCQ[mt] + r for mt in range(2) for r in range(0, 16, 2)]
    outs = [PQ + mt*8 + r//2 for mt in range(2) for r in range(0, 16, 2)]
    phi_pairs(g, regs, TMP, s_l2e, s_eps, outs)
    g.e(f"""
    s_lshl_b32 s{t0}, s{s_wave}, 12
    s_add_u32 s{t0}, s{t0}, {LPQ}
    v_add_u32 v{TA+1}, s{t0}, v{TA}
    """)
    for i in range(4):
        g.e(f"ds_write_b128 v{TA+1}, v[{PQ+4*i}:{PQ+4*i+3}] offset:{i*1024}")
    g.e(f"""
    s_cmp_lg_u32 s{s_wm}, 0
    s_cbranch_scc1 L_nof2
    s_lshl_b32 s{t0}, s{s_hp}, 7
    s_lshl_b32 s{t1}, s{s_rb}, 3
    s_add_u32 s{t0}, s{t0}, s{t1}
    s_lshl_b32 s{t1}, s{s_wn}, 2
    s_add_u32 s{t0}, s{t0}, s{t1}
    s_add_u32 s{t0}, s{t0}, {WS_F2}
    s_waitcnt vmcnt(0)
    """)
    post_flag(g, t0, TA+5, TA+6)
    g.lab("L_nof2")
    ACC = 0; S = [32, 96]; cA = list(range(160, 168)); cB = 168; T = 170
    g.e(f"""
    v_and_b32 v{T+5}, 15, v{l}
    v_lshrrev_b32 v{T+6}, 4, v{l}
    v_add_u32 v{T+7}, 1, v{T+5}
    v_and_b32 v{T+7}, -2, v{T+7}
    v_lshlrev_b32 v{T+7}, 1, v{T+7}
    v_lshl_add_u32 v{T+7}, v{T+6}, 4, v{T+7}
    v_and_b32 v{T+8}, 1, v{T+5}
    v_xor_b32 v{T+8}, 1, v{T+8}
    v_mul_u32_u24 v{T+8}, 4160, v{T+8}
    v_add_u32 v{T+7}, v{T+7}, v{T+8}
    s_mul_i32 s{t0}, s{s_wave}, {H_STRIDE}
    s_add_u32 s{t0}, s{t0}, {LH + 448}
    v_add_u32 v{cA[0]}, s{t0}, v{T+7}
    """)
    for a in range(1, 8):
        g.e(f"v_add_u32 v{cA[a]}, {512*a}, v{cA[0]}")
    g.e(f"""
    v_lshlrev_b32 v{cB}, 4, v{T+6}
    v_lshlrev_b32 v{T+7}, 5, v{T+5}
    v_sub_u32 v{cB}, v{cB}, v{T+7}
    s_mul_i32 s{t0}, s{s_wave}, {X_STRIDE}
    s_add_u32 s{t0}, s{t0}, {LX + 4512 - 3584}
    v_add_u32 v{cB}, s{t0}, v{cB}
    """)
    for r in range(32): g.e(f"v_mov_b32 v{ACC+r}, 0")
    if opt("wopf", "1") == "1":
        g.e(f"""
        v_lshlrev_b32 v{T+9}, 11, v{l}
        s_lshl_b32 s{t0}, s{s_rb}, 18
        s_lshl_b32 s{t1}, s{s_hp}, 7
        s_add_u32 s{t0}, s{t0}, s{t1}
        s_and_b32 s{t1}, s{s_wave}, 1
        s_lshl_b32 s{t1}, s{t1}, 17
        s_add_u32 s{t0}, s{t0}, s{t1}
        s_cmp_lt_u32 s{s_wave}, 2
        s_cbranch_scc0 L_noqpf
        buffer_load_dword v{vJ}, v{T+9}, s[{S_Q}:{S_Q+3}], s{t0} offen
        """)
        g.lab("L_noqpf")
    wo_dma_setup(g, vWO, T+9)
    g.e("s_waitcnt lgkmcnt(0)")
    stamp(g, 5)
    g.e("s_barrier")
    stamp(g, 6)
    g.e("s_setprio 1")
    def creads(sb):
        R = []
        for x in range(8):
            d = sb + 4*x
            R.append(f"ds_read2_b32 v[{d}:{d+1}], v{cA[x]} offset0:0 offset1:1")
            R.append(f"ds_read2_b32 v[{d+2}:{d+3}], v{cA[x]} offset0:2 offset1:3")
            d = sb + 32 + 4*x
            R.append(f"ds_read_b128 v[{d}:{d+3}], v{cB} offset:{512*(7-x)}")
        return R
    def adv():
        for a in range(8): g.e(f"v_subrev_u32 v{cA[a]}, 64, v{cA[a]}")
        g.e(f"v_subrev_u32 v{cB}, 64, v{cB}")
    def cm(sb):
        pairs = [(a, w) for a in range(8) for w in range(8) if a + w <= 7]
        pairs.sort(key=lambda p: (max(p), p[0]))
        M = []
        for a, w in pairs:
            A = sb + 4*a; B = sb + 32 + 4*w; D = ACC + 4*(a + w)
            M.append(f"v_mfma_f32_16x16x32_bf16 v[{D}:{D+3}], v[{A}:{A+3}], v[{B}:{B+3}], v[{D}:{D+3}]")
        return M
    R = creads(S[0])
    for i, asm in enumerate(R):
        g.e(asm)
        if i == 11: g.e("s_waitcnt lgkmcnt(4)")
        if i == 19: g.e("s_waitcnt lgkmcnt(4)")
    adv()
    g.e(f"s_mov_b32 s{s_it}, 4")
    g.lab("L_cloop")
    for half in range(2):
        cur, nxt = S[half], S[1-half]
        g.e("s_waitcnt lgkmcnt(0)")
        M = cm(cur); R = creads(nxt)
        ri = 0
        for mi, asm in enumerate(M):
            g.e(asm)
            if mi < 32 and ri < 24 and (mi % 4 != 3):
                g.e(R[ri]); ri += 1
            if mi == 33: adv()
        assert ri == 24
    g.e(f"s_sub_u32 s{s_it}, s{s_it}, 1")
    g.e(f"s_cmp_lg_u32 s{s_it}, 0")
    g.e(f"s_cbranch_scc1 L_cloop")
    g.e("s_waitcnt lgkmcnt(0)")
    lds_set(g, F_CF, s_wave, T+5, T+6)
    g.e("s_nop 3")
    stamp(g, 7)
    g.e(f"""
    v_and_b32 v{T+5}, 15, v{l}
    v_lshrrev_b32 v{T+6}, 4, v{l}
    v_lshlrev_b32 v{T+5}, 5, v{T+5}
    v_and_b32 v{T+7}, 1, v{T+6}
    v_lshl_add_u32 v{T+5}, v{T+7}, 9, v{T+5}
    v_lshrrev_b32 v{T+6}, 1, v{T+6}
    v_lshl_add_u32 v{T+5}, v{T+6}, 4, v{T+5}
    s_lshl_b32 s{t0}, s{s_hp}, 6
    s_lshl_b32 s{t1}, s{s_rb}, 2
    s_add_u32 s{t0}, s{t0}, s{t1}
    s_add_u32 s{t0}, s{t0}, s{s_wave}
    s_lshl_b32 s{t0}, s{t0}, 12
    s_add_u32 s{t0}, s{t0}, {WS_YT}
    """)
    for cb in range(8):
        d = 32 + 2*cb
        g.e(f"v_cvt_pk_bf16_f32 v{d}, v{ACC+4*cb}, v{ACC+4*cb+1}")
        g.e(f"v_cvt_pk_bf16_f32 v{d+1}, v{ACC+4*cb+2}, v{ACC+4*cb+3}")
    g.e("s_nop 1")
    for cp in range(4):
        d = 32 + 4*cp
        g.e(f"v_permlane16_swap_b32 v{d}, v{d+2}")
        g.e(f"v_permlane16_swap_b32 v{d+1}, v{d+3}")
    g.e("s_nop 1")
    for cp in range(4):
        d = 32 + 4*cp
        g.e(f"buffer_store_dwordx4 v[{d}:{d+3}], v{T+5}, s[{S_WS}:{S_WS+3}], s{t0} offen offset:{1024*cp} sc1")
    ACC2 = [0, 16]; AR = 64; RING = int(opt("g2ring", 32)); PRE2 = int(opt("g2pre", 14))
    BF = [32, 40, 48, 56]
    vAo = [200, 201, 202, 203]; vBn = [204, 205]; T = 208
    s_ab, s_r, s_g = 64, 65, 66
    s_wl, s_wg = 67, 68
    g.e(f"""
    v_and_b32 v{vAo[0]}, 31, v{l}
    v_lshlrev_b32 v{T}, 2, v{vAo[0]}
    v_lshlrev_b32 v{vAo[0]}, 4, v{vAo[0]}
    v_lshrrev_b32 v{T+1}, 5, v{l}
    v_lshl_add_u32 v{vAo[0]}, v{T+1}, 11, v{vAo[0]}
    v_add_u32 v{vAo[1]}, 4096, v{vAo[0]}
    v_add_u32 v{vAo[2]}, 8192, v{vAo[0]}
    v_add_u32 v{vAo[3]}, 12288, v{vAo[0]}
    s_lshl_b32 s{s_ab}, s{s_rb2}, 18
    s_lshl_b32 s{t1}, s{s_wave}, 9
    s_add_u32 s{s_ab}, s{s_ab}, s{t1}
    s_add_u32 s{s_ab}, s{s_ab}, {WS_O}
    s_lshl_b32 s{s_r}, s{s_cb2}, 2
    """)
    if opt("g2rot", "0") != "1": g.e(f"s_mov_b32 s{s_r}, 0")
    TB = T + 4
    g.e(f"""
    v_lshrrev_b32 v{TB}, 5, v{l}
    v_lshlrev_b32 v{TB}, 2, v{TB}
    v_and_b32 v{TB+1}, 15, v{l}
    v_lshrrev_b32 v{TB+1}, 2, v{TB+1}
    v_add_u32 v{TB}, v{TB}, v{TB+1}
    v_lshlrev_b32 v{TB}, 7, v{TB}
    v_lshrrev_b32 v{TB+1}, 4, v{l}
    v_and_b32 v{TB+1}, 1, v{TB+1}
    v_lshlrev_b32 v{TB+1}, 1, v{TB+1}
    v_and_b32 v{TB+2}, 3, v{l}
    v_lshrrev_b32 v{TB+2}, 1, v{TB+2}
    v_add_u32 v{TB+1}, v{TB+1}, v{TB+2}
    v_lshrrev_b32 v{TB+2}, 3, v{l}
    v_and_b32 v{TB+2}, 1, v{TB+2}
    v_lshlrev_b32 v{TB+2}, 2, v{TB+2}
    v_xor_b32 v{TB+1}, v{TB+1}, v{TB+2}
    v_and_b32 v{TB+3}, 1, v{l}
    v_lshl_add_u32 v{TB}, v{TB+3}, 3, v{TB}
    s_lshl_b32 s{t0}, s{s_r}, 11
    v_add_u32 v{TB}, s{t0}, v{TB}
    v_lshl_add_u32 v{vBn[0]}, v{TB+1}, 4, v{TB}
    v_xor_b32 v{TB+1}, 4, v{TB+1}
    v_lshl_add_u32 v{vBn[1]}, v{TB+1}, 4, v{TB}
    s_lshl_b32 s{t0}, s{s_hp}, 8
    s_lshl_b32 s{t1}, s{s_rb}, 4
    s_add_u32 s{t0}, s{t0}, s{t1}
    s_lshl_b32 s{t1}, s{s_wave}, 2
    s_add_u32 s{t0}, s{t0}, s{t1}
    s_add_u32 s{t5}, s{t0}, {WS_F4}
    """)
    W23 = opt("wo23", "g2")
    if W23 == "pre":
        lds_spin(g, F_PF, 7, T+2, T+3, "cf")
        g.e(f"s_lshl_b32 s{t3}, s{s_wave}, 7")
        g.e(f"s_add_u32 s{t3}, s{t3}, 512")
        wo_dma(g, vWO, t3, 4, "wo23")
    g.e(f"s_waitcnt vmcnt({16 if W23 == 'pre' else 0})")
    post_flag(g, t5, T+2, T+3)
    if W23 != "pre":
        lds_spin(g, F_PF, 7, T+2, T+3, "cf")
        g.e(f"""
        s_lshl_b32 s{s_wl}, s{s_wave}, 14
        s_add_u32 s{s_wl}, s{s_wl}, 65536
        s_lshl_b32 s{s_wg}, s{s_wl}, 4
        """)
    stamp(g, 9)
    lds_spin(g, F_W1, 3, T+2, T+3, "w1")
    g.e(f"""
    s_lshl_b32 s{t1}, s{s_rb2}, 1
    s_lshr_b32 s{t2}, s{s_wave}, 1
    s_add_u32 s{t1}, s{t1}, s{t2}
    s_lshl_b32 s{t1}, s{t1}, 7
    s_add_u32 s{t1}, s{t1}, {WS_F3}
    """)
    def breads(setb, t16):
        R = []
        for nt in range(2):
            for q in range(2):
                d = setb + 4*nt + 2*q
                R.append(f"ds_read_b64_tr_b16 v[{d}:{d+1}], v{vBn[nt]} offset:{2048*t16 + 1024*q}")
        return R
    BD = int(opt("g2bd", 2))
    assert PRE2 < RING and BD <= 3
    for u in range(BD):
        for x in breads(BF[u], u): g.e(x)
    poll(g, T, T+1, t1, "pf3")
    stamp(g, 8)
    if W23 == "pre":
        g.e("s_waitcnt lgkmcnt(0)")
        lds_set(g, F_WF, s_wave, T+2, T+3)
    g.vm_reset()
    aidx = {}
    def aload(n):
        if n % 4 == 0:
            g.e(f"s_add_u32 s{s_g}, s{s_r}, {n}")
            g.e(f"s_and_b32 s{s_g}, s{s_g}, 63")
            g.e(f"s_lshl_b32 s{s_g}, s{s_g}, 12")
            g.e(f"s_add_u32 s{s_g}, s{s_g}, s{s_ab}")
        d = AR + 4*(n % RING)
        aidx[n] = g.vm(f"buffer_load_dwordx4 v[{d}:{d+3}], v{vAo[n % 4]}, s[{S_WS}:{S_WS+3}], s{s_g} offen{lsc('a')}")
    def wpiece(i):
        blk, m = i // 4, i % 4
        if m == 0:
            g.e(f"s_add_u32 m0, s{s_wl}, {blk*4096}")
            g.e(f"s_add_u32 s{t1}, s{s_wg}, {blk*32*2048}")
        return g.vm(f"buffer_load_dwordx4 v{vWO+m}, s[{S_WO}:{S_WO+3}], s{t1} offen offset:{m*1024}{ntf('wo')} lds")
    W0 = int(opt("w23at", 0)); WPS = int(opt("w23ps", 2))
    wsched = {}
    if W23 != "pre":
        for i in range(16): wsched.setdefault(W0 + i // WPS, []).append(i)
    wlast = None; wflag_done = (W23 == "pre")
    for n in range(PRE2): aload(n)
    g.e("s_setprio 3")
    for t in range(64):
        cur = BF[t % 4]
        A = AR + 4*(t % RING)
        rd_out = min(64, t + BD) - (t + 1)
        g.vm_wait(aidx[t])
        g.e(f"s_waitcnt lgkmcnt({4*rd_out})")
        if not wflag_done and wlast is not None and g.vmdone > wlast and max(wsched) < t:
            lds_set(g, F_WF, s_wave, T+2, T+3); wflag_done = True
            assert t < 32 - BD
        tn = t + BD
        if tn == 32:
            assert wflag_done
            lds_spin(g, F_WF, 3, T+2, T+3, "wf")
        if tn < 64 and tn % 4 == 0:
            g.e(f"s_cmp_eq_u32 s{s_r}, {64 - tn}")
            g.e(f"s_cselect_b32 s{t0}, 0xfffe0000, 0")
            if tn == 32: g.e(f"s_add_u32 s{t0}, s{t0}, 0x10000")
            g.e(f"v_add_u32 v{vBn[0]}, s{t0}, v{vBn[0]}")
            g.e(f"v_add_u32 v{vBn[1]}, s{t0}, v{vBn[1]}")
        R = breads(BF[tn % 4], tn & 31) if tn < 64 else ["", "", "", ""]
        c0 = "0" if t == 0 else f"v[{ACC2[0]}:{ACC2[0]+15}]"
        c1 = "0" if t == 0 else f"v[{ACC2[1]}:{ACC2[1]+15}]"
        g.e(f"v_mfma_f32_32x32x16_bf16 v[{ACC2[0]}:{ACC2[0]+15}], v[{cur}:{cur+3}], v[{A}:{A+3}], {c0}")
        g.e(R[0]); g.e(R[1])
        if PRE2 + t < 64: aload(PRE2 + t)
        g.e(f"v_mfma_f32_32x32x16_bf16 v[{ACC2[1]}:{ACC2[1]+15}], v[{cur+4}:{cur+7}], v[{A}:{A+3}], {c1}")
        g.e(R[2]); g.e(R[3])
        for i in wsched.get(t, []): wlast = wpiece(i)
    g.e("s_waitcnt vmcnt(0) lgkmcnt(0)")
    g.e("s_nop 7")
    g.e("s_nop 3")
    stamp(g, 10)
    O = 32
    for nt in range(2):
        for r in range(0, 16, 2):
            g.e(f"v_cvt_pk_bf16_f32 v{O + nt*8 + r//2}, v{ACC2[nt]+r}, v{ACC2[nt]+r+1}")
    g.e("s_nop 1")
    for nt in range(2):
        for p in range(2):
            x = O + nt*8 + 4*p
            g.e(f"v_permlane32_swap_b32 v{x}, v{x+2}")
            g.e(f"v_permlane32_swap_b32 v{x+1}, v{x+3}")
    if opt("fullb"):
        FB = 131072
        g.e(f"""
        v_and_b32 v{T}, 31, v{l}
        v_mul_u32_u24 v{T}, 144, v{T}
        v_lshrrev_b32 v{T+1}, 5, v{l}
        v_lshl_add_u32 v{T}, v{T+1}, 4, v{T}
        s_mul_i32 s{t0}, s{s_wave}, 4608
        s_add_u32 s{t0}, s{t0}, {FB}
        v_add_u32 v{T}, s{t0}, v{T}
        v_lshrrev_b32 v{T+1}, 3, v{l}
        v_and_b32 v{T+2}, 7, v{l}
        v_mul_u32_u24 v{T+3}, 144, v{T+1}
        v_lshl_add_u32 v{T+3}, v{T+2}, 4, v{T+3}
        v_add_u32 v{T+3}, s{t0}, v{T+3}
        """)
        for nt_ in range(2):
            for p in range(2):
                x = O + nt_*8 + 4*p
                g.e(f"ds_write_b128 v{T}, v[{x}:{x+3}] offset:{nt_*64 + p*32}")
        g.e(f"""
        s_lshl_b32 s{t0}, s{s_rb2}, 7
        s_lshl_b32 s{t1}, s{s_wave}, 5
        s_add_u32 s{t0}, s{t0}, s{t1}
        v_add_u32 v{T+4}, s{t0}, v{T+1}
        v_lshlrev_b32 v{T+4}, 12, v{T+4}
        v_lshl_add_u32 v{T+4}, v{T+2}, 4, v{T+4}
        s_lshl_b32 s{t0}, s{s_cb2}, 7
        s_add_u32 s{t0}, s{t0}, 2048
        s_waitcnt lgkmcnt(0)
        """)
        for i in range(4):
            g.e(f"ds_read_b128 v[{O+16+4*i}:{O+16+4*i+3}], v{T+3} offset:{i*8*144}")
        for i in range(4):
            g.e(f"s_waitcnt lgkmcnt({3-i})")
            if 'b' not in opt("noout", ""): g.e(f"buffer_store_dwordx4 v[{O+16+4*i}:{O+16+4*i+3}], v{T+4}, s[{S_OUT}:{S_OUT+3}], s{t0} offen{ostm('b')}")
            if i < 3: g.e(f"s_add_u32 s{t0}, s{t0}, {8*4096}")
    else:
        g.e(f"""
        v_and_b32 v{T}, 31, v{l}
        s_lshl_b32 s{t0}, s{s_rb2}, 7
        s_lshl_b32 s{t1}, s{s_wave}, 5
        s_add_u32 s{t0}, s{t0}, s{t1}
        v_add_u32 v{T}, s{t0}, v{T}
        v_lshlrev_b32 v{T}, 12, v{T}
        v_lshrrev_b32 v{T+1}, 5, v{l}
        v_lshl_add_u32 v{T}, v{T+1}, 4, v{T}
        s_lshl_b32 s{t0}, s{s_cb2}, 7
        s_add_u32 s{t0}, s{t0}, 2048
        """)
        for nt_ in range(2):
            for p in range(2):
                x = O + nt_*8 + 4*p
                if 'b' not in opt("noout", ""): g.e(f"buffer_store_dwordx4 v[{x}:{x+3}], v{T}, s[{S_OUT}:{S_OUT+3}], s{t0} offen offset:{nt_*64 + p*32}{ostm('b')}")
    g.e(f"""
    s_or_b32 s{t0}, s2, s{s_wave}
    s_cmp_lg_u32 s{t0}, 0
    s_cbranch_scc1 L_noep
    s_mov_b32 s{t0}, {WS_EPOCH}
    """)
    post_flag(g, t0, T+2, T+3)
    g.lab("L_noep")
    g.e("s_waitcnt vmcnt(0)")
    flush_stamps(g, 'c')
    g.e("s_endpgm")

def gen_helper(g):
    g.lab("L_helper")
    l = vL
    s_hw = 69
    T = 2
    g.e(f"""
    s_setprio 3
    s_sub_u32 s{s_hw}, s{s_wave}, 4
    s_lshr_b32 s{s_wm}, s{s_hw}, 1
    s_and_b32 s{s_wn}, s{s_hw}, 1
    v_and_b32 v{T}, 31, v{l}
    v_lshlrev_b32 v{T}, 2, v{T}
    s_lshl_b32 s{t1}, s{s_hp}, 7
    s_add_u32 s{t1}, s{t1}, {WS_F2}
    v_lshlrev_b32 v{T+2}, 4, v{l}
    v_and_b32 v{T+3}, 15, v{l}
    v_lshlrev_b32 v{T+3}, 2, v{T+3}
    v_lshrrev_b32 v{T+4}, 4, v{l}
    v_mul_u32_u24 v{T+4}, {KVP_STRIDE}, v{T+4}
    v_add_u32 v{T+3}, v{T+3}, v{T+4}
    s_lshl_b32 s{t2}, s{s_hp}, 4
    s_mul_i32 s{t2}, s{t2}, {KVP_STRIDE}
    s_add_u32 s{t2}, s{t2}, {WS_KVP}
    s_lshl_b32 s{t3}, s{s_hw}, 10
    s_add_u32 s{t3}, s{t3}, s{t2}
    s_lshl_b32 s{t4}, s{s_hw}, 6
    s_add_u32 s{t4}, s{t4}, s{t2}
    s_add_u32 s{t4}, s{t4}, 4096
    """)
    WO1 = opt("wo01", "post")
    if WO1 in ("x2", "x1"):
        nb = 4 if WO1 == "x2" else 2
        g.e(f"s_lshl_b32 s{t5}, s{s_hw}, 7")
        if WO1 == "x1": g.e(f"s_add_u32 s{t5}, s{t5}, 64")
        wo_dma(g, vWO, t5, nb, "wo01")
        g.e(f"""
        s_lshl_b32 s{t1}, s{s_hp}, 7
        s_add_u32 s{t1}, s{t1}, {WS_F2}
        s_lshl_b32 s{t2}, s{s_hp}, 4
        s_mul_i32 s{t2}, s{t2}, {KVP_STRIDE}
        s_add_u32 s{t2}, s{t2}, {WS_KVP}
        """)
    stamp(g, 8)
    poll(g, T, T+1, t1, "pf2")
    stamp(g, 9)
    if WO1 in ("x2", "x1"): lds_set(g, F_W1, s_hw, T+5, T+6)
    PB = 32; ZB = 160
    PROT = opt("prot", "1") == "1"
    s_pi, s_po = 64, 65
    if PROT:
        g.e(f"""
        s_and_b32 s{s_pi}, s{s_rb}, 7
        s_lshl_b32 s{s_pi}, s{s_pi}, 1
        """)
    else:
        g.e(f"s_mov_b32 s{s_pi}, 0")
    for r in range(16):
        d = PB + 4*r
        g.e(f"s_mul_i32 s{s_po}, s{s_pi}, {KVP_STRIDE}")
        g.e(f"s_add_u32 s{t0}, s{t3}, s{s_po}")
        g.e(f"buffer_load_dwordx4 v[{d}:{d+3}], v{T+2}, s[{S_WS}:{S_WS+3}], s{t0} offen{lsc('p')}")
        if r == 0:
            for u in range(4):
                g.e(f"s_add_u32 s{t1}, s{t4}, {4*u*KVP_STRIDE}")
                g.e(f"buffer_load_dword v{ZB+u}, v{T+3}, s[{S_WS}:{S_WS+3}], s{t1} offen{lsc('p')}")
        if r < 15:
            g.e(f"s_add_u32 s{s_pi}, s{s_pi}, 1")
            g.e(f"s_and_b32 s{s_pi}, s{s_pi}, 15")
    PQ = 200
    g.e(f"""
    s_lshl_b32 s{t0}, s{s_hw}, 12
    s_add_u32 s{t0}, s{t0}, {LPQ}
    v_add_u32 v{T+5}, s{t0}, v{T+2}
    """)
    for i in range(4):
        g.e(f"ds_read_b128 v[{PQ+4*i}:{PQ+4*i+3}], v{T+5} offset:{i*1024}")
    g.e("s_waitcnt lgkmcnt(0)")
    lds_set(g, F_PF, s_hw, T+6, T+7)
    stamp(g, 48)
    SA, UT = 96, 104
    for r in range(16):
        g.e(f"s_waitcnt vmcnt({15-r if r else 19})")
        if r in (0, 8, 15): stamp(g, 49 + (r + 1)//8)
        d = PB + 4*r
        for u in range(4):
            o = SA + 2*u if r == 0 else UT + 2*((4*r + u) % 4)
            g.e(f"v_lshlrev_b32 v{o}, 16, v{d+u}")
            g.e(f"v_and_b32 v{o+1}, 0xffff0000, v{d+u}")
        if r > 0:
            for u in range(4):
                o = UT + 2*((4*r + u) % 4)
                g.e(f"v_pk_add_f32 v[{SA+2*u}:{SA+2*u+1}], v[{SA+2*u}:{SA+2*u+1}], v[{o}:{o+1}]")
        if r == 1:
            g.e(f"v_add_f32 v{ZB}, v{ZB}, v{ZB+1}")
            g.e(f"v_add_f32 v{ZB+2}, v{ZB+2}, v{ZB+3}")
            g.e(f"v_add_f32 v{ZB}, v{ZB}, v{ZB+2}")
            g.e(f"v_mov_b32 v{ZB+1}, v{ZB}")
            g.e("s_nop 1")
            g.e(f"v_permlane32_swap_b32 v{ZB}, v{ZB+1}")
            g.e("s_nop 1")
            g.e(f"v_add_f32 v{ZB}, v{ZB}, v{ZB+1}")
            g.e(f"v_mov_b32 v{ZB+1}, v{ZB}")
            g.e("s_nop 1")
            g.e(f"v_permlane16_swap_b32 v{ZB}, v{ZB+1}")
            g.e("s_nop 1")
            g.e(f"v_add_f32 v{ZB}, v{ZB}, v{ZB+1}")
    KX = 180
    for u in range(0, 8, 2):
        g.e(f"v_cvt_pk_bf16_f32 v{KX+u//2}, v{SA+u}, v{SA+u+1}")
    g.e(f"v_cvt_pk_bf16_f32 v{ZB}, v{ZB}, v{ZB}")
    g.e(f"""
    s_lshl_b32 s{t0}, s{s_hw}, 10
    s_add_u32 s{t0}, s{t0}, {LKVX}
    v_add_u32 v{T+5}, s{t0}, v{T+2}
    ds_write_b128 v{T+5}, v[{KX}:{KX+3}]
    s_lshl_b32 s{t0}, s{s_hw}, 5
    s_add_u32 s{t0}, s{t0}, {LZX}
    v_lshlrev_b32 v{T+6}, 1, v{l}
    v_add_u32 v{T+6}, s{t0}, v{T+6}
    s_mov_b64 exec, 0xffff
    ds_write_b16 v{T+6}, v{ZB}
    s_mov_b64 exec, 1
    s_lshl_b32 s{t0}, s{s_hw}, 2
    s_add_u32 s{t0}, s{t0}, {LFLAG}
    v_mov_b32 v{T+6}, s{t0}
    v_mov_b32 v{T+7}, s{s_tag}
    s_waitcnt lgkmcnt(0)
    ds_write_b32 v{T+6}, v{T+7}
    s_mov_b64 exec, -1
    v_mov_b32 v{T+6}, {LFLAG}
    v_and_b32 v{T+7}, 3, v{l}
    v_lshl_add_u32 v{T+6}, v{T+7}, 2, v{T+6}
    s_mov_b32 s{t7}, {MAXSPIN*8}
    """)
    g.lab("L_hsync")
    g.e(f"""
    ds_read_b32 v{T+7}, v{T+6}
    s_waitcnt lgkmcnt(0)
    v_cmp_ne_u32 vcc, s{s_tag}, v{T+7}
    s_cbranch_vccz L_hsyncd
    s_sub_u32 s{t7}, s{t7}, 1
    s_cbranch_scc0 L_hsync
    """)
    g.lab("L_hsyncd")
    stamp(g, 10)
    KF = 184; ZF = 192
    g.e(f"""
    s_lshl_b32 s{t0}, s{s_wn}, 11
    s_add_u32 s{t0}, s{t0}, {LKVX}
    v_add_u32 v{T+5}, s{t0}, v{T+2}
    ds_read_b128 v[{KF}:{KF+3}], v{T+5}
    ds_read_b128 v[{KF+4}:{KF+7}], v{T+5} offset:1024
    s_lshl_b32 s{t0}, s{s_wn}, 6
    s_add_u32 s{t0}, s{t0}, {LZX}
    v_lshrrev_b32 v{T+6}, 5, v{l}
    v_lshlrev_b32 v{T+6}, 4, v{T+6}
    v_add_u32 v{T+6}, s{t0}, v{T+6}
    ds_read_b128 v[{ZF}:{ZF+3}], v{T+6}
    ds_read_b128 v[{ZF+4}:{ZF+7}], v{T+6} offset:32
    s_waitcnt lgkmcnt(0)
    """)
    NUM = [48, 64]; DEN = [80, 96]
    for mt in range(2):
        for q2 in range(2):
            a = KF + 4*q2; z = ZF + 4*q2; b = PQ + mt*8 + q2*4
            c = "0" if q2 == 0 else f"v[{NUM[mt]}:{NUM[mt]+15}]"
            g.e(f"v_mfma_f32_32x32x16_bf16 v[{NUM[mt]}:{NUM[mt]+15}], v[{a}:{a+3}], v[{b}:{b+3}], {c}")
            c = "0" if q2 == 0 else f"v[{DEN[mt]}:{DEN[mt]+15}]"
            g.e(f"v_mfma_f32_32x32x16_bf16 v[{DEN[mt]}:{DEN[mt]+15}], v[{z}:{z+3}], v[{b}:{b+3}], {c}")
    g.e(f"""
    s_lshl_b32 s{t2}, s{s_rb}, 18
    s_lshl_b32 s{t0}, s{s_hp}, 1
    s_add_u32 s{t0}, s{t0}, s{s_wn}
    s_lshl_b32 s{t0}, s{t0}, 13
    s_add_u32 s{t2}, s{t2}, s{t0}
    s_lshl_b32 s{t0}, s{s_wm}, 10
    s_add_u32 s{t2}, s{t2}, s{t0}
    s_add_u32 s{t2}, s{t2}, {WS_O}
    v_and_b32 v{T+5}, 31, v{l}
    v_lshlrev_b32 v{T+5}, 4, v{T+5}
    v_lshrrev_b32 v{T+6}, 5, v{l}
    v_lshl_add_u32 v{T+5}, v{T+6}, 11, v{T+5}
    s_mov_b32 s{t3}, {EPS}
    s_nop 7
    """)
    for mt in range(2):
        g.e(f"v_add_f32 v{DEN[mt]}, s{t3}, v{DEN[mt]}")
    for mt in range(2):
        g.e(f"v_rcp_f32 v{DEN[mt]}, v{DEN[mt]}")
    g.e("s_nop 1")
    OUT = 112
    for mt in range(2):
        for r in range(0, 16, 2):
            g.e(f"v_mul_f32 v{NUM[mt]+r}, v{NUM[mt]+r}, v{DEN[mt]}")
            g.e(f"v_mul_f32 v{NUM[mt]+r+1}, v{NUM[mt]+r+1}, v{DEN[mt]}")
            g.e(f"v_cvt_pk_bf16_f32 v{OUT + mt*8 + r//2}, v{NUM[mt]+r}, v{NUM[mt]+r+1}")
        for q2 in range(2):
            d = OUT + mt*8 + q2*4
            g.e(f"s_add_u32 s{t0}, s{t2}, {q2*4096 + mt*512}")
            g.e(f"buffer_store_dwordx4 v[{d}:{d+3}], v{T+5}, s[{S_WS}:{S_WS+3}], s{t0} offen sc1")
    g.e(f"""
    s_lshl_b32 s{t0}, s{s_rb}, 1
    s_add_u32 s{t0}, s{t0}, s{s_wm}
    s_lshl_b32 s{t0}, s{t0}, 7
    s_lshl_b32 s{t1}, s{s_hp}, 3
    s_add_u32 s{t0}, s{t0}, s{t1}
    s_lshl_b32 s{t1}, s{s_wn}, 2
    s_add_u32 s{t0}, s{t0}, s{t1}
    s_add_u32 s{t4}, s{t0}, {WS_F3}
    s_lshl_b32 s{t3}, s{s_hw}, 7
    """)
    if WO1 in ("x2", "x1"):
        g.e("s_waitcnt vmcnt(0)")
        post_flag(g, t4, T+6, T+7)
        stamp(g, 11)
    elif opt("wo01", "post") == "mid":
        wo_dma(g, vWO, t3, 4, "wo01")
        g.e("s_waitcnt vmcnt(16)")
        post_flag(g, t4, T+6, T+7)
        stamp(g, 11)
        g.e("s_waitcnt vmcnt(1)")
    else:
        g.e("s_waitcnt vmcnt(0)")
        post_flag(g, t4, T+6, T+7)
        stamp(g, 11)
        wo_dma(g, vWO, t3, 4, "wo01")
    Y = 32; Q = 64; F = 96; OUT = 112
    g.e(f"""
    v_and_b32 v{T}, 7, v{l}
    v_lshrrev_b32 v{T+1}, 3, v{l}
    s_lshl_b32 s{t0}, s{s_hw}, 3
    v_add_u32 v{T+1}, s{t0}, v{T+1}
    v_lshlrev_b32 v{T+1}, 2, v{T+1}
    s_lshl_b32 s{t0}, s{s_rb}, 7
    v_add_u32 v{T+1}, s{t0}, v{T+1}
    v_lshlrev_b32 v{T+2}, 3, v{T}
    s_lshl_b32 s{t0}, s{s_hp}, 6
    v_add_u32 v{T+2}, s{t0}, v{T+2}
    v_lshlrev_b32 v{T+3}, 12, v{T+2}
    v_lshl_add_u32 v{T+3}, v{T+1}, 1, v{T+3}
    v_lshlrev_b32 v{T+4}, 11, v{T+1}
    v_lshl_add_u32 v{T+4}, v{T+2}, 1, v{T+4}
    v_lshlrev_b32 v{T+5}, 12, v{T+1}
    v_lshl_add_u32 v{T+5}, v{T+2}, 1, v{T+5}
    s_mov_b32 s{t1}, 4096
    """)
    for i in range(4):
        so = "0" if i < 2 else f"s{t1}"
        g.e(f"buffer_load_dwordx4 v[{Q+4*i}:{Q+4*i+3}], v{T+4}, s[{S_Q}:{S_Q+3}], {so} offen offset:{(i&1)*2048}{ntf('q')}")
    if WO1 not in ("x2", "x1"):
        g.e("s_waitcnt vmcnt(4)")
        lds_set(g, F_W1, s_hw, T+6, T+7)
    stamp(g, 12)
    g.e(f"""
    v_lshlrev_b32 v{T}, 2, v{l}
    s_lshl_b32 s{t1}, s{s_hp}, 8
    s_add_u32 s{t1}, s{t1}, {WS_F4}
    s_setprio 0
    """)
    poll(g, T, T+6, t1, "pf4")
    stamp(g, 13)
    for j in range(8):
        g.e(f"s_mov_b32 s{t0}, {WS_YT + j*4096}")
        g.e(f"buffer_load_dwordx2 v[{Y+2*j}:{Y+2*j+1}], v{T+3}, s[{S_WS}:{S_WS+3}], s{t0} offen{lsc('y')}")
    g.e("s_waitcnt vmcnt(0)")
    for i in range(4):
        for m in range(4):
            a, b, c, d = F + 4*(m & 1), F+1 + 4*(m & 1), F+2 + 4*(m & 1), F+3 + 4*(m & 1)
            qd = Q + 4*i + m
            y0 = Y + 2*(2*m) + i//2; y1 = Y + 2*(2*m+1) + i//2
            g.e(f"v_lshlrev_b32 v{a}, 16, v{qd}")
            g.e(f"v_and_b32 v{b}, 0xffff0000, v{qd}")
            if i % 2 == 0:
                g.e(f"v_lshlrev_b32 v{c}, 16, v{y0}")
                g.e(f"v_lshlrev_b32 v{d}, 16, v{y1}")
            else:
                g.e(f"v_and_b32 v{c}, 0xffff0000, v{y0}")
                g.e(f"v_and_b32 v{d}, 0xffff0000, v{y1}")
            g.e(f"v_pk_mul_f32 v[{a}:{b}], v[{a}:{b}], v[{c}:{d}]")
            g.e(f"v_cvt_pk_bf16_f32 v{OUT+4*i+m}, v{a}, v{b}")
        g.e(f"s_mov_b32 s{t0}, {i*4096}")
        if 'a' not in opt('noout', ''): g.e(f"buffer_store_dwordx4 v[{OUT+4*i}:{OUT+4*i+3}], v{T+5}, s[{S_OUT}:{S_OUT+3}], s{t0} offen{ostm('a')}")
    g.e("s_waitcnt vmcnt(0)")
    flush_stamps(g, 'h')
    g.lab("L_end")
    g.e("s_endpgm")

HDR = open("concat_heads__ssm_conv_h3__linear_attn_block__prompt.s.ref").read().split("; Override")[0]
def full():
    g = G()
    g.L.append(khead(NAME))
    gen_entry(g)
    gen_hyb(g)
    gen_compute(g)
    gen_helper(g)
    s = HDR
    s += f"; @launch grid=(256,1,1) block=(512,1,1) lds={LDS_TOTAL}\n"
    s += '.amdgcn_target "amdgcn-amd-amdhsa--gfx950"\n.text\n'
    s += g.text() + kdesc(NAME, 256)
    return s
if __name__ == "__main__":
    if "--prof" in sys.argv:
        PROF = True; sys.argv.remove("--prof")
    for a in list(sys.argv):
        if a.startswith("--opt="):
            for kv in a[6:].split(","):
                k, v = kv.split("="); OPT[k] = v
            sys.argv.remove(a)
    for a in list(sys.argv):
        if a.startswith("--nt="):
            NT = set(a[5:].split(",")); sys.argv.remove(a)
    out = sys.argv[1] if len(sys.argv) > 1 else "v7.s"
    open(out, "w").write(full())
    print("wrote", out)
```

```python
import sys
from dsl import *
NAME = "concat_heads__ssm_conv_h3__linear_attn_block__prompt_kernel"
WS_EPOCH = 0x0
WS_F1 = 0x1000
WS_F2 = 0x2000
WS_F3 = 0x3000
WS_F4 = 0x4000
WS_XR = 0x10000
WS_YT = 0x410000
WS_O  = 0x810000
WS_KVP = 0xC10000
KVP_STRIDE = 4352
WS_SIZE = 0x1000000
LA, LB = 0, 49152
LH = 122880; H_STRIDE = 8320
LX = 73728; X_STRIDE = 4576
LPQ = 92160
LRED = 108544
LKVX = 156160
LZX = 160256
LFLAG = 160512
F_HS, F_X1, F_HF, F_PF, F_CF, F_WF, F_QF, F_W1 = 0, 16, 32, 48, 64, 80, 96, 112
LDS_TOTAL = 163840
LOG2E = 0x3fb8aa3b
EPS   = 0x358637bd
NB_SD = 2048*1024*2
MAXSPIN = int(__import__("os").environ.get("MAXSPIN", 20000))

PROF = False
OPT = {}
NT = set(["kv", "h"])
def lsc(k): return '' if k in opt('pl', '').split('+') else ' sc1'
def ntf(k): return ' nt' if k in NT else ''
PROF_OFF = 0x8000000
def opt(k, d=None): return OPT.get(k, d)

def ostm(k):
    m = opt("ost" + k, opt("ost", ""))
    return {"": "", "nt": " nt", "sc1": " sc1", "sc01": " sc0 sc1", "sc1nt": " sc1 nt", "sc0": " sc0", "all": " sc0 sc1 nt"}[m]

S_X, S_W, S_WS, S_K, S_V, S_SK, S_H, S_D, S_WO, S_OUT, S_Q = 4, 8, 12, 16, 20, 24, 28, 32, 36, 40, 44
s_rb, s_hp, s_wave, s_tag, s_wm, s_wn, s_rb2, s_cb2 = 48, 49, 50, 51, 52, 53, 54, 55
t0, t1, t2, t3, t4, t5, t6, t7 = 56, 57, 58, 59, 60, 61, 62, 63
S_PF = 92
vL = 250
vJ = 251
vWO = 244

vST = 249
def stamp(g, k, sreg=None):
    if not PROF: return
    if opt("lite") and (k not in (0, 15) or sreg is not None): return
    g.e(f"s_memrealtime s[88:89]")
    if sreg is not None: g.e(f"s_add_u32 m0, s{sreg}, {k}")
    g.e("s_waitcnt lgkmcnt(0)")
    g.e(f"v_writelane_b32 v{vST}, s88, {k if sreg is None else 'm0'}")
def stampc(g, k):
    if not PROF or opt("lite"): return
    g.e(f"s_memtime s[88:89]")
    g.e("s_waitcnt lgkmcnt(0)")
    g.e(f"v_writelane_b32 v{vST}, s88, {k}")
def init_stamps(g):
    if not PROF: return
    g.e(f"v_mov_b32 v{vST}, 0")
def flush_stamps(g, cls):
    if not PROF: return
    stamp(g, 15)
    if not opt("lite"): g.e(f"""
    s_load_dwordx2 s[64:65], s[0:1], 88
    s_mov_b32 s66, 0x10000000
    s_mov_b32 s67, 0x20000
    s_lshl_b32 s68, s2, 3
    s_add_u32 s68, s68, s{s_wave}
    s_lshl_b32 s68, s68, 8
    s_add_u32 s68, s68, {PROF_OFF}
    v_lshlrev_b32 v2, 2, v{vL}
    s_waitcnt lgkmcnt(0)
    buffer_store_dword v{vST}, v2, s[64:67], s68 offen
    s_waitcnt vmcnt(0)
    """)
    if opt("amp"):
        a, b, mult, cl_, wg = opt("amp").split(".")
        if cl_ == cls:
            lab = g.newlabel("amp"); done = g.newlabel("ampd")
            g.e(f"""
            s_cmp_lg_u32 s2, {wg if wg != 'a' else 's2'}
            s_cbranch_scc1 {done}
            v_readlane_b32 s64, v{vST}, {a}
            v_readlane_b32 s65, v{vST}, {b}
            v_readlane_b32 s66, v{vST}, 15
            s_nop 1
            s_sub_u32 s64, s65, s64
            s_mul_i32 s64, s64, {mult}
            s_min_u32 s64, s64, 30000
            """)
            g.lab(lab)
            g.e(f"""
            s_memrealtime s[88:89]
            s_waitcnt lgkmcnt(0)
            s_sub_u32 s65, s88, s66
            s_cmp_lt_u32 s65, s64
            s_cbranch_scc1 {lab}
            """)
            g.lab(done)

def srd_load(g, base, koff):
    g.e(f"s_load_dwordx2 s[{base}:{base+1}], s[0:1], {koff}")
def srd_const(g, base, nbytes):
    g.e(f"s_mov_b32 s{base+2}, {nbytes}")
    g.e(f"s_mov_b32 s{base+3}, 0x20000")
SRD_INFO = {S_X: (48, NB_SD), S_W: (56, 1024*3072*2), S_WS: (88, WS_SIZE), S_K: (8, NB_SD), S_V: (16, NB_SD),
            S_SK: (24, 1024*4*2), S_H: (32, NB_SD), S_D: (40, 2048), S_WO: (64, 1024*1024*2),
            S_OUT: (72, 2048*2048*2), S_Q: (0, NB_SD)}
def srds(g, lst):
    for b in lst: srd_load(g, b, SRD_INFO[b][0])
    for b in lst: srd_const(g, b, SRD_INFO[b][1])

def poll(g, vaddr, vtmp, soff, name):
    lab = g.newlabel(name); done = g.newlabel(name + "d")
    NP = int(opt("np_" + name, opt("np", 1)))
    g.e(f"s_mov_b32 s{t7}, {MAXSPIN}")
    if NP > 1:
        R = [252 + i for i in range(NP)]
        ld = lambda r: g.e(f"buffer_load_dword v{r}, v{vaddr}, s[{S_WS}:{S_WS+3}], s{soff} offen sc1")
        for i in range(NP - 1):
            ld(R[i])
            g.e(f"s_sleep {int(opt('npsl', 4))}")
        g.lab(lab)
        for i in range(NP):
            ld(R[(i + NP - 1) % NP])
            g.e(f"s_waitcnt vmcnt({NP-1})")
            g.e(f"v_cmp_ne_u32 vcc, s{s_tag}, v{R[i]}")
            g.e(f"s_cbranch_vccz {done}")
        g.e(f"s_sub_u32 s{t7}, s{t7}, 1")
        g.e(f"s_cbranch_scc0 {lab}")
        g.lab(done)
        return NP - 1
    g.lab(lab)
    g.e(f"buffer_load_dword v{vtmp}, v{vaddr}, s[{S_WS}:{S_WS+3}], s{soff} offen sc1")
    g.e("s_waitcnt vmcnt(0)")
    g.e(f"v_cmp_ne_u32 vcc, s{s_tag}, v{vtmp}")
    g.e(f"s_cbranch_vccz {done}")
    g.e(f"s_sub_u32 s{t7}, s{t7}, 1")
    g.e(f"s_cbranch_scc1 {done}")
    g.e(f"s_sleep {int(opt('psl_' + name, 1))}")
    g.e(f"s_branch {lab}")
    g.lab(done)
    return 0

def post_flag(g, soff, vz, vt):
    g.e(f"""
    v_mov_b32 v{vz}, 0
    v_mov_b32 v{vt}, s{s_tag}
    s_mov_b64 exec, 1
    buffer_store_dword v{vt}, v{vz}, s[{S_WS}:{S_WS+3}], s{soff} offen sc1
    s_mov_b64 exec, -1
    """)

def lds_set(g, off, sidx, va, vt):
    g.e(f"""
    s_lshl_b32 s{t6}, s{sidx}, 2
    s_add_u32 s{t6}, s{t6}, {LFLAG + off}
    v_mov_b32 v{va}, s{t6}
    v_mov_b32 v{vt}, s{s_tag}
    ds_write_b32 v{va}, v{vt}
    """)
def lds_spin(g, off, nmask, va, vt, name, sidx=None):
    lab = g.newlabel(name); done = g.newlabel(name + "d")
    if sidx is None:
        g.e(f"v_and_b32 v{va}, {nmask}, v{vL}")
        g.e(f"v_lshlrev_b32 v{va}, 2, v{va}")
        g.e(f"v_add_u32 v{va}, {LFLAG + off}, v{va}")
    else:
        g.e(f"s_lshl_b32 s{t6}, s{sidx}, 2")
        g.e(f"s_add_u32 s{t6}, s{t6}, {LFLAG + off}")
        g.e(f"v_mov_b32 v{va}, s{t6}")
    g.e(f"s_mov_b32 s{t7}, {MAXSPIN*8}")
    g.lab(lab)
    g.e(f"""
    ds_read_b32 v{vt}, v{va}
    s_waitcnt lgkmcnt(0)
    v_cmp_ne_u32 vcc, s{s_tag}, v{vt}
    s_cbranch_vccz {done}
    s_sub_u32 s{t7}, s{t7}, 1
    s_cbranch_scc0 {lab}
    """)
    g.lab(done)

def phi_pairs(g, regs, tmp, s_l2e, s_eps, outs):
    n = len(regs)
    for i in range(0, n, 2):
        a, b = regs[i], regs[i+1]
        ta, tb = tmp, tmp + 2
        g.e(f"v_pk_mul_f32 v[{ta}:{ta+1}], v[{a}:{a+1}], s[{s_l2e}:{s_l2e+1}]")
        g.e(f"v_pk_mul_f32 v[{tb}:{tb+1}], v[{b}:{b+1}], s[{s_l2e}:{s_l2e+1}]")
        g.e(f"v_exp_f32_e64 v{ta}, v{ta} clamp")
        g.e(f"v_exp_f32_e64 v{ta+1}, v{ta+1} clamp")
        g.e(f"v_exp_f32_e64 v{tb}, v{tb} clamp")
        g.e(f"v_exp_f32_e64 v{tb+1}, v{tb+1} clamp")
        g.e(f"v_max_f32 v{a}, 0, v{a}")
        g.e(f"v_max_f32 v{a+1}, 0, v{a+1}")
        g.e(f"v_max_f32 v{b}, 0, v{b}")
        g.e(f"v_max_f32 v{b+1}, 0, v{b+1}")
        g.e(f"v_pk_add_f32 v[{a}:{a+1}], v[{a}:{a+1}], v[{ta}:{ta+1}]")
        g.e(f"v_pk_add_f32 v[{b}:{b+1}], v[{b}:{b+1}], v[{tb}:{tb+1}]")
        g.e(f"v_pk_add_f32 v[{a}:{a+1}], v[{a}:{a+1}], s[{s_eps}:{s_eps+1}]")
        g.e(f"v_pk_add_f32 v[{b}:{b+1}], v[{b}:{b+1}], s[{s_eps}:{s_eps+1}]")
        g.e(f"v_cvt_pk_bf16_f32 v{outs[i]}, v{a}, v{a+1}")
        g.e(f"v_cvt_pk_bf16_f32 v{outs[i+1]}, v{b}, v{b+1}")

def gen_entry(g):
    g.e(f"s_cmp_ge_u32 s2, 256")
    g.e(f"s_cbranch_scc1 L_end")
    init_stamps(g)
    stamp(g, 0)
    for b in (S_X, S_W, S_WS, S_K, S_V, S_H, S_WO, S_Q, S_SK, S_D, S_OUT): srd_load(g, b, SRD_INFO[b][0])
    g.e(f"""
    v_lshrrev_b32 v1, 6, v0
    s_and_b32 s{t0}, s2, 7
    s_lshr_b32 s{t1}, s2, 3
    v_readfirstlane_b32 s{s_wave}, v1
    s_and_b32 s{s_rb}, s{t0}, 1
    s_lshl_b32 s{s_rb}, s{s_rb}, 3
    s_lshr_b32 s{t2}, s{t0}, 1
    s_xor_b32 s{t2}, s{t2}, {int(opt('hgx', 0))}
    s_lshl_b32 s{s_hp}, s{t2}, 2
    s_and_b32 s{t2}, s{t1}, 7
    s_or_b32 s{s_rb}, s{s_rb}, s{t2}
    s_lshr_b32 s{t2}, s{t1}, 3
    s_xor_b32 s{t2}, s{t2}, {int(opt('hpx', 0))}
    s_or_b32 s{s_hp}, s{s_hp}, s{t2}
    v_and_b32 v{vL}, 63, v0
    s_lshl_b32 s{s_rb2}, s{t0}, 1
    s_and_b32 s{t2}, s{t1}, 1
    s_or_b32 s{s_rb2}, s{s_rb2}, s{t2}
    s_lshr_b32 s{s_cb2}, s2, 4
    """)
    for b in (S_X, S_W, S_WS): srd_const(g, b, SRD_INFO[b][1])
    g.e(f"s_cmp_lt_u32 s{s_wave}, 4")
    g.e(f"s_cbranch_scc1 L_compute")

def wo_dma_setup(g, vW, T):
    g.e(f"""
    v_lshrrev_b32 v{T}, 3, v{vL}
    v_lshlrev_b32 v{T}, 11, v{T}
    v_lshrrev_b32 v{T+1}, 4, v{vL}
    v_and_b32 v{T+1}, 1, v{T+1}
    v_lshlrev_b32 v{T+1}, 2, v{T+1}
    v_and_b32 v{T+2}, 7, v{vL}
    v_xor_b32 v{T+1}, v{T+1}, v{T+2}
    v_lshl_add_u32 v{T}, v{T+1}, 4, v{T}
    s_lshl_b32 s{t0}, s{s_cb2}, 7
    v_add_u32 v{vW}, s{t0}, v{T}
    """)
    for m in range(1, 4):
        g.e(f"v_add_u32 v{vW+m}, {m*(8*2048 - 1024)}, v{vW}")
def wo_dma(g, vW, s_row0, nblk, name):
    lab = g.newlabel(name)
    g.e(f"""
    s_lshl_b32 s{t0}, s{s_row0}, 7
    s_lshl_b32 s{t1}, s{s_row0}, 11
    s_mov_b32 s{t2}, {nblk}
    """)
    g.lab(lab)
    g.e(f"s_mov_b32 m0, s{t0}")
    g.e(f"s_add_u32 s{t0}, s{t0}, 4096")
    for m in range(4):
        g.e(f"buffer_load_dwordx4 v{vW+m}, s[{S_WO}:{S_WO+3}], s{t1} offen offset:{m*1024}{ntf('wo')} lds")
    g.e(f"s_add_u32 s{t1}, s{t1}, {32*2048}")
    g.e(f"s_sub_u32 s{t2}, s{t2}, 1")
    g.e(f"s_cmp_lg_u32 s{t2}, 0")
    g.e(f"s_cbranch_scc1 {lab}")

def gen_hyb(g):
    g.lab("L_hyb")
    l = vL
    s_hw = 69
    vAo = [2, 3, 4, 5]; vBo = [[6 + 2*sec + i for i in range(2)] for sec in range(3)]
    T = 24
    g.e(f"""
    s_sub_u32 s{s_hw}, s{s_wave}, 4
    v_lshrrev_b32 v{T}, 3, v{l}
    s_lshl_b32 s{t0}, s{s_rb}, 7
    s_lshl_b32 s{t1}, s{s_hw}, 5
    s_add_u32 s{t0}, s{t0}, s{t1}
    v_add_u32 v{T+1}, s{t0}, v{T}
    v_lshlrev_b32 v{T+1}, 11, v{T+1}
    v_lshrrev_b32 v{T+2}, 4, v{l}
    v_and_b32 v{T+3}, 7, v{l}
    v_xor_b32 v{T+4}, v{T+2}, v{T+3}
    v_xor_b32 v{T+5}, 4, v{T+4}
    v_lshl_add_u32 v{T+4}, v{T+4}, 4, v{T+1}
    v_lshl_add_u32 v{T+5}, v{T+5}, 4, v{T+1}
    """)
    for i in range(4):
        g.e(f"v_add_u32 v{vAo[i]}, {i*8*2048 - 1024*i}, v{T + 4 + (i&1)}" if i else f"v_mov_b32 v{vAo[0]}, v{T+4}")
    g.e(f"""
    s_lshl_b32 s{t0}, s{s_hw}, 4
    v_add_u32 v{T+1}, s{t0}, v{T}
    s_movk_i32 s{t1}, 6144
    v_mul_lo_u32 v{T+1}, v{T+1}, s{t1}
    v_and_b32 v{T+2}, 1, v{T+2}
    v_lshlrev_b32 v{T+2}, 2, v{T+2}
    v_xor_b32 v{T+2}, v{T+2}, v{T+3}
    v_lshl_add_u32 v{T+1}, v{T+2}, 4, v{T+1}
    s_xor_b32 s{t0}, s{s_hp}, {int(opt('wx', 0))}
    s_lshl_b32 s{t0}, s{t0}, 7
    v_add_u32 v{T+1}, s{t0}, v{T+1}
    """)
    for sec in range(3):
        for i in range(2):
            g.e(f"v_add_u32 v{vBo[sec][i]}, {i*(8*6144 - 1024) + sec*2048}, v{T+1}")
    s_SA, s_SB, s_OA, s_OB, s_cnt, s_wrap = 64, 65, 66, 67, 68, 70
    STG = int(opt("stg", 1))
    g.e(f"""
    s_lshl_b32 s{s_SA}, s{s_hw}, 12
    s_lshl_b32 s{s_SB}, s{s_hw}, 11
    s_add_u32 s{s_SB}, s{s_SB}, {LB}
    s_mov_b32 s{s_cnt}, 0
    s_add_u32 s{s_wrap}, s{s_SA}, {3*16384}
    """)
    if STG == 0:
        g.e(f"s_mov_b32 s{s_OA}, 0")
        g.e(f"s_mov_b32 s{s_OB}, 0")
    elif STG >= 3:
        A_, B_, C_ = int(opt("sA", "0xECA86420"), 0), int(opt("sB", "0xC840"), 0), int(opt("sC", "0"), 0)
        g.e(f"""
        s_lshr_b32 s{t0}, s2, 3
        s_and_b32 s{t0}, s{t0}, 7
        s_lshl_b32 s{t0}, s{t0}, 2
        s_lshr_b32 s{t0}, {A_}, s{t0}
        s_lshr_b32 s{t1}, s2, 6
        s_lshl_b32 s{t1}, s{t1}, 2
        s_lshr_b32 s{t1}, {B_}, s{t1}
        s_add_u32 s{t0}, s{t0}, s{t1}
        s_and_b32 s{t1}, s2, 7
        s_lshl_b32 s{t1}, s{t1}, 2
        s_lshr_b32 s{t1}, {C_}, s{t1}
        s_add_u32 s{t0}, s{t0}, s{t1}
        s_and_b32 s{t0}, s{t0}, 15
        s_lshl_b32 s{s_OA}, s{t0}, 7
        s_mul_i32 s{s_OB}, s{t0}, {64*6144}
        """)
    else:
        g.e(f"""
        s_and_b32 s{t0}, s2, 7
        s_lshr_b32 s{t1}, s{t0}, 1
        s_lshl_b32 s{t1}, s{t1}, 2
        s_and_b32 s{t0}, s{t0}, 1
        s_lshl_b32 s{t0}, s{t0}, 3
        s_add_u32 s{t0}, s{t0}, s{t1}
        """)
        if STG == 2:
            g.e(f"s_lshr_b32 s{t1}, s2, 3")
            g.e(f"s_and_b32 s{t1}, s{t1}, 1")
            g.e(f"s_lshl_b32 s{t1}, s{t1}, 1")
            g.e(f"s_add_u32 s{t0}, s{t0}, s{t1}")
        g.e(f"""
        s_and_b32 s{t0}, s{t0}, 15
        s_lshl_b32 s{s_OA}, s{t0}, 7
        s_mul_i32 s{s_OB}, s{t0}, {64*6144}
        """)
    g.e(f"""
    s_waitcnt lgkmcnt(0)
    s_load_dword s{s_tag}, s[{S_WS}:{S_WS+1}], {WS_EPOCH}
    """)
    def issue():
        if "nodma" in opt("abl", "") and getattr(issue, "n", 0) >= 2:
            return
        issue.n = getattr(issue, "n", 0) + 1
        g.e(f"s_mov_b32 m0, s{s_SA}")
        g.e(f"s_add_u32 s{s_SA}, s{s_SA}, 16384")
        for i in range(4):
            g.e(f"buffer_load_dwordx4 v{vAo[i]}, s[{S_X}:{S_X+3}], s{s_OA} offen offset:{1024*i}{ntf('x')} lds")
        for sec in range(3):
            g.e(f"s_add_u32 m0, s{s_SB}, {sec*8192}")
            if sec == 0: g.e(f"s_add_u32 s{s_OA}, s{s_OA}, 128")
            else: g.e("s_nop 0")
            for i in range(2):
                g.e(f"buffer_load_dwordx4 v{vBo[sec][i]}, s[{S_W}:{S_W+3}], s{s_OB} offen offset:{1024*i}{ntf('w')} lds")
        g.e(f"""
        s_add_u32 s{s_OB}, s{s_OB}, {64*6144}
        s_add_u32 s{s_SB}, s{s_SB}, 24576
        s_cmp_eq_u32 s{s_SA}, s{s_wrap}
        s_cselect_b32 s{t0}, {3*16384}, 0
        s_cselect_b32 s{t1}, {3*24576}, 0
        s_sub_u32 s{s_SA}, s{s_SA}, s{t0}
        s_sub_u32 s{s_SB}, s{s_SB}, s{t1}
        """)
        if STG:
            g.e(f"s_cmp_eq_u32 s{s_OA}, 2048")
            g.e(f"s_cselect_b32 s{s_OA}, 0, s{s_OA}")
            g.e(f"s_cselect_b32 s{s_OB}, 0, s{s_OB}")
    NB = 10
    issue()
    stamp(g, 1)
    issue()
    for b in (S_K, S_V, S_SK, S_H, S_D, S_WO, S_Q, S_OUT): srd_const(g, b, SRD_INFO[b][1])
    wo_dma_setup(g, vWO, 240)
    vKb, vSt, vSK = 12, 15, 36
    vNeg = [37, 38, 39]
    KR = 40
    VR = 64
    WR = 80
    T = 24
    g.e(f"""
    v_and_b32 v{T}, 15, v{l}
    v_lshlrev_b32 v{T}, 3, v{T}
    s_lshl_b32 s{t0}, s{s_hp}, 7
    v_add_u32 v{T}, s{t0}, v{T}
    v_lshrrev_b32 v{T+1}, 4, v{l}
    v_lshlrev_b32 v{T+1}, 3, v{T+1}
    s_lshl_b32 s{t0}, s{s_rb}, 7
    s_lshl_b32 s{t1}, s{s_hw}, 5
    s_add_u32 s{t0}, s{t0}, s{t1}
    v_add_u32 v{T+1}, s{t0}, v{T+1}
    v_lshl_add_u32 v{vKb}, v{T+1}, 11, v{T}
    v_mov_b32 v{T+2}, 0x80000000
    v_cmp_eq_u32 vcc, 0, v{T+1}
    v_lshlrev_b32 v{vSK}, 2, v{T}
    v_lshlrev_b32 v{vSt}, 11, v{T}
    v_lshlrev_b32 v{T+3}, 1, v{T+1}
    v_sub_u32 v{T+3}, 4080, v{T+3}
    v_add_u32 v{vSt}, v{vSt}, v{T+3}
    v_lshlrev_b32 v13, 4, v{l}
    v_add_u32 v14, 2, v13
    v_mov_b32 v176, 0
    v_mov_b32 v177, 0
    v_mov_b32 v178, 0
    v_mov_b32 v179, 0
    """)
    for i in range(3):
        g.e(f"v_subrev_u32 v{vNeg[i]}, {(3-i)*2048}, v{vKb}")
    for i in range(3):
        g.e(f"v_cndmask_b32 v{vNeg[i]}, v{vNeg[i]}, v{T+2}, vcc")
    s_ch = 71
    for m in range(1, 4):
        g.e(f"s_mov_b32 s{71+m}, {m*4096}")
    def soff(row): return "0" if row < 2 else f"s{71 + row//2}"
    g.e(f"""
    s_lshl_b32 s{s_ch}, s{s_hp}, 6
    s_lshl_b32 s{t0}, s{s_rb}, 2
    s_add_u32 s{s_ch}, s{s_ch}, s{t0}
    s_add_u32 s{s_ch}, s{s_ch}, s{s_hw}
    s_setprio 1
    s_waitcnt lgkmcnt(0)
    s_add_u32 s{s_tag}, s{s_tag}, 1
    s_not_b32 s{t0}, s{s_tag}
    v_mov_b32 v{T+2}, s{t0}
    v_lshlrev_b32 v{T+3}, 2, v{l}
    v_add_u32 v{T+3}, {LFLAG}, v{T+3}
    s_mov_b32 exec_hi, 0
    ds_write_b32 v{T+3}, v{T+2}
    s_mov_b64 exec, -1
    s_waitcnt vmcnt({NB}) lgkmcnt(0)
    """)
    stamp(g, 2)
    g.e("s_barrier")
    KF, WF, XO, VF, OUT = 112, 134, 142, 158, 160
    T = 16
    def kv_list():
        L = []
        for i in range(2):
            L.append(f"buffer_load_dwordx4 v[{WR+4*i}:{WR+4*i+3}], v{vSK}, s[{S_SK}:{S_SK+3}], 0 offen offset:{16*i}")
        for i in range(3):
            L.append(f"buffer_load_dwordx2 v[{KR+2*i}:{KR+2*i+1}], v{vNeg[i]}, s[{S_K}:{S_K+3}], 0 offen{ntf('kv')}")
        for r in range(8):
            L.append(f"buffer_load_dwordx2 v[{KR+6+2*r}:{KR+6+2*r+1}], v{vKb}, s[{S_K}:{S_K+3}], {soff(r)} offen offset:{(r&1)*2048}{ntf('kv')}")
        for r in range(8):
            L.append(f"buffer_load_dwordx2 v[{VR+2*r}:{VR+2*r+1}], v{vKb}, s[{S_V}:{S_V+3}], {soff(r)} offen offset:{(r&1)*2048}{ntf('kv')}")
        return L
    def mk_kv(part):
        def f():
            for x in part: g.e(x)
            return len(part)
        return f
    def h_dma():
        g.e(f"s_lshl_b32 s{t0}, s{s_ch}, 12")
        g.e(f"s_mul_i32 s{t1}, s{s_hw}, {H_STRIDE}")
        g.e(f"s_add_u32 m0, s{t1}, {LH + 32}")
        g.e("s_nop 0")
        for m in range(4):
            g.e(f"buffer_load_dwordx4 v13, s[{S_H}:{S_H+3}], s{t0} offen offset:{m*1024}{ntf('h')} lds")
        g.e(f"s_add_u32 m0, s{t1}, {LH + 4160 + 32}")
        g.e("s_nop 0")
        for m in range(4):
            g.e(f"buffer_load_dwordx4 v14, s[{S_H}:{S_H+3}], s{t0} offen offset:{m*1024}{ntf('h')} lds")
        g.e(f"s_lshl_b32 s{t0}, s{s_ch}, 1")
        g.e(f"v_mov_b32 v35, 0")
        g.e(f"buffer_load_ushort v35, v35, s[{S_D}:{S_D+3}], s{t0} offen")
        return 9
    def unpack(dst, src):
        g.e(f"v_lshlrev_b32 v{dst}, 16, v{src}")
        g.e(f"v_and_b32 v{dst+1}, 0xffff0000, v{src}")
    def piece(p, half):
        ob = OUT + 8*p
        if half == 0:
            for c in range(2):
                w = WR + 2*(2*p + c)
                g.e(f"v_lshlrev_b32 v{WF+0+c}, 16, v{w}")
                g.e(f"v_and_b32 v{WF+2+c}, 0xffff0000, v{w}")
                g.e(f"v_lshlrev_b32 v{WF+4+c}, 16, v{w+1}")
                g.e(f"v_and_b32 v{WF+6+c}, 0xffff0000, v{w+1}")
            for r in range(11): unpack(KF + 2*r, KR + 2*r + p)
        for s_ in (range(0, 2) if half == 0 else range(2, 8)):
            o = XO + 2*s_
            for j in range(4):
                k = KF + 2*(s_ + 3 - j); w = WF + 2*j
                if j == 0: g.e(f"v_pk_mul_f32 v[{o}:{o+1}], v[{k}:{k+1}], v[{w}:{w+1}]")
                else: g.e(f"v_pk_fma_f32 v[{o}:{o+1}], v[{k}:{k+1}], v[{w}:{w+1}], v[{o}:{o+1}]")
            unpack(VF, VR + 2*s_ + p)
            g.e(f"v_pk_mul_f32 v[{o}:{o+1}], v[{o}:{o+1}], v[{VF}:{VF+1}]")
        if half == 1:
            for c in range(2):
                for m in range(4):
                    g.e(f"v_cvt_pk_bf16_f32 v{ob+4*c+m}, v{XO+2*(7-2*m)+c}, v{XO+2*(6-2*m)+c}")
    def xr_stores():
        for p in range(2):
            ob = OUT + 8*p
            for c in range(2):
                g.e(f"s_mov_b32 s{t0}, {WS_XR + (2*p + c)*4096}")
                g.e(f"buffer_store_dwordx4 v[{ob+4*c}:{ob+4*c+3}], v{vSt}, s[{S_WS}:{S_WS+3}], s{t0} offen sc1")
        return 4
    def f1_flag():
        g.e(f"""
        s_lshl_b32 s{t0}, s{s_hp}, 8
        s_lshl_b32 s{t1}, s{s_rb}, 4
        s_add_u32 s{t0}, s{t0}, s{t1}
        s_lshl_b32 s{t1}, s{s_hw}, 2
        s_add_u32 s{t0}, s{t0}, s{t1}
        s_add_u32 s{t0}, s{t0}, {WS_F1}
        """)
        post_flag(g, t0, T, T+1)
        return 1
    def h_fix():
        g.e(f"""
        s_mul_i32 s{t1}, s{s_hw}, {H_STRIDE}
        s_add_u32 s{t1}, s{t1}, {LH}
        v_mov_b32 v{T}, s{t1}
        ds_read_u16 v{T+1}, v{T} offset:32
        v_lshlrev_b32 v35, 16, v35
        s_waitcnt lgkmcnt(0)
        v_lshlrev_b32 v{T+1}, 16, v{T+1}
        v_add_f32 v{T+1}, v{T+1}, v35
        v_cvt_pk_bf16_f32 v{T+1}, v{T+1}, v{T+1}
        v_and_b32 v{T+2}, 0xffff0000, v{T+1}
        s_mov_b64 exec, 1
        ds_write_b128 v{T}, v[176:179]
        ds_write_b128 v{T}, v[176:179] offset:16
        ds_write_b16 v{T}, v{T+1} offset:32
        ds_write_b128 v{T}, v[176:179] offset:4160
        ds_write_b64 v{T}, v[176:177] offset:4176
        ds_write_b32 v{T}, v176 offset:4184
        ds_write_b32 v{T}, v{T+2} offset:4188
        s_mov_b64 exec, -1
        s_waitcnt lgkmcnt(0)
        """)
        return 0
    def wo_touch():
        g.e(f"""
        s_lshr_b32 s{t0}, s2, 3
        s_lshl_b32 s{t0}, s{t0}, 2
        s_add_u32 s{t0}, s{t0}, s{s_hw}
        s_lshl_b32 s{t0}, s{t0}, 14
        v_lshrrev_b32 v{T}, 4, v{l}
        v_lshlrev_b32 v{T}, 11, v{T}
        v_and_b32 v{T+1}, 15, v{l}
        v_lshl_add_u32 v{T}, v{T+1}, 7, v{T}
        buffer_load_dword v{vJ}, v{T}, s[{S_WO}:{S_WO+3}], s{t0} offen
        s_add_u32 s{t0}, s{t0}, 8192
        buffer_load_dword v{vJ}, v{T}, s[{S_WO}:{S_WO+3}], s{t0} offen
        """)
        return 2
    def mk_wo_piece(u):
        def f():
            g.e(f"""
            s_lshr_b32 s{t0}, s2, 3
            s_lshl_b32 s{t0}, s{t0}, 5
            s_add_u32 s{t0}, s{t0}, s{s_hw}
            s_add_u32 s{t0}, s{t0}, {4*u}
            s_lshl_b32 s{t0}, s{t0}, 11
            v_lshlrev_b32 v{T}, 7, v{l}
            s_mov_b64 exec, 0xffff
            buffer_load_dword v{vJ}, v{T}, s[{S_WO}:{S_WO+3}], s{t0} offen
            s_mov_b64 exec, -1
            """)
            return 1
        return f
    def wo_touch3():
        g.e(f"""
        s_lshr_b32 s{t0}, s2, 3
        s_lshl_b32 s{t0}, s{t0}, 2
        s_add_u32 s{t0}, s{t0}, s{s_hw}
        s_lshl_b32 s{t0}, s{t0}, 14
        s_add_u32 s{t0}, s{t0}, 384
        v_and_b32 v{T}, 7, v{l}
        v_lshlrev_b32 v{T}, 11, v{T}
        v_lshrrev_b32 v{T+1}, 3, v{l}
        v_lshl_add_u32 v{T}, v{T+1}, 10, v{T}
        s_mov_b64 exec, 0xffff
        buffer_load_dword v{vJ}, v{T}, s[{S_WO}:{S_WO+3}], s{t0} offen
        s_mov_b64 exec, -1
        """)
        return 1
    def wo_touchm():
        g.e(f"""
        s_lshl_b32 s{t0}, s2, 2
        s_add_u32 s{t0}, s{t0}, s{s_hw}
        s_lshl_b32 s{t0}, s{t0}, 11
        v_lshlrev_b32 v{T}, 7, v{l}
        s_mov_b64 exec, 0xffff
        buffer_load_dword v{vJ}, v{T}, s[{S_WO}:{S_WO+3}], s{t0} offen
        s_mov_b64 exec, -1
        """)
        return 1
    KL = int(opt("kvit", 4)); XS = int(opt("xsit", 11)); HD = int(opt("hit", 13)); V0 = int(opt("vit", KL + int(opt("kvsp", 1)) + 2))
    abl = opt("abl", "")
    side = {}
    val = {}
    def add(t, f): side.setdefault(t, []).append(f)
    extra_cnt = {}
    if "noaux" not in abl:
        KSP = int(opt("kvsp", 1))
        Lk = kv_list(); per = -(-len(Lk) // KSP)
        for u in range(KSP):
            part = Lk[u*per:(u+1)*per]
            f_ = mk_kv(part); extra_cnt[f_] = len(part); add(KL + u, f_)
        if HD <= 13: add(HD, h_dma)
        add(XS, xr_stores)
        if opt("wom"):
            add(int(opt("wom")), wo_touchm); extra_cnt[wo_touchm] = 1
        w_ = opt("wot", "x")
        if w_.startswith("s"):
            for u in range(8):
                f_ = mk_wo_piece(u); extra_cnt[f_] = 1; add(int(w_[1:]) + u, f_)
        elif w_.startswith("c"):
            add(int(w_[1:]), wo_touch3); extra_cnt[wo_touch3] = 1
        elif w_ not in ("0", "x"): add(int(w_), wo_touch)
        for i in range(4): val[V0 + i] = (i // 2, i % 2)
        assert V0 >= KL + KSP + 2 and XS >= V0 + 4 and XS <= 12
    cnt_of = {h_dma: 9, xr_stores: 4, wo_touch: 2}
    cnt_of.update(extra_cnt)
    def ecount(t): return sum(cnt_of[f] for f in side.get(t, []))
    assert max(side) <= 13
    special = [t for t in range(14) if t in side or ecount(t - 1) or t in val]
    PRE = opt("pre", "1") == "1"
    g.lab("L_hloop")
    if PRE and val:
        g.e(f"s_cmp_lt_u32 s{s_hw}, 2")
        g.e(f"s_cbranch_scc1 L_hissue")
        for t in val:
            g.e(f"s_cmp_eq_u32 s{s_cnt}, {t}")
            g.e(f"s_cbranch_scc1 L_hval{t}")
    g.lab("L_hissue")
    issue()
    if opt("bar"): stamp(g, 32, s_cnt)
    for t in special:
        g.e(f"s_cmp_eq_u32 s{s_cnt}, {t}")
        g.e(f"s_cbranch_scc1 L_hside{t}")
    g.e(f"s_waitcnt vmcnt({NB})")
    g.lab("L_htail")
    if opt("bar"): stamp(g, 16, s_cnt)
    g.e(f"s_add_u32 s{s_cnt}, s{s_cnt}, 1")
    g.e(f"s_cmp_lg_u32 s{s_cnt}, 14")
    g.e("s_barrier")
    g.e("s_cbranch_scc1 L_hloop")
    g.e(f"s_waitcnt vmcnt({ecount(13)})")
    if "noaux" not in abl: f1_flag()
    if HD == 15 and "noaux" not in abl: h_dma()
    if HD == 14 and "noaux" not in abl: pass
    g.e("s_barrier")
    g.e("s_barrier")
    stamp(g, 3)
    if HD == 16 and "noaux" not in abl: h_dma()
    T = 16
    g.e(f"""
    v_lshlrev_b32 v{T}, 2, v{l}
    s_lshl_b32 s{t1}, s{s_hp}, 8
    s_add_u32 s{t1}, s{t1}, {WS_F1}
    """)
    poll(g, T, T+1, t1, "pf1")
    stamp(g, 6)
    XR_ = 40
    g.e(f"s_lshl_b32 s{t0}, s{s_ch}, 12")
    g.e(f"s_add_u32 s{t0}, s{t0}, {WS_XR}")
    for m in range(4):
        d = XR_ + 4*m
        g.e(f"buffer_load_dwordx4 v[{d}:{d+3}], v13, s[{S_WS}:{S_WS+3}], s{t0} offen offset:{m*1024}{lsc('x')}")
    nwt = 0
    if HD == 17: nwt += h_dma()
    if opt("wot", "x") == "x": nwt += wo_touch()
    if opt("wo01", "post") == "x1":
        g.e(f"s_lshl_b32 s{t5}, s{s_hw}, 7")
        wo_dma(g, vWO, t5, 2, "wo01a"); nwt += 8
    if HD != 17: h_fix()
    g.e(f"""
    s_mul_i32 s{t1}, s{s_hw}, {X_STRIDE}
    s_add_u32 s{t1}, s{t1}, {LX}
    v_add_u32 v{T}, s{t1}, v13
    v_cmp_gt_u32 vcc, 30, v{l}
    s_and_saveexec_b64 s[{t4}:{t4+1}], vcc
    ds_write_b128 v{T}, v[176:179] offset:4096
    s_mov_b64 exec, s[{t4}:{t4+1}]
    s_waitcnt vmcnt({nwt})
    """)
    for m in range(4):
        d = XR_ + 4*m
        g.e(f"ds_write_b128 v{T}, v[{d}:{d+3}] offset:{m*1024}")
    if HD == 17:
        g.e(f"s_waitcnt vmcnt({nwt - 9})")
        h_fix()
    g.e("s_waitcnt lgkmcnt(0)")
    stamp(g, 7)
    if opt("nox2"): lds_set(g, F_X1, s_hw, T, T+1)
    else: g.e("s_barrier")
    g.e("s_branch L_helper")
    for t in special:
        g.lab(f"L_hside{t}")
        for f in side.get(t, []): f()
        if t in val:
            if PRE:
                g.e(f"s_cmp_ge_u32 s{s_hw}, 2")
                g.e(f"s_cbranch_scc1 L_hwait{t}")
            g.lab(f"L_hval{t}")
            piece(*val[t])
            if PRE:
                g.e(f"s_cmp_ge_u32 s{s_hw}, 2")
                g.e(f"s_cbranch_scc1 L_hissue")
            g.lab(f"L_hwait{t}")
        n = ecount(t - 1) + NB + ecount(t)
        g.e(f"s_waitcnt vmcnt({min(n, 63)})")
        g.e("s_branch L_htail")

def q_early(g, s_hw, l):
    T = 240; Q = 224
    g.e(f"""
    v_and_b32 v{T}, 7, v{l}
    v_lshrrev_b32 v{T+1}, 3, v{l}
    s_lshl_b32 s{t0}, s{s_hw}, 3
    v_add_u32 v{T+1}, s{t0}, v{T+1}
    v_lshlrev_b32 v{T+1}, 2, v{T+1}
    s_lshl_b32 s{t0}, s{s_rb}, 7
    v_add_u32 v{T+1}, s{t0}, v{T+1}
    v_lshlrev_b32 v{T+2}, 3, v{T}
    s_lshl_b32 s{t0}, s{s_hp}, 6
    v_add_u32 v{T+2}, s{t0}, v{T+2}
    v_lshlrev_b32 v{T+3}, 11, v{T+1}
    v_lshl_add_u32 v{T+3}, v{T+2}, 1, v{T+3}
    s_mov_b32 s{t1}, 4096
    """)
    for i in range(4):
        so = "0" if i < 2 else f"s{t1}"
        g.e(f"buffer_load_dwordx4 v[{Q+4*i}:{Q+4*i+3}], v{T+3}, s[{S_Q}:{S_Q+3}], {so} offen offset:{(i&1)*2048}{ntf('q')}")

def post_pass(g, s_hw, T, l, helper, WO1):
    Y = 32; Q = 64; F = 96; OUT = 112
    g.e(f"""
    v_and_b32 v{T}, 7, v{l}
    v_lshrrev_b32 v{T+1}, 3, v{l}
    s_lshl_b32 s{t0}, s{s_hw}, 3
    v_add_u32 v{T+1}, s{t0}, v{T+1}
    v_lshlrev_b32 v{T+1}, 2, v{T+1}
    s_lshl_b32 s{t0}, s{s_rb}, 7
    v_add_u32 v{T+1}, s{t0}, v{T+1}
    v_lshlrev_b32 v{T+2}, 3, v{T}
    s_lshl_b32 s{t0}, s{s_hp}, 6
    v_add_u32 v{T+2}, s{t0}, v{T+2}
    v_lshlrev_b32 v{T+3}, 12, v{T+2}
    v_lshl_add_u32 v{T+3}, v{T+1}, 1, v{T+3}
    v_lshlrev_b32 v{T+4}, 11, v{T+1}
    v_lshl_add_u32 v{T+4}, v{T+2}, 1, v{T+4}
    v_lshlrev_b32 v{T+5}, 12, v{T+1}
    v_lshl_add_u32 v{T+5}, v{T+2}, 1, v{T+5}
    s_mov_b32 s{t1}, 4096
    """)
    if helper and opt("qe"): Q = 224
    else:
      for i in range(4):
        so = "0" if i < 2 else f"s{t1}"
        g.e(f"buffer_load_dwordx4 v[{Q+4*i}:{Q+4*i+3}], v{T+4}, s[{S_Q}:{S_Q+3}], {so} offen offset:{(i&1)*2048}{ntf('q')}")
    NQ = 0 if (helper and opt("qe")) else 4
    if helper and WO1 == "early":
        if opt("wo23") == "h":
            g.e(f"s_waitcnt vmcnt({NQ})")
            lds_set(g, F_WF, s_hw, T+6, T+7)
    elif helper and WO1 not in ("x2", "x1"):
        g.e(f"s_waitcnt vmcnt({NQ})")
        lds_set(g, F_W1, s_hw, T+6, T+7)
    if helper: stamp(g, 12)
    g.e(f"""
    v_lshlrev_b32 v{T}, 2, v{l}
    s_lshl_b32 s{t1}, s{s_hp}, 8
    s_add_u32 s{t1}, s{t1}, {WS_F4}
    {'s_setprio 0' if helper else ''}
    """)
    poll(g, T, T+6, t1, "pf4")
    stamp(g, 13 if helper else 20)
    for j in range(8):
        g.e(f"s_mov_b32 s{t0}, {WS_YT + j*4096}")
        g.e(f"buffer_load_dwordx2 v[{Y+2*j}:{Y+2*j+1}], v{T+3}, s[{S_WS}:{S_WS+3}], s{t0} offen{lsc('y')}")
    g.e("s_waitcnt vmcnt(0)")
    for i in range(4):
        for m in range(4):
            a, b, c, d = F + 4*(m & 1), F+1 + 4*(m & 1), F+2 + 4*(m & 1), F+3 + 4*(m & 1)
            qd = Q + 4*i + m
            y0 = Y + 2*(2*m) + i//2; y1 = Y + 2*(2*m+1) + i//2
            g.e(f"v_lshlrev_b32 v{a}, 16, v{qd}")
            g.e(f"v_and_b32 v{b}, 0xffff0000, v{qd}")
            if i % 2 == 0:
                g.e(f"v_lshlrev_b32 v{c}, 16, v{y0}")
                g.e(f"v_lshlrev_b32 v{d}, 16, v{y1}")
            else:
                g.e(f"v_and_b32 v{c}, 0xffff0000, v{y0}")
                g.e(f"v_and_b32 v{d}, 0xffff0000, v{y1}")
            g.e(f"v_pk_mul_f32 v[{a}:{b}], v[{a}:{b}], v[{c}:{d}]")
            g.e(f"v_cvt_pk_bf16_f32 v{OUT+4*i+m}, v{a}, v{b}")
        g.e(f"s_mov_b32 s{t0}, {i*4096}")
        if 'a' not in opt('noout', ''): g.e(f"buffer_store_dwordx4 v[{OUT+4*i}:{OUT+4*i+3}], v{T+5}, s[{S_OUT}:{S_OUT+3}], s{t0} offen{ostm('a')}")

def gen_compute(g):
    g.lab("L_compute")
    ACCQ = [0, 16]; ACCK = [32, 48]; ACCV = [64, 80]
    P = [96, 116]
    vA = [136, 137, 138, 139]; vB = 140
    T = 150
    l = vL
    abl = opt("abl", "")
    g.e(f"""
    s_waitcnt lgkmcnt(0)
    s_load_dword s{s_tag}, s[{S_WS}:{S_WS+1}], {WS_EPOCH}
    """)
    if opt("kvpf", "0") == "1":
        srd_const(g, S_K, NB_SD); srd_const(g, S_V, NB_SD)
        g.e(f"""
        s_lshl_b32 s{t0}, s{s_rb}, 18
        s_lshl_b32 s{t1}, s{s_hp}, 7
        s_add_u32 s{t0}, s{t0}, s{t1}
        s_and_b32 s{t1}, s{s_wave}, 1
        s_lshl_b32 s{t1}, s{t1}, 17
        s_add_u32 s{t0}, s{t0}, s{t1}
        v_lshlrev_b32 v{T}, 11, v{l}
        s_cmp_lt_u32 s{s_wave}, 2
        s_cbranch_scc0 L_pfv
        buffer_load_dword v{vJ}, v{T}, s[{S_K}:{S_K+3}], s{t0} offen
        s_branch L_pfdone
        """)
        g.lab("L_pfv")
        g.e(f"buffer_load_dword v{vJ}, v{T}, s[{S_V}:{S_V+3}], s{t0} offen")
    g.lab("L_pfdone")
    c3 = opt("c3", "wxk")
    C3AT = int(opt("c3at", 0))
    vC3, sC3, sC3m = 146, 70, 71
    if c3 != "0":
        srd_const(g, S_K, NB_SD); srd_const(g, S_V, NB_SD)
        g.e(f"""
        s_and_b32 s{t0}, s2, 7
        s_lshr_b32 s{t1}, s2, 3
        s_lshl_b32 s{t1}, s{t1}, 5
        v_and_b32 v{T}, 31, v{l}
        v_add_u32 v{T}, s{t1}, v{T}
        v_lshrrev_b32 v{T+1}, 5, v{l}
        s_lshr_b32 s{t2}, s{t0}, 1
        s_lshl_b32 s{t2}, s{t2}, 2
        s_add_u32 s{t2}, s{t2}, 3
        s_lshl_b32 s{t2}, s{t2}, 7
        s_and_b32 s{t3}, s{t0}, 1
        s_lshl_b32 s{t3}, s{t3}, 21
        s_mov_b32 s{sC3m}, 0
        s_mov_b32 s{sC3}, 0
        v_mov_b32 v{vC3}, 0
        """)
        g.e(f"s_cmp_eq_u32 s{s_wave}, 2")
        g.e(f"s_cbranch_scc1 L_c3x")
        g.e(f"s_bitcmp1_b32 s2, 1")
        g.e(f"s_cbranch_scc1 L_c3done")
        g.e(f"s_cmp_eq_u32 s{s_wave}, 3")
        g.e(f"s_cbranch_scc1 L_c3k")
        if "w" in c3:
            g.e(f"""
            s_movk_i32 s{t4}, 6144
            v_mul_lo_u32 v{vC3}, v{T}, s{t4}
            v_lshl_add_u32 v{vC3}, v{T+1}, 11, v{vC3}
            s_lshl_b32 s{t4}, s{s_wave}, 12
            s_add_u32 s{sC3}, s{t2}, s{t4}
            s_add_u32 s{sC3m}, s{s_wave}, 1
            """)
        g.e("s_branch L_c3done")
        g.lab("L_c3x")
        if "x" in c3:
            g.e(f"""
            v_lshlrev_b32 v{vC3}, 11, v{T}
            v_lshl_add_u32 v{vC3}, v{T+1}, 10, v{vC3}
            s_add_u32 s{sC3}, s{t3}, 384
            s_mov_b32 s{sC3m}, 3
            """)
        g.e("s_branch L_c3done")
        g.lab("L_c3k")
        if "k" in c3:
            g.e(f"""
            v_lshlrev_b32 v{vC3}, 11, v{T}
            s_add_u32 s{sC3}, s{t3}, s{t2}
            s_mov_b32 s{sC3m}, 4
            """)
        g.lab("L_c3done")
    def c3_touch():
        if c3 == "0": return
        u = g.newlabel("c3")
        g.e(f"""
        s_cmp_eq_u32 s{sC3m}, 0
        s_cbranch_scc1 {u}e
        s_cmp_eq_u32 s{sC3m}, 3
        s_cbranch_scc1 {u}x
        s_cmp_eq_u32 s{sC3m}, 4
        s_cbranch_scc1 {u}k
        s_cmp_eq_u32 s{sC3m}, 1
        s_cbranch_scc1 {u}w
        s_mov_b32 exec_hi, 0
        {u}w:
        buffer_load_dword v{vJ}, v{vC3}, s[{S_W}:{S_W+3}], s{sC3} offen
        s_mov_b64 exec, -1
        s_branch {u}e
        {u}x:
        buffer_load_dword v{vJ}, v{vC3}, s[{S_X}:{S_X+3}], s{sC3} offen
        s_branch {u}e
        {u}k:
        s_mov_b32 exec_hi, 0
        buffer_load_dword v{vJ}, v{vC3}, s[{S_K}:{S_K+3}], s{sC3} offen
        s_not_b64 exec, exec
        buffer_load_dword v{vJ}, v{vC3}, s[{S_V}:{S_V+3}], s{sC3} offen
        s_mov_b64 exec, -1
        {u}e:
        s_mov_b32 s{sC3m}, 0
        """)
    if C3AT < 0: c3_touch()
    for b in (S_WO, S_Q, S_OUT): srd_const(g, b, SRD_INFO[b][1])
    g.e(f"""
    s_lshr_b32 s{s_wm}, s{s_wave}, 1
    s_and_b32 s{s_wn}, s{s_wave}, 1
    v_and_b32 v{T}, 31, v{l}
    s_lshl_b32 s{t0}, s{s_wm}, 6
    v_add_u32 v{T}, s{t0}, v{T}
    v_lshlrev_b32 v{T}, 7, v{T}
    v_lshrrev_b32 v{T+1}, 1, v{l}
    v_and_b32 v{T+1}, 7, v{T+1}
    v_lshrrev_b32 v{T+2}, 5, v{l}
    v_xor_b32 v{T+1}, v{T+1}, v{T+2}
    """)
    for j in range(4):
        g.e(f"v_xor_b32 v{T+3}, {2*j}, v{T+1}")
        g.e(f"v_lshl_add_u32 v{vA[j]}, v{T+3}, 4, v{T}")
    g.e(f"""
    v_lshrrev_b32 v{T}, 5, v{l}
    v_lshlrev_b32 v{T}, 3, v{T}
    v_and_b32 v{T+1}, 15, v{l}
    v_lshrrev_b32 v{T+1}, 2, v{T+1}
    v_add_u32 v{T}, v{T}, v{T+1}
    v_lshlrev_b32 v{T}, 7, v{T}
    v_lshrrev_b32 v{T+1}, 4, v{l}
    v_and_b32 v{T+1}, 1, v{T+1}
    v_lshlrev_b32 v{T+1}, 1, v{T+1}
    v_and_b32 v{T+2}, 3, v{l}
    v_lshrrev_b32 v{T+2}, 1, v{T+2}
    v_add_u32 v{T+1}, v{T+1}, v{T+2}
    s_lshl_b32 s{t0}, s{s_wn}, 2
    v_add_u32 v{T+1}, s{t0}, v{T+1}
    v_lshrrev_b32 v{T+2}, 3, v{l}
    v_and_b32 v{T+2}, 1, v{T+2}
    v_lshlrev_b32 v{T+2}, 2, v{T+2}
    v_xor_b32 v{T+1}, v{T+1}, v{T+2}
    v_lshl_add_u32 v{T}, v{T+1}, 4, v{T}
    v_and_b32 v{T+1}, 1, v{l}
    v_lshl_add_u32 v{T}, v{T+1}, 3, v{T}
    v_add_u32 v{vB}, {LB}, v{T}
    """)
    for r in range(96):
        g.e(f"v_mov_b32 v{r}, 0")
    g.e(f"""
    s_mov_b32 s64, 16384
    s_mov_b32 s65, -32768
    s_mov_b32 s66, 24576
    s_mov_b32 s67, -49152
    s_mov_b32 s68, 0
    s_mov_b32 s69, 0
    s_waitcnt lgkmcnt(0)
    s_add_u32 s{s_tag}, s{s_tag}, 1
    s_setprio 3
    """)
    s_slot, s_it = 68, 69
    def reads(setb, j):
        A0, A1, Bq, Bk, Bv = setb, setb+4, setb+8, setb+12, setb+16
        def tr(dst, sec, q):
            return f"ds_read_b64_tr_b16 v[{dst+2*q}:{dst+2*q+1}], v{vB} offset:{sec*8192 + j*2048 + q*512}"
        return [
            (f"ds_read_b128 v[{A0}:{A0+3}], v{vA[j]} offset:0", f"A0_{setb}"),
            (tr(Bq, 0, 0), f"Bqa_{setb}"),
            (tr(Bq, 0, 1), f"Bq_{setb}"),
            (f"ds_read_b128 v[{A1}:{A1+3}], v{vA[j]} offset:4096", f"A1_{setb}"),
            (tr(Bk, 1, 0), f"Bka_{setb}"),
            (tr(Bk, 1, 1), f"Bk_{setb}"),
            (tr(Bv, 2, 0), f"Bva_{setb}"),
            (tr(Bv, 2, 1), f"Bv_{setb}"),
        ]
    def mfmas(setb):
        A0, A1, Bq, Bk, Bv = setb, setb+4, setb+8, setb+12, setb+16
        def m(acc, a, b): return f"v_mfma_f32_32x32x16_bf16 v[{acc}:{acc+15}], v[{a}:{a+3}], v[{b}:{b+3}], v[{acc}:{acc+15}]"
        return [
            (m(ACCQ[0], Bq, A0), [f"A0_{setb}", f"Bq_{setb}"]),
            (m(ACCQ[1], Bq, A1), [f"A1_{setb}"]),
            (m(ACCK[0], A0, Bk), [f"Bk_{setb}"]),
            (m(ACCK[1], A1, Bk), []),
            (m(ACCV[0], A0, Bv), [f"Bv_{setb}"]),
            (m(ACCV[1], A1, Bv), []),
        ]
    stamp(g, 1)
    g.e("s_barrier")
    stamp(g, 2)
    stampc(g, 13)
    if C3AT == 0: c3_touch()
    g.lg_reset()
    for asm, tag in reads(P[0], 0): g.lg(asm, tag)
    g.lab("L_g1loop")
    g.lg_reset([t for a, t in reads(P[0], 0)])
    for j in range(4):
        cur, nxt = P[j & 1], P[(j + 1) & 1]
        M = mfmas(cur)
        if j < 3:
            R = reads(nxt, j + 1)
            sched = [2, 2, 2, 2, 0, 0]
            ri = 0
            for mi, (asm, needs) in enumerate(M):
                if needs: g.lg_need(*needs)
                g.e(asm)
                for _ in range(sched[mi]):
                    g.lg(*R[ri]); ri += 1
        else:
            R = reads(nxt, 0)
            for mi in range(2):
                asm, needs = M[mi]
                if needs: g.lg_need(*needs)
                g.e(asm)
            g.e(f"""
            s_add_u32 s{t0}, s{s_slot}, 1
            s_cmp_eq_u32 s{s_slot}, 2
            s_cselect_b32 s{s_slot}, 0, s{t0}
            s_cselect_b32 s{t0}, s65, s64
            s_cselect_b32 s{t1}, s67, s66
            """)
            for jj in range(4): g.e(f"v_add_u32 v{vA[jj]}, s{t0}, v{vA[jj]}")
            g.e(f"v_add_u32 v{vB}, s{t1}, v{vB}")
            g.lg_all()
            if opt("bar"): stamp(g, 16, s_it)
            g.e("s_barrier")
            if opt("bar"): stamp(g, 32, s_it)
            if C3AT > 0:
                g.e(f"s_cmp_lg_u32 s{s_it}, {C3AT-1}")
                g.e(f"s_cbranch_scc1 L_c3skip")
                c3_touch()
                g.lab("L_c3skip")
            ri = 0
            for mi in range(2, 6):
                asm, needs = M[mi]
                if needs: g.lg_need(*needs)
                g.e(asm)
                for _ in range(2):
                    g.lg(*R[ri]); ri += 1
    g.e(f"s_add_u32 s{s_it}, s{s_it}, 1")
    g.e(f"s_cmp_lg_u32 s{s_it}, 16")
    g.e(f"s_cbranch_scc1 L_g1loop")
    g.e("s_waitcnt lgkmcnt(0)")
    stamp(g, 3)
    stampc(g, 14)
    PK, VF, ONES, PQ, TMP, TA = 96, 112, 128, 132, 148, 152
    s_l2e, s_eps = 64, 66
    g.e(f"""
    s_mov_b32 s{s_l2e}, {LOG2E}
    s_mov_b32 s{s_l2e+1}, {LOG2E}
    s_mov_b32 s{s_eps}, {EPS}
    s_mov_b32 s{s_eps+1}, {EPS}
    v_mov_b32 v{ONES}, 0x3f803f80
    v_mov_b32 v{ONES+1}, 0x3f803f80
    v_mov_b32 v{ONES+2}, 0x3f803f80
    v_mov_b32 v{ONES+3}, 0x3f803f80
    v_lshlrev_b32 v{TA}, 4, v{l}
    s_mul_i32 s{t0}, s{s_wn}, 4224
    s_add_u32 s{t0}, s{t0}, {LRED}
    v_add_u32 v{TA+1}, s{t0}, v{TA}
    v_lshrrev_b32 v{TA+2}, 5, v{l}
    v_lshlrev_b32 v{TA+2}, 5, v{TA+2}
    v_and_b32 v{TA+3}, 31, v{l}
    s_nop 3
    """)
    regs = [ACCK[mt] + r for mt in range(2) for r in range(0, 16, 2)]
    outs = [PK + mt*8 + r//2 for mt in range(2) for r in range(0, 16, 2)]
    phi_pairs(g, regs, TMP, s_l2e, s_eps, outs)
    for mt in range(2):
        for r in range(0, 16, 2):
            g.e(f"v_cvt_pk_bf16_f32 v{VF + mt*8 + r//2}, v{ACCV[mt]+r}, v{ACCV[mt]+r+1}")
    KV, Z = 64, 80
    stamp(g, 11)
    g.e("s_nop 1")
    first = True
    for mt in range(2):
        for q2 in range(2):
            a = PK + mt*8 + q2*4; b = VF + mt*8 + q2*4
            c = "0" if first else f"v[{KV}:{KV+15}]"
            g.e(f"v_mfma_f32_32x32x16_bf16 v[{KV}:{KV+15}], v[{a}:{a+3}], v[{b}:{b+3}], {c}")
            c = "0" if first else f"v[{Z}:{Z+15}]"
            g.e(f"v_mfma_f32_32x32x16_bf16 v[{Z}:{Z+15}], v[{a}:{a+3}], v[{ONES}:{ONES+3}], {c}")
            first = False
    g.e(f"""
    s_add_u32 s{t1}, s{t0}, 4096
    v_add_u32 v{TA+4}, s{t1}, v{TA+2}
    v_cmp_eq_u32 vcc, 0, v{TA+3}
    s_mov_b64 s[{t4}:{t4+1}], vcc
    s_nop 7
    s_nop 3
    """)
    stamp(g, 12)
    g.e(f"""
    s_cmp_eq_u32 s{s_wm}, 0
    s_cbranch_scc1 L_red0
    """)
    for q in range(4):
        g.e(f"ds_write_b128 v{TA+1}, v[{KV+4*q}:{KV+4*q+3}] offset:{q*1024}")
    g.e(f"s_mov_b64 exec, s[{t4}:{t4+1}]")
    for q in range(4):
        g.e(f"ds_write_b128 v{TA+4}, v[{Z+4*q}:{Z+4*q+3}] offset:{(q>>1)*64 + (q&1)*16}")
    g.e("s_mov_b64 exec, -1")
    g.e(f"""
    s_lshl_b32 s{t2}, s{s_wn}, 2
    s_add_u32 s{t2}, s{t2}, {LFLAG + 16}
    v_mov_b32 v{TA+5}, s{t2}
    v_mov_b32 v{TA+6}, s{s_tag}
    s_waitcnt lgkmcnt(0)
    ds_write_b32 v{TA+5}, v{TA+6}
    """)
    g.e("s_branch L_phiq")
    g.lab("L_red0")
    g.e(f"""
    s_lshl_b32 s{t2}, s{s_hp}, 4
    s_add_u32 s{t2}, s{t2}, s{s_rb}
    s_mul_i32 s{t2}, s{t2}, {KVP_STRIDE}
    s_add_u32 s{t2}, s{t2}, {WS_KVP}
    s_lshl_b32 s{t3}, s{s_wn}, 11
    s_add_u32 s{t3}, s{t3}, s{t2}
    s_lshl_b32 s{t1}, s{s_wn}, 7
    s_add_u32 s{t2}, s{t2}, s{t1}
    s_add_u32 s{t2}, s{t2}, 4096
    """)
    g.e(f"""
    s_lshl_b32 s{t1}, s{s_wn}, 2
    s_add_u32 s{t1}, s{t1}, {LFLAG + 16}
    v_mov_b32 v{TA+5}, s{t1}
    s_mov_b32 s{t7}, {MAXSPIN*8}
    """)
    g.lab("L_x1")
    g.e(f"""
    ds_read_b32 v{TA+6}, v{TA+5}
    s_waitcnt lgkmcnt(0)
    v_cmp_ne_u32 vcc, s{s_tag}, v{TA+6}
    s_cbranch_vccz L_x1d
    s_sub_u32 s{t7}, s{t7}, 1
    s_cbranch_scc0 L_x1
    """)
    g.lab("L_x1d")
    for q in range(4):
        g.e(f"ds_read_b128 v[{0+32+4*q}:{0+32+4*q+3}], v{TA+1} offset:{q*1024}")
    for q in range(4):
        g.e(f"ds_read_b128 v[{48+4*q}:{48+4*q+3}], v{TA+4} offset:{(q>>1)*64 + (q&1)*16}")
    g.e("s_waitcnt lgkmcnt(4)")
    for r in range(0, 16, 2):
        g.e(f"v_pk_add_f32 v[{KV+r}:{KV+r+1}], v[{KV+r}:{KV+r+1}], v[{32+r}:{32+r+1}]")
    for r in range(0, 16, 2):
        g.e(f"v_cvt_pk_bf16_f32 v{32 + r//2}, v{KV+r}, v{KV+r+1}")
    g.e("s_waitcnt lgkmcnt(0)")
    for q in range(2):
        g.e(f"buffer_store_dwordx4 v[{32+4*q}:{32+4*q+3}], v{TA}, s[{S_WS}:{S_WS+3}], s{t3} offen offset:{q*1024} sc1")
    for r in range(0, 16, 2):
        g.e(f"v_pk_add_f32 v[{Z+r}:{Z+r+1}], v[{Z+r}:{Z+r+1}], v[{48+r}:{48+r+1}]")
    g.e(f"s_mov_b64 exec, s[{t4}:{t4+1}]")
    for q in range(4):
        g.e(f"buffer_store_dwordx4 v[{Z+4*q}:{Z+4*q+3}], v{TA+2}, s[{S_WS}:{S_WS+3}], s{t2} offen offset:{(q>>1)*64 + (q&1)*16} sc1")
    g.e("s_mov_b64 exec, -1")
    g.lab("L_phiq")
    stamp(g, 4)
    regs = [ACCQ[mt] + r for mt in range(2) for r in range(0, 16, 2)]
    outs = [PQ + mt*8 + r//2 for mt in range(2) for r in range(0, 16, 2)]
    phi_pairs(g, regs, TMP, s_l2e, s_eps, outs)
    g.e(f"""
    s_lshl_b32 s{t0}, s{s_wave}, 12
    s_add_u32 s{t0}, s{t0}, {LPQ}
    v_add_u32 v{TA+1}, s{t0}, v{TA}
    """)
    for i in range(4):
        g.e(f"ds_write_b128 v{TA+1}, v[{PQ+4*i}:{PQ+4*i+3}] offset:{i*1024}")
    if opt("nox2"):
        g.e("s_waitcnt lgkmcnt(0)")
        lds_set(g, F_QF, s_wave, TA+5, TA+6)
    g.e(f"""
    s_cmp_lg_u32 s{s_wm}, 0
    s_cbranch_scc1 L_nof2
    s_lshl_b32 s{t0}, s{s_hp}, 7
    s_lshl_b32 s{t1}, s{s_rb}, 3
    s_add_u32 s{t0}, s{t0}, s{t1}
    s_lshl_b32 s{t1}, s{s_wn}, 2
    s_add_u32 s{t0}, s{t0}, s{t1}
    s_add_u32 s{t0}, s{t0}, {WS_F2}
    s_waitcnt vmcnt(0)
    """)
    post_flag(g, t0, TA+5, TA+6)
    g.lab("L_nof2")
    ACC = 0; S = [32, 96]; cA = list(range(160, 168)); cB = 168; T = 170
    g.e(f"""
    v_and_b32 v{T+5}, 15, v{l}
    v_lshrrev_b32 v{T+6}, 4, v{l}
    v_add_u32 v{T+7}, 1, v{T+5}
    v_and_b32 v{T+7}, -2, v{T+7}
    v_lshlrev_b32 v{T+7}, 1, v{T+7}
    v_lshl_add_u32 v{T+7}, v{T+6}, 4, v{T+7}
    v_and_b32 v{T+8}, 1, v{T+5}
    v_xor_b32 v{T+8}, 1, v{T+8}
    v_mul_u32_u24 v{T+8}, 4160, v{T+8}
    v_add_u32 v{T+7}, v{T+7}, v{T+8}
    s_mul_i32 s{t0}, s{s_wave}, {H_STRIDE}
    s_add_u32 s{t0}, s{t0}, {LH + 448}
    v_add_u32 v{cA[0]}, s{t0}, v{T+7}
    """)
    for a in range(1, 8):
        g.e(f"v_add_u32 v{cA[a]}, {512*a}, v{cA[0]}")
    g.e(f"""
    v_lshlrev_b32 v{cB}, 4, v{T+6}
    v_lshlrev_b32 v{T+7}, 5, v{T+5}
    v_sub_u32 v{cB}, v{cB}, v{T+7}
    s_mul_i32 s{t0}, s{s_wave}, {X_STRIDE}
    s_add_u32 s{t0}, s{t0}, {LX + 4512 - 3584}
    v_add_u32 v{cB}, s{t0}, v{cB}
    """)
    for r in range(32): g.e(f"v_mov_b32 v{ACC+r}, 0")
    if opt("wopf", "1") == "1":
        g.e(f"""
        v_lshlrev_b32 v{T+9}, 11, v{l}
        s_lshl_b32 s{t0}, s{s_rb}, 18
        s_lshl_b32 s{t1}, s{s_hp}, 7
        s_add_u32 s{t0}, s{t0}, s{t1}
        s_and_b32 s{t1}, s{s_wave}, 1
        s_lshl_b32 s{t1}, s{t1}, 17
        s_add_u32 s{t0}, s{t0}, s{t1}
        s_cmp_lt_u32 s{s_wave}, 2
        s_cbranch_scc0 L_noqpf
        buffer_load_dword v{vJ}, v{T+9}, s[{S_Q}:{S_Q+3}], s{t0} offen
        """)
        g.lab("L_noqpf")
    wo_dma_setup(g, vWO, T+9)
    g.e("s_waitcnt lgkmcnt(0)")
    stamp(g, 5)
    if opt("nox2"): lds_spin(g, F_X1, 0, T+5, T+6, "x1", sidx=s_wave)
    else: g.e("s_barrier")
    stamp(g, 6)
    g.e("s_setprio 1")
    def creads(sb):
        R = []
        for x in range(8):
            d = sb + 4*x
            R.append(f"ds_read2_b32 v[{d}:{d+1}], v{cA[x]} offset0:0 offset1:1")
            R.append(f"ds_read2_b32 v[{d+2}:{d+3}], v{cA[x]} offset0:2 offset1:3")
            d = sb + 32 + 4*x
            R.append(f"ds_read_b128 v[{d}:{d+3}], v{cB} offset:{512*(7-x)}")
        return R
    def adv():
        for a in range(8): g.e(f"v_subrev_u32 v{cA[a]}, 64, v{cA[a]}")
        g.e(f"v_subrev_u32 v{cB}, 64, v{cB}")
    def cm(sb):
        pairs = [(a, w) for a in range(8) for w in range(8) if a + w <= 7]
        pairs.sort(key=lambda p: (max(p), p[0]))
        M = []
        for a, w in pairs:
            A = sb + 4*a; B = sb + 32 + 4*w; D = ACC + 4*(a + w)
            M.append(f"v_mfma_f32_16x16x32_bf16 v[{D}:{D+3}], v[{A}:{A+3}], v[{B}:{B+3}], v[{D}:{D+3}]")
        return M
    R = creads(S[0])
    for i, asm in enumerate(R):
        g.e(asm)
        if i == 11: g.e("s_waitcnt lgkmcnt(4)")
        if i == 19: g.e("s_waitcnt lgkmcnt(4)")
    adv()
    g.e(f"s_mov_b32 s{s_it}, 4")
    g.lab("L_cloop")
    for half in range(2):
        cur, nxt = S[half], S[1-half]
        g.e("s_waitcnt lgkmcnt(0)")
        M = cm(cur); R = creads(nxt)
        ri = 0
        for mi, asm in enumerate(M):
            g.e(asm)
            if mi < 32 and ri < 24 and (mi % 4 != 3):
                g.e(R[ri]); ri += 1
            if mi == 33: adv()
        assert ri == 24
    g.e(f"s_sub_u32 s{s_it}, s{s_it}, 1")
    g.e(f"s_cmp_lg_u32 s{s_it}, 0")
    g.e(f"s_cbranch_scc1 L_cloop")
    g.e("s_waitcnt lgkmcnt(0)")
    lds_set(g, F_CF, s_wave, T+5, T+6)
    g.e("s_nop 3")
    stamp(g, 7)
    g.e(f"""
    v_and_b32 v{T+5}, 15, v{l}
    v_lshrrev_b32 v{T+6}, 4, v{l}
    v_lshlrev_b32 v{T+5}, 5, v{T+5}
    v_and_b32 v{T+7}, 1, v{T+6}
    v_lshl_add_u32 v{T+5}, v{T+7}, 9, v{T+5}
    v_lshrrev_b32 v{T+6}, 1, v{T+6}
    v_lshl_add_u32 v{T+5}, v{T+6}, 4, v{T+5}
    s_lshl_b32 s{t0}, s{s_hp}, 6
    s_lshl_b32 s{t1}, s{s_rb}, 2
    s_add_u32 s{t0}, s{t0}, s{t1}
    s_add_u32 s{t0}, s{t0}, s{s_wave}
    s_lshl_b32 s{t0}, s{t0}, 12
    s_add_u32 s{t0}, s{t0}, {WS_YT}
    """)
    for cb in range(8):
        d = 32 + 2*cb
        g.e(f"v_cvt_pk_bf16_f32 v{d}, v{ACC+4*cb}, v{ACC+4*cb+1}")
        g.e(f"v_cvt_pk_bf16_f32 v{d+1}, v{ACC+4*cb+2}, v{ACC+4*cb+3}")
    g.e("s_nop 1")
    for cp in range(4):
        d = 32 + 4*cp
        g.e(f"v_permlane16_swap_b32 v{d}, v{d+2}")
        g.e(f"v_permlane16_swap_b32 v{d+1}, v{d+3}")
    g.e("s_nop 1")
    for cp in range(4):
        d = 32 + 4*cp
        g.e(f"buffer_store_dwordx4 v[{d}:{d+3}], v{T+5}, s[{S_WS}:{S_WS+3}], s{t0} offen offset:{1024*cp} sc1")
    ACC2 = [0, 16]; AR = 64; RING = int(opt("g2ring", 32)); PRE2 = int(opt("g2pre", 14))
    BF = [32, 40, 48, 56]
    vAo = [200, 201, 202, 203]; vBn = [204, 205]; T = 208
    s_ab, s_r, s_g = 64, 65, 66
    s_wl, s_wg = 67, 68
    g.e(f"""
    v_and_b32 v{vAo[0]}, 31, v{l}
    v_lshlrev_b32 v{T}, 2, v{vAo[0]}
    v_lshlrev_b32 v{vAo[0]}, 4, v{vAo[0]}
    v_lshrrev_b32 v{T+1}, 5, v{l}
    v_lshl_add_u32 v{vAo[0]}, v{T+1}, 11, v{vAo[0]}
    v_add_u32 v{vAo[1]}, 4096, v{vAo[0]}
    v_add_u32 v{vAo[2]}, 8192, v{vAo[0]}
    v_add_u32 v{vAo[3]}, 12288, v{vAo[0]}
    s_lshl_b32 s{s_ab}, s{s_rb2}, 18
    s_lshl_b32 s{t1}, s{s_wave}, 9
    s_add_u32 s{s_ab}, s{s_ab}, s{t1}
    s_add_u32 s{s_ab}, s{s_ab}, {WS_O}
    s_lshl_b32 s{s_r}, s{s_cb2}, 2
    """)
    if opt("g2rot", "0") != "1": g.e(f"s_mov_b32 s{s_r}, 0")
    TB = T + 4
    g.e(f"""
    v_lshrrev_b32 v{TB}, 5, v{l}
    v_lshlrev_b32 v{TB}, 2, v{TB}
    v_and_b32 v{TB+1}, 15, v{l}
    v_lshrrev_b32 v{TB+1}, 2, v{TB+1}
    v_add_u32 v{TB}, v{TB}, v{TB+1}
    v_lshlrev_b32 v{TB}, 7, v{TB}
    v_lshrrev_b32 v{TB+1}, 4, v{l}
    v_and_b32 v{TB+1}, 1, v{TB+1}
    v_lshlrev_b32 v{TB+1}, 1, v{TB+1}
    v_and_b32 v{TB+2}, 3, v{l}
    v_lshrrev_b32 v{TB+2}, 1, v{TB+2}
    v_add_u32 v{TB+1}, v{TB+1}, v{TB+2}
    v_lshrrev_b32 v{TB+2}, 3, v{l}
    v_and_b32 v{TB+2}, 1, v{TB+2}
    v_lshlrev_b32 v{TB+2}, 2, v{TB+2}
    v_xor_b32 v{TB+1}, v{TB+1}, v{TB+2}
    v_and_b32 v{TB+3}, 1, v{l}
    v_lshl_add_u32 v{TB}, v{TB+3}, 3, v{TB}
    s_lshl_b32 s{t0}, s{s_r}, 11
    v_add_u32 v{TB}, s{t0}, v{TB}
    v_lshl_add_u32 v{vBn[0]}, v{TB+1}, 4, v{TB}
    v_xor_b32 v{TB+1}, 4, v{TB+1}
    v_lshl_add_u32 v{vBn[1]}, v{TB+1}, 4, v{TB}
    s_lshl_b32 s{t0}, s{s_hp}, 8
    s_lshl_b32 s{t1}, s{s_rb}, 4
    s_add_u32 s{t0}, s{t0}, s{t1}
    s_lshl_b32 s{t1}, s{s_wave}, 2
    s_add_u32 s{t0}, s{t0}, s{t1}
    s_add_u32 s{t5}, s{t0}, {WS_F4}
    """)
    W23 = opt("wo23", "g2")
    if W23 == "pre":
        lds_spin(g, F_PF, 7, T+2, T+3, "cf")
        g.e(f"s_lshl_b32 s{t3}, s{s_wave}, 7")
        g.e(f"s_add_u32 s{t3}, s{t3}, 512")
        wo_dma(g, vWO, t3, 4, "wo23")
    g.e(f"s_waitcnt vmcnt({16 if W23 == 'pre' else 0})")
    post_flag(g, t5, T+2, T+3)
    if W23 not in ("pre", "h"):
        lds_spin(g, F_PF, 7, T+2, T+3, "cf")
        g.e(f"""
        s_lshl_b32 s{s_wl}, s{s_wave}, 14
        s_add_u32 s{s_wl}, s{s_wl}, 65536
        s_lshl_b32 s{s_wg}, s{s_wl}, 4
        """)
    stamp(g, 9)
    if opt("pp", "h") == "c":
        post_pass(g, s_wave, 220, l, False, None)
        stamp(g, 21)
    F3F = opt("f3first", "0") == "1"
    if not F3F: lds_spin(g, F_W1, 3, T+2, T+3, "w1")
    g.e(f"""
    s_lshl_b32 s{t1}, s{s_rb2}, 1
    s_lshr_b32 s{t2}, s{s_wave}, 1
    s_add_u32 s{t1}, s{t1}, s{t2}
    s_lshl_b32 s{t1}, s{t1}, 7
    s_add_u32 s{t1}, s{t1}, {WS_F3}
    """)
    def breads(setb, t16):
        R = []
        for nt in range(2):
            for q in range(2):
                d = setb + 4*nt + 2*q
                R.append(f"ds_read_b64_tr_b16 v[{d}:{d+1}], v{vBn[nt]} offset:{2048*t16 + 1024*q}")
        return R
    BD = int(opt("g2bd", 2))
    assert PRE2 < RING and BD <= 3
    if not F3F:
        for u in range(BD):
            for x in breads(BF[u], u): g.e(x)
    poll(g, T, T+1, t1, "pf3")
    stamp(g, 8)
    if W23 == "pre":
        g.e("s_waitcnt lgkmcnt(0)")
        lds_set(g, F_WF, s_wave, T+2, T+3)
    g.vm_reset()
    aidx = {}
    def aload(n):
        if n % 4 == 0:
            g.e(f"s_add_u32 s{s_g}, s{s_r}, {n}")
            g.e(f"s_and_b32 s{s_g}, s{s_g}, 63")
            g.e(f"s_lshl_b32 s{s_g}, s{s_g}, 12")
            g.e(f"s_add_u32 s{s_g}, s{s_g}, s{s_ab}")
        d = AR + 4*(n % RING)
        aidx[n] = g.vm(f"buffer_load_dwordx4 v[{d}:{d+3}], v{vAo[n % 4]}, s[{S_WS}:{S_WS+3}], s{s_g} offen{lsc('a')}")
    def wpiece(i):
        blk, m = i // 4, i % 4
        if m == 0:
            g.e(f"s_add_u32 m0, s{s_wl}, {blk*4096}")
            g.e(f"s_add_u32 s{t1}, s{s_wg}, {blk*32*2048}")
        return g.vm(f"buffer_load_dwordx4 v{vWO+m}, s[{S_WO}:{S_WO+3}], s{t1} offen offset:{m*1024}{ntf('wo')} lds")
    W0 = int(opt("w23at", 0)); WPS = int(opt("w23ps", 2))
    wsched = {}
    if W23 not in ("pre", "h"):
        for i in range(16): wsched.setdefault(W0 + i // WPS, []).append(i)
    wlast = None; wflag_done = (W23 in ("pre", "h"))
    for n in range(PRE2): aload(n)
    if F3F:
        lds_spin(g, F_W1, 3, T+2, T+3, "w1")
        for u in range(BD):
            for x in breads(BF[u], u): g.e(x)
    g.e("s_setprio 3")
    for t in range(64):
        cur = BF[t % 4]
        A = AR + 4*(t % RING)
        rd_out = min(64, t + BD) - (t + 1)
        g.vm_wait(aidx[t])
        g.e(f"s_waitcnt lgkmcnt({4*rd_out})")
        if not wflag_done and wlast is not None and g.vmdone > wlast and max(wsched) < t:
            lds_set(g, F_WF, s_wave, T+2, T+3); wflag_done = True
            assert t < 32 - BD
        tn = t + BD
        if tn == 32:
            assert wflag_done
            lds_spin(g, F_WF, 3, T+2, T+3, "wf")
        if tn < 64 and tn % 4 == 0:
            g.e(f"s_cmp_eq_u32 s{s_r}, {64 - tn}")
            g.e(f"s_cselect_b32 s{t0}, 0xfffe0000, 0")
            if tn == 32: g.e(f"s_add_u32 s{t0}, s{t0}, 0x10000")
            g.e(f"v_add_u32 v{vBn[0]}, s{t0}, v{vBn[0]}")
            g.e(f"v_add_u32 v{vBn[1]}, s{t0}, v{vBn[1]}")
        R = breads(BF[tn % 4], tn & 31) if tn < 64 else ["", "", "", ""]
        c0 = "0" if t == 0 else f"v[{ACC2[0]}:{ACC2[0]+15}]"
        c1 = "0" if t == 0 else f"v[{ACC2[1]}:{ACC2[1]+15}]"
        g.e(f"v_mfma_f32_32x32x16_bf16 v[{ACC2[0]}:{ACC2[0]+15}], v[{cur}:{cur+3}], v[{A}:{A+3}], {c0}")
        g.e(R[0]); g.e(R[1])
        if PRE2 + t < 64: aload(PRE2 + t)
        g.e(f"v_mfma_f32_32x32x16_bf16 v[{ACC2[1]}:{ACC2[1]+15}], v[{cur+4}:{cur+7}], v[{A}:{A+3}], {c1}")
        g.e(R[2]); g.e(R[3])
        for i in wsched.get(t, []): wlast = wpiece(i)
    g.e("s_waitcnt vmcnt(0) lgkmcnt(0)")
    g.e("s_nop 7")
    g.e("s_nop 3")
    stamp(g, 10)
    O = 32
    for nt in range(2):
        for r in range(0, 16, 2):
            g.e(f"v_cvt_pk_bf16_f32 v{O + nt*8 + r//2}, v{ACC2[nt]+r}, v{ACC2[nt]+r+1}")
    g.e("s_nop 1")
    for nt in range(2):
        for p in range(2):
            x = O + nt*8 + 4*p
            g.e(f"v_permlane32_swap_b32 v{x}, v{x+2}")
            g.e(f"v_permlane32_swap_b32 v{x+1}, v{x+3}")
    if opt("fullb"):
        FB = 131072
        g.e(f"""
        v_and_b32 v{T}, 31, v{l}
        v_mul_u32_u24 v{T}, 144, v{T}
        v_lshrrev_b32 v{T+1}, 5, v{l}
        v_lshl_add_u32 v{T}, v{T+1}, 4, v{T}
        s_mul_i32 s{t0}, s{s_wave}, 4608
        s_add_u32 s{t0}, s{t0}, {FB}
        v_add_u32 v{T}, s{t0}, v{T}
        v_lshrrev_b32 v{T+1}, 3, v{l}
        v_and_b32 v{T+2}, 7, v{l}
        v_mul_u32_u24 v{T+3}, 144, v{T+1}
        v_lshl_add_u32 v{T+3}, v{T+2}, 4, v{T+3}
        v_add_u32 v{T+3}, s{t0}, v{T+3}
        """)
        for nt_ in range(2):
            for p in range(2):
                x = O + nt_*8 + 4*p
                g.e(f"ds_write_b128 v{T}, v[{x}:{x+3}] offset:{nt_*64 + p*32}")
        g.e(f"""
        s_lshl_b32 s{t0}, s{s_rb2}, 7
        s_lshl_b32 s{t1}, s{s_wave}, 5
        s_add_u32 s{t0}, s{t0}, s{t1}
        v_add_u32 v{T+4}, s{t0}, v{T+1}
        v_lshlrev_b32 v{T+4}, 12, v{T+4}
        v_lshl_add_u32 v{T+4}, v{T+2}, 4, v{T+4}
        s_lshl_b32 s{t0}, s{s_cb2}, 7
        s_add_u32 s{t0}, s{t0}, 2048
        s_waitcnt lgkmcnt(0)
        """)
        for i in range(4):
            g.e(f"ds_read_b128 v[{O+16+4*i}:{O+16+4*i+3}], v{T+3} offset:{i*8*144}")
        for i in range(4):
            g.e(f"s_waitcnt lgkmcnt({3-i})")
            if 'b' not in opt("noout", ""): g.e(f"buffer_store_dwordx4 v[{O+16+4*i}:{O+16+4*i+3}], v{T+4}, s[{S_OUT}:{S_OUT+3}], s{t0} offen{ostm('b')}")
            if i < 3: g.e(f"s_add_u32 s{t0}, s{t0}, {8*4096}")
    else:
        g.e(f"""
        v_and_b32 v{T}, 31, v{l}
        s_lshl_b32 s{t0}, s{s_rb2}, 7
        s_lshl_b32 s{t1}, s{s_wave}, 5
        s_add_u32 s{t0}, s{t0}, s{t1}
        v_add_u32 v{T}, s{t0}, v{T}
        v_lshlrev_b32 v{T}, 12, v{T}
        v_lshrrev_b32 v{T+1}, 5, v{l}
        v_lshl_add_u32 v{T}, v{T+1}, 4, v{T}
        s_lshl_b32 s{t0}, s{s_cb2}, 7
        s_add_u32 s{t0}, s{t0}, 2048
        """)
        for nt_ in range(2):
            for p in range(2):
                x = O + nt_*8 + 4*p
                if 'b' not in opt("noout", ""): g.e(f"buffer_store_dwordx4 v[{x}:{x+3}], v{T}, s[{S_OUT}:{S_OUT+3}], s{t0} offen offset:{nt_*64 + p*32}{ostm('b')}")
    g.e(f"""
    s_or_b32 s{t0}, s2, s{s_wave}
    s_cmp_lg_u32 s{t0}, 0
    s_cbranch_scc1 L_noep
    s_mov_b32 s{t0}, {WS_EPOCH}
    """)
    post_flag(g, t0, T+2, T+3)
    g.lab("L_noep")
    g.e("s_waitcnt vmcnt(0)")
    flush_stamps(g, 'c')
    g.e("s_endpgm")

def gen_helper(g):
    g.lab("L_helper")
    l = vL
    s_hw = 69
    T = 2
    g.e(f"""
    s_setprio 3
    s_sub_u32 s{s_hw}, s{s_wave}, 4
    s_lshr_b32 s{s_wm}, s{s_hw}, 1
    s_and_b32 s{s_wn}, s{s_hw}, 1
    v_and_b32 v{T}, 31, v{l}
    v_lshlrev_b32 v{T}, 2, v{T}
    s_lshl_b32 s{t1}, s{s_hp}, 7
    s_add_u32 s{t1}, s{t1}, {WS_F2}
    v_lshlrev_b32 v{T+2}, 4, v{l}
    v_and_b32 v{T+3}, 15, v{l}
    v_lshlrev_b32 v{T+3}, 2, v{T+3}
    v_lshrrev_b32 v{T+4}, 4, v{l}
    v_mul_u32_u24 v{T+4}, {KVP_STRIDE}, v{T+4}
    v_add_u32 v{T+3}, v{T+3}, v{T+4}
    s_lshl_b32 s{t2}, s{s_hp}, 4
    s_mul_i32 s{t2}, s{t2}, {KVP_STRIDE}
    s_add_u32 s{t2}, s{t2}, {WS_KVP}
    s_lshl_b32 s{t3}, s{s_hw}, 10
    s_add_u32 s{t3}, s{t3}, s{t2}
    s_lshl_b32 s{t4}, s{s_hw}, 6
    s_add_u32 s{t4}, s{t4}, s{t2}
    s_add_u32 s{t4}, s{t4}, 4096
    """)
    WO1 = opt("wo01", "post")
    if WO1 in ("x2", "x1"):
        nb = 4 if WO1 == "x2" else 2
        g.e(f"s_lshl_b32 s{t5}, s{s_hw}, 7")
        if WO1 == "x1": g.e(f"s_add_u32 s{t5}, s{t5}, 64")
        wo_dma(g, vWO, t5, nb, "wo01")
        g.e(f"""
        s_lshl_b32 s{t1}, s{s_hp}, 7
        s_add_u32 s{t1}, s{t1}, {WS_F2}
        s_lshl_b32 s{t2}, s{s_hp}, 4
        s_mul_i32 s{t2}, s{t2}, {KVP_STRIDE}
        s_add_u32 s{t2}, s{t2}, {WS_KVP}
        """)
    if opt("arr"):
        PB = 32; ZB = 160; PQ = 200; SA, UT = 96, 104
        s_pend, s_infl, s_land, s_new, s_spin = 64, 65, 66, 67, 68
        if opt("nox2"): lds_spin(g, F_QF, 0, T+5, T+6, "qf", sidx=s_hw)
        g.e(f"buffer_load_dword v{T+1}, v{T}, s[{S_WS}:{S_WS+3}], s{t1} offen sc1")
        g.e(f"""
        s_lshl_b32 s{t0}, s{s_hw}, 12
        s_add_u32 s{t0}, s{t0}, {LPQ}
        v_add_u32 v{T+5}, s{t0}, v{T+2}
        """)
        for i in range(4):
            g.e(f"ds_read_b128 v[{PQ+4*i}:{PQ+4*i+3}], v{T+5} offset:{i*1024}")
        for u in range(8): g.e(f"v_mov_b32 v{SA+u}, 0")
        g.e(f"""
        s_mov_b32 s{s_pend}, 0x55555555
        s_mov_b32 s{s_infl}, 0
        s_mov_b32 s{s_spin}, {MAXSPIN}
        s_waitcnt lgkmcnt(0)
        """)
        lds_set(g, F_PF, s_hw, T+6, T+7)
        stamp(g, 8)
        LP = g.newlabel("arr"); LS = g.newlabel("arrs"); LZ = g.newlabel("arrz"); LN = g.newlabel("arrn")
        g.lab(LP)
        g.e(f"""
        s_waitcnt vmcnt(0)
        s_mov_b32 s{s_land}, s{s_infl}
        s_mov_b32 s{s_infl}, 0
        s_cmp_eq_u32 s{s_pend}, 0
        s_cbranch_scc1 {LS}
        v_cmp_eq_u32 vcc, s{s_tag}, v{T+1}
        s_lshr_b32 s{s_new}, vcc_lo, s{s_wm}
        s_and_b32 s{s_new}, s{s_new}, s{s_pend}
        s_sub_u32 s{s_spin}, s{s_spin}, 1
        s_cselect_b32 s{s_new}, s{s_pend}, s{s_new}
        s_andn2_b32 s{s_pend}, s{s_pend}, s{s_new}
        s_mov_b32 s{s_infl}, s{s_new}
        """)
        for r in range(16):
            sk = g.newlabel("ai")
            d = PB + 4*r
            g.e(f"s_bitcmp1_b32 s{s_new}, {2*r}")
            g.e(f"s_cbranch_scc0 {sk}")
            g.e(f"s_add_u32 s{t0}, s{t3}, {r*KVP_STRIDE}")
            g.e(f"buffer_load_dwordx4 v[{d}:{d+3}], v{T+2}, s[{S_WS}:{S_WS+3}], s{t0} offen{lsc('p')}")
            g.lab(sk)
        g.e(f"s_cmp_eq_u32 s{s_pend}, 0")
        g.e(f"s_cbranch_scc1 {LZ}")
        g.e(f"buffer_load_dword v{T+1}, v{T}, s[{S_WS}:{S_WS+3}], s{t1} offen sc1")
        g.e(f"s_branch {LS}")
        g.lab(LZ)
        for u in range(4):
            g.e(f"s_add_u32 s{t0}, s{t4}, {4*u*KVP_STRIDE}")
            g.e(f"buffer_load_dword v{ZB+u}, v{T+3}, s[{S_WS}:{S_WS+3}], s{t0} offen{lsc('p')}")
        stamp(g, 9)
        g.lab(LS)
        for r in range(16):
            sk = g.newlabel("as")
            d = PB + 4*r
            g.e(f"s_bitcmp1_b32 s{s_land}, {2*r}")
            g.e(f"s_cbranch_scc0 {sk}")
            for u in range(4):
                o = UT + 2*u
                g.e(f"v_lshlrev_b32 v{o}, 16, v{d+u}")
                g.e(f"v_and_b32 v{o+1}, 0xffff0000, v{d+u}")
            for u in range(4):
                o = UT + 2*u
                g.e(f"v_pk_add_f32 v[{SA+2*u}:{SA+2*u+1}], v[{SA+2*u}:{SA+2*u+1}], v[{o}:{o+1}]")
            g.lab(sk)
        g.e(f"s_or_b32 s{s_new}, s{s_infl}, s{s_pend}")
        g.e(f"s_cmp_lg_u32 s{s_new}, 0")
        g.e(f"s_cbranch_scc1 {LP}")
        g.e(f"v_add_f32 v{ZB}, v{ZB}, v{ZB+1}")
        g.e(f"v_add_f32 v{ZB+2}, v{ZB+2}, v{ZB+3}")
        g.e(f"v_add_f32 v{ZB}, v{ZB}, v{ZB+2}")
        g.e(f"v_mov_b32 v{ZB+1}, v{ZB}")
        g.e("s_nop 1")
        g.e(f"v_permlane32_swap_b32 v{ZB}, v{ZB+1}")
        g.e("s_nop 1")
        g.e(f"v_add_f32 v{ZB}, v{ZB}, v{ZB+1}")
        g.e(f"v_mov_b32 v{ZB+1}, v{ZB}")
        g.e("s_nop 1")
        g.e(f"v_permlane16_swap_b32 v{ZB}, v{ZB+1}")
        g.e("s_nop 1")
        g.e(f"v_add_f32 v{ZB}, v{ZB}, v{ZB+1}")
    else:
        stamp(g, 8)
        poll(g, T, T+1, t1, "pf2")
        stamp(g, 9)
        if WO1 in ("x2", "x1"): lds_set(g, F_W1, s_hw, T+5, T+6)
        PB = 32; ZB = 160
        PROT = opt("prot", "1") == "1"
        s_pi, s_po = 64, 65
        if PROT:
            g.e(f"""
            s_and_b32 s{s_pi}, s{s_rb}, 7
            s_lshl_b32 s{s_pi}, s{s_pi}, 1
            """)
        else:
            g.e(f"s_mov_b32 s{s_pi}, 0")
        for r in range(16):
            d = PB + 4*r
            g.e(f"s_mul_i32 s{s_po}, s{s_pi}, {KVP_STRIDE}")
            g.e(f"s_add_u32 s{t0}, s{t3}, s{s_po}")
            g.e(f"buffer_load_dwordx4 v[{d}:{d+3}], v{T+2}, s[{S_WS}:{S_WS+3}], s{t0} offen{lsc('p')}")
            if r == 0:
                for u in range(4):
                    g.e(f"s_add_u32 s{t1}, s{t4}, {4*u*KVP_STRIDE}")
                    g.e(f"buffer_load_dword v{ZB+u}, v{T+3}, s[{S_WS}:{S_WS+3}], s{t1} offen{lsc('p')}")
            if r < 15:
                g.e(f"s_add_u32 s{s_pi}, s{s_pi}, 1")
                g.e(f"s_and_b32 s{s_pi}, s{s_pi}, 15")
        XE = 0
        WIL = [int(x) for x in opt("wil", "").split("+") if x != ""]
        if WO1 == "early" and not WIL:
            g.e(f"s_lshl_b32 s{t5}, s{s_hw}, 7")
            wo_dma(g, vWO, t5, 4, "wo01e"); XE += 16
        if WO1 == "early" and WIL:
            g.e(f"s_lshl_b32 s{t5}, s{s_hw}, 14")
            g.e(f"s_lshl_b32 s{t4}, s{s_hw}, 18")
        if opt("qe"):
            q_early(g, s_hw, l); XE += 4
        PQ = 200
        if opt("nox2"): lds_spin(g, F_QF, 0, T+5, T+6, "qf", sidx=s_hw)
        g.e(f"""
        s_lshl_b32 s{t0}, s{s_hw}, 12
        s_add_u32 s{t0}, s{t0}, {LPQ}
        v_add_u32 v{T+5}, s{t0}, v{T+2}
        """)
        for i in range(4):
            g.e(f"ds_read_b128 v[{PQ+4*i}:{PQ+4*i+3}], v{T+5} offset:{i*1024}")
        g.e("s_waitcnt lgkmcnt(0)")
        lds_set(g, F_PF, s_hw, T+6, T+7)
        stamp(g, 48)
        SA, UT = 96, 104
        for r in range(16):
            g.e(f"s_waitcnt vmcnt({(15-r if r else 19) + XE})")
            if r in (0, 8, 15): stamp(g, 49 + (r + 1)//8)
            d = PB + 4*r
            for u in range(4):
                o = SA + 2*u if r == 0 else UT + 2*((4*r + u) % 4)
                g.e(f"v_lshlrev_b32 v{o}, 16, v{d+u}")
                g.e(f"v_and_b32 v{o+1}, 0xffff0000, v{d+u}")
            if r > 0:
                for u in range(4):
                    o = UT + 2*((4*r + u) % 4)
                    g.e(f"v_pk_add_f32 v[{SA+2*u}:{SA+2*u+1}], v[{SA+2*u}:{SA+2*u+1}], v[{o}:{o+1}]")
            if WO1 == "early":
                for b in [i for i, rr in enumerate(WIL) if rr == r]:
                    g.e(f"s_add_u32 m0, s{t5}, {b*4096}")
                    g.e(f"s_add_u32 s{t1}, s{t4}, {b*32*2048}")
                    for m in range(4):
                        g.e(f"buffer_load_dwordx4 v{vWO+m}, s[{S_WO}:{S_WO+3}], s{t1} offen offset:{m*1024}{ntf('wo')} lds")
                    XE += 4
            if r == 1:
                g.e(f"v_add_f32 v{ZB}, v{ZB}, v{ZB+1}")
                g.e(f"v_add_f32 v{ZB+2}, v{ZB+2}, v{ZB+3}")
                g.e(f"v_add_f32 v{ZB}, v{ZB}, v{ZB+2}")
                g.e(f"v_mov_b32 v{ZB+1}, v{ZB}")
                g.e("s_nop 1")
                g.e(f"v_permlane32_swap_b32 v{ZB}, v{ZB+1}")
                g.e("s_nop 1")
                g.e(f"v_add_f32 v{ZB}, v{ZB}, v{ZB+1}")
                g.e(f"v_mov_b32 v{ZB+1}, v{ZB}")
                g.e("s_nop 1")
                g.e(f"v_permlane16_swap_b32 v{ZB}, v{ZB+1}")
                g.e("s_nop 1")
                g.e(f"v_add_f32 v{ZB}, v{ZB}, v{ZB+1}")
    KX = 180
    for u in range(0, 8, 2):
        g.e(f"v_cvt_pk_bf16_f32 v{KX+u//2}, v{SA+u}, v{SA+u+1}")
    g.e(f"v_cvt_pk_bf16_f32 v{ZB}, v{ZB}, v{ZB}")
    g.e(f"""
    s_lshl_b32 s{t0}, s{s_hw}, 10
    s_add_u32 s{t0}, s{t0}, {LKVX}
    v_add_u32 v{T+5}, s{t0}, v{T+2}
    ds_write_b128 v{T+5}, v[{KX}:{KX+3}]
    s_lshl_b32 s{t0}, s{s_hw}, 5
    s_add_u32 s{t0}, s{t0}, {LZX}
    v_lshlrev_b32 v{T+6}, 1, v{l}
    v_add_u32 v{T+6}, s{t0}, v{T+6}
    s_mov_b64 exec, 0xffff
    ds_write_b16 v{T+6}, v{ZB}
    s_mov_b64 exec, 1
    s_lshl_b32 s{t0}, s{s_hw}, 2
    s_add_u32 s{t0}, s{t0}, {LFLAG}
    v_mov_b32 v{T+6}, s{t0}
    v_mov_b32 v{T+7}, s{s_tag}
    s_waitcnt lgkmcnt(0)
    ds_write_b32 v{T+6}, v{T+7}
    s_mov_b64 exec, -1
    v_mov_b32 v{T+6}, {LFLAG}
    v_and_b32 v{T+7}, 3, v{l}
    v_lshl_add_u32 v{T+6}, v{T+7}, 2, v{T+6}
    s_mov_b32 s{t7}, {MAXSPIN*8}
    """)
    g.lab("L_hsync")
    g.e(f"""
    ds_read_b32 v{T+7}, v{T+6}
    s_waitcnt lgkmcnt(0)
    v_cmp_ne_u32 vcc, s{s_tag}, v{T+7}
    s_cbranch_vccz L_hsyncd
    s_sub_u32 s{t7}, s{t7}, 1
    s_cbranch_scc0 L_hsync
    """)
    g.lab("L_hsyncd")
    stamp(g, 10)
    KF = 184; ZF = 192
    g.e(f"""
    s_lshl_b32 s{t0}, s{s_wn}, 11
    s_add_u32 s{t0}, s{t0}, {LKVX}
    v_add_u32 v{T+5}, s{t0}, v{T+2}
    ds_read_b128 v[{KF}:{KF+3}], v{T+5}
    ds_read_b128 v[{KF+4}:{KF+7}], v{T+5} offset:1024
    s_lshl_b32 s{t0}, s{s_wn}, 6
    s_add_u32 s{t0}, s{t0}, {LZX}
    v_lshrrev_b32 v{T+6}, 5, v{l}
    v_lshlrev_b32 v{T+6}, 4, v{T+6}
    v_add_u32 v{T+6}, s{t0}, v{T+6}
    ds_read_b128 v[{ZF}:{ZF+3}], v{T+6}
    ds_read_b128 v[{ZF+4}:{ZF+7}], v{T+6} offset:32
    s_waitcnt lgkmcnt(0)
    """)
    NUM = [48, 64]; DEN = [80, 96]
    for mt in range(2):
        for q2 in range(2):
            a = KF + 4*q2; z = ZF + 4*q2; b = PQ + mt*8 + q2*4
            c = "0" if q2 == 0 else f"v[{NUM[mt]}:{NUM[mt]+15}]"
            g.e(f"v_mfma_f32_32x32x16_bf16 v[{NUM[mt]}:{NUM[mt]+15}], v[{a}:{a+3}], v[{b}:{b+3}], {c}")
            c = "0" if q2 == 0 else f"v[{DEN[mt]}:{DEN[mt]+15}]"
            g.e(f"v_mfma_f32_32x32x16_bf16 v[{DEN[mt]}:{DEN[mt]+15}], v[{z}:{z+3}], v[{b}:{b+3}], {c}")
    g.e(f"""
    s_lshl_b32 s{t2}, s{s_rb}, 18
    s_lshl_b32 s{t0}, s{s_hp}, 1
    s_add_u32 s{t0}, s{t0}, s{s_wn}
    s_lshl_b32 s{t0}, s{t0}, 13
    s_add_u32 s{t2}, s{t2}, s{t0}
    s_lshl_b32 s{t0}, s{s_wm}, 10
    s_add_u32 s{t2}, s{t2}, s{t0}
    s_add_u32 s{t2}, s{t2}, {WS_O}
    v_and_b32 v{T+5}, 31, v{l}
    v_lshlrev_b32 v{T+5}, 4, v{T+5}
    v_lshrrev_b32 v{T+6}, 5, v{l}
    v_lshl_add_u32 v{T+5}, v{T+6}, 11, v{T+5}
    s_mov_b32 s{t3}, {EPS}
    s_nop 7
    """)
    for mt in range(2):
        g.e(f"v_add_f32 v{DEN[mt]}, s{t3}, v{DEN[mt]}")
    for mt in range(2):
        g.e(f"v_rcp_f32 v{DEN[mt]}, v{DEN[mt]}")
    g.e("s_nop 1")
    OUT = 112
    for mt in range(2):
        for r in range(0, 16, 2):
            g.e(f"v_mul_f32 v{NUM[mt]+r}, v{NUM[mt]+r}, v{DEN[mt]}")
            g.e(f"v_mul_f32 v{NUM[mt]+r+1}, v{NUM[mt]+r+1}, v{DEN[mt]}")
            g.e(f"v_cvt_pk_bf16_f32 v{OUT + mt*8 + r//2}, v{NUM[mt]+r}, v{NUM[mt]+r+1}")
        for q2 in range(2):
            d = OUT + mt*8 + q2*4
            g.e(f"s_add_u32 s{t0}, s{t2}, {q2*4096 + mt*512}")
            g.e(f"buffer_store_dwordx4 v[{d}:{d+3}], v{T+5}, s[{S_WS}:{S_WS+3}], s{t0} offen sc1")
    g.e(f"""
    s_lshl_b32 s{t0}, s{s_rb}, 1
    s_add_u32 s{t0}, s{t0}, s{s_wm}
    s_lshl_b32 s{t0}, s{t0}, 7
    s_lshl_b32 s{t1}, s{s_hp}, 3
    s_add_u32 s{t0}, s{t0}, s{t1}
    s_lshl_b32 s{t1}, s{s_wn}, 2
    s_add_u32 s{t0}, s{t0}, s{t1}
    s_add_u32 s{t4}, s{t0}, {WS_F3}
    s_lshl_b32 s{t3}, s{s_hw}, 7
    """)
    if WO1 == "early":
        g.e("s_waitcnt vmcnt(0)")
        post_flag(g, t4, T+6, T+7)
        lds_set(g, F_W1, s_hw, T+6, T+7)
        stamp(g, 11)
        if opt("wo23") == "h":
            lds_spin(g, F_PF, 7, T+6, T+7, "cfh")
            g.e(f"s_lshl_b32 s{t3}, s{s_hw}, 7")
            g.e(f"s_add_u32 s{t3}, s{t3}, 512")
            wo_dma(g, vWO, t3, 4, "wo23h")
    elif WO1 in ("x2", "x1"):
        g.e("s_waitcnt vmcnt(0)")
        post_flag(g, t4, T+6, T+7)
        stamp(g, 11)
    elif opt("wo01", "post") == "mid":
        wo_dma(g, vWO, t3, 4, "wo01")
        g.e("s_waitcnt vmcnt(16)")
        post_flag(g, t4, T+6, T+7)
        stamp(g, 11)
        g.e("s_waitcnt vmcnt(1)")
    else:
        g.e("s_waitcnt vmcnt(0)")
        post_flag(g, t4, T+6, T+7)
        stamp(g, 11)
        wo_dma(g, vWO, t3, 4, "wo01")
    if opt("pp", "h") == "h":
        post_pass(g, s_hw, T, l, True, WO1)
    else:
        if WO1 not in ("x2", "x1"):
            g.e("s_waitcnt vmcnt(0)")
            lds_set(g, F_W1, s_hw, T+6, T+7)
        stamp(g, 12)
    g.e("s_waitcnt vmcnt(0)")
    flush_stamps(g, 'h')
    g.lab("L_end")
    g.e("s_endpgm")

HDR = open("concat_heads__ssm_conv_h3__linear_attn_block__prompt.s.ref").read().split("; Override")[0]
def full():
    g = G()
    g.L.append(khead(NAME))
    gen_entry(g)
    gen_hyb(g)
    gen_compute(g)
    gen_helper(g)
    s = HDR
    s += f"; @launch grid=(256,1,1) block=(512,1,1) lds={LDS_TOTAL}\n"
    s += '.amdgcn_target "amdgcn-amd-amdhsa--gfx950"\n.text\n'
    s += g.text() + kdesc(NAME, 256)
    return s
if __name__ == "__main__":
    if "--prof" in sys.argv:
        PROF = True; sys.argv.remove("--prof")
    for a in list(sys.argv):
        if a.startswith("--opt="):
            for kv in a[6:].split(","):
                k, v = kv.split("="); OPT[k] = v
            sys.argv.remove(a)
    for a in list(sys.argv):
        if a.startswith("--nt="):
            NT = set(a[5:].split(",")); sys.argv.remove(a)
    out = sys.argv[1] if len(sys.argv) > 1 else "v7.s"
    open(out, "w").write(full())
    print("wrote", out)
```
